```python
import torch

def _softmax(x, axis=-1):
    return torch.softmax(x, dim=axis)
def _gelu(x):
    return torch.nn.functional.gelu(x, approximate="tanh")
def _silu(x):
    return torch.nn.functional.silu(x)
def _sigmoid(x):
    return torch.sigmoid(x)
def _layernorm(x, axis=-1, eps=1e-5):
    m = x.mean(dim=axis, keepdim=True)
    v = x.var(dim=axis, keepdim=True, unbiased=False)
    return (x - m) / torch.sqrt(v + eps)
def _scatter_add(tgt, idx, src, axis=0):
    return tgt.clone().index_add_(axis, idx, src)
def _segment_sum(src, seg, n):
    out = torch.zeros((n,) + src.shape[1:], dtype=src.dtype)
    return out.index_add_(0, seg, src)
def _pad(x, pw):
    flat = tuple(v for pair in reversed(pw) for v in pair)
    return torch.nn.functional.pad(x, flat)

kernel_name = 'sequential_preLN__compressed_kv_cla__dense_activation_relu__decode'

def setup_inputs():

    _w = (lambda a: (lambda t: t.to(torch.bfloat16) if t.is_floating_point() else t)(torch.as_tensor(a)))
    def _A_setup():
        B, H, Sq, Sk, D, M = 1, 32, 1, 8192, 128, 640
        Dc = 4 * D
        return {
            "x": _w((lambda *s: torch.randn(*s, dtype=torch.bfloat16) * 0.05)(B, Sq, M)),
            "c_kv": _w((lambda *s: torch.randn(*s, dtype=torch.bfloat16) * 0.4)(B, Sk, Dc)),
            "w_q": _w((lambda *s: torch.randn(*s, dtype=torch.bfloat16) * 3.2)(M, H, D) * (M ** -0.5)),
            "w_uk": _w((lambda *s: torch.randn(*s, dtype=torch.bfloat16) * 3.2)(Dc, H, D) * (Dc ** -0.5)),
            "w_uv": _w((lambda *s: torch.randn(*s, dtype=torch.bfloat16) * 0.4)(Dc, H, D) * (Dc ** -0.5)),
            "w_o": _w((lambda *s: torch.randn(*s, dtype=torch.bfloat16) * 0.4)(H, D, M) * ((H * D) ** -0.5)),
        }
    _A_in = _A_setup()

    def _B_setup():
        B, S, D, Dff = 1, 1, 640, 1728
        return {
            "x": _w((lambda *s: torch.randn(*s, dtype=torch.bfloat16) * 0.05)(B, S, D)),
            "w1": _w((lambda *s: torch.randn(*s, dtype=torch.bfloat16) * 0.05)(D, Dff)),
            "w2": _w((lambda *s: torch.randn(*s, dtype=torch.bfloat16) * 0.05)(Dff, D)),
        }
    _B_in = _B_setup()

    return {
        "A_x": _A_in["x"],
        "A_c_kv": _A_in["c_kv"],
        "A_w_q": _A_in["w_q"],
        "A_w_uk": _A_in["w_uk"],
        "A_w_uv": _A_in["w_uv"],
        "A_w_o": _A_in["w_o"],
        "B_x": _B_in["x"],
        "B_w1": _B_in["w1"],
        "B_w2": _B_in["w2"],
    }

def reference(A_x, A_c_kv, A_w_q, A_w_uk, A_w_uv, A_w_o, B_x, B_w1, B_w2):
    def _A_ref(x, c_kv, w_q, w_uk, w_uv, w_o):
        B, Sq, M = x.shape[0], x.shape[1], x.shape[2]
        Sk = c_kv.shape[1]
        H, D = w_q.shape[1], w_q.shape[2]
        q = torch.einsum("bqm,mhd->bhqd", x, w_q)
        k = torch.einsum("bkc,chd->bhkd", c_kv, w_uk)
        v = torch.einsum("bkc,chd->bhkd", c_kv, w_uv)
        scores = torch.einsum("bhqd,bhkd->bhqk", q, k) * (D ** -0.5)
        off = Sk - Sq
        qi = torch.arange(Sq)[:, None]
        kj = torch.arange(Sk)[None, :]
        cmask = kj <= (qi + off)
        scores = torch.where(cmask[None, None], scores, -1e9)
        p = _softmax(scores, axis=-1)
        ctx = torch.einsum("bhqk,bhkd->bhqd", p, v)
        return torch.einsum("bhqd,hdm->bqm", ctx, w_o)

    def _B_ref(x, w1, w2):
        h = torch.einsum("bsd,df->bsf", x, w1)
        zero = torch.zeros_like(h)
        h = torch.maximum(h, zero)
        return torch.einsum("bsf,fd->bsd", h, w2)

    x = A_x
    h = x + _A_ref(_layernorm(x, axis=-1), A_c_kv, A_w_q, A_w_uk, A_w_uv, A_w_o)
    h2 = h + _B_ref(_layernorm(h, axis=-1), B_w1, B_w2)
    return h2
```

```python
import sys

KN = "sequential_preLN__compressed_kv_cla__dense_activation_relu__decode_kernel"

Q1 = 0x000000
QA = 0x020000
PB = 0x028000
PS = 0x0A8000
OB = 0x0B8000
OS = 0x2B8000
EB = 0x2BA000
HB = 0x35A000
FB = 0x35B000
WEND = 0x3A1000
INIT_PER_WG = WEND // 256
assert INIT_PER_WG * 256 == WEND and INIT_PER_WG % 16 == 0
STAMP = 0x400000
WS_RECORDS = 0x400000 + 768 * 128

SPIN_LIMIT = 200000
LOG2E = 0x3fb8aa3b
SCALE = 0x3db504f3


class Gen:
    def __init__(self, stamps=False, opts=None):
        self.o = []
        self.nl = 0
        self.stamps = stamps
        self.opts = opts or {}

    def e(self, s):
        for line in s.strip("\n").split("\n"):
            self.o.append("  " + line.strip())

    def label(self, name):
        self.o.append(name + ":")

    def newlabel(self, base):
        self.nl += 1
        return f"L_{base}_{self.nl}"

    def srd(self, d, ptr, nbytes):
        self.e(f"""s_mov_b32 s{d}, s{ptr}
s_and_b32 s{d+1}, s{ptr+1}, 0xffff
s_mov_b32 s{d+2}, {nbytes}
s_mov_b32 s{d+3}, 0x00020000""")

    def stamp(self, idx):
        if not self.stamps:
            return
        l = self.newlabel("st")
        self.e(f"""s_cmp_lg_u32 s7, 0
s_cbranch_scc1 {l}
s_memrealtime s[90:91]
s_waitcnt lgkmcnt(0)
v_mov_b32 v160, s90
v_mov_b32 v161, 0
s_lshl_b32 s92, s2, 7
s_add_u32 s92, s92, {STAMP + idx * 4}
buffer_store_dword v160, v161, s[40:43], s92 offen""")
        self.label(l)

    def wave_sum(self, v, sd, op="add"):
        ins = "v_add_f32_dpp" if op == "add" else "v_max_f32_dpp"
        for sh in (1, 2, 4, 8):
            self.e(f"s_nop 1\n{ins} v{v}, v{v}, v{v} row_shr:{sh} row_mask:0xf bank_mask:0xf bound_ctrl:0")
        self.e(f"s_nop 1\n{ins} v{v}, v{v}, v{v} row_bcast:15 row_mask:0xa bank_mask:0xf")
        self.e(f"s_nop 1\n{ins} v{v}, v{v}, v{v} row_bcast:31 row_mask:0xc bank_mask:0xf")
        self.e(f"s_nop 1\nv_readlane_b32 s{sd}, v{v}, 63\ns_nop 1")

    def wait_flags(self, vt, vl4):
        l = self.newlabel("fl")
        d = self.newlabel("fld")
        self.e("s_mov_b32 s60, 0\ns_mov_b32 s61, 0x01010101")
        self.label(l)
        self.e(f"""buffer_load_dword v{vt}, v{vl4}, s[56:59], 0 offen sc1
s_add_u32 s60, s60, 1
s_waitcnt vmcnt(0)
v_cmp_ne_u32 vcc, s61, v{vt}
s_cmp_eq_u64 vcc, 0
s_cbranch_scc1 {d}
s_cmp_lt_u32 s60, {SPIN_LIMIT}
s_cbranch_scc1 {l}""")
        self.label(d)

    def poll(self, loads, vacc, pre=""):
        l = self.newlabel("pl")
        d = self.newlabel("pld")
        self.e("s_mov_b32 s60, 0")
        self.label(l)
        for ins in loads:
            self.e(ins[0])
        self.e("s_add_u32 s60, s60, 1\ns_waitcnt vmcnt(0)")
        regs = []
        for ins in loads:
            regs += list(range(ins[1], ins[1] + ins[2]))
        first = True
        i = 0
        while i < len(regs):
            if first:
                if len(regs) - i >= 3:
                    self.e(f"v_max3_u32 v{vacc}, v{regs[i]}, v{regs[i+1]}, v{regs[i+2]}")
                    i += 3
                elif len(regs) - i == 2:
                    self.e(f"v_max_u32 v{vacc}, v{regs[i]}, v{regs[i+1]}")
                    i += 2
                else:
                    self.e(f"v_mov_b32 v{vacc}, v{regs[i]}")
                    i += 1
                first = False
            else:
                if len(regs) - i >= 2:
                    self.e(f"v_max3_u32 v{vacc}, v{vacc}, v{regs[i]}, v{regs[i+1]}")
                    i += 2
                else:
                    self.e(f"v_max_u32 v{vacc}, v{vacc}, v{regs[i]}")
                    i += 1
        self.e(f"""v_cmp_eq_u32 vcc, -1, v{vacc}
s_cmp_eq_u64 vcc, 0
s_cbranch_scc1 {d}
s_cmp_lt_u32 s60, {SPIN_LIMIT}
s_cbranch_scc1 {l}""")
        self.label(d)

    def masks(self, m0, vi, vt, lo_rows):
        self.e(f"""v_and_b32 v{vt}, 1, v{vi}
v_cmp_eq_u32 vcc, 1, v{vt}
v_mov_b32 v{vt}, 0x0000ffff
v_mov_b32 v{vt+1}, 0xffff0000
v_cndmask_b32 v{vt}, v{vt}, v{vt+1}, vcc""")
        if lo_rows:
            self.e(f"v_bfe_u32 v{vt+1}, v{vi}, 1, 2")
        else:
            self.e(f"v_lshrrev_b32 v{vt+1}, 1, v{vi}")
        for r in range(4):
            self.e(f"""v_cmp_eq_u32 vcc, {r}, v{vt+1}
s_nop 1
v_cndmask_b32 v{m0+r}, 0, v{vt}, vcc""")

    def layernorm(self, vx, n, vt, sA, sB):
        inv = 0x3acccccd
        self.e(f"v_add_f32 v{vt}, v{vx}, v{vx+1}")
        for k in range(2, n):
            self.e(f"v_add_f32 v{vt}, v{vt}, v{vx+k}")
        self.wave_sum(vt, sA)
        self.e(f"v_mov_b32 v{vt+1}, {inv:#x}\nv_mul_f32 v{vt+1}, s{sA}, v{vt+1}")
        self.e(f"v_sub_f32 v{vt+2}, v{vx}, v{vt+1}\nv_mul_f32 v{vt}, v{vt+2}, v{vt+2}")
        for k in range(1, n):
            self.e(f"v_sub_f32 v{vt+2}, v{vx+k}, v{vt+1}\nv_fmac_f32 v{vt}, v{vt+2}, v{vt+2}")
        self.wave_sum(vt, sB)
        self.e(f"""v_mov_b32 v{vt+2}, {inv:#x}
v_mul_f32 v{vt+2}, s{sB}, v{vt+2}
v_cvt_pk_bf16_f32 v{vt+3}, v{vt+1}, v{vt+2}
v_lshlrev_b32 v{vt+1}, 16, v{vt+3}
v_and_b32 v{vt+2}, 0xffff0000, v{vt+3}
v_add_f32 v{vt+2}, 0x3727c5ac, v{vt+2}
v_cvt_pk_bf16_f32 v{vt+2}, v{vt+2}, v{vt+2}
v_and_b32 v{vt+2}, 0xffff0000, v{vt+2}
v_sqrt_f32 v{vt+2}, v{vt+2}
s_nop 0
v_cvt_pk_bf16_f32 v{vt+2}, v{vt+2}, v{vt+2}
v_and_b32 v{vt+2}, 0xffff0000, v{vt+2}
v_rcp_f32 v{vt+2}, v{vt+2}""")
        for k in range(0, n, 2):
            a, b = vx + k, vx + k + 1
            self.e(f"""v_sub_f32 v{a}, v{a}, v{vt+1}
v_sub_f32 v{b}, v{b}, v{vt+1}
v_cvt_pk_bf16_f32 v{vt}, v{a}, v{b}
v_lshlrev_b32 v{a}, 16, v{vt}
v_and_b32 v{b}, 0xffff0000, v{vt}
v_mul_f32 v{a}, v{a}, v{vt+2}
v_mul_f32 v{b}, v{b}, v{vt+2}""")

    def build(self):
        nt = self.opts.get("nt", "nt")
        e = self.e
        self.o.append(f"; @launch grid=(768,1,1) block=(256,1,1) lds=51200")
        self.o.append('.amdgcn_target "amdgcn-amd-amdhsa--gfx950"')
        self.o.append(".text")
        self.o.append(f".globl {KN}")
        self.o.append(".p2align 8")
        self.o.append(f".type {KN},@function")
        self.label(KN)
        e("""s_load_dwordx16 s[16:31], s[0:1], 0
s_load_dwordx8 s[32:39], s[0:1], 64
s_cmp_ge_u32 s2, 768
s_cbranch_scc1 L_end
s_lshr_b32 s3, s2, 8
s_and_b32 s4, s2, 255
s_and_b32 s8, s4, 7
s_lshr_b32 s9, s4, 3
s_and_b32 s10, s9, 3
s_lshl_b32 s5, s8, 2
s_add_u32 s5, s5, s10
s_lshr_b32 s6, s9, 2
v_lshrrev_b32 v1, 6, v0
v_and_b32 v2, 15, v0
v_readfirstlane_b32 s7, v1
v_and_b32 v1, 63, v0
v_bfe_u32 v3, v0, 4, 2
v_lshlrev_b32 v4, 2, v1
v_lshlrev_b32 v5, 4, v1
s_waitcnt lgkmcnt(0)""")
        self.srd(40, 38, WS_RECORDS)
        self.srd(56, 36, 256)
        self.stamp(0)
        e("""s_cmp_eq_u32 s3, 1
s_cbranch_scc1 L_role1
s_cmp_eq_u32 s3, 2
s_cbranch_scc1 L_role2""")
        self.role0(nt)
        self.label("L_role1")
        self.role1(nt)
        self.label("L_role2")
        self.role2(nt)
        self.label("L_end")
        e("s_endpgm")
        self.o.append(f""".section .rodata,"a"
.p2align 6
.amdhsa_kernel {KN}
  .amdhsa_next_free_vgpr 168
  .amdhsa_next_free_sgpr 96
  .amdhsa_accum_offset 168
  .amdhsa_group_segment_fixed_size 0
  .amdhsa_kernarg_size 96
  .amdhsa_user_sgpr_count 2
  .amdhsa_user_sgpr_kernarg_segment_ptr 1
  .amdhsa_system_sgpr_workgroup_id_x 1
.end_amdhsa_kernel""")
        return "\n".join(self.o) + "\n"

    def role0(self, nt):
        e = self.e
        XT, QRED, QBF, W1L, HN = 0, 10240, 12288, 13312, 33792
        self.srd(44, 16, 1280)
        self.srd(48, 20, 5242880)
        self.srd(52, 22, 4194304)
        for k in range(5):
            e(f"buffer_load_dword v{10+k}, v4, s[44:47], 0 offen offset:{256*k}")
        e("""v_lshlrev_b32 v6, 13, v3
v_lshl_add_u32 v6, v2, 4, v6
s_mul_i32 s10, s6, 80
s_mul_i32 s11, s7, 20
s_add_u32 s10, s10, s11
s_lshl_b32 s11, s10, 13
s_lshl_b32 s12, s5, 8
s_add_u32 s11, s11, s12""")
        for t in range(5):
            e(f"buffer_load_dwordx4 v[{16+4*t}:{19+4*t}], v6, s[48:51], s11 offen {nt}")
            if t < 4:
                e("s_add_u32 s11, s11, 32768")
        e("""v_lshlrev_b32 v7, 13, v2
v_lshl_add_u32 v7, v3, 4, v7
s_lshl_b32 s13, s6, 6
s_lshl_b32 s14, s7, 4
s_add_u32 s13, s13, s14
s_lshl_b32 s13, s13, 13
s_add_u32 s13, s13, s12""")
        lw = self.newlabel("r0_skipwuk")
        e(f"s_cmp_eq_u32 s7, 0\ns_cbranch_scc1 {lw}")
        for t in range(4):
            e(f"buffer_load_dwordx4 v[{36+4*t}:{39+4*t}], v7, s[52:55], s13 offen offset:{64*t} {nt}")
        self.label(lw)
        self.masks(52, 2, 60, False)
        lx = self.newlabel("r0_x")
        lx2 = self.newlabel("r0_x2")
        e(f"s_cmp_eq_u32 s7, 0\ns_cbranch_scc1 {lx}\ns_waitcnt vmcnt(9)\ns_branch {lx2}")
        self.label(lx)
        e("s_waitcnt vmcnt(5)")
        self.label(lx2)
        for k in range(5):
            e(f"v_lshlrev_b32 v{60+2*k}, 16, v{10+k}\nv_and_b32 v{61+2*k}, 0xffff0000, v{10+k}")
        self.layernorm(60, 10, 70, 62, 63)
        e(f"""s_mul_i32 s14, s7, 2560
v_lshlrev_b32 v8, 3, v1
v_add_u32 v8, s14, v8""")
        for k in range(5):
            e(f"""v_cvt_pk_bf16_f32 v74, v{60+2*k}, v{60+2*k}
v_cvt_pk_bf16_f32 v75, v{61+2*k}, v{61+2*k}
ds_write_b64 v8, v[74:75] offset:{XT + 512*k}""")
        e(f"""s_lshl_b32 s15, s10, 2
s_add_u32 s15, s15, s14
v_lshl_add_u32 v9, v3, 2, s15
s_waitcnt lgkmcnt(0)""")
        for t in range(5):
            e(f"ds_read_b32 v{60+t}, v9 offset:{XT + 16*t}")
        e("s_waitcnt lgkmcnt(0)")
        for t in range(5):
            for r in range(4):
                e(f"v_and_b32 v{80+4*t+r}, v{60+t}, v{52+r}")
        lq = self.newlabel("r0_q")
        lq2 = self.newlabel("r0_q2")
        e(f"s_cmp_eq_u32 s7, 0\ns_cbranch_scc1 {lq}\ns_waitcnt vmcnt(4)\ns_branch {lq2}")
        self.label(lq)
        e("s_waitcnt vmcnt(0)")
        self.label(lq2)
        self.stamp(1)
        for t in range(5):
            c = "0" if t == 0 else "v[56:59]"
            e(f"v_mfma_f32_16x16x32_bf16 v[56:59], v[{80+4*t}:{83+4*t}], v[{16+4*t}:{19+4*t}], {c}")
        e(f"""v_lshlrev_b32 v8, 5, v2
v_lshl_add_u32 v8, v3, 4, v8
s_lshl_b32 s14, s7, 9
v_add_u32 v8, s14, v8
s_nop 7
s_mov_b32 exec_hi, 0
ds_write_b128 v8, v[56:59] offset:{QRED}
s_mov_b64 exec, -1""")
        lnf = self.newlabel("r0_nofl")
        e(f"s_cmp_lg_u32 s7, 0\ns_cbranch_scc1 {lnf}")
        self.wait_flags(60, 4)
        self.stamp(2)
        self.label(lnf)
        e("s_waitcnt lgkmcnt(0)\ns_barrier")
        lnp = self.newlabel("r0_nopub")
        e(f"s_cmp_lg_u32 s7, 0\ns_cbranch_scc1 {lnp}")
        for wv in range(4):
            e(f"ds_read_b128 v[{60+4*wv}:{63+4*wv}], v5 offset:{QRED + 512*wv}")
        e("s_waitcnt lgkmcnt(0)")
        for r in range(4):
            e(f"v_add_f32 v{60+r}, v{60+r}, v{64+r}\nv_add_f32 v{68+r}, v{68+r}, v{72+r}")
        for r in range(4):
            e(f"v_add_f32 v{60+r}, v{60+r}, v{68+r}")
        e(f"""s_lshl_b32 s14, s5, 3
s_add_u32 s14, s14, s6
s_lshl_b32 s14, s14, 9
s_add_u32 s14, s14, {Q1}
s_mov_b32 exec_hi, 0
buffer_store_dwordx4 v[60:63], v5, s[40:43], s14 offen sc1
s_mov_b64 exec, -1""")
        for t in range(4):
            e(f"buffer_load_dwordx4 v[{36+4*t}:{39+4*t}], v7, s[52:55], s13 offen offset:{64*t} {nt}")
        self.label(lnp)
        e(f"s_lshl_b32 s14, s5, 12\ns_add_u32 s14, s14, {Q1}")
        self.poll([(f"buffer_load_dwordx4 v[{64+4*k}:{67+4*k}], v5, s[40:43], s14 offen offset:{1024*k} sc1", 64 + 4 * k, 4) for k in range(4)], 60)
        self.stamp(3)
        for r in range(4):
            e(f"v_add_f32 v{64+r}, v{64+r}, v{68+r}\nv_add_f32 v{72+r}, v{72+r}, v{76+r}")
        for r in range(4):
            e(f"v_add_f32 v{64+r}, v{64+r}, v{72+r}")
        e(f"""s_nop 1
v_permlane32_swap_b32 v64, v66
v_permlane32_swap_b32 v65, v67
s_nop 1
v_add_f32 v64, v64, v66
v_add_f32 v65, v65, v67
v_cvt_pk_bf16_f32 v64, v64, v65
v_and_b32 v8, 31, v1
v_lshlrev_b32 v8, 3, v8
v_lshrrev_b32 v9, 5, v1
v_lshl_add_u32 v8, v9, 2, v8
s_lshl_b32 s14, s7, 8
v_add_u32 v8, s14, v8
ds_write_b32 v8, v64 offset:{QBF}
v_lshl_add_u32 v9, v3, 4, s14
s_waitcnt lgkmcnt(0)""")
        for t in range(4):
            e(f"ds_read_b128 v[{64+4*t}:{67+4*t}], v9 offset:{QBF + 64*t}")
        e("s_waitcnt vmcnt(0) lgkmcnt(0)")
        for t in range(4):
            c = "0" if t == 0 else "v[56:59]"
            e(f"v_mfma_f32_16x16x32_bf16 v[56:59], v[{36+4*t}:{39+4*t}], v[{64+4*t}:{67+4*t}], {c}")
        e(f"""s_lshl_b32 s14, s6, 2
s_add_u32 s14, s14, s7
s_lshl_b32 s14, s14, 5
s_add_u32 s14, s14, s5
s_lshl_b32 s14, s14, 5
s_add_u32 s14, s14, {QA}
v_lshlrev_b32 v8, 3, v3
s_nop 4
v_cvt_pk_bf16_f32 v60, v56, v57
v_cvt_pk_bf16_f32 v61, v58, v59
s_mov_b32 s62, 0x00010001
s_mov_b32 s63, 0x00010001
s_mov_b64 exec, s[62:63]
buffer_store_dwordx2 v[60:61], v8, s[40:43], s14 offen sc1
s_mov_b64 exec, -1""")
        self.stamp(4)
        e("""s_cmp_ge_u32 s9, 16
s_cbranch_scc1 L_end
s_lshr_b32 s10, s9, 2
s_lshl_b32 s10, s10, 3
s_add_u32 s10, s10, s8
s_cmp_ge_u32 s10, 27
s_cbranch_scc1 L_end
s_and_b32 s11, s9, 3
s_lshl_b32 s10, s10, 2
s_add_u32 s10, s10, s11""")
        self.srd(44, 30, 2211840)
        self.srd(48, 32, 2211840)
        if self.opts.get("trig_fg", 1):
            e(f"""s_lshl_b32 s14, s5, 3
s_add_u32 s14, s14, s6
s_lshl_b32 s14, s14, 11
s_add_u32 s14, s14, {PB}""")
            self.poll([(f"buffer_load_dword v64, v4, s[40:43], s14 offen sc1", 64, 1)], 60)
        self.stamp(5)
        e(f"""v_lshrrev_b32 v6, 1, v1
v_mul_u32_u24 v6, 3456, v6
v_and_b32 v7, 1, v1
v_lshl_add_u32 v6, v7, 4, v6
s_mul_i32 s11, s7, 160
s_mul_i32 s12, s11, 3456
s_lshl_b32 s13, s10, 5
s_add_u32 s12, s12, s13
s_lshl_b32 s13, s11, 5
s_add_u32 s13, s13, {W1L}""")
        for k in range(5):
            e(f"""s_mov_b32 m0, s13
s_nop 0
buffer_load_dwordx4 v6, s[44:47], s12 offen {nt} lds""")
            if k < 4:
                e(f"s_add_u32 s12, s12, {32*3456}\ns_add_u32 s13, s13, 1024")
        e("""v_mul_u32_u24 v7, 5120, v3
v_lshl_add_u32 v7, v2, 4, v7
s_mul_i32 s12, s10, 20480
s_lshl_b32 s13, s7, 8
s_add_u32 s12, s12, s13""")
        for t in range(4):
            e(f"buffer_load_dwordx4 v[{16+4*t}:{19+4*t}], v7, s[48:51], s12 offen offset:{1280*t} {nt}")
        lb4 = self.newlabel("r0_b4")
        e(f"s_cmp_lg_u32 s7, 0\ns_cbranch_scc1 {lb4}\ns_add_u32 s13, s12, 1024")
        for t in range(4):
            e(f"buffer_load_dwordx4 v[{32+4*t}:{35+4*t}], v7, s[48:51], s13 offen offset:{1280*t} {nt}")
        self.label(lb4)
        e("s_waitcnt vmcnt(0)\ns_barrier")
        e(f"""v_lshrrev_b32 v8, 2, v2
v_lshl_add_u32 v8, v3, 3, v8
v_lshlrev_b32 v8, 5, v8
v_and_b32 v9, 3, v2
v_lshl_add_u32 v8, v9, 3, v8""")
        for t in range(20):
            for hh in range(2):
                e(f"ds_read_b64_tr_b16 v[{80+4*t+2*hh}:{81+4*t+2*hh}], v8 offset:{W1L + 1024*t + 128*hh}")
            if t % 4 == 3:
                e("s_waitcnt lgkmcnt(0)")
        self.stamp(6)
        e(f"s_mov_b32 s14, {HB}\nv_lshlrev_b32 v8, 3, v1")
        self.poll([("buffer_load_dwordx4 v[60:63], v5, s[40:43], s14 offen sc1", 60, 4),
                   ("buffer_load_dwordx4 v[64:67], v5, s[40:43], s14 offen offset:1024 sc1", 64, 4),
                   ("buffer_load_dwordx2 v[68:69], v8, s[40:43], s14 offen offset:2048 sc1", 68, 2)], 70)
        self.stamp(7)
        self.layernorm(60, 10, 70, 62, 63)
        e(f"""s_mul_i32 s14, s7, 1280
v_cvt_pk_bf16_f32 v70, v60, v61
v_cvt_pk_bf16_f32 v71, v62, v63
v_cvt_pk_bf16_f32 v72, v64, v65
v_cvt_pk_bf16_f32 v73, v66, v67
v_cvt_pk_bf16_f32 v74, v68, v69
v_add_u32 v8, s14, v8
v_add_u32 v9, s14, v4
ds_write_b64 v8, v[70:71] offset:{HN}
ds_write_b64 v8, v[72:73] offset:{HN + 512}
ds_write_b32 v9, v74 offset:{HN + 1024}
v_lshl_add_u32 v9, v3, 4, s14
s_waitcnt lgkmcnt(0)""")
        for bt in range(4):
            for u in range(5):
                t = 5 * bt + u
                e(f"ds_read_b128 v[{60+4*u}:{63+4*u}], v9 offset:{HN + 64*t}")
            for u in range(5):
                t = 5 * bt + u
                e(f"s_waitcnt lgkmcnt({4-u})")
                c = "0" if t == 0 else "v[56:59]"
                e(f"v_mfma_f32_16x16x32_bf16 v[56:59], v[{80+4*t}:{83+4*t}], v[{60+4*u}:{63+4*u}], {c}")
            e("s_nop 7")
        e("s_nop 7")
        for r in range(4):
            e(f"v_max_f32 v{56+r}, 0, v{56+r}")
        for t in range(4):
            e(f"v_cvt_pk_bf16_f32 v{60+t}, v{56+t}, v{56+t}")
        for t in range(4):
            for r in range(4):
                e(f"v_and_b32 v{80+4*t+r}, v{60+t}, v{52+r}")
        e("s_nop 1")
        for t in range(4):
            c = "0" if t == 0 else "v[64:67]"
            e(f"v_mfma_f32_16x16x32_bf16 v[64:67], v[{80+4*t}:{83+4*t}], v[{16+4*t}:{19+4*t}], {c}")
        e(f"""v_lshrrev_b32 v8, 1, v2
v_mul_u32_u24 v8, 7168, v8
v_and_b32 v9, 1, v2
v_lshl_add_u32 v8, v9, 5, v8
v_lshl_add_u32 v8, v3, 4, v8
s_mul_i32 s14, s7, {8*7168}
s_lshl_b32 s15, s10, 6
s_add_u32 s14, s14, s15
s_add_u32 s14, s14, {FB}""")
        lb5 = self.newlabel("r0_b5")
        e(f"s_cmp_lg_u32 s7, 0\ns_cbranch_scc1 {lb5}")
        for t in range(4):
            c = "0" if t == 0 else "v[68:71]"
            e(f"v_mfma_f32_16x16x32_bf16 v[68:71], v[{80+4*t}:{83+4*t}], v[{32+4*t}:{35+4*t}], {c}")
        e(f"""s_add_u32 s15, s14, {32*7168}
s_nop 7
s_mov_b32 exec_hi, 0
buffer_store_dwordx4 v[68:71], v8, s[40:43], s15 offen sc1
s_mov_b64 exec, -1""")
        self.label(lb5)
        e("""s_nop 7
s_mov_b32 exec_hi, 0
buffer_store_dwordx4 v[64:67], v8, s[40:43], s14 offen sc1
s_mov_b64 exec, -1""")
        self.stamp(8)
        e("s_endpgm")

    def role1(self, nt):
        e = self.e
        BT, SP = 0, 32768
        self.srd(44, 18, 8388608)
        self.srd(48, 16, 1280)
        lnf = self.newlabel("r1_nofl")
        e(f"s_cmp_lg_u32 s7, 0\ns_cbranch_scc1 {lnf}")
        self.wait_flags(60, 4)
        self.label(lnf)
        e("s_barrier")
        self.stamp(1)
        e("""v_and_b32 v6, 31, v1
v_lshlrev_b32 v6, 10, v6
v_lshrrev_b32 v7, 5, v1
v_lshl_add_u32 v6, v7, 4, v6
s_lshl_b32 s10, s5, 8
s_lshl_b32 s11, s6, 5
s_add_u32 s11, s11, s10
s_lshl_b32 s11, s11, 10
s_lshl_b32 s12, s7, 8
s_add_u32 s11, s11, s12""")
        for t in range(8):
            e(f"buffer_load_dwordx4 v[{16+4*t}:{19+4*t}], v6, s[44:47], s11 offen offset:{32*t} {nt}")
        e(f"""v_lshrrev_b32 v8, 3, v1
v_lshlrev_b32 v8, 10, v8
v_and_b32 v9, 7, v1
v_lshl_add_u32 v8, v9, 4, v8
s_lshl_b32 s12, s7, 6
s_add_u32 s13, s12, s10
s_lshl_b32 s13, s13, 10
s_lshl_b32 s14, s6, 7
s_add_u32 s13, s13, s14
s_lshl_b32 s14, s12, 7
s_add_u32 s14, s14, {BT}""")
        nt2 = self.opts.get("nt_block", nt)
        for k in range(8):
            e(f"""s_mov_b32 m0, s14
s_nop 0
buffer_load_dwordx4 v8, s[44:47], s13 offen {nt2} lds""")
            if k < 7:
                e("s_add_u32 s13, s13, 8192\ns_add_u32 s14, s14, 1024")
        e("s_waitcnt vmcnt(0)\ns_barrier")
        self.stamp(2)
        e(f"""v_lshrrev_b32 v8, 2, v2
v_lshl_add_u32 v8, v3, 3, v8
v_lshlrev_b32 v8, 7, v8
v_and_b32 v9, 3, v2
v_lshl_add_u32 v8, v9, 3, v8
s_lshr_b32 s12, s7, 1
s_lshl_b32 s12, s12, 6
v_add_u32 v8, s12, v8""")
        for p in range(8):
            for ctl in range(2):
                for hh in range(2):
                    r = 96 + (p * 2 + ctl) * 4 + 2 * hh
                    e(f"ds_read_b64_tr_b16 v[{r}:{r+1}], v8 offset:{BT + 4096*p + 512*hh + 32*ctl}")
            if p % 2 == 1:
                e("s_waitcnt lgkmcnt(0)")
        e(f"""v_and_b32 v6, 31, v1
v_lshlrev_b32 v6, 5, v6
v_lshl_add_u32 v6, v7, 4, v6
s_lshl_b32 s12, s7, 13
s_add_u32 s12, s12, {QA}
s_add_u32 s13, s12, 4096""")
        self.poll([(f"buffer_load_dwordx4 v[{48+4*t}:{51+4*t}], v6, s[40:43], s{12 + t//4} offen offset:{1024*(t%4)} sc1", 48 + 4 * t, 4) for t in range(8)], 10)
        self.stamp(3)
        for t in range(8):
            c = "0" if t == 0 else "v[80:95]"
            e(f"v_mfma_f32_32x32x16_bf16 v[80:95], v[{16+4*t}:{19+4*t}], v[{48+4*t}:{51+4*t}], {c}")
        e(f"""v_and_b32 v6, 31, v1
v_mul_u32_u24 v6, 144, v6
v_lshl_add_u32 v6, v7, 4, v6
s_mul_i32 s12, s7, 4608
v_add_u32 v6, s12, v6
v_lshrrev_b32 v8, 3, v1
s_lshl_b32 s12, s7, 3
v_add_u32 v8, s12, v8
v_and_b32 v9, 7, v1
v_mul_u32_u24 v10, 144, v8
v_lshl_add_u32 v10, v9, 4, v10
s_nop 7""")
        for a in range(4):
            e(f"ds_write_b128 v6, v[{80+4*a}:{83+4*a}] offset:{SP + 32*a}")
        e("s_waitcnt lgkmcnt(0)\ns_barrier")
        for wv in range(4):
            e(f"ds_read_b128 v[{16+4*wv}:{19+4*wv}], v10 offset:{SP + 4608*wv}")
        e("s_waitcnt lgkmcnt(0)")
        for r in range(4):
            e(f"v_add_f32 v{16+r}, v{16+r}, v{20+r}\nv_add_f32 v{24+r}, v{24+r}, v{28+r}")
        for r in range(4):
            e(f"v_add_f32 v{16+r}, v{16+r}, v{24+r}")
        e(f"""s_mov_b32 s12, {SCALE:#x}
s_mov_b32 s13, {LOG2E:#x}
v_cvt_pk_bf16_f32 v20, v16, v17
v_cvt_pk_bf16_f32 v21, v18, v19
v_lshlrev_b32 v16, 16, v20
v_and_b32 v17, 0xffff0000, v20
v_lshlrev_b32 v18, 16, v21
v_and_b32 v19, 0xffff0000, v21
v_mul_f32 v16, s12, v16
v_mul_f32 v17, s12, v17
v_mul_f32 v18, s12, v18
v_mul_f32 v19, s12, v19
v_cvt_pk_bf16_f32 v20, v16, v17
v_cvt_pk_bf16_f32 v21, v18, v19
v_lshlrev_b32 v16, 16, v20
v_and_b32 v17, 0xffff0000, v20
v_lshlrev_b32 v18, 16, v21
v_and_b32 v19, 0xffff0000, v21
v_max3_f32 v22, v16, v17, v18
v_max_f32 v22, v22, v19
s_nop 1
v_max_f32_dpp v22, v22, v22 quad_perm:[1,0,3,2] row_mask:0xf bank_mask:0xf
s_nop 1
v_max_f32_dpp v22, v22, v22 quad_perm:[2,3,0,1] row_mask:0xf bank_mask:0xf
s_nop 1
v_max_f32_dpp v22, v22, v22 row_half_mirror row_mask:0xf bank_mask:0xf
v_sub_f32 v16, v16, v22
v_sub_f32 v17, v17, v22
v_sub_f32 v18, v18, v22
v_sub_f32 v19, v19, v22
v_mul_f32 v16, s13, v16
v_mul_f32 v17, s13, v17
v_mul_f32 v18, s13, v18
v_mul_f32 v19, s13, v19
v_exp_f32 v16, v16
v_exp_f32 v17, v17
v_exp_f32 v18, v18
v_exp_f32 v19, v19
s_nop 0
v_cvt_pk_bf16_f32 v20, v16, v17
v_cvt_pk_bf16_f32 v21, v18, v19
v_add_f32 v23, v16, v17
v_add_f32 v24, v18, v19
v_add_f32 v23, v23, v24
s_lshl_b32 s12, s5, 3
s_add_u32 s12, s12, s6
s_lshl_b32 s12, s12, 11
s_add_u32 s12, s12, {PB}
v_lshlrev_b32 v11, 6, v8
v_lshl_add_u32 v11, v9, 3, v11
buffer_store_dwordx2 v[20:21], v11, s[40:43], s12 offen sc1
v_add_f32_dpp v23, v23, v23 quad_perm:[1,0,3,2] row_mask:0xf bank_mask:0xf
s_nop 1
v_add_f32_dpp v23, v23, v23 quad_perm:[2,3,0,1] row_mask:0xf bank_mask:0xf
s_nop 1
v_add_f32_dpp v23, v23, v23 row_half_mirror row_mask:0xf bank_mask:0xf
s_lshl_b32 s12, s5, 11
s_lshl_b32 s13, s6, 3
s_add_u32 s12, s12, s13
s_add_u32 s12, s12, {PS}
v_lshlrev_b32 v11, 6, v8
s_mov_b32 s62, 0x01010101
s_mov_b32 s63, 0x01010101
s_mov_b64 exec, s[62:63]
buffer_store_dwordx2 v[22:23], v11, s[40:43], s12 offen sc1
s_mov_b64 exec, -1""")
        self.stamp(4)
        e(f"""s_and_b32 s12, s7, 1
s_lshl_b32 s12, s12, 4
v_add_u32 v8, s12, v2
v_lshlrev_b32 v9, 6, v8
v_lshl_add_u32 v10, v3, 4, v9
s_lshl_b32 s12, s5, 14
s_add_u32 s12, s12, {PB}
s_add_u32 s13, s12, 4096
s_add_u32 s14, s12, 8192
s_add_u32 s15, s12, 12288
s_lshl_b32 s62, s5, 11
s_add_u32 s62, s62, {PS}""")
        loads = [(f"buffer_load_dwordx4 v[{16+4*p}:{19+4*p}], v10, s[40:43], s{12 + p//2} offen offset:{2048*(p%2)} sc1", 16 + 4 * p, 4) for p in range(8)]
        loads += [(f"buffer_load_dwordx4 v[{48+4*k}:{51+4*k}], v9, s[40:43], s62 offen offset:{16*k} sc1", 48 + 4 * k, 4) for k in range(4)]
        self.poll(loads, 11)
        self.stamp(5)
        e("""v_max3_f32 v64, v48, v50, v52
v_max3_f32 v64, v64, v54, v56
v_max3_f32 v64, v64, v58, v60
v_max_f32 v64, v64, v62""")
        e(f"s_mov_b32 s13, {LOG2E:#x}")
        for p in range(8):
            e(f"v_sub_f32 v{48+2*p}, v{48+2*p}, v64\nv_mul_f32 v{48+2*p}, s13, v{48+2*p}")
        for p in range(8):
            e(f"v_exp_f32 v{48+2*p}, v{48+2*p}")
        e("s_nop 0\nv_mul_f32 v65, v48, v49")
        for p in range(1, 8):
            e(f"v_fmac_f32 v65, v{48+2*p}, v{49+2*p}")
        for p in range(8):
            ab = 72 + 8 * (p % 2)
            for ctl in range(2):
                ar = 96 + (p * 2 + ctl) * 4
                e(f"v_mfma_f32_16x16x32_bf16 v[{ab+4*ctl}:{ab+3+4*ctl}], v[{ar}:{ar+3}], v[{16+4*p}:{19+4*p}], 0")
            e("s_nop 7")
            for r in range(8):
                if p == 0:
                    e(f"v_mul_f32 v{88+r}, v{48+2*p}, v{ab+r}")
                else:
                    e(f"v_fmac_f32 v{88+r}, v{48+2*p}, v{ab+r}")
        e(f"""v_lshlrev_b32 v9, 16, v8
v_lshl_add_u32 v9, v3, 4, v9
s_lshr_b32 s12, s6, 1
s_lshl_b32 s12, s12, 5
s_add_u32 s12, s12, s5
s_lshl_b32 s12, s12, 9
s_and_b32 s13, s6, 1
s_lshl_b32 s13, s13, 8
s_add_u32 s12, s12, s13
s_lshr_b32 s13, s7, 1
s_lshl_b32 s13, s13, 7
s_add_u32 s12, s12, s13
s_add_u32 s12, s12, {OB}
buffer_store_dwordx4 v[88:91], v9, s[40:43], s12 offen sc1
buffer_store_dwordx4 v[92:95], v9, s[40:43], s12 offen offset:64 sc1""")
        lns = self.newlabel("r1_nost")
        e(f"""s_cmp_lg_u32 s6, 0
s_cbranch_scc1 {lns}
s_cmp_ge_u32 s7, 2
s_cbranch_scc1 {lns}
v_lshlrev_b32 v9, 8, v8
s_lshl_b32 s12, s5, 3
s_add_u32 s12, s12, {OS}
s_mov_b64 exec, 0xffff
buffer_store_dwordx2 v[64:65], v9, s[40:43], s12 offen sc1
s_mov_b64 exec, -1""")
        self.label(lns)
        self.stamp(6)
        e("""s_cmp_ge_u32 s4, 40
s_cbranch_scc1 L_end
s_cmp_lg_u32 s7, 0
s_cbranch_scc1 L_end""")
        self.colidx(8, 9)
        e(f"""s_lshl_b32 s12, s4, 5
v_lshlrev_b32 v9, 1, v8
buffer_load_ushort v10, v9, s[48:51], s12 offen
s_lshl_b32 s12, s4, 14
s_add_u32 s12, s12, {EB}
s_add_u32 s13, s12, 4096
s_add_u32 s14, s12, 8192
s_add_u32 s15, s12, 12288""")
        self.poll([(f"buffer_load_dwordx4 v[{16+4*k}:{19+4*k}], v5, s[40:43], s{12 + k//4} offen offset:{1024*(k%4)} sc1", 16 + 4 * k, 4) for k in range(16)], 11)
        self.stamp(7)
        self.reduce16(16, 16)
        e(f"""v_cvt_pk_bf16_f32 v16, v16, v16
v_and_b32 v16, 0xffff0000, v16
v_lshlrev_b32 v10, 16, v10
v_add_f32 v16, v16, v10
v_cvt_pk_bf16_f32 v16, v16, v16
v_and_b32 v16, 0xffff0000, v16
v_lshlrev_b32 v9, 2, v8
s_lshl_b32 s12, s4, 6
s_add_u32 s12, s12, {HB}
s_mov_b32 s62, 0x000f000f
s_mov_b32 s63, 0x000f000f
s_mov_b64 exec, s[62:63]
buffer_store_dword v16, v9, s[40:43], s12 offen sc1
s_mov_b64 exec, -1""")
        self.stamp(8)
        e("s_endpgm")

    def colidx(self, vd, vt):
        self.e(f"""v_and_b32 v{vd}, 1, v3
v_lshlrev_b32 v{vd}, 1, v{vd}
v_lshrrev_b32 v{vt}, 1, v3
v_or_b32 v{vd}, v{vd}, v{vt}
v_and_b32 v{vt}, 3, v1
v_lshl_add_u32 v{vd}, v{vt}, 2, v{vd}""")

    def reduce16(self, v0, n):
        e = self.e
        step = 1
        while step < n:
            for k in range(0, n - step, 2 * step):
                for r in range(4):
                    e(f"v_add_f32 v{v0+4*k+r}, v{v0+4*k+r}, v{v0+4*(k+step)+r}")
            step *= 2
        a = v0
        e(f"""s_nop 1
v_permlane32_swap_b32 v{a}, v{a+1}
v_permlane32_swap_b32 v{a+2}, v{a+3}
s_nop 1
v_add_f32 v{a}, v{a}, v{a+1}
v_add_f32 v{a+2}, v{a+2}, v{a+3}
s_nop 1
v_permlane16_swap_b32 v{a}, v{a+2}
s_nop 1
v_add_f32 v{a}, v{a}, v{a+2}
s_nop 1
v_add_f32_dpp v{a}, v{a}, v{a} row_ror:8 row_mask:0xf bank_mask:0xf
s_nop 1
v_add_f32_dpp v{a}, v{a}, v{a} row_ror:4 row_mask:0xf bank_mask:0xf""")

    def role2(self, nt):
        e = self.e
        CLX, RED, RED2 = 0, 1024, 4096
        e(f"""s_mul_i32 s10, s4, {INIT_PER_WG}
s_add_u32 s44, s38, s10
s_addc_u32 s45, s39, 0
s_and_b32 s45, s45, 0xffff
s_mov_b32 s46, {INIT_PER_WG}
s_mov_b32 s47, 0x00020000
v_lshlrev_b32 v6, 4, v0
v_mov_b32 v8, -1
v_mov_b32 v9, -1
v_mov_b32 v10, -1
v_mov_b32 v11, -1
s_mov_b32 s11, 4096
s_mov_b32 s12, 8192
s_mov_b32 s13, 12288
buffer_store_dwordx4 v[8:11], v6, s[44:47], 0 offen sc1
buffer_store_dwordx4 v[8:11], v6, s[44:47], s11 offen sc1
buffer_store_dwordx4 v[8:11], v6, s[44:47], s12 offen sc1
buffer_store_dwordx4 v[8:11], v6, s[44:47], s13 offen sc1
s_waitcnt vmcnt(0)
s_barrier""")
        lnf = self.newlabel("r2_nofl")
        e(f"""s_cmp_lg_u32 s7, 0
s_cbranch_scc1 {lnf}
v_mov_b32 v8, 1
v_mov_b32 v9, s4
s_mov_b64 exec, 1
buffer_store_byte v8, v9, s[56:59], 0 offen sc1
s_mov_b64 exec, -1""")
        self.stamp(1)
        self.wait_flags(60, 4)
        self.stamp(2)
        if self.opts.get("trig_de", 1):
            e(f"""s_lshl_b32 s14, s6, 7
s_add_u32 s14, s14, s5
s_lshl_b32 s14, s14, 5
s_add_u32 s14, s14, {QA}
v_mov_b32 v9, 0""")
            self.poll([("buffer_load_dword v64, v9, s[40:43], s14 offen sc1", 64, 1)], 60)
        self.label(lnf)
        e("s_barrier")
        self.stamp(3)
        self.srd(44, 24, 4194304)
        self.srd(48, 26, 5242880)
        self.srd(52, 34, 1280)
        e("""s_lshr_b32 s10, s6, 1
s_and_b32 s11, s6, 1
v_lshrrev_b32 v6, 3, v2
v_lshl_add_u32 v6, v6, 2, v3
v_lshlrev_b32 v7, 4, v6
v_lshlrev_b32 v6, 13, v6
v_and_b32 v8, 7, v2
v_lshl_add_u32 v6, v8, 4, v6
s_lshl_b32 s12, s10, 7
s_lshl_b32 s13, s7, 5
s_add_u32 s12, s12, s13
s_lshl_b32 s12, s12, 13
s_lshl_b32 s13, s5, 8
s_add_u32 s12, s12, s13
s_lshl_b32 s13, s11, 7
s_add_u32 s12, s12, s13""")
        for t in range(4):
            e(f"buffer_load_dwordx4 v[{16+4*t}:{19+4*t}], v6, s[44:47], s12 offen {nt}")
            if t < 3:
                e("s_add_u32 s12, s12, 65536")
        nto = self.opts.get("nt_wo", nt)
        e("""v_mul_u32_u24 v6, 5120, v3
v_lshl_add_u32 v6, v2, 4, v6
s_lshl_b32 s12, s5, 7
s_lshl_b32 s13, s11, 6
s_add_u32 s12, s12, s13
s_lshl_b32 s13, s7, 4
s_add_u32 s12, s12, s13
s_mul_i32 s12, s12, 1280
s_add_u32 s13, s12, 2560""")
        for t in range(4):
            for b in range(5):
                r = 80 + (t * 5 + b) * 4
                e(f"buffer_load_dwordx4 v[{r}:{r+3}], v6, s[48:51], s{12 + t//2} offen offset:{1280*(t%2) + 256*b} {nto}")
        self.masks(76, 2, 60, True)
        e(f"""v_and_b32 v8, 1, v3
v_lshlrev_b32 v8, 1, v8
v_lshrrev_b32 v9, 1, v3
v_or_b32 v8, v8, v9
v_and_b32 v9, 1, v1
v_lshl_add_u32 v8, v9, 2, v8
v_bfe_u32 v9, v1, 1, 2
v_lshl_add_u32 v8, v8, 2, v9
v_lshlrev_b32 v8, 2, v8
s_lshl_b32 s12, s7, 7
v_add_u32 v8, s12, v8
v_add_u32 v7, s12, v7""")
        e(f"""v_lshrrev_b32 v9, 3, v1
v_lshlrev_b32 v10, 3, v9
v_lshlrev_b32 v9, 9, v9
v_and_b32 v11, 7, v1
v_lshl_add_u32 v9, v11, 4, v9
s_lshl_b32 s12, s5, 2
s_add_u32 s12, s12, s10
s_lshl_b32 s12, s12, 14
s_lshl_b32 s13, s7, 7
s_add_u32 s12, s12, s13
s_add_u32 s12, s12, {OB}
s_add_u32 s13, s12, 4096
s_add_u32 s14, s12, 8192
s_add_u32 s15, s12, 12288
s_lshl_b32 s62, s5, 8
s_add_u32 s62, s62, {OS}
s_waitcnt vmcnt(0)""")
        self.stamp(4)
        loads = [(f"buffer_load_dwordx4 v[{32+4*k}:{35+4*k}], v9, s[40:43], s{12+k} offen sc1", 32 + 4 * k, 4) for k in range(4)]
        loads += [(f"buffer_load_dwordx2 v[{48+2*k}:{49+2*k}], v10, s[40:43], s62 offen offset:{64*k} sc1", 48 + 2 * k, 2) for k in range(4)]
        self.poll(loads, 11)
        self.stamp(5)
        e(f"""v_max3_f32 v56, v48, v50, v52
v_max_f32 v56, v56, v54
s_nop 1
v_max_f32_dpp v56, v56, v56 row_ror:8 row_mask:0xf bank_mask:0xf
s_nop 0
v_mov_b32 v57, v56
s_nop 1
v_permlane16_swap_b32 v56, v57
s_nop 1
v_max_f32 v56, v56, v57
s_nop 0
v_mov_b32 v57, v56
s_nop 1
v_permlane32_swap_b32 v56, v57
s_nop 1
v_max_f32 v56, v56, v57
s_mov_b32 s13, {LOG2E:#x}""")
        for k in range(4):
            e(f"v_sub_f32 v{48+2*k}, v{48+2*k}, v56\nv_mul_f32 v{48+2*k}, s13, v{48+2*k}")
        for k in range(4):
            e(f"v_exp_f32 v{48+2*k}, v{48+2*k}")
        e("s_nop 0\nv_mul_f32 v58, v48, v49")
        for k in range(1, 4):
            e(f"v_fmac_f32 v58, v{48+2*k}, v{49+2*k}")
        for r in range(4):
            e(f"v_mul_f32 v{32+r}, v48, v{32+r}")
        for k in range(1, 4):
            for r in range(4):
                e(f"v_fmac_f32 v{32+r}, v{48+2*k}, v{32+4*k+r}")
        e("""v_add_f32_dpp v58, v58, v58 row_ror:8 row_mask:0xf bank_mask:0xf
s_nop 0
v_mov_b32 v57, v58
v_permlane32_swap_b32 v32, v33
v_permlane32_swap_b32 v34, v35
v_permlane16_swap_b32 v58, v57
s_nop 0
v_add_f32 v32, v32, v33
v_add_f32 v34, v34, v35
v_add_f32 v58, v58, v57
s_nop 0
v_mov_b32 v57, v58
v_permlane16_swap_b32 v32, v34
s_nop 0
v_permlane32_swap_b32 v58, v57
s_nop 0
v_add_f32 v32, v32, v34
v_add_f32 v58, v58, v57
s_nop 0
v_rcp_f32 v58, v58
v_add_f32_dpp v32, v32, v32 row_ror:8 row_mask:0xf bank_mask:0xf
s_nop 0
v_mul_f32 v32, v32, v58
v_cvt_pk_bf16_f32 v32, v32, v32""")
        e(f"""ds_write_b32 v8, v32 offset:{CLX}
s_waitcnt lgkmcnt(0)
ds_read_b128 v[32:35], v7 offset:{CLX}
s_waitcnt lgkmcnt(0)""")
        for t in range(4):
            for r in range(4):
                e(f"v_and_b32 v{36+4*t+r}, v{32+t}, v{76+r}")
        e("s_nop 1")
        for t in range(4):
            c = "0" if t == 0 else "v[52:55]"
            e(f"v_mfma_f32_16x16x32_bf16 v[52:55], v[{36+4*t}:{39+4*t}], v[{16+4*t}:{19+4*t}], {c}")
        e(f"""v_and_b32 v8, 7, v2
v_lshlrev_b32 v8, 5, v8
v_and_b32 v9, 1, v3
v_lshl_add_u32 v8, v9, 4, v8
v_lshrrev_b32 v9, 3, v2
v_lshl_add_u32 v8, v9, 8, v8
s_lshl_b32 s12, s7, 9
v_add_u32 v8, s12, v8
s_lshl_b32 s12, s7, 6
v_lshl_add_u32 v9, v3, 4, s12
s_mov_b32 s62, 0x00ff00ff
s_mov_b32 s63, 0xff00ff00
s_mov_b64 exec, s[62:63]
ds_write_b128 v8, v[52:55] offset:{RED}
s_mov_b64 exec, -1
s_waitcnt lgkmcnt(0)
s_barrier""")
        for p in range(8):
            e(f"ds_read_b128 v[{16+4*p}:{19+4*p}], v9 offset:{RED + 256*p}")
        e("s_waitcnt lgkmcnt(0)")
        step = 1
        while step < 8:
            for k in range(0, 8, 2 * step):
                for r in range(4):
                    e(f"v_add_f32 v{16+4*k+r}, v{16+4*k+r}, v{16+4*(k+step)+r}")
            step *= 2
        e("v_cmp_gt_u32 vcc, 8, v2")
        for t in range(4):
            e(f"""v_cvt_pk_bf16_f32 v{20+t}, v{16+t}, v{16+t}
v_and_b32 v{24+t}, 0xffff0000, v{20+t}
v_sub_f32 v{24+t}, v{16+t}, v{24+t}
v_cvt_pk_bf16_f32 v{24+t}, v{24+t}, v{24+t}
v_cndmask_b32 v{20+t}, v{24+t}, v{20+t}, vcc""")
        for t in range(4):
            for r in range(4):
                e(f"v_and_b32 v{36+4*t+r}, v{20+t}, v{76+r}")
        e("s_nop 1")
        for t in range(4):
            for b in range(5):
                r = 80 + (t * 5 + b) * 4
                c = "0" if t == 0 else f"v[{52+4*b}:{55+4*b}]"
                e(f"v_mfma_f32_16x16x32_bf16 v[{52+4*b}:{55+4*b}], v[{36+4*t}:{39+4*t}], v[{r}:{r+3}], {c}")
        e(f"""v_lshlrev_b32 v8, 5, v2
v_and_b32 v9, 1, v3
v_lshl_add_u32 v8, v9, 4, v8
v_lshrrev_b32 v9, 1, v3
v_lshl_add_u32 v8, v9, 9, v8
s_mul_i32 s12, s7, 2560
v_add_u32 v8, s12, v8
s_nop 7""")
        for r in range(4):
            e(f"v_mov_b32 v{72+r}, v{68+r}")
        e("s_nop 1")
        for pr in range(3):
            a = 52 + 8 * pr
            for r in range(4):
                e(f"v_permlane32_swap_b32 v{a+r}, v{a+4+r}")
        e("s_nop 1")
        for pr in range(3):
            a = 52 + 8 * pr
            for r in range(4):
                e(f"v_add_f32 v{a+r}, v{a+r}, v{a+4+r}")
        e(f"""ds_write_b128 v8, v[52:55] offset:{RED2}
ds_write_b128 v8, v[60:63] offset:{RED2 + 1024}
s_mov_b32 exec_hi, 0
ds_write_b128 v8, v[68:71] offset:{RED2 + 2048}
s_mov_b64 exec, -1
s_waitcnt lgkmcnt(0)
s_barrier
v_lshlrev_b32 v8, 4, v0
v_cmp_gt_u32 vcc, 160, v0
s_and_saveexec_b64 s[62:63], vcc""")
        lsk = self.newlabel("r2_skip")
        e(f"s_cbranch_execz {lsk}")
        for wv in range(4):
            e(f"ds_read_b128 v[{16+4*wv}:{19+4*wv}], v8 offset:{RED2 + 2560*wv}")
        e(f"""v_lshrrev_b32 v9, 2, v0
v_lshlrev_b32 v9, 14, v9
v_and_b32 v10, 3, v0
v_lshl_add_u32 v9, v10, 4, v9
s_lshl_b32 s12, s4, 6
s_add_u32 s12, s12, {EB}
s_waitcnt lgkmcnt(0)""")
        for r in range(4):
            e(f"v_add_f32 v{16+r}, v{16+r}, v{20+r}\nv_add_f32 v{24+r}, v{24+r}, v{28+r}")
        for r in range(4):
            e(f"v_add_f32 v{16+r}, v{16+r}, v{24+r}")
        e("buffer_store_dwordx4 v[16:19], v9, s[40:43], s12 offen sc1")
        self.label(lsk)
        e("s_mov_b64 exec, -1")
        self.stamp(6)
        e("""s_cmp_ge_u32 s4, 40
s_cbranch_scc1 L_end
s_cmp_lg_u32 s7, 0
s_cbranch_scc1 L_end""")
        self.colidx(8, 9)
        e(f"""v_lshlrev_b32 v9, 2, v8
s_lshl_b32 s62, s4, 6
s_add_u32 s62, s62, {HB}
s_mul_i32 s12, s4, 7168
s_add_u32 s12, s12, {FB}
s_add_u32 s13, s12, 4096
v_cmp_gt_u32 vcc, 48, v1
v_mov_b32 v10, 0x7ffffff0
s_nop 0
v_cndmask_b32 v10, v10, v5, vcc""")
        loads = [(f"buffer_load_dwordx4 v[{16+4*k}:{19+4*k}], v5, s[40:43], s{12 + k//4} offen offset:{1024*(k%4)} sc1", 16 + 4 * k, 4) for k in range(6)]
        loads += [("buffer_load_dwordx4 v[40:43], v10, s[40:43], s13 offen offset:2048 sc1", 40, 4)]
        loads += [("buffer_load_dword v48, v9, s[40:43], s62 offen sc1", 48, 1)]
        self.poll(loads, 11)
        self.stamp(7)
        e("v_cmp_gt_u32 vcc, 48, v1\ns_nop 1")
        for r in range(4):
            e(f"v_cndmask_b32 v{40+r}, 0, v{40+r}, vcc")
        self.reduce16(16, 7)
        e(f"""v_cvt_pk_bf16_f32 v16, v16, v16
v_and_b32 v16, 0xffff0000, v16
v_add_f32 v16, v16, v48
v_cvt_pk_bf16_f32 v16, v16, v16
v_lshlrev_b32 v9, 1, v8
s_lshl_b32 s12, s4, 5
s_mov_b32 s62, 0x000f000f
s_mov_b32 s63, 0x000f000f
s_mov_b64 exec, s[62:63]
buffer_store_short v16, v9, s[52:55], s12 offen
s_mov_b64 exec, -1""")
        self.stamp(8)
        e("s_endpgm")


if __name__ == "__main__":
    import argparse
    ap = argparse.ArgumentParser()
    ap.add_argument("out")
    ap.add_argument("--stamps", action="store_true")
    ap.add_argument("--opt", action="append", default=[])
    a = ap.parse_args()
    opts = {}
    for o in a.opt:
        k, v = o.split("=")
        opts[k] = int(v) if v.lstrip("-").isdigit() else v
    g = Gen(stamps=a.stamps, opts=opts)
    open(a.out, "w").write(g.build())
```

```python
import sys

KN = "sequential_preLN__compressed_kv_cla__dense_activation_relu__decode_kernel"

Q1 = 0x000000
QA = 0x020000
PB = 0x030000
PMSG = 1152
OB = 0x0C0000
OS = 0x2C0000
EL = 0x2C4000
XB = 0x314000
FB = 0x319000
SIG = 0x360000
RDY = 0x374000
assert PB + 512 * PMSG <= OB
STAMP = 0x400000
WS_RECORDS = 0x400000 + 256 * 128

SPIN_LIMIT = 100000
RESTORE_IT = 10
LOG2E = 0x3fb8aa3b
SCALE = 0x3db504f3
LDS_BYTES = 146432
NB = 133120
NON, FLG = 0, 16


class Gen:
    def __init__(self, stamps=False, opts=None):
        self.o = []
        self.nl = 0
        self.stamps = stamps
        self.opts = opts or {}

    def opt(self, k, d):
        return self.opts.get(k, d)

    def e(self, s):
        for line in s.strip("\n").split("\n"):
            self.o.append("  " + line.strip())

    def label(self, name):
        self.o.append(name + ":")

    def newlabel(self, base):
        self.nl += 1
        return f"L_{base}_{self.nl}"

    def srd(self, d, ptr, nbytes):
        self.e(f"""s_mov_b32 s{d}, s{ptr}
s_and_b32 s{d+1}, s{ptr+1}, 0xffff
s_mov_b32 s{d+2}, {nbytes}
s_mov_b32 s{d+3}, 0x00020000""")

    def stamp(self, idx):
        if self.stamps:
            self.e(f"s_memrealtime s[{76+2*idx}:{77+2*idx}]")

    def stamp_dump(self):
        if not self.stamps:
            return
        self.e("""s_and_b32 s60, s7, 3
s_cmp_lg_u32 s60, 0
s_cbranch_scc1 L_end
s_waitcnt lgkmcnt(0)
s_mov_b64 exec, 1
v_mov_b32 v251, 0""")
        self.e(f"s_lshl_b32 s60, s2, 7\ns_lshl_b32 s61, s7, 4\ns_add_u32 s60, s60, s61\ns_add_u32 s60, s60, {STAMP}")
        for i in range(12):
            self.e(f"v_mov_b32 v250, s{76+2*i}\nbuffer_store_dword v250, v251, s[40:43], s60 offen offset:{4*i}")

    def wave_sum(self, v, sd):
        ins = "v_add_f32_dpp"
        for sh in (1, 2, 4, 8):
            self.e(f"s_nop 1\n{ins} v{v}, v{v}, v{v} row_shr:{sh} row_mask:0xf bank_mask:0xf bound_ctrl:0")
        self.e(f"s_nop 1\n{ins} v{v}, v{v}, v{v} row_bcast:15 row_mask:0xa bank_mask:0xf")
        self.e(f"s_nop 1\n{ins} v{v}, v{v}, v{v} row_bcast:31 row_mask:0xc bank_mask:0xf")
        self.e(f"s_nop 0\nv_readlane_b32 s{sd}, v{v}, 63")

    def wait_nonce(self, vt):
        d = self.newlabel("nnd")
        for k in range(4):
            self.e(f"""s_load_dword s65, s[36:37], {64*k}
s_waitcnt lgkmcnt(0)
s_cmp_lg_u32 s65, 0
s_cbranch_scc1 {d}
s_sleep 4""")
        l = self.newlabel("nn")
        self.e("s_mov_b32 s60, 0")
        self.label(l)
        self.e(f"""buffer_load_dword v{vt}, v11, s[56:59], 0 offen sc1
s_add_u32 s60, s60, 1
s_waitcnt vmcnt(0)
v_readfirstlane_b32 s65, v{vt}
s_cmp_ge_u32 s60, {SPIN_LIMIT}
s_cbranch_scc1 {d}
s_cmp_eq_u32 s65, 0
s_cbranch_scc1 {l}""")
        self.label(d)

    def set_tags(self):
        self.e("""s_mov_b32 s64, 0xffffff00
s_and_b32 s61, s65, 0xff
v_mov_b32 v12, s61
s_bfe_u32 s61, s65, 0x80008
v_mov_b32 v13, s61
s_bfe_u32 s61, s65, 0x80010
v_mov_b32 v14, s61
s_lshr_b32 s61, s65, 24
v_mov_b32 v15, s61
s_and_b32 s67, s65, 0xbfffbfff""")

    def tag4(self, v):
        for r in range(4):
            self.e(f"v_and_or_b32 v{v+r}, v{v+r}, s64, v{12+r}")

    def sig_prep(self, k, sd, sid="s4"):
        self.e(f"s_lshl_b32 s{sd}, {sid}, 7\ns_add_u32 s{sd}, s{sd}, {SIG + k * 16384}")

    def sig_send(self, sd, vtag, vzero):
        self.e(f"buffer_store_dword v{vtag}, v{vzero}, s[40:43], s{sd} offen sc1")

    def sig_wait(self, sd, vt, vzero, sleep=0, restore=None):
        l = self.newlabel("sg")
        d = self.newlabel("sgd")
        self.e("s_mov_b32 s60, 0")
        self.label(l)
        self.e(f"""s_load_dword s66, s[38:39], s{sd} glc
s_add_u32 s60, s60, 1""")
        if restore:
            nr = self.newlabel("snr")
            self.e(f"s_cmp_lg_u32 s60, {RESTORE_IT}\ns_cbranch_scc1 {nr}")
            restore()
            self.label(nr)
        self.e(f"""s_cmp_ge_u32 s60, {SPIN_LIMIT}
s_cbranch_scc1 {d}
s_waitcnt lgkmcnt(0)
s_cmp_lg_u32 s66, s65
s_cbranch_scc1 {l}""")
        self.label(d)
        self.e("s_waitcnt lgkmcnt(0)")
        if sleep:
            self.e(f"s_sleep {sleep}")

    def check(self, regs, kind, vacc, first=True):
        e = self.e
        if kind == 'tag':
            for i, r in enumerate(regs):
                t = 12 + (i % 4)
                if first and i == 0:
                    e(f"v_xor_b32 v{vacc}, v{r}, v{t}")
                else:
                    e(f"v_bitop3_b32 v{vacc}, v{vacc}, v{r}, v{t} bitop3:0xf6")
        else:
            i = 0
            while i < len(regs):
                if first and i == 0:
                    if len(regs) >= 3:
                        e(f"v_max3_u32 v{vacc}, v{regs[0]}, v{regs[1]}, v{regs[2]}"); i = 3
                    elif len(regs) == 2:
                        e(f"v_max_u32 v{vacc}, v{regs[0]}, v{regs[1]}"); i = 2
                    else:
                        e(f"v_mov_b32 v{vacc}, v{regs[0]}"); i = 1
                elif len(regs) - i >= 2:
                    e(f"v_max3_u32 v{vacc}, v{vacc}, v{regs[i]}, v{regs[i+1]}"); i += 2
                else:
                    e(f"v_max_u32 v{vacc}, v{vacc}, v{regs[i]}"); i += 1

    def verdict(self, kind, vacc):
        if kind == 'tag':
            self.e(f"v_and_b32 v{vacc}, 0xff, v{vacc}\nv_cmp_ne_u32 vcc, 0, v{vacc}\ns_cmp_lg_u64 vcc, 0")
        else:
            self.e(f"v_cmp_eq_u32 vcc, -1, v{vacc}\ns_cmp_lg_u64 vcc, 0")

    def poll(self, loads, kind, vacc, restore=None):
        e = self.e
        l = self.newlabel("pl")
        d = self.newlabel("pld")
        e("s_mov_b32 s60, 0")
        self.label(l)
        for ins in loads:
            e(ins[0])
        e("s_add_u32 s60, s60, 1")
        if restore:
            nr = self.newlabel("pnr")
            e(f"s_cmp_lg_u32 s60, {RESTORE_IT}\ns_cbranch_scc1 {nr}")
            restore()
            self.label(nr)
        e(f"s_cmp_ge_u32 s60, {SPIN_LIMIT}\ns_cbranch_scc1 {d}\ns_waitcnt vmcnt(0)")
        for k, ins in enumerate(loads):
            self.check(list(range(ins[1], ins[1] + ins[2])), kind, vacc, first=(k == 0))
        self.verdict(kind, vacc)
        e(f"s_cbranch_scc1 {l}")
        self.label(d)
        e("s_waitcnt vmcnt(0)")

    def masks(self, m0, vi, vt, lo_rows):
        self.e(f"""v_and_b32 v{vt}, 1, v{vi}
v_cmp_eq_u32 vcc, 1, v{vt}
v_mov_b32 v{vt}, 0x0000ffff
v_mov_b32 v{vt+1}, 0xffff0000
v_cndmask_b32 v{vt}, v{vt}, v{vt+1}, vcc""")
        if lo_rows:
            self.e(f"v_bfe_u32 v{vt+1}, v{vi}, 1, 2")
        else:
            self.e(f"v_lshrrev_b32 v{vt+1}, 1, v{vi}")
        for r in range(4):
            self.e(f"""v_cmp_eq_u32 vcc, {r}, v{vt+1}
s_nop 1
v_cndmask_b32 v{m0+r}, 0, v{vt}, vcc""")

    def layernorm(self, vx, vt, sA, sB):
        e = self.e
        inv = 0x3acccccd
        e(f"""v_pk_add_f32 v[{vt}:{vt+1}], v[{vx}:{vx+1}], v[{vx+2}:{vx+3}]
v_pk_add_f32 v[{vt+2}:{vt+3}], v[{vx+4}:{vx+5}], v[{vx+6}:{vx+7}]
v_pk_add_f32 v[{vt}:{vt+1}], v[{vt}:{vt+1}], v[{vx+8}:{vx+9}]
v_pk_add_f32 v[{vt}:{vt+1}], v[{vt}:{vt+1}], v[{vt+2}:{vt+3}]
v_add_f32 v{vt}, v{vt}, v{vt+1}""")
        self.wave_sum(vt, sA)
        e(f"v_mov_b32 v{vt+4}, {inv:#x}\ns_nop 0\nv_mul_f32 v{vt+4}, s{sA}, v{vt+4}")
        for k in range(0, 10, 2):
            e(f"v_pk_add_f32 v[{vt+2}:{vt+3}], v[{vx+k}:{vx+k+1}], v[{vt+4}:{vt+5}] op_sel_hi:[1,0] neg_lo:[0,1] neg_hi:[0,1]")
            if k == 0:
                e(f"v_pk_mul_f32 v[{vt}:{vt+1}], v[{vt+2}:{vt+3}], v[{vt+2}:{vt+3}]")
            else:
                e(f"v_pk_fma_f32 v[{vt}:{vt+1}], v[{vt+2}:{vt+3}], v[{vt+2}:{vt+3}], v[{vt}:{vt+1}]")
        e(f"v_add_f32 v{vt}, v{vt}, v{vt+1}")
        self.wave_sum(vt, sB)
        e(f"""v_mov_b32 v{vt+2}, {inv:#x}
s_nop 0
v_mul_f32 v{vt+2}, s{sB}, v{vt+2}
v_cvt_pk_bf16_f32 v{vt+3}, v{vt+4}, v{vt+2}
v_lshlrev_b32 v{vt+4}, 16, v{vt+3}
v_and_b32 v{vt+2}, 0xffff0000, v{vt+3}
v_add_f32 v{vt+2}, 0x3727c5ac, v{vt+2}
v_cvt_pk_bf16_f32 v{vt+2}, v{vt+2}, v{vt+2}
v_and_b32 v{vt+2}, 0xffff0000, v{vt+2}
v_sqrt_f32 v{vt+2}, v{vt+2}""")
        for k in range(0, 10, 2):
            e(f"v_pk_add_f32 v[{vx+k}:{vx+k+1}], v[{vx+k}:{vx+k+1}], v[{vt+4}:{vt+5}] op_sel_hi:[1,0] neg_lo:[0,1] neg_hi:[0,1]")
        e(f"""v_cvt_pk_bf16_f32 v{vt+2}, v{vt+2}, v{vt+2}
v_and_b32 v{vt+2}, 0xffff0000, v{vt+2}
v_rcp_f32 v{vt+2}, v{vt+2}""")
        for k in range(0, 10, 2):
            a, b = vx + k, vx + k + 1
            e(f"""v_cvt_pk_bf16_f32 v{vt}, v{a}, v{b}
v_lshlrev_b32 v{a}, 16, v{vt}
v_and_b32 v{b}, 0xffff0000, v{vt}
v_pk_mul_f32 v[{a}:{b}], v[{a}:{b}], v[{vt+2}:{vt+3}] op_sel_hi:[1,0]""")

    def tree_sum(self, v0, n, width=4, stride=None):
        stride = stride or width
        step = 1
        while step < n:
            for k in range(0, n - step, 2 * step):
                for r in range(0, width, 2):
                    a = v0 + stride * k + r
                    b = v0 + stride * (k + step) + r
                    self.e(f"v_pk_add_f32 v[{a}:{a+1}], v[{a}:{a+1}], v[{b}:{b+1}]")
            step *= 2

    def build(self):
        nt = self.opt("nt", "nt")
        e = self.e
        self.o.append(f"; @launch grid=(256,1,1) block=(512,1,1) lds={LDS_BYTES}")
        self.o.append('.amdgcn_target "amdgcn-amd-amdhsa--gfx950"')
        self.o.append(".text")
        self.o.append(f".globl {KN}")
        self.o.append(".p2align 8")
        self.o.append(f".type {KN},@function")
        self.label(KN)
        e("""s_load_dwordx16 s[16:31], s[0:1], 0
s_load_dwordx8 s[32:39], s[0:1], 64
s_memrealtime s[62:63]
s_cmp_ge_u32 s2, 256
s_cbranch_scc1 L_end
s_cmp_ge_u32 s2, 16
s_cbranch_scc1 L_nocp
s_getpc_b64 s[60:61]
v_lshlrev_b32 v6, 6, v0
v_min_u32 v6, (L_codeend-L_nocp-64), v6
global_load_dword v255, v6, s[60:61]
L_nocp:
s_and_b32 s8, s2, 7
s_lshr_b32 s9, s2, 3
s_and_b32 s4, s2, 127
v_lshrrev_b32 v1, 6, v0
v_and_b32 v2, 15, v0
v_readfirstlane_b32 s7, v1
v_and_b32 v1, 63, v0
v_bfe_u32 v3, v0, 4, 2
v_lshlrev_b32 v4, 2, v1
v_lshlrev_b32 v5, 4, v1
s_and_b32 s10, s9, 3
s_lshl_b32 s5, s8, 2
s_add_u32 s5, s5, s10
s_lshr_b32 s6, s9, 2
v_mov_b32 v11, 0""")
        if self.stamps:
            for i in range(76, 100):
                e(f"s_mov_b32 s{i}, 0")
        self.stamp(0)
        e("""s_or_b32 s10, s2, s7
s_cmp_lg_u32 s10, 0
s_cbranch_scc1 L_nomaster
s_waitcnt lgkmcnt(0)
s_mul_i32 s62, s62, 0x9e3779b1
s_or_b32 s62, s62, 1
v_mov_b32 v16, s62
global_store_dword v4, v16, s[36:37] sc1
L_nomaster:
s_cmp_ge_u32 s7, 4
s_cbranch_scc1 L_hi""")
        self.commonA(nt)
        self.roleW(nt)
        self.roleKV(nt)
        self.label("L_fin")
        self.stamp_dump()
        self.label("L_end")
        e("s_endpgm")
        self.label("L_codeend")
        self.o.append(f""".section .rodata,"a"
.p2align 6
.amdhsa_kernel {KN}
  .amdhsa_next_free_vgpr 256
  .amdhsa_next_free_sgpr 100
  .amdhsa_accum_offset 256
  .amdhsa_group_segment_fixed_size 0
  .amdhsa_kernarg_size 96
  .amdhsa_user_sgpr_count 2
  .amdhsa_user_sgpr_kernarg_segment_ptr 1
  .amdhsa_system_sgpr_workgroup_id_x 1
.end_amdhsa_kernel""")
        return "\n".join(self.o) + "\n"

    def commonA(self, nt):
        e = self.e
        AB = 133248
        XT, QRED = AB, AB + 10240
        e("""s_mul_i32 s10, s6, 80
s_mul_i32 s11, s7, 20
s_add_u32 s10, s10, s11
s_lshl_b32 s11, s10, 13
s_lshl_b32 s12, s5, 8
s_add_u32 s11, s11, s12
v_lshlrev_b32 v6, 13, v3
v_lshl_add_u32 v6, v2, 4, v6
v_add_u32 v6, s11, v6
s_waitcnt lgkmcnt(0)""")
        for k in range(5):
            e(f"global_load_dword v{76+k}, v4, s[16:17] offset:{256*k}")
        for t in range(5):
            e(f"global_load_dwordx4 v[{16+4*t}:{19+4*t}], v6, s[20:21] {nt}")
            if t < 4:
                e("v_add_u32 v6, 0x8000, v6")
        self.srd(40, 38, WS_RECORDS)
        self.srd(56, 36, 256)
        self.masks(68, 2, 92, False)
        e(f"""s_mul_i32 s14, s7, 2560
s_add_u32 s14, s14, {XT}
v_lshlrev_b32 v8, 3, v1
v_add_u32 v8, s14, v8
s_lshl_b32 s15, s10, 2
s_add_u32 s15, s15, s14
v_lshl_add_u32 v9, v3, 2, s15
v_lshlrev_b32 v10, 5, v2
v_lshl_add_u32 v10, v3, 4, v10
s_lshl_b32 s14, s7, 9
s_add_u32 s14, s14, {QRED}
v_add_u32 v10, s14, v10
v_mov_b32 v227, {NB}
v_add_u32 v7, {QRED}, v5
s_lshl_b32 s68, s5, 12
s_add_u32 s68, s68, {Q1}
s_lshl_b32 s69, s6, 9
s_add_u32 s69, s69, s68
s_waitcnt vmcnt(5)""")
        for k in range(5):
            e(f"v_lshlrev_b32 v{82+2*k}, 16, v{76+k}\nv_and_b32 v{83+2*k}, 0xffff0000, v{76+k}")
        self.layernorm(82, 92, 62, 63)
        for k in range(5):
            e(f"""v_cvt_pk_bf16_f32 v{92+2*(k%2)}, v{82+2*k}, v{82+2*k}
v_cvt_pk_bf16_f32 v{93+2*(k%2)}, v{83+2*k}, v{83+2*k}
ds_write_b64 v8, v[{92+2*(k%2)}:{93+2*(k%2)}] offset:{512*k}""")
        e("s_waitcnt lgkmcnt(0)")
        for t in range(5):
            e(f"ds_read_b32 v{82+t}, v9 offset:{16*t}")
        e("s_waitcnt lgkmcnt(0)")
        for t in range(5):
            for r in range(4):
                e(f"v_and_b32 v{96+4*t+r}, v{82+t}, v{68+r}")
        ln = self.newlabel("a_nn")
        e(f"s_cmp_lg_u32 s7, 0\ns_cbranch_scc1 {ln}")
        self.wait_nonce(90)
        e(f"v_mov_b32 v90, s65\nds_write_b32 v227, v90 offset:{NON}")
        self.label(ln)
        for t in range(5):
            c = "0" if t == 0 else "v[116:119]"
            e(f"s_waitcnt vmcnt({4-t})")
            e(f"v_mfma_f32_16x16x32_bf16 v[116:119], v[{96+4*t}:{99+4*t}], v[{16+4*t}:{19+4*t}], {c}")
        self.stamp(1)
        e("s_nop 2")
        e(f"""s_nop 4
s_mov_b32 exec_hi, 0
ds_write_b128 v10, v[116:119]
s_mov_b64 exec, -1
s_waitcnt lgkmcnt(0)
s_barrier""")
        self.stamp(2)
        e("s_cmp_lg_u32 s7, 0\ns_cbranch_scc1 L_lo123")
        for wv in range(4):
            e(f"ds_read_b128 v[{120+4*wv}:{123+4*wv}], v7 offset:{512*wv}")
        self.set_tags()
        e("s_waitcnt lgkmcnt(0)")
        self.tree_sum(120, 4)
        self.tag4(120)
        e("""s_mov_b32 exec_hi, 0
buffer_store_dwordx4 v[120:123], v5, s[40:43], s69 offen
s_mov_b64 exec, -1
s_mov_b32 s73, s69
s_cmp_ge_u32 s9, 16
s_cbranch_scc1 L_kv_w0""")

    def get_nonce_lds(self, vt):
        self.e(f"""ds_read_b32 v{vt}, v227 offset:{NON}
s_waitcnt lgkmcnt(0)
v_readfirstlane_b32 s65, v{vt}""")
        self.set_tags()

    def roleW(self, nt):
        e = self.e
        QBF, QAL, CLX, RED, RED2 = 24576, 24832, 25600, 26624, 28672
        e("""v_and_b32 v8, 31, v1
v_lshlrev_b32 v8, 3, v8
v_lshrrev_b32 v9, 5, v1
v_lshl_add_u32 v8, v9, 2, v8""")

        def restore_q1():
            e("""s_mov_b32 exec_hi, 0
buffer_store_dwordx4 v[120:123], v5, s[40:43], s73 offen sc1
s_mov_b64 exec, -1""")
        self.restore_q1 = restore_q1
        self.poll([(f"buffer_load_dwordx4 v[{124+4*k}:{127+4*k}], v5, s[40:43], s68 offen offset:{1024*k} sc1", 124 + 4 * k, 4) for k in range(4)], 'tag', 90, restore=restore_q1)
        self.stamp(3)
        self.tree_sum(124, 4)
        e(f"""s_nop 0
v_permlane32_swap_b32 v124, v126
v_permlane32_swap_b32 v125, v127
s_nop 0
v_pk_add_f32 v[124:125], v[124:125], v[126:127]
v_cvt_pk_bf16_f32 v124, v124, v125
ds_write_b32 v8, v124 offset:{QBF}
ds_write_b32 v11, v11 offset:{QAL + 268}
ds_write_b32 v11, v11 offset:{QAL + 284}
s_waitcnt lgkmcnt(0)
s_barrier""")
        e(f"""v_lshrrev_b32 v8, 1, v1
v_and_b32 v9, 1, v1
v_cmp_gt_u32 vcc, 8, v8
v_lshlrev_b32 v128, 5, v8
v_mul_u32_u24 v129, 96, v8
v_add_u32 v129, {-768+12 & 0xffffffff:#x}, v129
v_cndmask_b32 v128, v129, v128, vcc
v_lshl_add_u32 v128, v9, 4, v128
v_mov_b32 v129, 32
v_cndmask_b32 v130, v129, 4, vcc
v_add_u32 v129, v128, v130
v_add_u32 v130, v129, v130
v_lshlrev_b32 v8, 10, v8
v_lshl_add_u32 v8, v9, 4, v8
s_lshr_b32 s10, s5, 4
s_mul_i32 s10, s10, {22*1024}
s_lshr_b32 s11, s6, 1
s_mul_i32 s11, s11, {11*1024}
s_add_u32 s10, s10, s11
s_and_b32 s11, s5, 15
s_lshl_b32 s11, s11, 6
s_add_u32 s10, s10, s11
s_and_b32 s11, s6, 1
s_lshl_b32 s11, s11, 5
s_add_u32 s10, s10, s11
s_add_u32 s10, s10, {QA}
v_mov_b32 v127, s67
v_mov_b32 v90, s65""")
        self.sig_prep(0, 70)
        if self.opt("sig0_early", 1):
            self.sig_send(70, 90, 11)
        e(f"""s_mov_b32 exec_lo, 0x3fffff
s_mov_b32 exec_hi, 0
s_barrier
ds_read_b32 v124, v128 offset:{QAL}
ds_read_b32 v125, v129 offset:{QAL}
ds_read_b32 v126, v130 offset:{QAL}
s_waitcnt lgkmcnt(0)
buffer_store_dwordx4 v[124:127], v8, s[40:43], s10 offen sc1
s_mov_b64 exec, -1""")
        if not self.opt("sig0_early", 1):
            self.sig_send(70, 90, 11)
        self.stamp(4)
        e("s_branch L_w_join")
        self.label("L_lo123")
        e("s_cmp_ge_u32 s9, 16\ns_cbranch_scc1 L_kv_lo")
        self.get_nonce_lds(90)
        e("s_barrier\ns_barrier\ns_branch L_w_join")
        self.label("L_hi")
        e(f"""s_lshr_b32 s13, s6, 1
s_lshl_b32 s13, s13, 8
s_and_b32 s14, s6, 1
s_lshl_b32 s14, s14, 4
s_add_u32 s13, s13, s14
s_sub_u32 s14, s7, 4
s_lshl_b32 s14, s14, 6
s_add_u32 s13, s13, s14
s_lshl_b32 s13, s13, 13
s_lshl_b32 s12, s5, 8
s_add_u32 s13, s13, s12
v_xor_b32 v7, v2, v3
v_lshlrev_b32 v7, 4, v7
v_lshl_add_u32 v7, v3, 13, v7
v_mov_b32 v227, {NB}
s_waitcnt lgkmcnt(0)""")
        self.srd(56, 36, 256)
        self.srd(40, 38, WS_RECORDS)
        e("s_cmp_ge_u32 s9, 16\ns_cbranch_scc1 L_kv_hi")
        lpw = self.newlabel("w_pw")
        e(f"""s_cmp_lg_u32 s7, 4
s_cbranch_scc1 {lpw}
s_lshl_b32 s68, s5, 12
s_add_u32 s68, s68, {Q1}
v_lshlrev_b32 v8, 6, v1
buffer_load_dword v91, v8, s[40:43], s68 offen sc1""")
        self.label(lpw)
        ntk = self.opt("nt_wuk", nt)
        if ntk == "none":
            ntk = ""
        if self.opt("sl_wuk", 1):
            e(f"s_sleep {self.opt('sl_wuk', 1)}")
        WKL = 32768
        self.srd(52, 22, 4194304)
        e(f"""s_sub_u32 s14, s7, 4
s_lshl_b32 s14, s14, 13
s_add_u32 s14, s14, {WKL}
v_lshlrev_b32 v6, 8, v2
v_add_u32 v6, s14, v6""")
        for k in range(8):
            e(f"""s_mov_b32 m0, s14
v_xor_b32 v8, {64*(k&3)}, v7
buffer_load_dwordx4 v8, s[52:55], s13 offen {ntk} lds
s_add_u32 s14, s14, 1024
s_add_u32 s13, s13, {32768 if k != 3 else 32768 + 16*8192}""")
        for t in range(4):
            e(f"""v_or_b32 v8, {4*t}, v3
v_xor_b32 v8, v8, v2
v_lshl_add_u32 v{100+t}, v8, 4, v6""")
        e(f"""v_lshlrev_b32 v9, 4, v3
s_sub_u32 s14, s7, 4
s_lshl_b32 s14, s14, 6
v_lshl_add_u32 v8, v3, 3, s14
s_barrier""")
        self.get_nonce_lds(90)
        e("s_waitcnt vmcnt(0)")
        self.stamp(1)
        for t in range(4):
            e(f"ds_read_b128 v[{36+4*t}:{39+4*t}], v{100+t}\nds_read_b128 v[{52+4*t}:{55+4*t}], v{100+t} offset:4096")
        e("s_waitcnt lgkmcnt(0)\ns_barrier")
        for t in range(4):
            e(f"ds_read_b128 v[{120+4*t}:{123+4*t}], v9 offset:{QBF + 64*t}")
        for t in range(4):
            c0 = "0" if t == 0 else "v[116:119]"
            c1 = "0" if t == 0 else "v[136:139]"
            e(f"s_waitcnt lgkmcnt({3-t})")
            e(f"v_mfma_f32_16x16x32_bf16 v[116:119], v[{36+4*t}:{39+4*t}], v[{120+4*t}:{123+4*t}], {c0}")
            e(f"v_mfma_f32_16x16x32_bf16 v[136:139], v[{52+4*t}:{55+4*t}], v[{120+4*t}:{123+4*t}], {c1}")
        e(f"""s_nop 6
v_cvt_pk_bf16_f32 v140, v116, v117
v_cvt_pk_bf16_f32 v141, v118, v119
v_cvt_pk_bf16_f32 v142, v136, v137
v_cvt_pk_bf16_f32 v143, v138, v139
ds_write_b64 v8, v[140:141] offset:{QAL}
ds_write_b64 v8, v[142:143] offset:{QAL + 32}
s_waitcnt lgkmcnt(0)
s_barrier""")
        self.label("L_w_join")
        self.masks(72, 2, 92, True)
        if self.opt("sl_de", 0):
            e(f"s_sleep {self.opt('sl_de', 0)}")
        nto = self.opt("nt_wo", nt)
        e("""s_lshr_b32 s10, s6, 1
s_and_b32 s11, s6, 1
v_lshrrev_b32 v6, 3, v2
v_lshl_add_u32 v6, v6, 2, v3
v_lshlrev_b32 v7, 4, v6
v_lshlrev_b32 v6, 13, v6
v_and_b32 v8, 7, v2
v_lshl_add_u32 v6, v8, 4, v6
s_lshl_b32 s12, s10, 8
s_lshl_b32 s13, s7, 5
s_add_u32 s12, s12, s13
s_lshl_b32 s12, s12, 13
s_lshl_b32 s13, s5, 8
s_add_u32 s12, s12, s13
s_lshl_b32 s13, s11, 7
s_add_u32 s12, s12, s13
v_add_u32 v6, s12, v6""")
        for t in range(4):
            e(f"global_load_dwordx4 v[{16+4*t}:{19+4*t}], v6, s[24:25] {nt}")
            if t < 3:
                e("v_add_u32 v6, 0x10000, v6")
        lwo = self.newlabel("w_nowo")
        e(f"""s_cmp_ge_u32 s7, 4
s_cbranch_scc1 {lwo}
v_mul_u32_u24 v6, 5120, v3
v_lshl_add_u32 v6, v2, 4, v6
s_lshl_b32 s12, s5, 7
s_lshl_b32 s13, s11, 6
s_add_u32 s12, s12, s13
s_lshl_b32 s13, s7, 4
s_add_u32 s12, s12, s13
s_mul_i32 s12, s12, 1280
v_add_u32 v6, s12, v6""")
        for t in range(4):
            for b in range(5):
                r = 160 + (t * 5 + b) * 4
                e(f"global_load_dwordx4 v[{r}:{r+3}], v6, s[26:27] offset:{1280*(t%2) + 256*b} {nto}")
            if t == 1:
                e("v_add_u32 v6, 2560, v6")
        self.label(lwo)
        e(f"""v_and_b32 v8, 1, v3
v_lshlrev_b32 v8, 1, v8
v_lshrrev_b32 v9, 1, v3
v_or_b32 v8, v8, v9
v_and_b32 v9, 1, v1
v_lshl_add_u32 v8, v9, 2, v8
v_bfe_u32 v9, v1, 1, 2
v_lshl_add_u32 v8, v8, 2, v9
v_lshlrev_b32 v8, 2, v8
s_lshl_b32 s12, s7, 7
v_add_u32 v8, s12, v8
v_add_u32 v7, s12, v7
v_lshrrev_b32 v9, 3, v1
v_lshlrev_b32 v10, 4, v9
v_lshlrev_b32 v9, 9, v9
v_and_b32 v6, 7, v1
v_lshl_add_u32 v9, v6, 4, v9
s_lshl_b32 s12, s5, 2
s_lshl_b32 s13, s10, 1
s_add_u32 s12, s12, s13
s_lshr_b32 s13, s7, 2
s_add_u32 s12, s12, s13
s_lshl_b32 s12, s12, 14
s_and_b32 s13, s7, 3
s_lshl_b32 s13, s13, 7
s_add_u32 s12, s12, s13
s_add_u32 s12, s12, {OB}
s_add_u32 s13, s12, 4096
s_add_u32 s14, s12, 8192
s_add_u32 s15, s12, 12288
s_lshl_b32 s68, s5, 9
s_add_u32 s68, s68, {OS}
v_and_b32 v36, 7, v2
v_lshlrev_b32 v36, 5, v36
v_lshl_add_u32 v36, v3, 4, v36
s_lshl_b32 s61, s7, 8
v_add_u32 v36, s61, v36
s_lshl_b32 s61, s7, 6
v_lshl_add_u32 v37, v3, 4, s61
v_lshlrev_b32 v38, 5, v2
v_lshl_add_u32 v38, v3, 4, v38
s_mul_i32 s61, s7, 2560
v_add_u32 v38, s61, v38
v_subrev_u32 v39, 256, v0
v_lshrrev_b32 v40, 3, v39
v_lshlrev_b32 v40, 11, v40
v_and_b32 v41, 7, v39
v_lshl_add_u32 v40, v41, 4, v40
v_lshlrev_b32 v41, 4, v39
s_mul_i32 s69, s8, {20*2048}
s_lshl_b32 s61, s9, 7
s_add_u32 s69, s69, s61
s_add_u32 s69, s69, {EL}
s_and_b32 s61, s4, 0x67
v_mov_b32 v42, s65
s_mov_b32 s62, {LOG2E:#x}""")
        self.sig_prep(1, 70, "s61")
        self.sig_prep(2, 71)
        self.sig_prep(3, 72)
        e("s_waitcnt vmcnt(0)")
        self.stamp(5)
        lrq = self.newlabel("w_rq")
        lpe = self.newlabel("w_pe")
        e(f"""s_cmp_lg_u32 s7, 0
s_cbranch_scc1 {lrq}
s_mov_b32 exec_hi, 0
buffer_store_dwordx4 v[120:123], v5, s[40:43], s73 offen sc1
s_mov_b64 exec, -1""")
        self.label(lrq)
        e(f"""s_sub_u32 s61, s7, 4
s_lshl_b32 s61, s61, 4
s_add_u32 s61, s61, s9
s_cmp_ge_u32 s61, 20
s_cbranch_scc1 {lpe}
s_mul_i32 s63, s8, 20
s_add_u32 s63, s63, s61
s_lshl_b32 s63, s63, 11
s_add_u32 s63, s63, {EL}
v_lshlrev_b32 v44, 5, v1
buffer_load_dword v45, v44, s[40:43], s63 offen sc1""")
        self.label(lpe)
        self.sig_wait(71, 44, 11, self.opt("sl_h3", 44))
        self.stamp(6)
        loads = [(f"buffer_load_dwordx4 v[{48+4*k}:{51+4*k}], v10, s[40:43], s68 offen offset:{128*k} sc1", 48 + 4 * k, 4) for k in range(4)]
        loads += [(f"buffer_load_dwordx4 v[{120+4*k}:{123+4*k}], v9, s[40:43], s{12+k} offen sc1", 120 + 4 * k, 4) for k in range(4)]
        self.poll(loads, 'tag', 44)
        self.stamp(7)
        for k in range(4):
            e(f"v_and_b32 v{48+4*k}, s64, v{48+4*k}")
        e(f"""v_max3_f32 v44, v48, v52, v56
v_max_f32 v44, v44, v60
s_nop 1
v_max_f32_dpp v44, v44, v44 row_ror:8 row_mask:0xf bank_mask:0xf
s_nop 0
v_mov_b32 v45, v44
s_nop 1
v_permlane16_swap_b32 v44, v45
s_nop 0
v_max_f32 v44, v44, v45
v_mov_b32 v45, v44
s_nop 1
v_permlane32_swap_b32 v44, v45
s_nop 0
v_max_f32 v44, v44, v45
v_mul_f32 v44, s62, v44""")
        for k in range(4):
            e(f"v_fma_f32 v{48+4*k}, v{48+4*k}, s62, -v44")
        for k in range(4):
            e(f"v_exp_f32 v{48+4*k}, v{48+4*k}")
        e("s_nop 0\nv_mul_f32 v46, v48, v49")
        for k in range(1, 4):
            e(f"v_fmac_f32 v46, v{48+4*k}, v{49+4*k}")
        for r in (0, 2):
            e(f"v_pk_mul_f32 v[{120+r}:{121+r}], v[{120+r}:{121+r}], v[48:49] op_sel_hi:[1,0]")
        e("v_add_f32_dpp v46, v46, v46 row_ror:8 row_mask:0xf bank_mask:0xf")
        for k in range(1, 4):
            for r in (0, 2):
                e(f"v_pk_fma_f32 v[{120+r}:{121+r}], v[{120+4*k+r}:{121+4*k+r}], v[{48+4*k}:{49+4*k}], v[{120+r}:{121+r}] op_sel_hi:[1,0,1]")
            if k == 1:
                e("v_mov_b32 v45, v46")
            if k == 2:
                e("v_permlane16_swap_b32 v46, v45")
        e(f"""v_add_f32 v46, v46, v45
v_permlane32_swap_b32 v120, v121
v_mov_b32 v45, v46
v_permlane32_swap_b32 v122, v123
v_add_f32 v120, v120, v121
v_permlane32_swap_b32 v46, v45
v_add_f32 v122, v122, v123
v_add_f32 v46, v46, v45
s_nop 0
v_permlane16_swap_b32 v120, v122
v_rcp_f32 v46, v46
v_add_f32 v120, v120, v122
s_nop 1
v_add_f32_dpp v120, v120, v120 row_ror:8 row_mask:0xf bank_mask:0xf
s_nop 0
v_mul_f32 v120, v120, v46
v_cvt_pk_bf16_f32 v120, v120, v120
ds_write_b32 v8, v120 offset:{CLX}
s_waitcnt lgkmcnt(0)
ds_read_b128 v[120:123], v7 offset:{CLX}
s_waitcnt lgkmcnt(0)""")
        for t in range(4):
            for r in range(4):
                e(f"v_and_b32 v{96+4*t+r}, v{120+t}, v{72+r}")
            if t > 0:
                c = "0" if t == 1 else "v[116:119]"
                e(f"v_mfma_f32_16x16x32_bf16 v[116:119], v[{96+4*(t-1)}:{99+4*(t-1)}], v[{16+4*(t-1)}:{19+4*(t-1)}], {c}")
        e("s_nop 0\nv_mfma_f32_16x16x32_bf16 v[116:119], v[108:111], v[28:31], v[116:119]\ns_nop 7")
        for r in range(4):
            e(f"v_mov_b32 v{124+r}, v{116+r}")
        for r in range(4):
            e(f"v_permlane32_swap_b32 v{116+r}, v{124+r}")
        for r in range(4):
            e(f"v_add_f32_dpp v{116+r}, v{124+r}, v{116+r} row_ror:8 row_mask:0xf bank_mask:0xf")
        e(f"""s_mov_b32 exec_lo, 0x00ff00ff
s_mov_b32 exec_hi, 0
ds_write_b128 v36, v[116:119] offset:{RED}
s_mov_b64 exec, -1
s_waitcnt lgkmcnt(0)
s_barrier""")
        lhi = self.newlabel("w_hi")
        e(f"s_cmp_ge_u32 s7, 4\ns_cbranch_scc1 {lhi}")
        for p in range(8):
            e(f"ds_read_b128 v[{120+4*p}:{123+4*p}], v37 offset:{RED + 256*p}")
        e("s_waitcnt lgkmcnt(0)")
        self.tree_sum(120, 8)
        for t in range(4):
            e(f"v_cvt_pk_bf16_f32 v{124+t}, v{120+t}, v{120+t}")
        for t in range(4):
            for r in range(4):
                e(f"v_and_b32 v{96+4*t+r}, v{124+t}, v{68+r}")
            e("s_nop 1")
            for b in range(5):
                r = 160 + (t * 5 + b) * 4
                c = "0" if t == 0 else f"v[{136+4*b}:{139+4*b}]"
                e(f"v_mfma_f32_16x16x32_bf16 v[{136+4*b}:{139+4*b}], v[{96+4*t}:{99+4*t}], v[{r}:{r+3}], {c}")
        e("s_mov_b32 exec_hi, 0\ns_nop 3")
        for b in range(5):
            if b == 4:
                e("s_nop 3")
            e(f"ds_write_b128 v38, v[{136+4*b}:{139+4*b}] offset:{RED2 + 512*b}")
        e("s_mov_b64 exec, -1\ns_waitcnt lgkmcnt(0)\ns_barrier")
        self.stamp(8)
        e("""s_cmp_ge_u32 s4, 40
s_cbranch_scc1 L_fin
s_cmp_lg_u32 s7, 0
s_cbranch_scc1 L_fin""")
        self.colidx(8, 9)
        self.srd(44, 16, 1280)
        self.srd(52, 34, 1280)
        e(f"""s_lshl_b32 s12, s4, 5
v_lshlrev_b32 v9, 1, v8
buffer_load_ushort v50, v9, s[44:47], s12 offen
s_mul_i32 s12, s4, 7168
s_add_u32 s12, s12, {FB}
s_add_u32 s13, s12, 4096
v_cmp_gt_u32 vcc, 48, v1
v_add_u32 v10, 1024, v5
s_nop 0
v_cndmask_b32 v10, v5, v10, vcc
v_bfe_u32 v51, v1, 2, 3
v_mul_u32_u24 v51, 2560, v51
v_and_b32 v52, 3, v1
v_lshl_add_u32 v51, v52, 4, v51
s_lshl_b32 s14, s4, 6
s_add_u32 s14, s14, {XB}""")
        self.sig_prep(4, 70)
        self.sig_wait(72, 16, 11, self.opt("sl_h5", 0) + 8)
        self.poll([("buffer_load_dwordx4 v[44:47], v51, s[40:43], s14 offen sc1", 44, 4)], 'tag', 53)
        e("v_cmp_gt_u32 vcc, 32, v1\ns_nop 1")
        for r in range(4):
            e(f"v_cndmask_b32 v{44+r}, 0, v{44+r}, vcc")
        self.reduce16(44, 1)
        e(f"""v_cvt_pk_bf16_f32 v44, v44, v44
v_and_b32 v44, 0xffff0000, v44
v_lshlrev_b32 v50, 16, v50
v_add_f32 v44, v44, v50
v_cvt_pk_bf16_f32 v44, v44, v44
v_and_b32 v44, 0xffff0000, v44
s_lshl_b32 s15, s4, 5
s_mov_b32 s62, 0x000f000f
s_mov_b32 s63, 0x000f000f
v_cmp_gt_u32 s[68:69], 48, v1""")
        self.sig_wait(70, 16, 11, self.opt("sl_h6", 0))
        loads = [(f"buffer_load_dwordx4 v[{16+4*k}:{19+4*k}], v5, s[40:43], s{12 + k//4} offen offset:{1024*(k%4)} sc1", 16 + 4 * k, 4) for k in range(6)]
        loads += [("buffer_load_dwordx4 v[40:43], v10, s[40:43], s13 offen offset:1024 sc1", 40, 4)]
        self.poll(loads, 'tag', 53)
        self.stamp(9)
        for r in range(4):
            e(f"v_cndmask_b32 v{40+r}, 0, v{40+r}, s[68:69]")
        self.reduce16(16, 7)
        e(f"""s_nop 0
v_cvt_pk_bf16_f32 v16, v16, v16
v_and_b32 v16, 0xffff0000, v16
v_add_f32 v16, v16, v44
v_cvt_pk_bf16_f32 v16, v16, v16
s_mov_b64 exec, s[62:63]
buffer_store_short v16, v9, s[52:55], s15 offen
s_mov_b64 exec, -1""")
        self.stamp(10)
        e("s_branch L_fin")
        self.label(lhi)
        e(f"""s_sub_u32 s10, s7, 4
s_lshl_b32 s10, s10, 4
s_add_u32 s10, s10, s9
s_mul_i32 s12, s8, 20
s_add_u32 s12, s12, s10
s_lshl_b32 s12, s12, 11
s_add_u32 s12, s12, {EL}
s_mul_i32 s13, s8, 2560
s_lshl_b32 s14, s10, 7
s_add_u32 s13, s13, s14
s_add_u32 s13, s13, {XB}
v_cmp_gt_u32 vcc, 160, v39
s_and_saveexec_b64 s[62:63], vcc
s_barrier
s_cbranch_execz L_fin""")
        for wv in range(4):
            e(f"ds_read_b128 v[{120+4*wv}:{123+4*wv}], v41 offset:{RED2 + 2560*wv}")
        e("s_waitcnt lgkmcnt(0)")
        self.tree_sum(120, 4)
        self.tag4(120)
        e("buffer_store_dwordx4 v[120:123], v40, s[40:43], s69 offen")
        self.stamp(8)

        def restore_el():
            e("buffer_store_dwordx4 v[120:123], v40, s[40:43], s69 offen sc1")
        lnr = self.newlabel("w_nored")
        e(f"s_cmp_ge_u32 s10, 20\ns_cbranch_scc1 {lnr}")
        self.poll([(f"buffer_load_dwordx4 v[{124+4*k}:{127+4*k}], v5, s[40:43], s12 offen offset:{1024*k} sc1", 124 + 4 * k, 4) for k in range(2)], 'tag', 44, restore=restore_el)
        self.stamp(9)
        self.tree_sum(124, 2)
        e("s_nop 0")
        for r in range(4):
            e(f"v_add_f32_dpp v{124+r}, v{124+r}, v{124+r} row_ror:8 row_mask:0xf bank_mask:0xf")
        for r in range(4):
            e(f"v_mov_b32 v{128+r}, v{124+r}")
        for r in range(4):
            e(f"v_permlane16_swap_b32 v{124+r}, v{128+r}")
        self.tree_sum(124, 2)
        for r in range(4):
            e(f"v_mov_b32 v{128+r}, v{124+r}")
        for r in range(4):
            e(f"v_permlane32_swap_b32 v{124+r}, v{128+r}")
        self.tree_sum(124, 2)
        self.tag4(124)
        e("""s_mov_b64 exec, 0xff
buffer_store_dwordx4 v[124:127], v5, s[40:43], s13 offen sc1
s_mov_b64 exec, -1""")
        lns = self.newlabel("w_nosig")
        e(f"s_cmp_lg_u32 s7, 4\ns_cbranch_scc1 {lns}")
        self.sig_send(72, 42, 11)
        self.label(lns)
        self.stamp(10)
        self.label(lnr)
        e(f"s_sleep {self.opt('sl_el', 64)}")
        restore_el()
        e("s_branch L_fin")

    def colidx(self, vd, vt):
        self.e(f"""v_and_b32 v{vd}, 1, v3
v_lshlrev_b32 v{vd}, 1, v{vd}
v_lshrrev_b32 v{vt}, 1, v3
v_or_b32 v{vd}, v{vd}, v{vt}
v_and_b32 v{vt}, 3, v1
v_lshl_add_u32 v{vd}, v{vt}, 2, v{vd}""")

    def reduce16(self, v0, n):
        e = self.e
        self.tree_sum(v0, n)
        a = v0
        e(f"""s_nop 1
v_permlane32_swap_b32 v{a}, v{a+1}
v_permlane32_swap_b32 v{a+2}, v{a+3}
s_nop 0
v_add_f32 v{a}, v{a}, v{a+1}
v_add_f32 v{a+2}, v{a+2}, v{a+3}
s_nop 1
v_permlane16_swap_b32 v{a}, v{a+2}
s_nop 0
v_add_f32 v{a}, v{a}, v{a+2}
s_nop 1
v_add_f32_dpp v{a}, v{a}, v{a} row_ror:8 row_mask:0xf bank_mask:0xf
s_nop 1
v_add_f32_dpp v{a}, v{a}, v{a} row_ror:4 row_mask:0xf bank_mask:0xf""")

    def acc(self, k):
        return 168 + 4 * k if k < 11 else 64 + 4 * (k - 11)

    def roleKV(self, nt):
        e = self.e
        RT, BT, QL, XCH, PL, SL = 0, 67584, 4096, 49152, 4096, 64
        W1L, HN, HF = 24576, 45056, 50176

        def ids():
            e(f"""s_bfe_u32 s10, s9, 0x20002
s_lshl_b32 s5, s8, 2
s_add_u32 s5, s5, s10
s_and_b32 s6, s9, 3""")
            self.srd(44, 18, 8388608)
            e(f"""s_lshl_b32 s10, s5, 3
s_lshl_b32 s11, s6, 1
s_add_u32 s10, s10, s11
s_mul_i32 s68, s10, {2*PMSG}
s_add_u32 s68, s68, {PB}
s_lshl_b32 s69, s5, 7
s_add_u32 s69, s69, {RDY}""")

        def rows(done):
            e(f"""s_sub_u32 s15, s7, 1
s_lshl_b32 s12, s5, 8
s_lshl_b32 s13, s6, 6
s_add_u32 s12, s12, s13
s_add_u32 s12, s12, s15
s_lshl_b32 s12, s12, 10
s_mul_i32 s14, s15, 1040
s_add_u32 s14, s14, {RT}""")
            for k in range(11):
                if k == 10:
                    e(f"s_cmp_ge_u32 s15, 4\ns_cbranch_scc1 {done}")
                e(f"""s_mov_b32 m0, s14
s_add_u32 s14, s14, {6*1040}
buffer_load_dwordx4 v5, s[44:47], s12 offen {nt} lds
s_add_u32 s12, s12, {6*1024}""")
        lj = "L_kv_join"
        self.label("L_kv_w0")
        ids()
        e(f"s_branch {lj}")
        self.label("L_kv_lo")
        ids()
        rows(lj)
        e(f"s_branch {lj}")
        self.label("L_kv_hi")
        ids()
        l7 = self.newlabel("kv_w7")
        lrd = self.newlabel("kv_rowsd")
        e(f"s_cmp_eq_u32 s7, 7\ns_cbranch_scc1 {l7}")
        if self.opt("sl_ckv", 28):
            e(f"s_sleep {self.opt('sl_ckv', 28)}")
        rows(lrd)
        self.label(lrd)
        e(f"s_barrier\ns_branch {lj}")
        self.label(l7)
        e("""v_mov_b32 v20, -1
v_mov_b32 v21, -1
v_mov_b32 v22, -1
v_mov_b32 v23, -1
buffer_store_dwordx4 v[20:23], v5, s[40:43], s68 offen sc1
buffer_store_dwordx4 v[20:23], v5, s[40:43], s68 offen offset:1024 sc1
buffer_store_dwordx4 v[20:23], v5, s[40:43], s68 offen offset:2048 sc1
buffer_store_dwordx4 v[20:23], v5, s[40:43], s68 offen offset:3072 sc1
buffer_store_dwordx4 v[20:23], v5, s[40:43], s68 offen offset:3584 sc1""")
        e(f"""ds_write_b32 v227, v11 offset:{FLG}
ds_write_b32 v227, v11 offset:{FLG+4}
s_waitcnt lgkmcnt(0)
s_barrier
ds_read_b32 v60, v227 offset:{NON}
s_lshl_b32 s12, s6, 4
s_add_u32 s12, s12, s69
s_waitcnt vmcnt(0) lgkmcnt(0)
v_mov_b32 v61, v60
v_mov_b32 v62, v60
v_mov_b32 v63, v60
s_mov_b64 exec, 1
buffer_store_dwordx4 v[60:63], v11, s[40:43], s12 offen sc1
s_mov_b64 exec, -1
v_readfirstlane_b32 s65, v60
s_mov_b32 s60, 0""")
        lr = self.newlabel("kv_rdy")
        lrdn = self.newlabel("kv_rdyd")
        self.label(lr)
        e(f"""s_load_dwordx16 s[76:91], s[38:39], s69 glc
s_add_u32 s60, s60, 1
s_cmp_ge_u32 s60, {SPIN_LIMIT}
s_cbranch_scc1 {lrdn}
s_waitcnt lgkmcnt(0)
s_xor_b32 s76, s76, s65
s_xor_b32 s80, s80, s65
s_xor_b32 s84, s84, s65
s_xor_b32 s88, s88, s65
s_or_b32 s76, s76, s80
s_or_b32 s84, s84, s88
s_or_b32 s76, s76, s84
s_cbranch_scc1 {lr}""")
        self.label(lrdn)
        e(f"""s_waitcnt lgkmcnt(0)
s_mul_i32 s12, s5, {16*PMSG}
s_add_u32 s12, s12, {PB}
v_mul_u32_u24 v8, 96, v1
buffer_load_dword v250, v8, s[40:43], s12 offen sc1
s_add_u32 s12, s12, 6144
buffer_load_dword v251, v8, s[40:43], s12 offen sc1
s_add_u32 s12, s12, 6144
buffer_load_dword v252, v8, s[40:43], s12 offen sc1""")
        self.label(lj)
        e(f"""s_lshr_b32 s10, s7, 2
s_lshl_b32 s10, s10, 9
s_bfe_u32 s11, s7, 0x10001
s_mul_i32 s11, s11, {32*1040}
s_add_u32 s10, s10, s11
s_add_u32 s10, s10, {RT}
v_mul_u32_u24 v231, 1040, v2
v_lshl_add_u32 v231, v3, 4, v231
v_add_u32 v231, s10, v231""")
        e(f"""s_lshl_b32 s48, s7, 10
s_add_u32 s49, s48, {QA}
s_add_u32 s48, s48, {QL}
s_lshr_b32 s10, s7, 2
s_mul_i32 s10, s10, {11*1024}
s_and_b32 s11, s7, 1
s_mul_i32 s12, s11, {22*1024}
s_add_u32 s10, s10, s12
v_lshlrev_b32 v10, 6, v2
v_lshl_add_u32 v10, v3, 4, v10
v_add_u32 v6, s10, v10
s_and_b32 s10, s7, 3
s_lshl_b32 s10, s10, 11
v_add_u32 v9, s10, v5
s_lshl_b32 s10, s7, 11
v_add_u32 v7, s10, v5
s_and_b32 s10, s7, 3
s_mul_i32 s10, s10, {PMSG}
s_add_u32 s50, s68, s10
v_lshlrev_b32 v212, 3, v2
s_mul_i32 s51, s5, {16*PMSG}
s_mul_i32 s10, s7, {2*PMSG}
s_add_u32 s51, s51, s10
s_add_u32 s51, s51, {PB}
v_and_b32 v213, 1, v3
v_mul_u32_u24 v213, {PMSG}, v213
v_add_u32 v213, v213, v212
v_and_b32 v214, 31, v1
v_lshlrev_b32 v214, 6, v214
s_lshl_b32 s10, s7, 3
v_add_u32 v214, s10, v214
s_lshl_b32 s10, s11, 10
v_add_u32 v215, s10, v10
s_lshl_b32 s10, s11, 4
v_add_u32 v216, s10, v2
v_lshlrev_b32 v217, 6, v216
v_lshlrev_b32 v218, 16, v216
v_lshl_add_u32 v218, v3, 4, v218
s_lshl_b32 s52, s6, 5
s_add_u32 s52, s52, s5
s_lshl_b32 s52, s52, 9
s_lshr_b32 s10, s7, 1
s_lshl_b32 s10, s10, 7
s_add_u32 s52, s52, s10
s_add_u32 s52, s52, {OB}
v_lshlrev_b32 v219, 9, v216
s_lshl_b32 s53, s5, 4
s_add_u32 s53, s53, {OS}
s_mov_b32 s54, {SCALE:#x}
s_mov_b32 s55, {LOG2E:#x}
v_mov_b32 v221, 1
v_lshlrev_b32 v8, 1, v3
v_xor_b32 v8, v8, v2
v_lshlrev_b32 v222, 10, v3
v_lshl_add_u32 v222, v8, 4, v222
v_xor_b32 v226, 0x80, v222
s_lshl_b32 s74, s5, 8
s_lshl_b32 s13, s7, 5
s_add_u32 s74, s74, s13
s_lshl_b32 s74, s74, 10
s_lshl_b32 s14, s6, 8
s_add_u32 s74, s74, s14
s_lshl_b32 s75, s7, 13
s_add_u32 s75, s75, {BT}
v_lshrrev_b32 v223, 2, v2
v_lshl_add_u32 v223, v3, 2, v223
v_and_b32 v229, 7, v223
s_lshr_b32 s12, s7, 1
s_lshl_b32 s12, s12, 1
v_xor_b32 v229, s12, v229
v_lshlrev_b32 v223, 8, v223
v_lshl_add_u32 v223, v229, 5, v223
v_and_b32 v8, 3, v2
v_lshl_add_u32 v223, v8, 3, v223
v_add_u32 v223, {BT}, v223
v_xor_b32 v229, 32, v223
v_mul_u32_u24 v230, {PMSG}, v2""")
        self.sig_prep(0, 70)
        self.sig_prep(1, 71)
        self.sig_prep(2, 72)
        nt2 = self.opt("nt_block", nt)

        def blk_dma():
            for k in range(8):
                e(f"""s_mov_b32 m0, s75
s_add_u32 s75, s75, 1024
buffer_load_dwordx4 v{222 if k % 2 == 0 else 226}, s[44:47], s74 offen {nt2} lds
s_add_u32 s74, s74, 4096""")

        def tr_reads():
            for p in range(8):
                for ctl in range(2):
                    for hh in range(2):
                        r = 104 + (p * 2 + ctl) * 4 + 2 * hh
                        e(f"ds_read_b64_tr_b16 v[{r}:{r+1}], v{223 if ctl == 0 else 229} offset:{8192*p + 4096*hh}")
                if p % 3 == 2:
                    e("s_waitcnt lgkmcnt(3)")
        self.tr_reads = tr_reads
        early = 1
        self.get_nonce_lds(240)
        e("v_mov_b32 v220, s65\ns_mov_b32 s73x, 0".replace("s73x", "s47x").replace("s47x", "s3"))
        def rq():
            lrq = self.newlabel("kv_rq")
            e(f"""s_cmp_lg_u32 s7, 0
s_cbranch_scc1 {lrq}
s_mov_b32 exec_hi, 0
buffer_store_dwordx4 v[232:235], v5, s[40:43], s73 offen sc1
s_mov_b64 exec, -1""")
            self.label(lrq)
        if self.opt("sl_blk", 0):
            e(f"s_sleep {self.opt('sl_blk', 0)}")
        lb7 = self.newlabel("kv_b7")
        lb0 = self.newlabel("kv_b0")
        e(f"s_cmp_eq_u32 s7, 7\ns_cbranch_scc1 {lb7}")
        blk_dma()
        e(f"s_cmp_lg_u32 s7, 0\ns_cbranch_scc1 {lb0}\ns_add_u32 s74, s74, {192*1024}\ns_add_u32 s75, s75, {48*1024}")
        blk_dma()
        e(f"s_branch {lb7}")
        self.label(lb0)
        e("s_waitcnt vmcnt(8)")
        self.label(lb7)
        e("s_barrier")
        self.stamp(3)
        for u in range(8):
            e(f"ds_read_b128 v[{16+4*u}:{19+4*u}], v231 offset:{64*u}")
        for u in range(8):
            if u == 7:
                e("s_waitcnt lgkmcnt(8)")
            e(f"ds_read_b128 v[{60+4*u}:{63+4*u}], v231 offset:{16*1040 + 64*u}")
        e("s_load_dword s66, s[38:39], s70 glc")
        e("v_mov_b32 v232, v120\nv_mov_b32 v233, v121\nv_mov_b32 v234, v122\nv_mov_b32 v235, v123\ns_waitcnt lgkmcnt(0)")
        for a in range(2):
            for z in range(3):
                for i in range(3):
                    sidx = 3 * z + i
                    d = 16 + 44 * a + 4 * (8 + z) + i
                    if sidx < 8:
                        e(f"v_mov_b32 v{d}, v{16+44*a+4*sidx+3}")
                    else:
                        e(f"v_mov_b32 v{d}, 0")
                e(f"v_mov_b32 v{16+44*a+4*(8+z)+3}, 0")
        if self.opt("dbg1", 0): self.stamp(9)
        e("s_waitcnt vmcnt(0)")
        if self.opt("dbg1", 0): self.stamp(10)
        e("s_barrier")
        if self.opt("dbg1", 0): self.stamp(1)
        lsk0 = self.newlabel("kv_sig0ok")
        e(f"s_cmp_eq_u32 s66, s65\ns_cbranch_scc1 {lsk0}")
        self.sig_wait(70, 240, 11, self.opt("sl_h2", 0), restore=rq)
        self.label(lsk0)
        self.stamp(11)
        e("s_mov_b32 s60, 0")
        lsw = self.newlabel("kv_sweep")
        self.label(lsw)
        e("s_mov_b32 s10, s48\ns_mov_b32 s11, s49")
        for k in range(6):
            if k == 5:
                l5 = self.newlabel("kv_sw5")
                e(f"s_cmp_ge_u32 s7, 4\ns_cbranch_scc1 {l5}")
            e(f"""s_mov_b32 m0, s10
s_add_u32 s10, s10, 8192
buffer_load_dwordx4 v5, s[40:43], s11 offen sc1 lds
s_add_u32 s11, s11, 8192""")
            if k == 5:
                self.label(l5)
        ltr = self.newlabel("kv_notr")
        e(f"s_cmp_lg_u32 s60, 0\ns_cbranch_scc1 {ltr}")
        tr_reads()
        self.label(ltr)
        e("s_waitcnt vmcnt(0) lgkmcnt(0)\ns_barrier")
        for u in range(11):
            e(f"ds_read_b128 v[{168+4*u}:{171+4*u}], v6 offset:{QL + 1024*u}")
        self.stamp(4)

        def chk(u):
            r = 168 + 4 * u + 3
            e(f"s_waitcnt lgkmcnt({10 - u})")
            if u == 0:
                e(f"v_xor_b32 v224, s67, v{r}")
            else:
                e(f"v_bitop3_b32 v224, v224, v{r}, s67 bitop3:0xf6")
            e(f"v_mov_b32 v{r}, 0")
        chk(0)
        for u in range(11):
            if u + 1 < 11:
                chk(u + 1)
            else:
                e("v_cmp_ne_u32 vcc, 0, v224\nv_add_u32 v225, s3, v227")
            r = 168 + 4 * u
            for a in range(2):
                c = "0" if u == 0 else f"v[{240+4*a}:{243+4*a}]"
                e(f"v_mfma_f32_16x16x32_bf16 v[{240+4*a}:{243+4*a}], v[{16+44*a+4*u}:{19+44*a+4*u}], v[{r}:{r+3}], {c}")
        lok = self.newlabel("kv_ok")
        e(f"""s_cmp_eq_u64 vcc, 0
s_cbranch_scc1 {lok}
ds_write_b32 v225, v221 offset:{FLG}""")
        self.label(lok)
        lnx = self.newlabel("kv_nox")
        e(f"""s_cmp_lt_u32 s7, 4
s_cbranch_scc1 {lnx}
s_nop 3
ds_write_b128 v9, v[240:243] offset:{XCH}
ds_write_b128 v9, v[244:247] offset:{XCH + 1024}""")
        self.label(lnx)
        e(f"""s_waitcnt lgkmcnt(0)
s_barrier
ds_read_b32 v224, v225 offset:{FLG}
ds_read_b128 v[168:171], v9 offset:{XCH}
ds_read_b128 v[172:175], v9 offset:{XCH + 1024}""")
        lgo = self.newlabel("kv_go")
        e(f"""s_waitcnt lgkmcnt(2)
v_readfirstlane_b32 s10, v224
s_nop 0
s_cmp_eq_u32 s10, 0
s_cbranch_scc1 {lgo}
s_waitcnt lgkmcnt(0)
s_xor_b32 s3, s3, 4
v_add_u32 v225, s3, v227
ds_write_b32 v225, v11 offset:{FLG}
s_add_u32 s60, s60, 1
s_waitcnt lgkmcnt(0)
s_barrier""")
        rq()
        e(f"""s_cmp_lt_u32 s60, {SPIN_LIMIT}
s_cbranch_scc1 {lsw}""")
        self.label(lgo)
        self.stamp(5)
        lnsm = self.newlabel("kv_nosm")
        e(f"s_cmp_ge_u32 s7, 4\ns_cbranch_scc1 {lnsm}\ns_waitcnt lgkmcnt(0)")
        for k in range(4):
            e(f"v_pk_add_f32 v[{168+2*k}:{169+2*k}], v[{168+2*k}:{169+2*k}], v[{240+2*k}:{241+2*k}]")
        for k in range(4):
            e(f"v_cvt_pk_bf16_f32 v{176+k}, v{168+2*k}, v{169+2*k}")
        for k in range(4):
            e(f"v_lshlrev_b32 v{168+2*k}, 16, v{176+k}\nv_and_b32 v{169+2*k}, 0xffff0000, v{176+k}")
        for k in range(8):
            e(f"v_mul_f32 v{168+k}, s54, v{168+k}")
        for k in range(4):
            e(f"v_cvt_pk_bf16_f32 v{176+k}, v{168+2*k}, v{169+2*k}")
        for k in range(4):
            e(f"v_lshlrev_b32 v{168+2*k}, 16, v{176+k}\nv_and_b32 v{169+2*k}, 0xffff0000, v{176+k}")
        e("""v_max3_f32 v248, v168, v169, v170
v_max3_f32 v180, v171, v172, v173
v_max3_f32 v248, v248, v174, v175
v_max_f32 v248, v248, v180
v_mov_b32 v180, v248
s_nop 1
v_permlane16_swap_b32 v248, v180
s_nop 0
v_max_f32 v248, v248, v180
v_mov_b32 v180, v248
s_nop 1
v_permlane32_swap_b32 v248, v180
s_nop 0
v_max_f32 v248, v248, v180
v_mul_f32 v180, s55, v248""")
        for k in range(8):
            e(f"v_fma_f32 v{168+k}, v{168+k}, s55, -v180")
        for k in range(8):
            e(f"v_exp_f32 v{168+k}, v{168+k}")
        e("s_nop 0")
        for k in range(4):
            e(f"v_cvt_pk_bf16_f32 v{252+k}, v{168+2*k}, v{169+2*k}")
        e("""buffer_store_dwordx4 v[252:255], v10, s[40:43], s50 offen
v_pk_add_f32 v[168:169], v[168:169], v[170:171]
v_pk_add_f32 v[172:173], v[172:173], v[174:175]
v_pk_add_f32 v[168:169], v[168:169], v[172:173]
v_add_f32 v249, v168, v169
v_mov_b32 v180, v249
s_nop 1
v_permlane16_swap_b32 v249, v180
s_nop 0
v_add_f32 v249, v249, v180
v_mov_b32 v180, v249
s_nop 1
v_permlane32_swap_b32 v249, v180
s_nop 0
v_add_f32 v249, v249, v180
s_mov_b64 exec, 0xffff
buffer_store_dwordx2 v[248:249], v212, s[40:43], s50 offen offset:1024
s_mov_b64 exec, -1""")
        self.stamp(6)
        if not early:
            lsj = self.newlabel("kv_sj")
            e(f"s_branch {lsj}")
            self.label(lnsm)
            e("s_waitcnt vmcnt(0)")
            self.label(lsj)
            e("s_barrier")
            tr_reads()
        else:
            self.label(lnsm)

        def restore_p():
            l = self.newlabel("rp")
            e(f"""s_cmp_ge_u32 s7, 4
s_cbranch_scc1 {l}
buffer_store_dwordx4 v[252:255], v10, s[40:43], s50 offen sc1
s_mov_b64 exec, 0xffff
buffer_store_dwordx2 v[248:249], v212, s[40:43], s50 offen offset:1024 sc1
s_mov_b64 exec, -1""")
            self.label(l)
        e(f"s_mul_i32 s49, s5, {16*PMSG}\ns_add_u32 s49, s49, {PB}")
        self.poll([("buffer_load_dwordx4 v[168:171], v5, s[40:43], s51 offen sc1", 168, 4),
                   (f"buffer_load_dwordx4 v[172:175], v5, s[40:43], s51 offen offset:{PMSG} sc1", 172, 4),
                   ("buffer_load_dwordx2 v[176:177], v213, s[40:43], s51 offen offset:1024 sc1", 176, 2),
                   ("buffer_load_dword v178, v230, s[40:43], s49 offen offset:1024 sc1", 178, 1)], 'sent', 224, restore=restore_p)
        e(f"""ds_write_b128 v7, v[168:171] offset:{PL}
ds_write_b128 v7, v[172:175] offset:{PL + 1024}
ds_write_b64 v214, v[176:177] offset:{SL}
s_waitcnt lgkmcnt(0)
s_barrier""")
        self.stamp(7)
        if self.opt("sig2_early", 1):
            l0e = self.newlabel("kv_sig")
            e(f"s_cmp_lg_u32 s7, 7\ns_cbranch_scc1 {l0e}")
            self.sig_send(72, 220, 11)
            self.label(l0e)
        for k in range(4):
            e(f"ds_read_b128 v[{48+4*k}:{51+4*k}], v217 offset:{SL + 16*k}")
        for p in range(8):
            e(f"ds_read_b128 v[{16+4*p}:{19+4*p}], v215 offset:{PL + 2048*p}")
        stats = []
        stats.append("v_max3_f32 v238, v48, v50, v52")
        stats.append("v_max3_f32 v239, v54, v56, v58")
        stats.append("v_max3_f32 v238, v238, v60, v62")
        stats.append("v_max_f32 v238, v238, v239")
        stats.append("v_mul_f32 v239, s55, v238")
        for p in range(8):
            stats.append(f"v_fma_f32 v{48+2*p}, v{48+2*p}, s55, -v239")
        for p in range(8):
            stats.append(f"v_exp_f32 v{48+2*p}, v{48+2*p}")
        stats.append("v_and_or_b32 v240, v238, s64, v12")
        stats.append("v_mul_f32 v239, v48, v49")
        for p in range(1, 8):
            stats.append(f"v_fmac_f32 v239, v{48+2*p}, v{49+2*p}")
        si = 0
        for p in range(8):
            e(f"s_waitcnt lgkmcnt({7 - p})")
            for ctl in range(2):
                ar = 104 + (p * 2 + ctl) * 4
                ac = self.acc(p * 2 + ctl)
                e(f"v_mfma_f32_16x16x32_bf16 v[{ac}:{ac+3}], v[{ar}:{ar+3}], v[{16+4*p}:{19+4*p}], 0")
                for _ in range(2):
                    if si < len(stats):
                        e(stats[si]); si += 1
        while si < len(stats):
            e(stats[si]); si += 1
        lno = self.newlabel("kv_noos")
        e(f"""s_cmp_lg_u32 s6, 0
s_cbranch_scc1 {lno}
s_cmp_ge_u32 s7, 2
s_cbranch_scc1 {lno}
v_and_or_b32 v241, v239, s64, v13
v_mov_b32 v242, v14
v_mov_b32 v243, v15
s_mov_b64 exec, 0xffff
buffer_store_dwordx4 v[240:243], v219, s[40:43], s53 offen sc1
s_mov_b64 exec, -1""")
        self.label(lno)
        for r in range(0, 8, 2):
            e(f"v_pk_mul_f32 v[{168+r}:{169+r}], v[{168+r}:{169+r}], v[48:49] op_sel_hi:[1,0]")
        for p in range(1, 8):
            for ctl in range(2):
                for r in (0, 2):
                    a = self.acc(2 * p + ctl) + r
                    o = 168 + 4 * ctl + r
                    e(f"v_pk_fma_f32 v[{o}:{o+1}], v[{a}:{a+1}], v[{48+2*p}:{49+2*p}], v[{o}:{o+1}] op_sel_hi:[1,0,1]")
        self.tag4(168)
        e("buffer_store_dwordx4 v[168:171], v218, s[40:43], s52 offen sc1")
        self.tag4(172)
        e("buffer_store_dwordx4 v[172:175], v218, s[40:43], s52 offen offset:64 sc1")
        self.stamp(8)
        e("s_barrier")
        if not self.opt("sig2_early", 1):
            l0 = self.newlabel("kv_sig")
            e(f"s_cmp_lg_u32 s7, 0\ns_cbranch_scc1 {l0}")
            self.sig_send(72, 220, 11)
            self.label(l0)
        e(f"v_mov_b32 v236, v220\ns_cmp_ge_u32 s7, 4\ns_cbranch_scc1 L_fin\ns_sleep {self.opt('sl_rp', 16)}")
        restore_p()
        rq()
        e("""s_cmp_ge_u32 s7, 4
s_cbranch_scc1 L_fin
s_bfe_u32 s10, s9, 0x20002
s_lshl_b32 s10, s10, 3
s_add_u32 s10, s10, s8
s_cmp_ge_u32 s10, 27
s_cbranch_scc1 L_fin
s_lshl_b32 s10, s10, 2
s_add_u32 s10, s10, s6""")
        self.srd(44, 30, 2211840)
        self.srd(48, 16, 1280)
        if self.opt("sl_fg", 0):
            e(f"s_sleep {self.opt('sl_fg', 0)}")
        e(f"""v_lshlrev_b32 v8, 3, v1
s_mul_i32 s11, s7, 320
buffer_load_dwordx2 v[48:49], v8, s[48:51], s11 offen
v_lshrrev_b32 v6, 1, v1
v_mul_u32_u24 v6, 3456, v6
v_and_b32 v7, 1, v1
v_lshl_add_u32 v6, v7, 4, v6
s_mul_i32 s11, s7, 160
s_mul_i32 s12, s11, 3456
s_lshl_b32 s13, s10, 5
s_add_u32 s12, s12, s13
s_lshl_b32 s13, s11, 5
s_add_u32 s13, s13, {W1L}""")
        for k in range(5):
            e(f"""s_mov_b32 m0, s13
s_add_u32 s13, s13, 1024
buffer_load_dwordx4 v6, s[44:47], s12 offen {nt} lds
s_add_u32 s12, s12, {32*3456}""")
        e("""v_mul_u32_u24 v7, 5120, v3
v_lshl_add_u32 v7, v2, 4, v7
s_mul_i32 s12, s10, 20480
s_lshl_b32 s13, s7, 8
s_add_u32 s12, s12, s13
v_add_u32 v7, s12, v7""")
        for t in range(4):
            e(f"global_load_dwordx4 v[{16+4*t}:{19+4*t}], v7, s[32:33] offset:{1280*t} {nt}")
        lb4 = self.newlabel("kv_b4")
        e(f"s_cmp_lg_u32 s7, 0\ns_cbranch_scc1 {lb4}\nv_add_u32 v7, 1024, v7")
        for t in range(4):
            e(f"global_load_dwordx4 v[{32+4*t}:{35+4*t}], v7, s[32:33] offset:{1280*t} {nt}")
        self.label(lb4)
        self.masks(52, 2, 60, False)
        e(f"""v_lshrrev_b32 v8, 2, v2
v_lshl_add_u32 v8, v3, 3, v8
v_lshlrev_b32 v8, 5, v8
v_and_b32 v9, 3, v2
v_lshl_add_u32 v8, v9, 3, v8
s_waitcnt vmcnt(0)
s_barrier""")
        for t in range(20):
            for hh in range(2):
                e(f"ds_read_b64_tr_b16 v[{80+4*t+2*hh}:{81+4*t+2*hh}], v8 offset:{W1L + 1024*t + 128*hh}")
            if t % 4 == 3:
                e("s_waitcnt lgkmcnt(0)")
        e(f"""s_mul_i32 s12, s7, 640
s_add_u32 s12, s12, {XB}
s_add_u32 s13, s12, 5120
s_add_u32 s14, s12, 10240
s_add_u32 s15, s12, 15360
v_lshlrev_b32 v56, 16, v48
v_and_b32 v57, 0xffff0000, v48
v_lshlrev_b32 v58, 16, v49
v_and_b32 v59, 0xffff0000, v49
v_lshlrev_b32 v8, 3, v1
s_mul_i32 s11, s7, 320
v_add_u32 v9, s11, v8
s_mul_i32 s11, s7, 1280
v_add_u32 v10, s11, v8
v_add_u32 v228, s11, v4
v_lshl_add_u32 v229, v3, 4, s11
v_lshrrev_b32 v230, 1, v2
v_mul_u32_u24 v230, 7168, v230
v_and_b32 v231, 1, v2
v_lshl_add_u32 v230, v231, 5, v230
v_lshl_add_u32 v230, v3, 4, v230
s_mul_i32 s52, s7, {8*7168}
s_lshl_b32 s53, s10, 6
s_add_u32 s52, s52, s53
s_add_u32 s52, s52, {FB}
s_add_u32 s53, s52, {32*7168}""")
        self.sig_prep(3, 70)
        self.sig_prep(4, 71)
        if not self.opt('dbg1', 0): self.stamp(9)
        self.sig_wait(70, 60, 11, self.opt("sl_h5", 0))
        e("s_mov_b32 exec_hi, 0xff")
        self.poll([(f"buffer_load_dwordx4 v[{160+4*x}:{163+4*x}], v5, s[40:43], s{12 + x//2} offen offset:{2560*(x%2)} sc1", 160 + 4 * x, 4) for x in range(8)], 'tag', 60)
        self.tree_sum(160, 8)
        e(f"""v_cvt_pk_bf16_f32 v60, v160, v161
v_cvt_pk_bf16_f32 v61, v162, v163
v_lshlrev_b32 v160, 16, v60
v_and_b32 v161, 0xffff0000, v60
v_lshlrev_b32 v162, 16, v61
v_and_b32 v163, 0xffff0000, v61
v_pk_add_f32 v[160:161], v[160:161], v[56:57]
v_pk_add_f32 v[162:163], v[162:163], v[58:59]
v_cvt_pk_bf16_f32 v60, v160, v161
v_cvt_pk_bf16_f32 v61, v162, v163
ds_write_b64 v9, v[60:61] offset:{HF}
s_mov_b64 exec, -1
s_waitcnt lgkmcnt(0)
s_barrier
ds_read_b64 v[70:71], v8 offset:{HF}
ds_read_b64 v[72:73], v8 offset:{HF + 512}
ds_read_b32 v74, v4 offset:{HF + 1024}
s_waitcnt lgkmcnt(0)""")
        if not self.opt('dbg1', 0): self.stamp(10)
        for k in range(5):
            e(f"v_lshlrev_b32 v{60+2*k}, 16, v{70+k}\nv_and_b32 v{61+2*k}, 0xffff0000, v{70+k}")
        self.layernorm(60, 70, 62, 63)
        e(f"""v_cvt_pk_bf16_f32 v70, v60, v61
v_cvt_pk_bf16_f32 v71, v62, v63
v_cvt_pk_bf16_f32 v72, v64, v65
v_cvt_pk_bf16_f32 v73, v66, v67
v_cvt_pk_bf16_f32 v74, v68, v69
ds_write_b64 v10, v[70:71] offset:{HN}
ds_write_b64 v10, v[72:73] offset:{HN + 512}
ds_write_b32 v228, v74 offset:{HN + 1024}
s_waitcnt lgkmcnt(0)""")
        for t in range(14):
            e(f"ds_read_b128 v[{160+4*t}:{163+4*t}], v229 offset:{HN + 64*t}")
        for t in range(20):
            issued = min(t + 14, 20)
            e(f"s_waitcnt lgkmcnt({issued - t - 1})")
            c = "0" if t == 0 else "v[56:59]"
            e(f"v_mfma_f32_16x16x32_bf16 v[56:59], v[{80+4*t}:{83+4*t}], v[{self.fb(t)}:{self.fb(t)+3}], {c}")
            if t + 14 < 20:
                e(f"ds_read_b128 v[{self.fb(t+14)}:{self.fb(t+14)+3}], v229 offset:{HN + 64*(t+14)}")
        e("s_nop 7")
        for r in range(4):
            e(f"v_max_f32 v{56+r}, 0, v{56+r}")
        for t in range(4):
            e(f"v_cvt_pk_bf16_f32 v{240+t}, v{56+t}, v{56+t}")
        for t in range(4):
            for r in range(4):
                e(f"v_and_b32 v{80+4*t+r}, v{240+t}, v{52+r}")
        for t in range(4):
            c = "0" if t == 0 else "v[64:67]"
            e(f"v_mfma_f32_16x16x32_bf16 v[64:67], v[{80+4*t}:{83+4*t}], v[{16+4*t}:{19+4*t}], {c}")
        lb5 = self.newlabel("kv_b5")
        e(f"s_cmp_lg_u32 s7, 0\ns_cbranch_scc1 {lb5}")
        for t in range(4):
            c = "0" if t == 0 else "v[68:71]"
            e(f"v_mfma_f32_16x16x32_bf16 v[68:71], v[{80+4*t}:{83+4*t}], v[{32+4*t}:{35+4*t}], {c}")
        e("s_nop 3")
        self.tag4(64)
        e("""s_mov_b32 exec_hi, 0
buffer_store_dwordx4 v[64:67], v230, s[40:43], s52 offen sc1""")
        self.tag4(68)
        e("buffer_store_dwordx4 v[68:71], v230, s[40:43], s53 offen sc1")
        self.sig_send(71, 236, 11)
        e("s_mov_b64 exec, -1")
        if not self.opt('dbg1', 0): self.stamp(1)
        e("s_branch L_fin")
        self.label(lb5)
        e("s_nop 5")
        self.tag4(64)
        e("""s_mov_b32 exec_hi, 0
buffer_store_dwordx4 v[64:67], v230, s[40:43], s52 offen sc1
s_mov_b64 exec, -1""")

    def fb(self, t):
        if t < 14:
            return 160 + 4 * t
        return [60, 64, 68, 72, 76, 244][t - 14]


if __name__ == "__main__":
    import argparse
    ap = argparse.ArgumentParser()
    ap.add_argument("out")
    ap.add_argument("--stamps", action="store_true")
    ap.add_argument("--opt", action="append", default=[])
    a = ap.parse_args()
    opts = {}
    for o in a.opt:
        k, v = o.split("=")
        opts[k] = int(v) if v.lstrip("-").isdigit() else v
    g = Gen(stamps=a.stamps, opts=opts)
    open(a.out, "w").write(g.build())
```

```python
import sys

KN = "sequential_preLN__compressed_kv_cla__dense_activation_relu__decode_kernel"

Q1 = 0x000000
QA = 0x020000
PB = 0x030000
PMSG = 1152
OB = 0x0C0000
OS = 0x2C0000
EL = 0x2C4000
XB = 0x314000
FB = 0x319000
SIG = 0x360000
RDY = 0x374000
assert PB + 512 * PMSG <= OB
STAMP = 0x400000
WS_RECORDS = 0x400000 + 256 * 128

SPIN_LIMIT = 100000
RESTORE_IT = 10
LOG2E = 0x3fb8aa3b
SCALE = 0x3db504f3
LDS_BYTES = 146432
NB = 133120
NON, FLG = 0, 16


class Gen:
    def __init__(self, stamps=False, opts=None):
        self.o = []
        self.nl = 0
        self.stamps = stamps
        self.opts = opts or {}

    def opt(self, k, d):
        return self.opts.get(k, d)

    def e(self, s):
        for line in s.strip("\n").split("\n"):
            self.o.append("  " + line.strip())

    def label(self, name):
        self.o.append(name + ":")

    def newlabel(self, base):
        self.nl += 1
        return f"L_{base}_{self.nl}"

    def srd(self, d, ptr, nbytes):
        self.e(f"""s_mov_b32 s{d}, s{ptr}
s_and_b32 s{d+1}, s{ptr+1}, 0xffff
s_mov_b32 s{d+2}, {nbytes}
s_mov_b32 s{d+3}, 0x00020000""")

    def stamp(self, idx):
        if self.stamps:
            self.e(f"s_memrealtime s[{76+2*idx}:{77+2*idx}]")

    def stamp_dump(self):
        if not self.stamps:
            return
        self.e("""s_and_b32 s60, s7, 3
s_cmp_lg_u32 s60, 0
s_cbranch_scc1 L_end
s_waitcnt lgkmcnt(0)
s_mov_b64 exec, 1
v_mov_b32 v251, 0""")
        self.e(f"s_lshl_b32 s60, s2, 7\ns_lshl_b32 s61, s7, 4\ns_add_u32 s60, s60, s61\ns_add_u32 s60, s60, {STAMP}")
        for i in range(12):
            self.e(f"v_mov_b32 v250, s{76+2*i}\nbuffer_store_dword v250, v251, s[40:43], s60 offen offset:{4*i}")

    def dbgtime(self, word, wg):
        if not self.opt("dbgt", 0):
            return
        l = self.newlabel("dt")
        self.e(f"""s_cmp_lg_u32 s2, {wg}
s_cbranch_scc1 {l}
s_memrealtime s[10:11]
s_load_dword s12, s[36:37], 4 glc
s_waitcnt lgkmcnt(0)
s_sub_u32 s10, s10, s12
v_mov_b32 v250, s10
v_mov_b32 v251, {4*word}
global_store_dword v251, v250, s[36:37]""")
        self.label(l)

    def wave_sum(self, v, sd):
        ins = "v_add_f32_dpp"
        for sh in (1, 2, 4, 8):
            self.e(f"s_nop 1\n{ins} v{v}, v{v}, v{v} row_shr:{sh} row_mask:0xf bank_mask:0xf bound_ctrl:0")
        self.e(f"s_nop 1\n{ins} v{v}, v{v}, v{v} row_bcast:15 row_mask:0xa bank_mask:0xf")
        self.e(f"s_nop 1\n{ins} v{v}, v{v}, v{v} row_bcast:31 row_mask:0xc bank_mask:0xf")
        self.e(f"s_nop 0\nv_readlane_b32 s{sd}, v{v}, 63")

    def wait_nonce(self, vt):
        d = self.newlabel("nnd")
        for k in range(4):
            self.e(f"""s_load_dword s65, s[36:37], {64*k}
s_waitcnt lgkmcnt(0)
s_cmp_lg_u32 s65, 0
s_cbranch_scc1 {d}
s_sleep 4""")
        l = self.newlabel("nn")
        self.e("s_mov_b32 s60, 0")
        self.label(l)
        self.e(f"""buffer_load_dword v{vt}, v11, s[56:59], 0 offen sc1
s_add_u32 s60, s60, 1
s_waitcnt vmcnt(0)
v_readfirstlane_b32 s65, v{vt}
s_cmp_ge_u32 s60, {SPIN_LIMIT}
s_cbranch_scc1 {d}
s_cmp_eq_u32 s65, 0
s_cbranch_scc1 {l}""")
        self.label(d)

    def set_tags(self):
        self.e("""s_mov_b32 s64, 0xffffff00
s_and_b32 s61, s65, 0xff
v_mov_b32 v12, s61
s_bfe_u32 s61, s65, 0x80008
v_mov_b32 v13, s61
s_bfe_u32 s61, s65, 0x80010
v_mov_b32 v14, s61
s_lshr_b32 s61, s65, 24
v_mov_b32 v15, s61
s_and_b32 s67, s65, 0xbfffbfff""")

    def tag4(self, v):
        for r in range(4):
            self.e(f"v_and_or_b32 v{v+r}, v{v+r}, s64, v{12+r}")

    def sig_prep(self, k, sd, sid="s4"):
        self.e(f"s_lshl_b32 s{sd}, {sid}, 7\ns_add_u32 s{sd}, s{sd}, {SIG + k * 16384}")

    def sig_send(self, sd, vtag, vzero):
        self.e(f"buffer_store_dword v{vtag}, v{vzero}, s[40:43], s{sd} offen sc1")

    def sig_wait(self, sd, vt, vzero, sleep=0, restore=None):
        l = self.newlabel("sg")
        d = self.newlabel("sgd")
        self.e("s_mov_b32 s60, 0")
        self.label(l)
        self.e(f"""s_load_dword s66, s[38:39], s{sd} glc
s_add_u32 s60, s60, 1""")
        if restore:
            nr = self.newlabel("snr")
            self.e(f"s_cmp_lg_u32 s60, {RESTORE_IT}\ns_cbranch_scc1 {nr}")
            restore()
            self.label(nr)
        self.e(f"""s_cmp_ge_u32 s60, {SPIN_LIMIT}
s_cbranch_scc1 {d}
s_waitcnt lgkmcnt(0)
s_cmp_lg_u32 s66, s65
s_cbranch_scc1 {l}""")
        self.label(d)
        self.e("s_waitcnt lgkmcnt(0)")
        if sleep:
            self.e(f"s_sleep {sleep}")

    def check(self, regs, kind, vacc, first=True):
        e = self.e
        if kind == 'tag':
            for i, r in enumerate(regs):
                t = 12 + (i % 4)
                if first and i == 0:
                    e(f"v_xor_b32 v{vacc}, v{r}, v{t}")
                else:
                    e(f"v_bitop3_b32 v{vacc}, v{vacc}, v{r}, v{t} bitop3:0xf6")
        else:
            i = 0
            while i < len(regs):
                if first and i == 0:
                    if len(regs) >= 3:
                        e(f"v_max3_u32 v{vacc}, v{regs[0]}, v{regs[1]}, v{regs[2]}"); i = 3
                    elif len(regs) == 2:
                        e(f"v_max_u32 v{vacc}, v{regs[0]}, v{regs[1]}"); i = 2
                    else:
                        e(f"v_mov_b32 v{vacc}, v{regs[0]}"); i = 1
                elif len(regs) - i >= 2:
                    e(f"v_max3_u32 v{vacc}, v{vacc}, v{regs[i]}, v{regs[i+1]}"); i += 2
                else:
                    e(f"v_max_u32 v{vacc}, v{vacc}, v{regs[i]}"); i += 1

    def verdict(self, kind, vacc):
        if kind == 'tag':
            self.e(f"v_and_b32 v{vacc}, 0xff, v{vacc}\nv_cmp_ne_u32 vcc, 0, v{vacc}\ns_cmp_lg_u64 vcc, 0")
        else:
            self.e(f"v_cmp_eq_u32 vcc, -1, v{vacc}\ns_cmp_lg_u64 vcc, 0")

    def poll(self, loads, kind, vacc, restore=None):
        e = self.e
        l = self.newlabel("pl")
        d = self.newlabel("pld")
        e("s_mov_b32 s60, 0")
        self.label(l)
        for ins in loads:
            e(ins[0])
        e("s_add_u32 s60, s60, 1")
        if restore:
            nr = self.newlabel("pnr")
            e(f"s_cmp_lg_u32 s60, {RESTORE_IT}\ns_cbranch_scc1 {nr}")
            restore()
            self.label(nr)
        e(f"s_cmp_ge_u32 s60, {SPIN_LIMIT}\ns_cbranch_scc1 {d}\ns_waitcnt vmcnt(0)")
        for k, ins in enumerate(loads):
            self.check(list(range(ins[1], ins[1] + ins[2])), kind, vacc, first=(k == 0))
        self.verdict(kind, vacc)
        e(f"s_cbranch_scc1 {l}")
        self.label(d)
        e("s_waitcnt vmcnt(0)")

    def masks(self, m0, vi, vt, lo_rows):
        self.e(f"""v_and_b32 v{vt}, 1, v{vi}
v_cmp_eq_u32 vcc, 1, v{vt}
v_mov_b32 v{vt}, 0x0000ffff
v_mov_b32 v{vt+1}, 0xffff0000
v_cndmask_b32 v{vt}, v{vt}, v{vt+1}, vcc""")
        if lo_rows:
            self.e(f"v_bfe_u32 v{vt+1}, v{vi}, 1, 2")
        else:
            self.e(f"v_lshrrev_b32 v{vt+1}, 1, v{vi}")
        for r in range(4):
            self.e(f"""v_cmp_eq_u32 vcc, {r}, v{vt+1}
s_nop 1
v_cndmask_b32 v{m0+r}, 0, v{vt}, vcc""")

    def layernorm(self, vx, vt, sA, sB):
        e = self.e
        inv = 0x3acccccd
        e(f"""v_pk_add_f32 v[{vt}:{vt+1}], v[{vx}:{vx+1}], v[{vx+2}:{vx+3}]
v_pk_add_f32 v[{vt+2}:{vt+3}], v[{vx+4}:{vx+5}], v[{vx+6}:{vx+7}]
v_pk_add_f32 v[{vt}:{vt+1}], v[{vt}:{vt+1}], v[{vx+8}:{vx+9}]
v_pk_add_f32 v[{vt}:{vt+1}], v[{vt}:{vt+1}], v[{vt+2}:{vt+3}]
v_add_f32 v{vt}, v{vt}, v{vt+1}""")
        self.wave_sum(vt, sA)
        e(f"v_mov_b32 v{vt+4}, {inv:#x}\ns_nop 0\nv_mul_f32 v{vt+4}, s{sA}, v{vt+4}")
        for k in range(0, 10, 2):
            e(f"v_pk_add_f32 v[{vt+2}:{vt+3}], v[{vx+k}:{vx+k+1}], v[{vt+4}:{vt+5}] op_sel_hi:[1,0] neg_lo:[0,1] neg_hi:[0,1]")
            if k == 0:
                e(f"v_pk_mul_f32 v[{vt}:{vt+1}], v[{vt+2}:{vt+3}], v[{vt+2}:{vt+3}]")
            else:
                e(f"v_pk_fma_f32 v[{vt}:{vt+1}], v[{vt+2}:{vt+3}], v[{vt+2}:{vt+3}], v[{vt}:{vt+1}]")
        e(f"v_add_f32 v{vt}, v{vt}, v{vt+1}")
        self.wave_sum(vt, sB)
        e(f"""v_mov_b32 v{vt+2}, {inv:#x}
s_nop 0
v_mul_f32 v{vt+2}, s{sB}, v{vt+2}
v_cvt_pk_bf16_f32 v{vt+3}, v{vt+4}, v{vt+2}
v_lshlrev_b32 v{vt+4}, 16, v{vt+3}
v_and_b32 v{vt+2}, 0xffff0000, v{vt+3}
v_add_f32 v{vt+2}, 0x3727c5ac, v{vt+2}
v_cvt_pk_bf16_f32 v{vt+2}, v{vt+2}, v{vt+2}
v_and_b32 v{vt+2}, 0xffff0000, v{vt+2}
v_sqrt_f32 v{vt+2}, v{vt+2}""")
        for k in range(0, 10, 2):
            e(f"v_pk_add_f32 v[{vx+k}:{vx+k+1}], v[{vx+k}:{vx+k+1}], v[{vt+4}:{vt+5}] op_sel_hi:[1,0] neg_lo:[0,1] neg_hi:[0,1]")
        e(f"""v_cvt_pk_bf16_f32 v{vt+2}, v{vt+2}, v{vt+2}
v_and_b32 v{vt+2}, 0xffff0000, v{vt+2}
v_rcp_f32 v{vt+2}, v{vt+2}""")
        for k in range(0, 10, 2):
            a, b = vx + k, vx + k + 1
            e(f"""v_cvt_pk_bf16_f32 v{vt}, v{a}, v{b}
v_lshlrev_b32 v{a}, 16, v{vt}
v_and_b32 v{b}, 0xffff0000, v{vt}
v_pk_mul_f32 v[{a}:{b}], v[{a}:{b}], v[{vt+2}:{vt+3}] op_sel_hi:[1,0]""")

    def tree_sum(self, v0, n, width=4, stride=None):
        stride = stride or width
        step = 1
        while step < n:
            for k in range(0, n - step, 2 * step):
                for r in range(0, width, 2):
                    a = v0 + stride * k + r
                    b = v0 + stride * (k + step) + r
                    self.e(f"v_pk_add_f32 v[{a}:{a+1}], v[{a}:{a+1}], v[{b}:{b+1}]")
            step *= 2

    def build(self):
        nt = self.opt("nt", "nt")
        e = self.e
        self.o.append(f"; @launch grid=(256,1,1) block=(512,1,1) lds={LDS_BYTES}")
        self.o.append('.amdgcn_target "amdgcn-amd-amdhsa--gfx950"')
        self.o.append(".text")
        self.o.append(f".globl {KN}")
        self.o.append(".p2align 8")
        self.o.append(f".type {KN},@function")
        self.label(KN)
        e("""s_load_dwordx16 s[16:31], s[0:1], 0
s_load_dwordx8 s[32:39], s[0:1], 64
s_memrealtime s[62:63]
s_cmp_ge_u32 s2, 256
s_cbranch_scc1 L_end
s_cmp_ge_u32 s2, 16
s_cbranch_scc1 L_nocp
s_getpc_b64 s[60:61]
v_lshlrev_b32 v6, 6, v0
v_min_u32 v6, (L_codeend-L_nocp-64), v6
global_load_dword v255, v6, s[60:61]
L_nocp:
s_and_b32 s8, s2, 7
s_lshr_b32 s9, s2, 3
s_and_b32 s4, s2, 127
v_lshrrev_b32 v1, 6, v0
v_and_b32 v2, 15, v0
v_readfirstlane_b32 s7, v1
v_and_b32 v1, 63, v0
v_bfe_u32 v3, v0, 4, 2
v_lshlrev_b32 v4, 2, v1
v_lshlrev_b32 v5, 4, v1
s_and_b32 s10, s9, 3
s_lshl_b32 s5, s8, 2
s_add_u32 s5, s5, s10
s_lshr_b32 s6, s9, 2
v_mov_b32 v11, 0""")
        if self.stamps:
            for i in range(76, 100):
                e(f"s_mov_b32 s{i}, 0")
        self.stamp(0)
        e("""s_or_b32 s10, s2, s7
s_cmp_lg_u32 s10, 0
s_cbranch_scc1 L_nomaster
s_waitcnt lgkmcnt(0)
s_mov_b32 s63, s62
s_mul_i32 s62, s62, 0x9e3779b1
s_or_b32 s62, s62, 1
v_mov_b32 v16, s62
v_mov_b32 v17, s63
v_lshlrev_b32 v18, 6, v1
s_mov_b64 exec, 15
global_store_dwordx2 v18, v[16:17], s[36:37] sc1
s_mov_b64 exec, -1
L_nomaster:
s_cmp_ge_u32 s7, 4
s_cbranch_scc1 L_hi""")
        self.commonA(nt)
        self.roleW(nt)
        self.roleKV(nt)
        self.label("L_fin")
        self.stamp_dump()
        self.label("L_end")
        e("s_endpgm")
        self.label("L_codeend")
        self.o.append(f""".section .rodata,"a"
.p2align 6
.amdhsa_kernel {KN}
  .amdhsa_next_free_vgpr 256
  .amdhsa_next_free_sgpr 100
  .amdhsa_accum_offset 256
  .amdhsa_group_segment_fixed_size 0
  .amdhsa_kernarg_size 96
  .amdhsa_user_sgpr_count 2
  .amdhsa_user_sgpr_kernarg_segment_ptr 1
  .amdhsa_system_sgpr_workgroup_id_x 1
.end_amdhsa_kernel""")
        return "\n".join(self.o) + "\n"

    def commonA(self, nt):
        e = self.e
        AB = 133248
        XT, QRED = AB, AB + 10240
        e("""s_mul_i32 s10, s6, 80
s_mul_i32 s11, s7, 20
s_add_u32 s10, s10, s11
s_lshl_b32 s11, s10, 13
s_lshl_b32 s12, s5, 8
s_add_u32 s11, s11, s12
v_lshlrev_b32 v6, 13, v3
v_lshl_add_u32 v6, v2, 4, v6
v_add_u32 v6, s11, v6
s_waitcnt lgkmcnt(0)""")
        for k in range(5):
            e(f"global_load_dword v{76+k}, v4, s[16:17] offset:{256*k}")
        for t in range(5):
            e(f"global_load_dwordx4 v[{16+4*t}:{19+4*t}], v6, s[20:21] {nt}")
            if t < 4:
                e("v_add_u32 v6, 0x8000, v6")
        self.srd(40, 38, WS_RECORDS)
        self.srd(56, 36, 256)
        self.masks(68, 2, 92, False)
        e(f"""s_mul_i32 s14, s7, 2560
s_add_u32 s14, s14, {XT}
v_lshlrev_b32 v8, 3, v1
v_add_u32 v8, s14, v8
s_lshl_b32 s15, s10, 2
s_add_u32 s15, s15, s14
v_lshl_add_u32 v9, v3, 2, s15
v_lshlrev_b32 v10, 5, v2
v_lshl_add_u32 v10, v3, 4, v10
s_lshl_b32 s14, s7, 9
s_add_u32 s14, s14, {QRED}
v_add_u32 v10, s14, v10
v_mov_b32 v227, {NB}
v_add_u32 v7, {QRED}, v5
s_lshl_b32 s68, s5, 12
s_add_u32 s68, s68, {Q1}
s_lshl_b32 s69, s6, 9
s_add_u32 s69, s69, s68
s_waitcnt vmcnt(5)""")
        for k in range(5):
            e(f"v_lshlrev_b32 v{82+2*k}, 16, v{76+k}\nv_and_b32 v{83+2*k}, 0xffff0000, v{76+k}")
        self.layernorm(82, 92, 62, 63)
        for k in range(5):
            e(f"""v_cvt_pk_bf16_f32 v{92+2*(k%2)}, v{82+2*k}, v{82+2*k}
v_cvt_pk_bf16_f32 v{93+2*(k%2)}, v{83+2*k}, v{83+2*k}
ds_write_b64 v8, v[{92+2*(k%2)}:{93+2*(k%2)}] offset:{512*k}""")
        e("s_waitcnt lgkmcnt(0)")
        for t in range(5):
            e(f"ds_read_b32 v{82+t}, v9 offset:{16*t}")
        e("s_waitcnt lgkmcnt(0)")
        for t in range(5):
            for r in range(4):
                e(f"v_and_b32 v{96+4*t+r}, v{82+t}, v{68+r}")
        ln = self.newlabel("a_nn")
        e(f"s_cmp_lg_u32 s7, 0\ns_cbranch_scc1 {ln}")
        self.wait_nonce(90)
        e(f"v_mov_b32 v90, s65\nds_write_b32 v227, v90 offset:{NON}")
        self.label(ln)
        for t in range(5):
            c = "0" if t == 0 else "v[116:119]"
            e(f"s_waitcnt vmcnt({4-t})")
            e(f"v_mfma_f32_16x16x32_bf16 v[116:119], v[{96+4*t}:{99+4*t}], v[{16+4*t}:{19+4*t}], {c}")
        self.stamp(1)
        e("s_nop 2")
        e(f"""s_nop 4
s_mov_b32 exec_hi, 0
ds_write_b128 v10, v[116:119]
s_mov_b64 exec, -1
s_waitcnt lgkmcnt(0)
s_barrier""")
        self.stamp(2)
        e("s_cmp_lg_u32 s7, 0\ns_cbranch_scc1 L_lo123")
        for wv in range(4):
            e(f"ds_read_b128 v[{120+4*wv}:{123+4*wv}], v7 offset:{512*wv}")
        self.set_tags()
        e("s_waitcnt lgkmcnt(0)")
        self.tree_sum(120, 4)
        self.tag4(120)
        e("""s_mov_b32 exec_hi, 0
buffer_store_dwordx4 v[120:123], v5, s[40:43], s69 offen
s_mov_b64 exec, -1
s_mov_b32 s73, s69
s_cmp_ge_u32 s9, 16
s_cbranch_scc1 L_kv_w0""")

    def get_nonce_lds(self, vt):
        self.e(f"""ds_read_b32 v{vt}, v227 offset:{NON}
s_waitcnt lgkmcnt(0)
v_readfirstlane_b32 s65, v{vt}""")
        self.set_tags()

    def roleW(self, nt):
        e = self.e
        QBF, QAL, CLX, RED, RED2 = 24576, 24832, 25600, 26624, 28672
        e("""v_and_b32 v8, 31, v1
v_lshlrev_b32 v8, 3, v8
v_lshrrev_b32 v9, 5, v1
v_lshl_add_u32 v8, v9, 2, v8""")

        def restore_q1():
            e("""s_mov_b32 exec_hi, 0
buffer_store_dwordx4 v[120:123], v5, s[40:43], s73 offen sc1
s_mov_b64 exec, -1""")
        self.restore_q1 = restore_q1
        self.poll([(f"buffer_load_dwordx4 v[{124+4*k}:{127+4*k}], v5, s[40:43], s68 offen offset:{1024*k} sc1", 124 + 4 * k, 4) for k in range(4)], 'tag', 90, restore=restore_q1)
        self.stamp(3)
        self.tree_sum(124, 4)
        e(f"""s_nop 0
v_permlane32_swap_b32 v124, v126
v_permlane32_swap_b32 v125, v127
s_nop 0
v_pk_add_f32 v[124:125], v[124:125], v[126:127]
v_cvt_pk_bf16_f32 v124, v124, v125
ds_write_b32 v8, v124 offset:{QBF}
ds_write_b32 v11, v11 offset:{QAL + 268}
ds_write_b32 v11, v11 offset:{QAL + 284}
s_waitcnt lgkmcnt(0)
s_barrier""")
        e(f"""v_lshrrev_b32 v8, 1, v1
v_and_b32 v9, 1, v1
v_cmp_gt_u32 vcc, 8, v8
v_lshlrev_b32 v128, 5, v8
v_mul_u32_u24 v129, 96, v8
v_add_u32 v129, {-768+12 & 0xffffffff:#x}, v129
v_cndmask_b32 v128, v129, v128, vcc
v_lshl_add_u32 v128, v9, 4, v128
v_mov_b32 v129, 32
v_cndmask_b32 v130, v129, 4, vcc
v_add_u32 v129, v128, v130
v_add_u32 v130, v129, v130
v_lshlrev_b32 v8, 10, v8
v_lshl_add_u32 v8, v9, 4, v8
s_lshr_b32 s10, s5, 4
s_mul_i32 s10, s10, {22*1024}
s_lshr_b32 s11, s6, 1
s_mul_i32 s11, s11, {11*1024}
s_add_u32 s10, s10, s11
s_and_b32 s11, s5, 15
s_lshl_b32 s11, s11, 6
s_add_u32 s10, s10, s11
s_and_b32 s11, s6, 1
s_lshl_b32 s11, s11, 5
s_add_u32 s10, s10, s11
s_add_u32 s10, s10, {QA}
v_mov_b32 v127, s67
v_mov_b32 v90, s65""")
        self.sig_prep(0, 70)
        if self.opt("sig0_early", 1):
            self.sig_send(70, 90, 11)
        e(f"""s_mov_b32 exec_lo, 0x3fffff
s_mov_b32 exec_hi, 0
s_barrier
ds_read_b32 v124, v128 offset:{QAL}
ds_read_b32 v125, v129 offset:{QAL}
ds_read_b32 v126, v130 offset:{QAL}
s_waitcnt lgkmcnt(0)
buffer_store_dwordx4 v[124:127], v8, s[40:43], s10 offen sc1
s_mov_b64 exec, -1""")
        if not self.opt("sig0_early", 1):
            self.sig_send(70, 90, 11)
        self.stamp(4)
        self.dbgtime(4, 0)
        self.dbgtime(5, 77)
        e("s_branch L_w_join")
        self.label("L_lo123")
        e("s_cmp_ge_u32 s9, 16\ns_cbranch_scc1 L_kv_lo")
        self.get_nonce_lds(90)
        e("s_barrier\ns_barrier\ns_branch L_w_join")
        self.label("L_hi")
        e(f"""s_lshr_b32 s13, s6, 1
s_lshl_b32 s13, s13, 8
s_and_b32 s14, s6, 1
s_lshl_b32 s14, s14, 4
s_add_u32 s13, s13, s14
s_sub_u32 s14, s7, 4
s_lshl_b32 s14, s14, 6
s_add_u32 s13, s13, s14
s_lshl_b32 s13, s13, 13
s_lshl_b32 s12, s5, 8
s_add_u32 s13, s13, s12
v_xor_b32 v7, v2, v3
v_lshlrev_b32 v7, 4, v7
v_lshl_add_u32 v7, v3, 13, v7
v_mov_b32 v227, {NB}
s_waitcnt lgkmcnt(0)""")
        self.srd(56, 36, 256)
        self.srd(40, 38, WS_RECORDS)
        e("s_cmp_ge_u32 s9, 16\ns_cbranch_scc1 L_kv_hi")
        lpw = self.newlabel("w_pw")
        e(f"""s_cmp_lg_u32 s7, 4
s_cbranch_scc1 {lpw}
s_lshl_b32 s68, s5, 12
s_add_u32 s68, s68, {Q1}
v_lshlrev_b32 v8, 6, v1
buffer_load_dword v91, v8, s[40:43], s68 offen sc1""")
        self.label(lpw)
        ntk = self.opt("nt_wuk", nt)
        if ntk == "none":
            ntk = ""
        if self.opt("sl_wuk", 1):
            e(f"s_sleep {self.opt('sl_wuk', 1)}")
        WKL = 32768
        self.srd(52, 22, 4194304)
        e(f"""s_sub_u32 s14, s7, 4
s_lshl_b32 s14, s14, 13
s_add_u32 s14, s14, {WKL}
v_lshlrev_b32 v6, 8, v2
v_add_u32 v6, s14, v6""")
        for k in range(8):
            e(f"""s_mov_b32 m0, s14
v_xor_b32 v8, {64*(k&3)}, v7
buffer_load_dwordx4 v8, s[52:55], s13 offen {ntk} lds
s_add_u32 s14, s14, 1024
s_add_u32 s13, s13, {32768 if k != 3 else 32768 + 16*8192}""")
        for t in range(4):
            e(f"""v_or_b32 v8, {4*t}, v3
v_xor_b32 v8, v8, v2
v_lshl_add_u32 v{100+t}, v8, 4, v6""")
        e(f"""v_lshlrev_b32 v9, 4, v3
s_sub_u32 s14, s7, 4
s_lshl_b32 s14, s14, 6
v_lshl_add_u32 v8, v3, 3, s14
s_barrier""")
        self.get_nonce_lds(90)
        e("s_waitcnt vmcnt(0)")
        self.stamp(1)
        for t in range(4):
            e(f"ds_read_b128 v[{36+4*t}:{39+4*t}], v{100+t}\nds_read_b128 v[{52+4*t}:{55+4*t}], v{100+t} offset:4096")
        e("s_waitcnt lgkmcnt(0)\ns_barrier")
        for t in range(4):
            e(f"ds_read_b128 v[{120+4*t}:{123+4*t}], v9 offset:{QBF + 64*t}")
        for t in range(4):
            c0 = "0" if t == 0 else "v[116:119]"
            c1 = "0" if t == 0 else "v[136:139]"
            e(f"s_waitcnt lgkmcnt({3-t})")
            e(f"v_mfma_f32_16x16x32_bf16 v[116:119], v[{36+4*t}:{39+4*t}], v[{120+4*t}:{123+4*t}], {c0}")
            e(f"v_mfma_f32_16x16x32_bf16 v[136:139], v[{52+4*t}:{55+4*t}], v[{120+4*t}:{123+4*t}], {c1}")
        e(f"""s_nop 6
v_cvt_pk_bf16_f32 v140, v116, v117
v_cvt_pk_bf16_f32 v141, v118, v119
v_cvt_pk_bf16_f32 v142, v136, v137
v_cvt_pk_bf16_f32 v143, v138, v139
ds_write_b64 v8, v[140:141] offset:{QAL}
ds_write_b64 v8, v[142:143] offset:{QAL + 32}
s_waitcnt lgkmcnt(0)
s_barrier""")
        self.label("L_w_join")
        self.masks(72, 2, 92, True)
        if self.opt("sl_de", 0):
            e(f"s_sleep {self.opt('sl_de', 0)}")
        nto = self.opt("nt_wo", nt)
        e("""s_lshr_b32 s10, s6, 1
s_and_b32 s11, s6, 1
v_lshrrev_b32 v6, 3, v2
v_lshl_add_u32 v6, v6, 2, v3
v_lshlrev_b32 v7, 4, v6
v_lshlrev_b32 v6, 13, v6
v_and_b32 v8, 7, v2
v_lshl_add_u32 v6, v8, 4, v6
s_lshl_b32 s12, s10, 8
s_lshl_b32 s13, s7, 5
s_add_u32 s12, s12, s13
s_lshl_b32 s12, s12, 13
s_lshl_b32 s13, s5, 8
s_add_u32 s12, s12, s13
s_lshl_b32 s13, s11, 7
s_add_u32 s12, s12, s13
v_add_u32 v6, s12, v6""")
        for t in range(4):
            e(f"global_load_dwordx4 v[{16+4*t}:{19+4*t}], v6, s[24:25] {nt}")
            if t < 3:
                e("v_add_u32 v6, 0x10000, v6")
        lwo = self.newlabel("w_nowo")
        e(f"""s_cmp_ge_u32 s7, 4
s_cbranch_scc1 {lwo}
v_mul_u32_u24 v6, 5120, v3
v_lshl_add_u32 v6, v2, 4, v6
s_lshl_b32 s12, s5, 7
s_lshl_b32 s13, s11, 6
s_add_u32 s12, s12, s13
s_lshl_b32 s13, s7, 4
s_add_u32 s12, s12, s13
s_mul_i32 s12, s12, 1280
v_add_u32 v6, s12, v6""")
        for t in range(4):
            for b in range(5):
                r = 160 + (t * 5 + b) * 4
                e(f"global_load_dwordx4 v[{r}:{r+3}], v6, s[26:27] offset:{1280*(t%2) + 256*b} {nto}")
            if t == 1:
                e("v_add_u32 v6, 2560, v6")
        self.label(lwo)
        e(f"""v_and_b32 v8, 1, v3
v_lshlrev_b32 v8, 1, v8
v_lshrrev_b32 v9, 1, v3
v_or_b32 v8, v8, v9
v_and_b32 v9, 1, v1
v_lshl_add_u32 v8, v9, 2, v8
v_bfe_u32 v9, v1, 1, 2
v_lshl_add_u32 v8, v8, 2, v9
v_lshlrev_b32 v8, 2, v8
s_lshl_b32 s12, s7, 7
v_add_u32 v8, s12, v8
v_add_u32 v7, s12, v7
v_lshrrev_b32 v9, 3, v1
v_lshlrev_b32 v10, 4, v9
v_lshlrev_b32 v9, 9, v9
v_and_b32 v6, 7, v1
v_lshl_add_u32 v9, v6, 4, v9
s_lshl_b32 s12, s5, 2
s_lshl_b32 s13, s10, 1
s_add_u32 s12, s12, s13
s_lshr_b32 s13, s7, 2
s_add_u32 s12, s12, s13
s_lshl_b32 s12, s12, 14
s_and_b32 s13, s7, 3
s_lshl_b32 s13, s13, 7
s_add_u32 s12, s12, s13
s_add_u32 s12, s12, {OB}
s_add_u32 s13, s12, 4096
s_add_u32 s14, s12, 8192
s_add_u32 s15, s12, 12288
s_lshl_b32 s68, s5, 9
s_add_u32 s68, s68, {OS}
v_and_b32 v36, 7, v2
v_lshlrev_b32 v36, 5, v36
v_lshl_add_u32 v36, v3, 4, v36
s_lshl_b32 s61, s7, 8
v_add_u32 v36, s61, v36
s_lshl_b32 s61, s7, 6
v_lshl_add_u32 v37, v3, 4, s61
v_lshlrev_b32 v38, 5, v2
v_lshl_add_u32 v38, v3, 4, v38
s_mul_i32 s61, s7, 2560
v_add_u32 v38, s61, v38
v_subrev_u32 v39, 256, v0
v_lshrrev_b32 v40, 3, v39
v_lshlrev_b32 v40, 11, v40
v_and_b32 v41, 7, v39
v_lshl_add_u32 v40, v41, 4, v40
v_lshlrev_b32 v41, 4, v39
s_mul_i32 s69, s8, {20*2048}
s_lshl_b32 s61, s9, 7
s_add_u32 s69, s69, s61
s_add_u32 s69, s69, {EL}
s_and_b32 s61, s4, 0x67
v_mov_b32 v42, s65
s_mov_b32 s62, {LOG2E:#x}""")
        self.sig_prep(1, 70, "s61")
        self.sig_prep(2, 71)
        self.sig_prep(3, 72)
        e("s_waitcnt vmcnt(0)")
        self.stamp(5)
        lrq = self.newlabel("w_rq")
        lpe = self.newlabel("w_pe")
        e(f"""s_cmp_lg_u32 s7, 0
s_cbranch_scc1 {lrq}
s_mov_b32 exec_hi, 0
buffer_store_dwordx4 v[120:123], v5, s[40:43], s73 offen sc1
s_mov_b64 exec, -1""")
        self.label(lrq)
        e(f"""s_sub_u32 s61, s7, 4
s_lshl_b32 s61, s61, 4
s_add_u32 s61, s61, s9
s_cmp_ge_u32 s61, 20
s_cbranch_scc1 {lpe}
s_mul_i32 s63, s8, 20
s_add_u32 s63, s63, s61
s_lshl_b32 s63, s63, 11
s_add_u32 s63, s63, {EL}
v_lshlrev_b32 v44, 5, v1
buffer_load_dword v45, v44, s[40:43], s63 offen sc1""")
        self.label(lpe)
        self.sig_wait(71, 44, 11, self.opt("sl_h3", 44))
        self.stamp(6)
        loads = [(f"buffer_load_dwordx4 v[{48+4*k}:{51+4*k}], v10, s[40:43], s68 offen offset:{128*k} sc1", 48 + 4 * k, 4) for k in range(4)]
        loads += [(f"buffer_load_dwordx4 v[{120+4*k}:{123+4*k}], v9, s[40:43], s{12+k} offen sc1", 120 + 4 * k, 4) for k in range(4)]
        self.poll(loads, 'tag', 44)
        self.stamp(7)
        for k in range(4):
            e(f"v_and_b32 v{48+4*k}, s64, v{48+4*k}")
        e(f"""v_max3_f32 v44, v48, v52, v56
v_max_f32 v44, v44, v60
s_nop 1
v_max_f32_dpp v44, v44, v44 row_ror:8 row_mask:0xf bank_mask:0xf
s_nop 0
v_mov_b32 v45, v44
s_nop 1
v_permlane16_swap_b32 v44, v45
s_nop 0
v_max_f32 v44, v44, v45
v_mov_b32 v45, v44
s_nop 1
v_permlane32_swap_b32 v44, v45
s_nop 0
v_max_f32 v44, v44, v45
v_mul_f32 v44, s62, v44""")
        for k in range(4):
            e(f"v_fma_f32 v{48+4*k}, v{48+4*k}, s62, -v44")
        for k in range(4):
            e(f"v_exp_f32 v{48+4*k}, v{48+4*k}")
        e("s_nop 0\nv_mul_f32 v46, v48, v49")
        for k in range(1, 4):
            e(f"v_fmac_f32 v46, v{48+4*k}, v{49+4*k}")
        for r in (0, 2):
            e(f"v_pk_mul_f32 v[{120+r}:{121+r}], v[{120+r}:{121+r}], v[48:49] op_sel_hi:[1,0]")
        e("v_add_f32_dpp v46, v46, v46 row_ror:8 row_mask:0xf bank_mask:0xf")
        for k in range(1, 4):
            for r in (0, 2):
                e(f"v_pk_fma_f32 v[{120+r}:{121+r}], v[{120+4*k+r}:{121+4*k+r}], v[{48+4*k}:{49+4*k}], v[{120+r}:{121+r}] op_sel_hi:[1,0,1]")
            if k == 1:
                e("v_mov_b32 v45, v46")
            if k == 2:
                e("v_permlane16_swap_b32 v46, v45")
        e(f"""v_add_f32 v46, v46, v45
v_permlane32_swap_b32 v120, v121
v_mov_b32 v45, v46
v_permlane32_swap_b32 v122, v123
v_add_f32 v120, v120, v121
v_permlane32_swap_b32 v46, v45
v_add_f32 v122, v122, v123
v_add_f32 v46, v46, v45
s_nop 0
v_permlane16_swap_b32 v120, v122
v_rcp_f32 v46, v46
v_add_f32 v120, v120, v122
s_nop 1
v_add_f32_dpp v120, v120, v120 row_ror:8 row_mask:0xf bank_mask:0xf
s_nop 0
v_mul_f32 v120, v120, v46
v_cvt_pk_bf16_f32 v120, v120, v120
ds_write_b32 v8, v120 offset:{CLX}
s_waitcnt lgkmcnt(0)
ds_read_b128 v[120:123], v7 offset:{CLX}
s_waitcnt lgkmcnt(0)""")
        for t in range(4):
            for r in range(4):
                e(f"v_and_b32 v{96+4*t+r}, v{120+t}, v{72+r}")
            if t > 0:
                c = "0" if t == 1 else "v[116:119]"
                e(f"v_mfma_f32_16x16x32_bf16 v[116:119], v[{96+4*(t-1)}:{99+4*(t-1)}], v[{16+4*(t-1)}:{19+4*(t-1)}], {c}")
        e("s_nop 0\nv_mfma_f32_16x16x32_bf16 v[116:119], v[108:111], v[28:31], v[116:119]\ns_nop 7")
        for r in range(4):
            e(f"v_mov_b32 v{124+r}, v{116+r}")
        for r in range(4):
            e(f"v_permlane32_swap_b32 v{116+r}, v{124+r}")
        for r in range(4):
            e(f"v_add_f32_dpp v{116+r}, v{124+r}, v{116+r} row_ror:8 row_mask:0xf bank_mask:0xf")
        e(f"""s_mov_b32 exec_lo, 0x00ff00ff
s_mov_b32 exec_hi, 0
ds_write_b128 v36, v[116:119] offset:{RED}
s_mov_b64 exec, -1
s_waitcnt lgkmcnt(0)
s_barrier""")
        lhi = self.newlabel("w_hi")
        e(f"s_cmp_ge_u32 s7, 4\ns_cbranch_scc1 {lhi}")
        for p in range(8):
            e(f"ds_read_b128 v[{120+4*p}:{123+4*p}], v37 offset:{RED + 256*p}")
        e("s_waitcnt lgkmcnt(0)")
        self.tree_sum(120, 8)
        for t in range(4):
            e(f"v_cvt_pk_bf16_f32 v{124+t}, v{120+t}, v{120+t}")
        for t in range(4):
            for r in range(4):
                e(f"v_and_b32 v{96+4*t+r}, v{124+t}, v{68+r}")
            e("s_nop 1")
            for b in range(5):
                r = 160 + (t * 5 + b) * 4
                c = "0" if t == 0 else f"v[{136+4*b}:{139+4*b}]"
                e(f"v_mfma_f32_16x16x32_bf16 v[{136+4*b}:{139+4*b}], v[{96+4*t}:{99+4*t}], v[{r}:{r+3}], {c}")
        e("s_mov_b32 exec_hi, 0\ns_nop 3")
        for b in range(5):
            if b == 4:
                e("s_nop 3")
            e(f"ds_write_b128 v38, v[{136+4*b}:{139+4*b}] offset:{RED2 + 512*b}")
        e("s_mov_b64 exec, -1\ns_waitcnt lgkmcnt(0)\ns_barrier")
        self.stamp(8)
        self.dbgtime(8, 5)
        e("""s_cmp_ge_u32 s4, 40
s_cbranch_scc1 L_fin
s_cmp_lg_u32 s7, 0
s_cbranch_scc1 L_fin""")
        self.colidx(8, 9)
        self.srd(44, 16, 1280)
        self.srd(52, 34, 1280)
        e(f"""s_lshl_b32 s12, s4, 5
v_lshlrev_b32 v9, 1, v8
buffer_load_ushort v50, v9, s[44:47], s12 offen
s_mul_i32 s12, s4, 7168
s_add_u32 s12, s12, {FB}
s_add_u32 s13, s12, 4096
v_cmp_gt_u32 vcc, 48, v1
v_add_u32 v10, 1024, v5
s_nop 0
v_cndmask_b32 v10, v5, v10, vcc
v_bfe_u32 v51, v1, 2, 3
v_mul_u32_u24 v51, 2560, v51
v_and_b32 v52, 3, v1
v_lshl_add_u32 v51, v52, 4, v51
s_lshl_b32 s14, s4, 6
s_add_u32 s14, s14, {XB}""")
        self.sig_prep(4, 70)
        self.sig_wait(72, 16, 11, self.opt("sl_h5", 0) + 8)
        self.poll([("buffer_load_dwordx4 v[44:47], v51, s[40:43], s14 offen sc1", 44, 4)], 'tag', 53)
        e("v_cmp_gt_u32 vcc, 32, v1\ns_nop 1")
        for r in range(4):
            e(f"v_cndmask_b32 v{44+r}, 0, v{44+r}, vcc")
        self.reduce16(44, 1)
        e(f"""v_cvt_pk_bf16_f32 v44, v44, v44
v_and_b32 v44, 0xffff0000, v44
v_lshlrev_b32 v50, 16, v50
v_add_f32 v44, v44, v50
v_cvt_pk_bf16_f32 v44, v44, v44
v_and_b32 v44, 0xffff0000, v44
s_lshl_b32 s15, s4, 5
s_mov_b32 s62, 0x000f000f
s_mov_b32 s63, 0x000f000f
v_cmp_gt_u32 s[68:69], 48, v1""")
        self.sig_wait(70, 16, 11, self.opt("sl_h6", 0))
        loads = [(f"buffer_load_dwordx4 v[{16+4*k}:{19+4*k}], v5, s[40:43], s{12 + k//4} offen offset:{1024*(k%4)} sc1", 16 + 4 * k, 4) for k in range(6)]
        loads += [("buffer_load_dwordx4 v[40:43], v10, s[40:43], s13 offen offset:1024 sc1", 40, 4)]
        self.poll(loads, 'tag', 53)
        self.stamp(9)
        for r in range(4):
            e(f"v_cndmask_b32 v{40+r}, 0, v{40+r}, s[68:69]")
        self.reduce16(16, 7)
        e(f"""s_nop 0
v_cvt_pk_bf16_f32 v16, v16, v16
v_and_b32 v16, 0xffff0000, v16
v_add_f32 v16, v16, v44
v_cvt_pk_bf16_f32 v16, v16, v16
s_mov_b64 exec, s[62:63]
buffer_store_short v16, v9, s[52:55], s15 offen
s_mov_b64 exec, -1""")
        self.stamp(10)
        self.dbgtime(2, 0)
        self.dbgtime(3, 39)
        e("s_branch L_fin")
        self.label(lhi)
        e(f"""s_sub_u32 s10, s7, 4
s_lshl_b32 s10, s10, 4
s_add_u32 s10, s10, s9
s_mul_i32 s12, s8, 20
s_add_u32 s12, s12, s10
s_lshl_b32 s12, s12, 11
s_add_u32 s12, s12, {EL}
s_mul_i32 s13, s8, 2560
s_lshl_b32 s14, s10, 7
s_add_u32 s13, s13, s14
s_add_u32 s13, s13, {XB}
v_cmp_gt_u32 vcc, 160, v39
s_and_saveexec_b64 s[62:63], vcc
s_barrier
s_cbranch_execz L_fin""")
        for wv in range(4):
            e(f"ds_read_b128 v[{120+4*wv}:{123+4*wv}], v41 offset:{RED2 + 2560*wv}")
        e("s_waitcnt lgkmcnt(0)")
        self.tree_sum(120, 4)
        self.tag4(120)
        e("buffer_store_dwordx4 v[120:123], v40, s[40:43], s69 offen")
        self.stamp(8)

        def restore_el():
            e("buffer_store_dwordx4 v[120:123], v40, s[40:43], s69 offen sc1")
        lnr = self.newlabel("w_nored")
        e(f"s_cmp_ge_u32 s10, 20\ns_cbranch_scc1 {lnr}")
        self.poll([(f"buffer_load_dwordx4 v[{124+4*k}:{127+4*k}], v5, s[40:43], s12 offen offset:{1024*k} sc1", 124 + 4 * k, 4) for k in range(2)], 'tag', 44, restore=restore_el)
        self.stamp(9)
        self.tree_sum(124, 2)
        e("s_nop 0")
        for r in range(4):
            e(f"v_add_f32_dpp v{124+r}, v{124+r}, v{124+r} row_ror:8 row_mask:0xf bank_mask:0xf")
        for r in range(4):
            e(f"v_mov_b32 v{128+r}, v{124+r}")
        for r in range(4):
            e(f"v_permlane16_swap_b32 v{124+r}, v{128+r}")
        self.tree_sum(124, 2)
        for r in range(4):
            e(f"v_mov_b32 v{128+r}, v{124+r}")
        for r in range(4):
            e(f"v_permlane32_swap_b32 v{124+r}, v{128+r}")
        self.tree_sum(124, 2)
        self.tag4(124)
        e("""s_mov_b64 exec, 0xff
buffer_store_dwordx4 v[124:127], v5, s[40:43], s13 offen sc1
s_mov_b64 exec, -1""")
        lns = self.newlabel("w_nosig")
        e(f"s_cmp_lg_u32 s7, 4\ns_cbranch_scc1 {lns}")
        self.sig_send(72, 42, 11)
        self.label(lns)
        self.stamp(10)
        self.label(lnr)
        e(f"s_sleep {self.opt('sl_el', 64)}")
        restore_el()
        e("s_branch L_fin")

    def colidx(self, vd, vt):
        self.e(f"""v_and_b32 v{vd}, 1, v3
v_lshlrev_b32 v{vd}, 1, v{vd}
v_lshrrev_b32 v{vt}, 1, v3
v_or_b32 v{vd}, v{vd}, v{vt}
v_and_b32 v{vt}, 3, v1
v_lshl_add_u32 v{vd}, v{vt}, 2, v{vd}""")

    def reduce16(self, v0, n):
        e = self.e
        self.tree_sum(v0, n)
        a = v0
        e(f"""s_nop 1
v_permlane32_swap_b32 v{a}, v{a+1}
v_permlane32_swap_b32 v{a+2}, v{a+3}
s_nop 0
v_add_f32 v{a}, v{a}, v{a+1}
v_add_f32 v{a+2}, v{a+2}, v{a+3}
s_nop 1
v_permlane16_swap_b32 v{a}, v{a+2}
s_nop 0
v_add_f32 v{a}, v{a}, v{a+2}
s_nop 1
v_add_f32_dpp v{a}, v{a}, v{a} row_ror:8 row_mask:0xf bank_mask:0xf
s_nop 1
v_add_f32_dpp v{a}, v{a}, v{a} row_ror:4 row_mask:0xf bank_mask:0xf""")

    def acc(self, k):
        return 168 + 4 * k if k < 11 else 64 + 4 * (k - 11)

    def roleKV(self, nt):
        e = self.e
        RT, BT, QL, XCH, PL, SL = 0, 67584, 4096, 49152, 4096, 64
        W1L, HN, HF = 24576, 45056, 50176

        def ids():
            e(f"""s_bfe_u32 s10, s9, 0x20002
s_lshl_b32 s5, s8, 2
s_add_u32 s5, s5, s10
s_and_b32 s6, s9, 3""")
            self.srd(44, 18, 8388608)
            e(f"""s_lshl_b32 s10, s5, 3
s_lshl_b32 s11, s6, 1
s_add_u32 s10, s10, s11
s_mul_i32 s68, s10, {2*PMSG}
s_add_u32 s68, s68, {PB}
s_lshl_b32 s69, s5, 7
s_add_u32 s69, s69, {RDY}""")

        def rows(done):
            e(f"""s_sub_u32 s15, s7, 1
s_lshl_b32 s12, s5, 8
s_lshl_b32 s13, s6, 6
s_add_u32 s12, s12, s13
s_add_u32 s12, s12, s15
s_lshl_b32 s12, s12, 10
s_mul_i32 s14, s15, 1040
s_add_u32 s14, s14, {RT}""")
            for k in range(11):
                if k == 10:
                    e(f"s_cmp_ge_u32 s15, 4\ns_cbranch_scc1 {done}")
                e(f"""s_mov_b32 m0, s14
s_add_u32 s14, s14, {6*1040}
buffer_load_dwordx4 v5, s[44:47], s12 offen {nt} lds
s_add_u32 s12, s12, {6*1024}""")
        lj = "L_kv_join"
        self.label("L_kv_w0")
        ids()
        e(f"s_branch {lj}")
        self.label("L_kv_lo")
        ids()
        rows(lj)
        e(f"s_branch {lj}")
        self.label("L_kv_hi")
        ids()
        l7 = self.newlabel("kv_w7")
        lrd = self.newlabel("kv_rowsd")
        e(f"s_cmp_eq_u32 s7, 7\ns_cbranch_scc1 {l7}")
        if self.opt("sl_ckv", 28):
            e(f"s_sleep {self.opt('sl_ckv', 28)}")
        rows(lrd)
        self.label(lrd)
        e(f"s_barrier\ns_branch {lj}")
        self.label(l7)
        e("""v_mov_b32 v20, -1
v_mov_b32 v21, -1
v_mov_b32 v22, -1
v_mov_b32 v23, -1
buffer_store_dwordx4 v[20:23], v5, s[40:43], s68 offen sc1
buffer_store_dwordx4 v[20:23], v5, s[40:43], s68 offen offset:1024 sc1
buffer_store_dwordx4 v[20:23], v5, s[40:43], s68 offen offset:2048 sc1
buffer_store_dwordx4 v[20:23], v5, s[40:43], s68 offen offset:3072 sc1
buffer_store_dwordx4 v[20:23], v5, s[40:43], s68 offen offset:3584 sc1""")
        e(f"""ds_write_b32 v227, v11 offset:{FLG}
ds_write_b32 v227, v11 offset:{FLG+4}
s_waitcnt lgkmcnt(0)
s_barrier
ds_read_b32 v60, v227 offset:{NON}
s_lshl_b32 s12, s6, 4
s_add_u32 s12, s12, s69
s_waitcnt vmcnt(0) lgkmcnt(0)
v_mov_b32 v61, v60
v_mov_b32 v62, v60
v_mov_b32 v63, v60
s_mov_b64 exec, 1
buffer_store_dwordx4 v[60:63], v11, s[40:43], s12 offen sc1
s_mov_b64 exec, -1
v_readfirstlane_b32 s65, v60
s_mov_b32 s60, 0""")
        lr = self.newlabel("kv_rdy")
        lrdn = self.newlabel("kv_rdyd")
        self.label(lr)
        e(f"""s_load_dwordx16 s[76:91], s[38:39], s69 glc
s_add_u32 s60, s60, 1
s_cmp_ge_u32 s60, {SPIN_LIMIT}
s_cbranch_scc1 {lrdn}
s_waitcnt lgkmcnt(0)
s_xor_b32 s76, s76, s65
s_xor_b32 s80, s80, s65
s_xor_b32 s84, s84, s65
s_xor_b32 s88, s88, s65
s_or_b32 s76, s76, s80
s_or_b32 s84, s84, s88
s_or_b32 s76, s76, s84
s_cbranch_scc1 {lr}""")
        self.label(lrdn)
        e(f"""s_waitcnt lgkmcnt(0)
s_mul_i32 s12, s5, {16*PMSG}
s_add_u32 s12, s12, {PB}
v_mul_u32_u24 v8, 96, v1
buffer_load_dword v250, v8, s[40:43], s12 offen sc1
s_add_u32 s12, s12, 6144
buffer_load_dword v251, v8, s[40:43], s12 offen sc1
s_add_u32 s12, s12, 6144
buffer_load_dword v252, v8, s[40:43], s12 offen sc1""")
        self.label(lj)
        e(f"""s_lshr_b32 s10, s7, 2
s_lshl_b32 s10, s10, 9
s_bfe_u32 s11, s7, 0x10001
s_mul_i32 s11, s11, {32*1040}
s_add_u32 s10, s10, s11
s_add_u32 s10, s10, {RT}
v_mul_u32_u24 v231, 1040, v2
v_lshl_add_u32 v231, v3, 4, v231
v_add_u32 v231, s10, v231""")
        e(f"""s_lshl_b32 s48, s7, 10
s_add_u32 s49, s48, {QA}
s_add_u32 s48, s48, {QL}
s_lshr_b32 s10, s7, 2
s_mul_i32 s10, s10, {11*1024}
s_and_b32 s11, s7, 1
s_mul_i32 s12, s11, {22*1024}
s_add_u32 s10, s10, s12
v_lshlrev_b32 v10, 6, v2
v_lshl_add_u32 v10, v3, 4, v10
v_add_u32 v6, s10, v10
s_and_b32 s10, s7, 3
s_lshl_b32 s10, s10, 11
v_add_u32 v9, s10, v5
s_lshl_b32 s10, s7, 11
v_add_u32 v7, s10, v5
s_and_b32 s10, s7, 3
s_mul_i32 s10, s10, {PMSG}
s_add_u32 s50, s68, s10
v_lshlrev_b32 v212, 3, v2
s_mul_i32 s51, s5, {16*PMSG}
s_mul_i32 s10, s7, {2*PMSG}
s_add_u32 s51, s51, s10
s_add_u32 s51, s51, {PB}
v_and_b32 v213, 1, v3
v_mul_u32_u24 v213, {PMSG}, v213
v_add_u32 v213, v213, v212
v_and_b32 v214, 31, v1
v_lshlrev_b32 v214, 6, v214
s_lshl_b32 s10, s7, 3
v_add_u32 v214, s10, v214
s_lshl_b32 s10, s11, 10
v_add_u32 v215, s10, v10
s_lshl_b32 s10, s11, 4
v_add_u32 v216, s10, v2
v_lshlrev_b32 v217, 6, v216
v_lshlrev_b32 v218, 16, v216
v_lshl_add_u32 v218, v3, 4, v218
s_lshl_b32 s52, s6, 5
s_add_u32 s52, s52, s5
s_lshl_b32 s52, s52, 9
s_lshr_b32 s10, s7, 1
s_lshl_b32 s10, s10, 7
s_add_u32 s52, s52, s10
s_add_u32 s52, s52, {OB}
v_lshlrev_b32 v219, 9, v216
s_lshl_b32 s53, s5, 4
s_add_u32 s53, s53, {OS}
s_mov_b32 s54, {SCALE:#x}
s_mov_b32 s55, {LOG2E:#x}
v_mov_b32 v221, 1
v_lshlrev_b32 v8, 1, v3
v_xor_b32 v8, v8, v2
v_lshlrev_b32 v222, 10, v3
v_lshl_add_u32 v222, v8, 4, v222
v_xor_b32 v226, 0x80, v222
s_lshl_b32 s74, s5, 8
s_lshl_b32 s13, s7, 5
s_add_u32 s74, s74, s13
s_lshl_b32 s74, s74, 10
s_lshl_b32 s14, s6, 8
s_add_u32 s74, s74, s14
s_lshl_b32 s75, s7, 13
s_add_u32 s75, s75, {BT}
v_lshrrev_b32 v223, 2, v2
v_lshl_add_u32 v223, v3, 2, v223
v_and_b32 v229, 7, v223
s_lshr_b32 s12, s7, 1
s_lshl_b32 s12, s12, 1
v_xor_b32 v229, s12, v229
v_lshlrev_b32 v223, 8, v223
v_lshl_add_u32 v223, v229, 5, v223
v_and_b32 v8, 3, v2
v_lshl_add_u32 v223, v8, 3, v223
v_add_u32 v223, {BT}, v223
v_xor_b32 v229, 32, v223
v_mul_u32_u24 v230, {PMSG}, v2""")
        self.sig_prep(0, 70)
        self.sig_prep(1, 71)
        self.sig_prep(2, 72)
        nt2 = self.opt("nt_block", nt)

        def blk_dma():
            for k in range(8):
                e(f"""s_mov_b32 m0, s75
s_add_u32 s75, s75, 1024
buffer_load_dwordx4 v{222 if k % 2 == 0 else 226}, s[44:47], s74 offen {nt2} lds
s_add_u32 s74, s74, 4096""")

        def tr_reads():
            for p in range(8):
                for ctl in range(2):
                    for hh in range(2):
                        r = 104 + (p * 2 + ctl) * 4 + 2 * hh
                        e(f"ds_read_b64_tr_b16 v[{r}:{r+1}], v{223 if ctl == 0 else 229} offset:{8192*p + 4096*hh}")
                if p % 3 == 2:
                    e("s_waitcnt lgkmcnt(3)")
        self.tr_reads = tr_reads
        early = 1
        self.get_nonce_lds(240)
        e("v_mov_b32 v220, s65\ns_mov_b32 s73x, 0".replace("s73x", "s47x").replace("s47x", "s3"))
        def rq():
            lrq = self.newlabel("kv_rq")
            e(f"""s_cmp_lg_u32 s7, 0
s_cbranch_scc1 {lrq}
s_mov_b32 exec_hi, 0
buffer_store_dwordx4 v[232:235], v5, s[40:43], s73 offen sc1
s_mov_b64 exec, -1""")
            self.label(lrq)
        if self.opt("sl_blk", 0):
            e(f"s_sleep {self.opt('sl_blk', 0)}")
        lb7 = self.newlabel("kv_b7")
        lb0 = self.newlabel("kv_b0")
        e(f"s_cmp_eq_u32 s7, 7\ns_cbranch_scc1 {lb7}")
        blk_dma()
        e(f"s_cmp_lg_u32 s7, 0\ns_cbranch_scc1 {lb0}\ns_add_u32 s74, s74, {192*1024}\ns_add_u32 s75, s75, {48*1024}")
        blk_dma()
        e(f"s_branch {lb7}")
        self.label(lb0)
        e("s_waitcnt vmcnt(8)")
        self.label(lb7)
        e("s_barrier")
        self.stamp(3)
        for u in range(8):
            e(f"ds_read_b128 v[{16+4*u}:{19+4*u}], v231 offset:{64*u}")
        for u in range(8):
            if u == 7:
                e("s_waitcnt lgkmcnt(8)")
            e(f"ds_read_b128 v[{60+4*u}:{63+4*u}], v231 offset:{16*1040 + 64*u}")
        e("s_load_dword s66, s[38:39], s70 glc")
        e("v_mov_b32 v232, v120\nv_mov_b32 v233, v121\nv_mov_b32 v234, v122\nv_mov_b32 v235, v123\ns_waitcnt lgkmcnt(0)")
        for a in range(2):
            for z in range(3):
                for i in range(3):
                    sidx = 3 * z + i
                    d = 16 + 44 * a + 4 * (8 + z) + i
                    if sidx < 8:
                        e(f"v_mov_b32 v{d}, v{16+44*a+4*sidx+3}")
                    else:
                        e(f"v_mov_b32 v{d}, 0")
                e(f"v_mov_b32 v{16+44*a+4*(8+z)+3}, 0")
        if self.opt("dbg1", 0): self.stamp(9)
        e("s_waitcnt vmcnt(0)")
        if self.opt("dbg1", 0): self.stamp(10)
        e("s_barrier")
        if self.opt("dbg1", 0): self.stamp(1)
        lsk0 = self.newlabel("kv_sig0ok")
        e(f"s_cmp_eq_u32 s66, s65\ns_cbranch_scc1 {lsk0}")
        self.sig_wait(70, 240, 11, self.opt("sl_h2", 0), restore=rq)
        self.label(lsk0)
        self.stamp(11)
        e("s_mov_b32 s60, 0")
        lsw = self.newlabel("kv_sweep")
        self.label(lsw)
        e("s_mov_b32 s10, s48\ns_mov_b32 s11, s49")
        for k in range(6):
            if k == 5:
                l5 = self.newlabel("kv_sw5")
                e(f"s_cmp_ge_u32 s7, 4\ns_cbranch_scc1 {l5}")
            e(f"""s_mov_b32 m0, s10
s_add_u32 s10, s10, 8192
buffer_load_dwordx4 v5, s[40:43], s11 offen sc1 lds
s_add_u32 s11, s11, 8192""")
            if k == 5:
                self.label(l5)
        ltr = self.newlabel("kv_notr")
        e(f"s_cmp_lg_u32 s60, 0\ns_cbranch_scc1 {ltr}")
        tr_reads()
        self.label(ltr)
        e("s_waitcnt vmcnt(0) lgkmcnt(0)\ns_barrier")
        for u in range(11):
            e(f"ds_read_b128 v[{168+4*u}:{171+4*u}], v6 offset:{QL + 1024*u}")
        self.stamp(4)

        def chk(u):
            r = 168 + 4 * u + 3
            e(f"s_waitcnt lgkmcnt({10 - u})")
            if u == 0:
                e(f"v_xor_b32 v224, s67, v{r}")
            else:
                e(f"v_bitop3_b32 v224, v224, v{r}, s67 bitop3:0xf6")
            e(f"v_mov_b32 v{r}, 0")
        chk(0)
        for u in range(11):
            if u + 1 < 11:
                chk(u + 1)
            else:
                e("v_cmp_ne_u32 vcc, 0, v224\nv_add_u32 v225, s3, v227")
            r = 168 + 4 * u
            for a in range(2):
                c = "0" if u == 0 else f"v[{240+4*a}:{243+4*a}]"
                e(f"v_mfma_f32_16x16x32_bf16 v[{240+4*a}:{243+4*a}], v[{16+44*a+4*u}:{19+44*a+4*u}], v[{r}:{r+3}], {c}")
        lok = self.newlabel("kv_ok")
        e(f"""s_cmp_eq_u64 vcc, 0
s_cbranch_scc1 {lok}
ds_write_b32 v225, v221 offset:{FLG}""")
        self.label(lok)
        lnx = self.newlabel("kv_nox")
        e(f"""s_cmp_lt_u32 s7, 4
s_cbranch_scc1 {lnx}
s_nop 3
ds_write_b128 v9, v[240:243] offset:{XCH}
ds_write_b128 v9, v[244:247] offset:{XCH + 1024}""")
        self.label(lnx)
        e(f"""s_waitcnt lgkmcnt(0)
s_barrier
ds_read_b32 v224, v225 offset:{FLG}
ds_read_b128 v[168:171], v9 offset:{XCH}
ds_read_b128 v[172:175], v9 offset:{XCH + 1024}""")
        lgo = self.newlabel("kv_go")
        e(f"""s_waitcnt lgkmcnt(2)
v_readfirstlane_b32 s10, v224
s_nop 0
s_cmp_eq_u32 s10, 0
s_cbranch_scc1 {lgo}
s_waitcnt lgkmcnt(0)
s_xor_b32 s3, s3, 4
v_add_u32 v225, s3, v227
ds_write_b32 v225, v11 offset:{FLG}
s_add_u32 s60, s60, 1
s_waitcnt lgkmcnt(0)
s_barrier""")
        rq()
        e(f"""s_cmp_lt_u32 s60, {SPIN_LIMIT}
s_cbranch_scc1 {lsw}""")
        self.label(lgo)
        self.stamp(5)
        lnsm = self.newlabel("kv_nosm")
        e(f"s_cmp_ge_u32 s7, 4\ns_cbranch_scc1 {lnsm}\ns_waitcnt lgkmcnt(0)")
        for k in range(4):
            e(f"v_pk_add_f32 v[{168+2*k}:{169+2*k}], v[{168+2*k}:{169+2*k}], v[{240+2*k}:{241+2*k}]")
        for k in range(4):
            e(f"v_cvt_pk_bf16_f32 v{176+k}, v{168+2*k}, v{169+2*k}")
        for k in range(4):
            e(f"v_lshlrev_b32 v{168+2*k}, 16, v{176+k}\nv_and_b32 v{169+2*k}, 0xffff0000, v{176+k}")
        for k in range(8):
            e(f"v_mul_f32 v{168+k}, s54, v{168+k}")
        for k in range(4):
            e(f"v_cvt_pk_bf16_f32 v{176+k}, v{168+2*k}, v{169+2*k}")
        for k in range(4):
            e(f"v_lshlrev_b32 v{168+2*k}, 16, v{176+k}\nv_and_b32 v{169+2*k}, 0xffff0000, v{176+k}")
        e("""v_max3_f32 v248, v168, v169, v170
v_max3_f32 v180, v171, v172, v173
v_max3_f32 v248, v248, v174, v175
v_max_f32 v248, v248, v180
v_mov_b32 v180, v248
s_nop 1
v_permlane16_swap_b32 v248, v180
s_nop 0
v_max_f32 v248, v248, v180
v_mov_b32 v180, v248
s_nop 1
v_permlane32_swap_b32 v248, v180
s_nop 0
v_max_f32 v248, v248, v180
v_mul_f32 v180, s55, v248""")
        for k in range(8):
            e(f"v_fma_f32 v{168+k}, v{168+k}, s55, -v180")
        for k in range(8):
            e(f"v_exp_f32 v{168+k}, v{168+k}")
        e("s_nop 0")
        for k in range(4):
            e(f"v_cvt_pk_bf16_f32 v{252+k}, v{168+2*k}, v{169+2*k}")
        e("""buffer_store_dwordx4 v[252:255], v10, s[40:43], s50 offen
v_pk_add_f32 v[168:169], v[168:169], v[170:171]
v_pk_add_f32 v[172:173], v[172:173], v[174:175]
v_pk_add_f32 v[168:169], v[168:169], v[172:173]
v_add_f32 v249, v168, v169
v_mov_b32 v180, v249
s_nop 1
v_permlane16_swap_b32 v249, v180
s_nop 0
v_add_f32 v249, v249, v180
v_mov_b32 v180, v249
s_nop 1
v_permlane32_swap_b32 v249, v180
s_nop 0
v_add_f32 v249, v249, v180
s_mov_b64 exec, 0xffff
buffer_store_dwordx2 v[248:249], v212, s[40:43], s50 offen offset:1024
s_mov_b64 exec, -1""")
        self.stamp(6)
        if not early:
            lsj = self.newlabel("kv_sj")
            e(f"s_branch {lsj}")
            self.label(lnsm)
            e("s_waitcnt vmcnt(0)")
            self.label(lsj)
            e("s_barrier")
            tr_reads()
        else:
            self.label(lnsm)

        def restore_p():
            l = self.newlabel("rp")
            e(f"""s_cmp_ge_u32 s7, 4
s_cbranch_scc1 {l}
buffer_store_dwordx4 v[252:255], v10, s[40:43], s50 offen sc1
s_mov_b64 exec, 0xffff
buffer_store_dwordx2 v[248:249], v212, s[40:43], s50 offen offset:1024 sc1
s_mov_b64 exec, -1""")
            self.label(l)
        e(f"s_mul_i32 s49, s5, {16*PMSG}\ns_add_u32 s49, s49, {PB}")
        self.poll([("buffer_load_dwordx4 v[168:171], v5, s[40:43], s51 offen sc1", 168, 4),
                   (f"buffer_load_dwordx4 v[172:175], v5, s[40:43], s51 offen offset:{PMSG} sc1", 172, 4),
                   ("buffer_load_dwordx2 v[176:177], v213, s[40:43], s51 offen offset:1024 sc1", 176, 2),
                   ("buffer_load_dword v178, v230, s[40:43], s49 offen offset:1024 sc1", 178, 1)], 'sent', 224, restore=restore_p)
        e(f"""ds_write_b128 v7, v[168:171] offset:{PL}
ds_write_b128 v7, v[172:175] offset:{PL + 1024}
ds_write_b64 v214, v[176:177] offset:{SL}
s_waitcnt lgkmcnt(0)
s_barrier""")
        self.stamp(7)
        if self.opt("sig2_early", 1):
            l0e = self.newlabel("kv_sig")
            e(f"s_cmp_lg_u32 s7, 7\ns_cbranch_scc1 {l0e}")
            self.sig_send(72, 220, 11)
            self.label(l0e)
        for k in range(4):
            e(f"ds_read_b128 v[{48+4*k}:{51+4*k}], v217 offset:{SL + 16*k}")
        for p in range(8):
            e(f"ds_read_b128 v[{16+4*p}:{19+4*p}], v215 offset:{PL + 2048*p}")
        stats = []
        stats.append("v_max3_f32 v238, v48, v50, v52")
        stats.append("v_max3_f32 v239, v54, v56, v58")
        stats.append("v_max3_f32 v238, v238, v60, v62")
        stats.append("v_max_f32 v238, v238, v239")
        stats.append("v_mul_f32 v239, s55, v238")
        for p in range(8):
            stats.append(f"v_fma_f32 v{48+2*p}, v{48+2*p}, s55, -v239")
        for p in range(8):
            stats.append(f"v_exp_f32 v{48+2*p}, v{48+2*p}")
        stats.append("v_and_or_b32 v240, v238, s64, v12")
        stats.append("v_mul_f32 v239, v48, v49")
        for p in range(1, 8):
            stats.append(f"v_fmac_f32 v239, v{48+2*p}, v{49+2*p}")
        si = 0
        for p in range(8):
            e(f"s_waitcnt lgkmcnt({7 - p})")
            for ctl in range(2):
                ar = 104 + (p * 2 + ctl) * 4
                ac = self.acc(p * 2 + ctl)
                e(f"v_mfma_f32_16x16x32_bf16 v[{ac}:{ac+3}], v[{ar}:{ar+3}], v[{16+4*p}:{19+4*p}], 0")
                for _ in range(2):
                    if si < len(stats):
                        e(stats[si]); si += 1
        while si < len(stats):
            e(stats[si]); si += 1
        lno = self.newlabel("kv_noos")
        e(f"""s_cmp_lg_u32 s6, 0
s_cbranch_scc1 {lno}
s_cmp_ge_u32 s7, 2
s_cbranch_scc1 {lno}
v_and_or_b32 v241, v239, s64, v13
v_mov_b32 v242, v14
v_mov_b32 v243, v15
s_mov_b64 exec, 0xffff
buffer_store_dwordx4 v[240:243], v219, s[40:43], s53 offen sc1
s_mov_b64 exec, -1""")
        self.label(lno)
        for r in range(0, 8, 2):
            e(f"v_pk_mul_f32 v[{168+r}:{169+r}], v[{168+r}:{169+r}], v[48:49] op_sel_hi:[1,0]")
        for p in range(1, 8):
            for ctl in range(2):
                for r in (0, 2):
                    a = self.acc(2 * p + ctl) + r
                    o = 168 + 4 * ctl + r
                    e(f"v_pk_fma_f32 v[{o}:{o+1}], v[{a}:{a+1}], v[{48+2*p}:{49+2*p}], v[{o}:{o+1}] op_sel_hi:[1,0,1]")
        self.tag4(168)
        e("buffer_store_dwordx4 v[168:171], v218, s[40:43], s52 offen sc1")
        self.tag4(172)
        e("buffer_store_dwordx4 v[172:175], v218, s[40:43], s52 offen offset:64 sc1")
        self.stamp(8)
        e("s_barrier")
        self.dbgtime(6, 128)
        self.dbgtime(7, 201)
        if not self.opt("sig2_early", 1):
            l0 = self.newlabel("kv_sig")
            e(f"s_cmp_lg_u32 s7, 0\ns_cbranch_scc1 {l0}")
            self.sig_send(72, 220, 11)
            self.label(l0)
        e(f"v_mov_b32 v236, v220\ns_cmp_ge_u32 s7, 4\ns_cbranch_scc1 L_fin\ns_sleep {self.opt('sl_rp', 16)}")
        restore_p()
        rq()
        e("""s_cmp_ge_u32 s7, 4
s_cbranch_scc1 L_fin
s_bfe_u32 s10, s9, 0x20002
s_lshl_b32 s10, s10, 3
s_add_u32 s10, s10, s8
s_cmp_ge_u32 s10, 27
s_cbranch_scc1 L_fin
s_lshl_b32 s10, s10, 2
s_add_u32 s10, s10, s6""")
        self.srd(44, 30, 2211840)
        self.srd(48, 16, 1280)
        if self.opt("sl_fg", 0):
            e(f"s_sleep {self.opt('sl_fg', 0)}")
        e(f"""v_lshlrev_b32 v8, 3, v1
s_mul_i32 s11, s7, 320
buffer_load_dwordx2 v[48:49], v8, s[48:51], s11 offen
v_lshrrev_b32 v6, 1, v1
v_mul_u32_u24 v6, 3456, v6
v_and_b32 v7, 1, v1
v_lshl_add_u32 v6, v7, 4, v6
s_mul_i32 s11, s7, 160
s_mul_i32 s12, s11, 3456
s_lshl_b32 s13, s10, 5
s_add_u32 s12, s12, s13
s_lshl_b32 s13, s11, 5
s_add_u32 s13, s13, {W1L}""")
        for k in range(5):
            e(f"""s_mov_b32 m0, s13
s_add_u32 s13, s13, 1024
buffer_load_dwordx4 v6, s[44:47], s12 offen {nt} lds
s_add_u32 s12, s12, {32*3456}""")
        e("""v_mul_u32_u24 v7, 5120, v3
v_lshl_add_u32 v7, v2, 4, v7
s_mul_i32 s12, s10, 20480
s_lshl_b32 s13, s7, 8
s_add_u32 s12, s12, s13
v_add_u32 v7, s12, v7""")
        for t in range(4):
            e(f"global_load_dwordx4 v[{16+4*t}:{19+4*t}], v7, s[32:33] offset:{1280*t} {nt}")
        lb4 = self.newlabel("kv_b4")
        e(f"s_cmp_lg_u32 s7, 0\ns_cbranch_scc1 {lb4}\nv_add_u32 v7, 1024, v7")
        for t in range(4):
            e(f"global_load_dwordx4 v[{32+4*t}:{35+4*t}], v7, s[32:33] offset:{1280*t} {nt}")
        self.label(lb4)
        self.masks(52, 2, 60, False)
        e(f"""v_lshrrev_b32 v8, 2, v2
v_lshl_add_u32 v8, v3, 3, v8
v_lshlrev_b32 v8, 5, v8
v_and_b32 v9, 3, v2
v_lshl_add_u32 v8, v9, 3, v8
s_waitcnt vmcnt(0)
s_barrier""")
        for t in range(20):
            for hh in range(2):
                e(f"ds_read_b64_tr_b16 v[{80+4*t+2*hh}:{81+4*t+2*hh}], v8 offset:{W1L + 1024*t + 128*hh}")
            if t % 4 == 3:
                e("s_waitcnt lgkmcnt(0)")
        e(f"""s_mul_i32 s12, s7, 640
s_add_u32 s12, s12, {XB}
s_add_u32 s13, s12, 5120
s_add_u32 s14, s12, 10240
s_add_u32 s15, s12, 15360
v_lshlrev_b32 v56, 16, v48
v_and_b32 v57, 0xffff0000, v48
v_lshlrev_b32 v58, 16, v49
v_and_b32 v59, 0xffff0000, v49
v_lshlrev_b32 v8, 3, v1
s_mul_i32 s11, s7, 320
v_add_u32 v9, s11, v8
s_mul_i32 s11, s7, 1280
v_add_u32 v10, s11, v8
v_add_u32 v228, s11, v4
v_lshl_add_u32 v229, v3, 4, s11
v_lshrrev_b32 v230, 1, v2
v_mul_u32_u24 v230, 7168, v230
v_and_b32 v231, 1, v2
v_lshl_add_u32 v230, v231, 5, v230
v_lshl_add_u32 v230, v3, 4, v230
s_mul_i32 s52, s7, {8*7168}
s_lshl_b32 s53, s10, 6
s_add_u32 s52, s52, s53
s_add_u32 s52, s52, {FB}
s_add_u32 s53, s52, {32*7168}""")
        self.sig_prep(3, 70)
        self.sig_prep(4, 71)
        if not self.opt('dbg1', 0): self.stamp(9)
        self.sig_wait(70, 60, 11, self.opt("sl_h5", 0))
        e("s_mov_b32 exec_hi, 0xff")
        self.poll([(f"buffer_load_dwordx4 v[{160+4*x}:{163+4*x}], v5, s[40:43], s{12 + x//2} offen offset:{2560*(x%2)} sc1", 160 + 4 * x, 4) for x in range(8)], 'tag', 60)
        self.tree_sum(160, 8)
        e(f"""v_cvt_pk_bf16_f32 v60, v160, v161
v_cvt_pk_bf16_f32 v61, v162, v163
v_lshlrev_b32 v160, 16, v60
v_and_b32 v161, 0xffff0000, v60
v_lshlrev_b32 v162, 16, v61
v_and_b32 v163, 0xffff0000, v61
v_pk_add_f32 v[160:161], v[160:161], v[56:57]
v_pk_add_f32 v[162:163], v[162:163], v[58:59]
v_cvt_pk_bf16_f32 v60, v160, v161
v_cvt_pk_bf16_f32 v61, v162, v163
ds_write_b64 v9, v[60:61] offset:{HF}
s_mov_b64 exec, -1
s_waitcnt lgkmcnt(0)
s_barrier
ds_read_b64 v[70:71], v8 offset:{HF}
ds_read_b64 v[72:73], v8 offset:{HF + 512}
ds_read_b32 v74, v4 offset:{HF + 1024}
s_waitcnt lgkmcnt(0)""")
        if not self.opt('dbg1', 0): self.stamp(10)
        for k in range(5):
            e(f"v_lshlrev_b32 v{60+2*k}, 16, v{70+k}\nv_and_b32 v{61+2*k}, 0xffff0000, v{70+k}")
        self.layernorm(60, 70, 62, 63)
        e(f"""v_cvt_pk_bf16_f32 v70, v60, v61
v_cvt_pk_bf16_f32 v71, v62, v63
v_cvt_pk_bf16_f32 v72, v64, v65
v_cvt_pk_bf16_f32 v73, v66, v67
v_cvt_pk_bf16_f32 v74, v68, v69
ds_write_b64 v10, v[70:71] offset:{HN}
ds_write_b64 v10, v[72:73] offset:{HN + 512}
ds_write_b32 v228, v74 offset:{HN + 1024}
s_waitcnt lgkmcnt(0)""")
        for t in range(14):
            e(f"ds_read_b128 v[{160+4*t}:{163+4*t}], v229 offset:{HN + 64*t}")
        for t in range(20):
            issued = min(t + 14, 20)
            e(f"s_waitcnt lgkmcnt({issued - t - 1})")
            c = "0" if t == 0 else "v[56:59]"
            e(f"v_mfma_f32_16x16x32_bf16 v[56:59], v[{80+4*t}:{83+4*t}], v[{self.fb(t)}:{self.fb(t)+3}], {c}")
            if t + 14 < 20:
                e(f"ds_read_b128 v[{self.fb(t+14)}:{self.fb(t+14)+3}], v229 offset:{HN + 64*(t+14)}")
        e("s_nop 7")
        for r in range(4):
            e(f"v_max_f32 v{56+r}, 0, v{56+r}")
        for t in range(4):
            e(f"v_cvt_pk_bf16_f32 v{240+t}, v{56+t}, v{56+t}")
        for t in range(4):
            for r in range(4):
                e(f"v_and_b32 v{80+4*t+r}, v{240+t}, v{52+r}")
        for t in range(4):
            c = "0" if t == 0 else "v[64:67]"
            e(f"v_mfma_f32_16x16x32_bf16 v[64:67], v[{80+4*t}:{83+4*t}], v[{16+4*t}:{19+4*t}], {c}")
        lb5 = self.newlabel("kv_b5")
        e(f"s_cmp_lg_u32 s7, 0\ns_cbranch_scc1 {lb5}")
        for t in range(4):
            c = "0" if t == 0 else "v[68:71]"
            e(f"v_mfma_f32_16x16x32_bf16 v[68:71], v[{80+4*t}:{83+4*t}], v[{32+4*t}:{35+4*t}], {c}")
        e("s_nop 3")
        self.tag4(64)
        e("""s_mov_b32 exec_hi, 0
buffer_store_dwordx4 v[64:67], v230, s[40:43], s52 offen sc1""")
        self.tag4(68)
        e("buffer_store_dwordx4 v[68:71], v230, s[40:43], s53 offen sc1")
        self.sig_send(71, 236, 11)
        e("s_mov_b64 exec, -1")
        if not self.opt('dbg1', 0): self.stamp(1)
        e("s_branch L_fin")
        self.label(lb5)
        e("s_nop 5")
        self.tag4(64)
        e("""s_mov_b32 exec_hi, 0
buffer_store_dwordx4 v[64:67], v230, s[40:43], s52 offen sc1
s_mov_b64 exec, -1""")

    def fb(self, t):
        if t < 14:
            return 160 + 4 * t
        return [60, 64, 68, 72, 76, 244][t - 14]


if __name__ == "__main__":
    import argparse
    ap = argparse.ArgumentParser()
    ap.add_argument("out")
    ap.add_argument("--stamps", action="store_true")
    ap.add_argument("--opt", action="append", default=[])
    a = ap.parse_args()
    opts = {}
    for o in a.opt:
        k, v = o.split("=")
        opts[k] = int(v) if v.lstrip("-").isdigit() else v
    g = Gen(stamps=a.stamps, opts=opts)
    open(a.out, "w").write(g.build())
```

```python
import sys

KN = "sequential_preLN__compressed_kv_cla__dense_activation_relu__decode_kernel"

Q1 = 0x000000
QA = 0x020000
PB = 0x030000
PMSG = 1152
OB = 0x0C0000
OS = 0x2C0000
EL = 0x2C4000
XB = 0x314000
FB = 0x319000
SIG = 0x360000
RDY = 0x374000
assert PB + 512 * PMSG <= OB
STAMP = 0x400000
WS_RECORDS = 0x400000 + 256 * 128

SPIN_LIMIT = 100000
RESTORE_IT = 10
LOG2E = 0x3fb8aa3b
SCALE = 0x3db504f3
LDS_BYTES = 146432
NB = 133120
NON, FLG = 0, 16


class Gen:
    def __init__(self, stamps=False, opts=None):
        self.o = []
        self.nl = 0
        self.stamps = stamps
        self.opts = opts or {}

    def opt(self, k, d):
        return self.opts.get(k, d)

    def e(self, s):
        for line in s.strip("\n").split("\n"):
            self.o.append("  " + line.strip())

    def label(self, name):
        self.o.append(name + ":")

    def newlabel(self, base):
        self.nl += 1
        return f"L_{base}_{self.nl}"

    def srd(self, d, ptr, nbytes):
        self.e(f"""s_mov_b32 s{d}, s{ptr}
s_and_b32 s{d+1}, s{ptr+1}, 0xffff
s_mov_b32 s{d+2}, {nbytes}
s_mov_b32 s{d+3}, 0x00020000""")

    def stamp(self, idx):
        if self.stamps:
            self.e(f"s_memrealtime s[{76+2*idx}:{77+2*idx}]")

    def stamp_dump(self):
        if not self.stamps:
            return
        self.e("""s_and_b32 s60, s7, 3
s_cmp_lg_u32 s60, 0
s_cbranch_scc1 L_end
s_waitcnt lgkmcnt(0)
s_mov_b64 exec, 1
v_mov_b32 v251, 0""")
        self.e(f"s_lshl_b32 s60, s2, 7\ns_lshl_b32 s61, s7, 4\ns_add_u32 s60, s60, s61\ns_add_u32 s60, s60, {STAMP}")
        for i in range(12):
            self.e(f"v_mov_b32 v250, s{76+2*i}\nbuffer_store_dword v250, v251, s[40:43], s60 offen offset:{4*i}")

    def dbgtime(self, word, wg):
        if not self.opt("dbgt", 0):
            return
        l = self.newlabel("dt")
        self.e(f"""s_cmp_lg_u32 s2, {wg}
s_cbranch_scc1 {l}
s_memrealtime s[10:11]
s_load_dword s12, s[36:37], 4 glc
s_waitcnt lgkmcnt(0)
s_sub_u32 s10, s10, s12
v_mov_b32 v250, s10
v_mov_b32 v251, {4*word}
global_store_dword v251, v250, s[36:37]""")
        self.label(l)

    def wave_sum(self, v, sd):
        ins = "v_add_f32_dpp"
        for sh in (1, 2, 4, 8):
            self.e(f"s_nop 1\n{ins} v{v}, v{v}, v{v} row_shr:{sh} row_mask:0xf bank_mask:0xf bound_ctrl:0")
        self.e(f"s_nop 1\n{ins} v{v}, v{v}, v{v} row_bcast:15 row_mask:0xa bank_mask:0xf")
        self.e(f"s_nop 1\n{ins} v{v}, v{v}, v{v} row_bcast:31 row_mask:0xc bank_mask:0xf")
        self.e(f"s_nop 0\nv_readlane_b32 s{sd}, v{v}, 63")

    def wait_nonce(self, vt):
        d = self.newlabel("nnd")
        for k in range(4):
            self.e(f"""s_load_dword s65, s[36:37], {64*k}
s_waitcnt lgkmcnt(0)
s_cmp_lg_u32 s65, 0
s_cbranch_scc1 {d}
s_sleep 4""")
        l = self.newlabel("nn")
        self.e("s_mov_b32 s60, 0")
        self.label(l)
        self.e(f"""buffer_load_dword v{vt}, v11, s[56:59], 0 offen sc1
s_add_u32 s60, s60, 1
s_waitcnt vmcnt(0)
v_readfirstlane_b32 s65, v{vt}
s_cmp_ge_u32 s60, {SPIN_LIMIT}
s_cbranch_scc1 {d}
s_cmp_eq_u32 s65, 0
s_cbranch_scc1 {l}""")
        self.label(d)

    def set_tags(self):
        self.e("""s_mov_b32 s64, 0xffffff00
s_and_b32 s61, s65, 0xff
v_mov_b32 v12, s61
s_bfe_u32 s61, s65, 0x80008
v_mov_b32 v13, s61
s_bfe_u32 s61, s65, 0x80010
v_mov_b32 v14, s61
s_lshr_b32 s61, s65, 24
v_mov_b32 v15, s61
s_and_b32 s67, s65, 0xbfffbfff""")

    def tag4(self, v):
        for r in range(4):
            self.e(f"v_and_or_b32 v{v+r}, v{v+r}, s64, v{12+r}")

    def sig_prep(self, k, sd, sid="s4"):
        self.e(f"s_lshl_b32 s{sd}, {sid}, 7\ns_add_u32 s{sd}, s{sd}, {SIG + k * 16384}")

    def sig_send(self, sd, vtag, vzero):
        self.e(f"buffer_store_dword v{vtag}, v{vzero}, s[40:43], s{sd} offen sc1")

    def sig_wait(self, sd, vt, vzero, sleep=0, restore=None):
        l = self.newlabel("sg")
        d = self.newlabel("sgd")
        self.e("s_mov_b32 s60, 0")
        self.label(l)
        self.e(f"""s_load_dword s66, s[38:39], s{sd} glc
s_add_u32 s60, s60, 1""")
        if restore:
            nr = self.newlabel("snr")
            self.e(f"s_cmp_lg_u32 s60, {RESTORE_IT}\ns_cbranch_scc1 {nr}")
            restore()
            self.label(nr)
        self.e(f"""s_cmp_ge_u32 s60, {SPIN_LIMIT}
s_cbranch_scc1 {d}
s_waitcnt lgkmcnt(0)
s_cmp_lg_u32 s66, s65
s_cbranch_scc1 {l}""")
        self.label(d)
        self.e("s_waitcnt lgkmcnt(0)")
        if sleep:
            self.e(f"s_sleep {sleep}")

    def check(self, regs, kind, vacc, first=True):
        e = self.e
        if kind == 'tag':
            for i, r in enumerate(regs):
                t = 12 + (i % 4)
                if first and i == 0:
                    e(f"v_xor_b32 v{vacc}, v{r}, v{t}")
                else:
                    e(f"v_bitop3_b32 v{vacc}, v{vacc}, v{r}, v{t} bitop3:0xf6")
        else:
            i = 0
            while i < len(regs):
                if first and i == 0:
                    if len(regs) >= 3:
                        e(f"v_max3_u32 v{vacc}, v{regs[0]}, v{regs[1]}, v{regs[2]}"); i = 3
                    elif len(regs) == 2:
                        e(f"v_max_u32 v{vacc}, v{regs[0]}, v{regs[1]}"); i = 2
                    else:
                        e(f"v_mov_b32 v{vacc}, v{regs[0]}"); i = 1
                elif len(regs) - i >= 2:
                    e(f"v_max3_u32 v{vacc}, v{vacc}, v{regs[i]}, v{regs[i+1]}"); i += 2
                else:
                    e(f"v_max_u32 v{vacc}, v{vacc}, v{regs[i]}"); i += 1

    def verdict(self, kind, vacc):
        if kind == 'tag':
            self.e(f"v_and_b32 v{vacc}, 0xff, v{vacc}\nv_cmp_ne_u32 vcc, 0, v{vacc}\ns_cmp_lg_u64 vcc, 0")
        else:
            self.e(f"v_cmp_eq_u32 vcc, -1, v{vacc}\ns_cmp_lg_u64 vcc, 0")

    def poll(self, loads, kind, vacc, restore=None):
        e = self.e
        l = self.newlabel("pl")
        d = self.newlabel("pld")
        e("s_mov_b32 s60, 0")
        self.label(l)
        for ins in loads:
            e(ins[0])
        e("s_add_u32 s60, s60, 1")
        if restore:
            nr = self.newlabel("pnr")
            e(f"s_cmp_lg_u32 s60, {self.opt('rit', RESTORE_IT)}\ns_cbranch_scc1 {nr}")
            restore()
            self.label(nr)
        e(f"s_cmp_ge_u32 s60, {SPIN_LIMIT}\ns_cbranch_scc1 {d}\ns_waitcnt vmcnt(0)")
        for k, ins in enumerate(loads):
            self.check(list(range(ins[1], ins[1] + ins[2])), kind, vacc, first=(k == 0))
        self.verdict(kind, vacc)
        e(f"s_cbranch_scc1 {l}")
        self.label(d)
        e("s_waitcnt vmcnt(0)")

    def masks(self, m0, vi, vt, lo_rows):
        self.e(f"""v_and_b32 v{vt}, 1, v{vi}
v_cmp_eq_u32 vcc, 1, v{vt}
v_mov_b32 v{vt}, 0x0000ffff
v_mov_b32 v{vt+1}, 0xffff0000
v_cndmask_b32 v{vt}, v{vt}, v{vt+1}, vcc""")
        if lo_rows:
            self.e(f"v_bfe_u32 v{vt+1}, v{vi}, 1, 2")
        else:
            self.e(f"v_lshrrev_b32 v{vt+1}, 1, v{vi}")
        for r in range(4):
            self.e(f"""v_cmp_eq_u32 vcc, {r}, v{vt+1}
s_nop 1
v_cndmask_b32 v{m0+r}, 0, v{vt}, vcc""")

    def layernorm(self, vx, vt, sA, sB):
        e = self.e
        inv = 0x3acccccd
        e(f"""v_pk_add_f32 v[{vt}:{vt+1}], v[{vx}:{vx+1}], v[{vx+2}:{vx+3}]
v_pk_add_f32 v[{vt+2}:{vt+3}], v[{vx+4}:{vx+5}], v[{vx+6}:{vx+7}]
v_pk_add_f32 v[{vt}:{vt+1}], v[{vt}:{vt+1}], v[{vx+8}:{vx+9}]
v_pk_add_f32 v[{vt}:{vt+1}], v[{vt}:{vt+1}], v[{vt+2}:{vt+3}]
v_add_f32 v{vt}, v{vt}, v{vt+1}""")
        self.wave_sum(vt, sA)
        e(f"v_mov_b32 v{vt+4}, {inv:#x}\ns_nop 0\nv_mul_f32 v{vt+4}, s{sA}, v{vt+4}")
        for k in range(0, 10, 2):
            e(f"v_pk_add_f32 v[{vt+2}:{vt+3}], v[{vx+k}:{vx+k+1}], v[{vt+4}:{vt+5}] op_sel_hi:[1,0] neg_lo:[0,1] neg_hi:[0,1]")
            if k == 0:
                e(f"v_pk_mul_f32 v[{vt}:{vt+1}], v[{vt+2}:{vt+3}], v[{vt+2}:{vt+3}]")
            else:
                e(f"v_pk_fma_f32 v[{vt}:{vt+1}], v[{vt+2}:{vt+3}], v[{vt+2}:{vt+3}], v[{vt}:{vt+1}]")
        e(f"v_add_f32 v{vt}, v{vt}, v{vt+1}")
        self.wave_sum(vt, sB)
        e(f"""v_mov_b32 v{vt+2}, {inv:#x}
s_nop 0
v_mul_f32 v{vt+2}, s{sB}, v{vt+2}
v_cvt_pk_bf16_f32 v{vt+3}, v{vt+4}, v{vt+2}
v_lshlrev_b32 v{vt+4}, 16, v{vt+3}
v_and_b32 v{vt+2}, 0xffff0000, v{vt+3}
v_add_f32 v{vt+2}, 0x3727c5ac, v{vt+2}
v_cvt_pk_bf16_f32 v{vt+2}, v{vt+2}, v{vt+2}
v_and_b32 v{vt+2}, 0xffff0000, v{vt+2}
v_sqrt_f32 v{vt+2}, v{vt+2}""")
        for k in range(0, 10, 2):
            e(f"v_pk_add_f32 v[{vx+k}:{vx+k+1}], v[{vx+k}:{vx+k+1}], v[{vt+4}:{vt+5}] op_sel_hi:[1,0] neg_lo:[0,1] neg_hi:[0,1]")
        e(f"""v_cvt_pk_bf16_f32 v{vt+2}, v{vt+2}, v{vt+2}
v_and_b32 v{vt+2}, 0xffff0000, v{vt+2}
v_rcp_f32 v{vt+2}, v{vt+2}""")
        for k in range(0, 10, 2):
            a, b = vx + k, vx + k + 1
            e(f"""v_cvt_pk_bf16_f32 v{vt}, v{a}, v{b}
v_lshlrev_b32 v{a}, 16, v{vt}
v_and_b32 v{b}, 0xffff0000, v{vt}
v_pk_mul_f32 v[{a}:{b}], v[{a}:{b}], v[{vt+2}:{vt+3}] op_sel_hi:[1,0]""")

    def tree_sum(self, v0, n, width=4, stride=None):
        stride = stride or width
        step = 1
        while step < n:
            for k in range(0, n - step, 2 * step):
                for r in range(0, width, 2):
                    a = v0 + stride * k + r
                    b = v0 + stride * (k + step) + r
                    self.e(f"v_pk_add_f32 v[{a}:{a+1}], v[{a}:{a+1}], v[{b}:{b+1}]")
            step *= 2

    def build(self):
        nt = self.opt("nt", "nt")
        nt = "" if nt == "none" else nt
        e = self.e
        self.o.append(f"; @launch grid=(256,1,1) block=(512,1,1) lds={LDS_BYTES}")
        self.o.append('.amdgcn_target "amdgcn-amd-amdhsa--gfx950"')
        self.o.append(".text")
        self.o.append(f".globl {KN}")
        self.o.append(".p2align 8")
        self.o.append(f".type {KN},@function")
        self.label(KN)
        e("""s_load_dwordx16 s[16:31], s[0:1], 0
s_load_dwordx8 s[32:39], s[0:1], 64
s_memrealtime s[62:63]
s_cmp_ge_u32 s2, 256
s_cbranch_scc1 L_end
s_cmp_ge_u32 s2, 16
s_cbranch_scc1 L_nocp
s_getpc_b64 s[60:61]
v_lshlrev_b32 v6, 6, v0
v_min_u32 v6, (L_codeend-L_nocp-64), v6
global_load_dword v255, v6, s[60:61]
L_nocp:
s_and_b32 s8, s2, 7
s_lshr_b32 s9, s2, 3
s_and_b32 s4, s2, 127
v_lshrrev_b32 v1, 6, v0
v_and_b32 v2, 15, v0
v_readfirstlane_b32 s7, v1
v_and_b32 v1, 63, v0
v_bfe_u32 v3, v0, 4, 2
v_lshlrev_b32 v4, 2, v1
v_lshlrev_b32 v5, 4, v1
s_and_b32 s10, s9, 3
s_lshl_b32 s5, s8, 2
s_add_u32 s5, s5, s10
s_lshr_b32 s6, s9, 2
v_mov_b32 v11, 0""")
        if self.stamps:
            for i in range(76, 100):
                e(f"s_mov_b32 s{i}, 0")
        self.stamp(0)
        e("""s_or_b32 s10, s2, s7
s_cmp_lg_u32 s10, 0
s_cbranch_scc1 L_nomaster
s_waitcnt lgkmcnt(0)
s_mov_b32 s63, s62
s_mul_i32 s62, s62, 0x9e3779b1
s_or_b32 s62, s62, 1
v_mov_b32 v16, s62
v_mov_b32 v17, s63
v_lshlrev_b32 v18, 6, v1
s_mov_b64 exec, 15
global_store_dwordx2 v18, v[16:17], s[36:37] sc1
s_mov_b64 exec, -1
L_nomaster:
s_cmp_ge_u32 s7, 4
s_cbranch_scc1 L_hi""")
        self.commonA(nt)
        self.roleW(nt)
        self.roleKV(nt)
        self.label("L_fin")
        self.stamp_dump()
        self.label("L_end")
        e("s_endpgm")
        self.label("L_codeend")
        self.o.append(f""".section .rodata,"a"
.p2align 6
.amdhsa_kernel {KN}
  .amdhsa_next_free_vgpr 256
  .amdhsa_next_free_sgpr 100
  .amdhsa_accum_offset 256
  .amdhsa_group_segment_fixed_size 0
  .amdhsa_kernarg_size 96
  .amdhsa_user_sgpr_count 2
  .amdhsa_user_sgpr_kernarg_segment_ptr 1
  .amdhsa_system_sgpr_workgroup_id_x 1
.end_amdhsa_kernel""")
        return "\n".join(self.o) + "\n"

    def commonA(self, nt):
        e = self.e
        AB = 133248
        XT, QRED = AB, AB + 10240
        e("""s_mul_i32 s10, s6, 80
s_mul_i32 s11, s7, 20
s_add_u32 s10, s10, s11
s_lshl_b32 s11, s10, 13
s_lshl_b32 s12, s5, 8
s_add_u32 s11, s11, s12
v_lshlrev_b32 v6, 13, v3
v_lshl_add_u32 v6, v2, 4, v6
v_add_u32 v6, s11, v6
s_waitcnt lgkmcnt(0)""")
        for k in range(5):
            e(f"global_load_dword v{76+k}, v4, s[16:17] offset:{256*k}")
        for t in range(5):
            e(f"global_load_dwordx4 v[{16+4*t}:{19+4*t}], v6, s[20:21] {nt}")
            if t < 4:
                e("v_add_u32 v6, 0x8000, v6")
        self.srd(40, 38, WS_RECORDS)
        self.srd(56, 36, 256)
        self.masks(68, 2, 92, False)
        e(f"""s_mul_i32 s14, s7, 2560
s_add_u32 s14, s14, {XT}
v_lshlrev_b32 v8, 3, v1
v_add_u32 v8, s14, v8
s_lshl_b32 s15, s10, 2
s_add_u32 s15, s15, s14
v_lshl_add_u32 v9, v3, 2, s15
v_lshlrev_b32 v10, 5, v2
v_lshl_add_u32 v10, v3, 4, v10
s_lshl_b32 s14, s7, 9
s_add_u32 s14, s14, {QRED}
v_add_u32 v10, s14, v10
v_mov_b32 v227, {NB}
v_add_u32 v7, {QRED}, v5
s_lshl_b32 s68, s5, 12
s_add_u32 s68, s68, {Q1}
s_lshl_b32 s69, s6, 9
s_add_u32 s69, s69, s68
s_waitcnt vmcnt(5)""")
        for k in range(5):
            e(f"v_lshlrev_b32 v{82+2*k}, 16, v{76+k}\nv_and_b32 v{83+2*k}, 0xffff0000, v{76+k}")
        self.layernorm(82, 92, 62, 63)
        for k in range(5):
            e(f"""v_cvt_pk_bf16_f32 v{92+2*(k%2)}, v{82+2*k}, v{82+2*k}
v_cvt_pk_bf16_f32 v{93+2*(k%2)}, v{83+2*k}, v{83+2*k}
ds_write_b64 v8, v[{92+2*(k%2)}:{93+2*(k%2)}] offset:{512*k}""")
        e("s_waitcnt lgkmcnt(0)")
        for t in range(5):
            e(f"ds_read_b32 v{82+t}, v9 offset:{16*t}")
        e("s_waitcnt lgkmcnt(0)")
        for t in range(5):
            for r in range(4):
                e(f"v_and_b32 v{96+4*t+r}, v{82+t}, v{68+r}")
        ln = self.newlabel("a_nn")
        e(f"s_cmp_lg_u32 s7, 0\ns_cbranch_scc1 {ln}")
        self.wait_nonce(90)
        e(f"v_mov_b32 v90, s65\nds_write_b32 v227, v90 offset:{NON}")
        self.label(ln)
        for t in range(5):
            c = "0" if t == 0 else "v[116:119]"
            e(f"s_waitcnt vmcnt({4-t})")
            e(f"v_mfma_f32_16x16x32_bf16 v[116:119], v[{96+4*t}:{99+4*t}], v[{16+4*t}:{19+4*t}], {c}")
        self.stamp(1)
        e("s_nop 2")
        e(f"""s_nop 4
s_mov_b32 exec_hi, 0
ds_write_b128 v10, v[116:119]
s_mov_b64 exec, -1
s_waitcnt lgkmcnt(0)
s_barrier""")
        self.stamp(2)
        e("s_cmp_lg_u32 s7, 0\ns_cbranch_scc1 L_lo123")
        for wv in range(4):
            e(f"ds_read_b128 v[{120+4*wv}:{123+4*wv}], v7 offset:{512*wv}")
        self.set_tags()
        e("s_waitcnt lgkmcnt(0)")
        self.tree_sum(120, 4)
        self.tag4(120)
        e("""s_mov_b32 exec_hi, 0
buffer_store_dwordx4 v[120:123], v5, s[40:43], s69 offen
s_mov_b64 exec, -1
s_mov_b32 s73, s69
s_cmp_ge_u32 s9, 16
s_cbranch_scc1 L_kv_w0""")

    def get_nonce_lds(self, vt):
        self.e(f"""ds_read_b32 v{vt}, v227 offset:{NON}
s_waitcnt lgkmcnt(0)
v_readfirstlane_b32 s65, v{vt}""")
        self.set_tags()

    def roleW(self, nt):
        e = self.e
        QBF, QAL, CLX, RED, RED2 = 24576, 24832, 25600, 26624, 28672
        e("""v_and_b32 v8, 31, v1
v_lshlrev_b32 v8, 3, v8
v_lshrrev_b32 v9, 5, v1
v_lshl_add_u32 v8, v9, 2, v8""")

        def restore_q1():
            e("""s_mov_b32 exec_hi, 0
buffer_store_dwordx4 v[120:123], v5, s[40:43], s73 offen sc1
s_mov_b64 exec, -1""")
        self.restore_q1 = restore_q1
        self.poll([(f"buffer_load_dwordx4 v[{124+4*k}:{127+4*k}], v5, s[40:43], s68 offen offset:{1024*k} sc1", 124 + 4 * k, 4) for k in range(4)], 'tag', 90, restore=restore_q1)
        self.stamp(3)
        self.tree_sum(124, 4)
        e(f"""s_nop 0
v_permlane32_swap_b32 v124, v126
v_permlane32_swap_b32 v125, v127
s_nop 0
v_pk_add_f32 v[124:125], v[124:125], v[126:127]
v_cvt_pk_bf16_f32 v124, v124, v125
ds_write_b32 v8, v124 offset:{QBF}
ds_write_b32 v11, v11 offset:{QAL + 268}
ds_write_b32 v11, v11 offset:{QAL + 284}
s_waitcnt lgkmcnt(0)
s_barrier""")
        e(f"""v_lshrrev_b32 v8, 1, v1
v_and_b32 v9, 1, v1
v_cmp_gt_u32 vcc, 8, v8
v_lshlrev_b32 v128, 5, v8
v_mul_u32_u24 v129, 96, v8
v_add_u32 v129, {-768+12 & 0xffffffff:#x}, v129
v_cndmask_b32 v128, v129, v128, vcc
v_lshl_add_u32 v128, v9, 4, v128
v_mov_b32 v129, 32
v_cndmask_b32 v130, v129, 4, vcc
v_add_u32 v129, v128, v130
v_add_u32 v130, v129, v130
v_lshlrev_b32 v8, 10, v8
v_lshl_add_u32 v8, v9, 4, v8
s_lshr_b32 s10, s5, 4
s_mul_i32 s10, s10, {22*1024}
s_lshr_b32 s11, s6, 1
s_mul_i32 s11, s11, {11*1024}
s_add_u32 s10, s10, s11
s_and_b32 s11, s5, 15
s_lshl_b32 s11, s11, 6
s_add_u32 s10, s10, s11
s_and_b32 s11, s6, 1
s_lshl_b32 s11, s11, 5
s_add_u32 s10, s10, s11
s_add_u32 s10, s10, {QA}
v_mov_b32 v127, s67
v_mov_b32 v90, s65""")
        self.sig_prep(0, 70)
        if self.opt("sig0_early", 1):
            self.sig_send(70, 90, 11)
        e(f"""s_mov_b32 exec_lo, 0x3fffff
s_mov_b32 exec_hi, 0
s_barrier
ds_read_b32 v124, v128 offset:{QAL}
ds_read_b32 v125, v129 offset:{QAL}
ds_read_b32 v126, v130 offset:{QAL}
s_waitcnt lgkmcnt(0)
buffer_store_dwordx4 v[124:127], v8, s[40:43], s10 offen sc1
s_mov_b64 exec, -1""")
        if not self.opt("sig0_early", 1):
            self.sig_send(70, 90, 11)
        self.stamp(4)
        self.dbgtime(4, 0)
        self.dbgtime(5, 77)
        e("s_branch L_w_join")
        self.label("L_lo123")
        e("s_cmp_ge_u32 s9, 16\ns_cbranch_scc1 L_kv_lo")
        self.get_nonce_lds(90)
        e("s_barrier\ns_barrier\ns_branch L_w_join")
        self.label("L_hi")
        e(f"""s_lshr_b32 s13, s6, 1
s_lshl_b32 s13, s13, 8
s_and_b32 s14, s6, 1
s_lshl_b32 s14, s14, 4
s_add_u32 s13, s13, s14
s_sub_u32 s14, s7, 4
s_lshl_b32 s14, s14, 6
s_add_u32 s13, s13, s14
s_lshl_b32 s13, s13, 13
s_lshl_b32 s12, s5, 8
s_add_u32 s13, s13, s12
v_xor_b32 v7, v2, v3
v_lshlrev_b32 v7, 4, v7
v_lshl_add_u32 v7, v3, 13, v7
v_mov_b32 v227, {NB}
s_waitcnt lgkmcnt(0)""")
        self.srd(56, 36, 256)
        self.srd(40, 38, WS_RECORDS)
        e("s_cmp_ge_u32 s9, 16\ns_cbranch_scc1 L_kv_hi")
        lpw = self.newlabel("w_pw")
        e(f"""s_cmp_lg_u32 s7, 4
s_cbranch_scc1 {lpw}
s_lshl_b32 s68, s5, 12
s_add_u32 s68, s68, {Q1}
v_lshlrev_b32 v8, 6, v1
buffer_load_dword v91, v8, s[40:43], s68 offen sc1""")
        self.label(lpw)
        ntk = self.opt("nt_wuk", nt)
        if ntk == "none":
            ntk = ""
        if self.opt("sl_wuk", 1):
            e(f"s_sleep {self.opt('sl_wuk', 1)}")
        WKL = 32768
        self.srd(52, 22, 4194304)
        e(f"""s_sub_u32 s14, s7, 4
s_lshl_b32 s14, s14, 13
s_add_u32 s14, s14, {WKL}
v_lshlrev_b32 v6, 8, v2
v_add_u32 v6, s14, v6""")
        for k in range(8):
            e(f"""s_mov_b32 m0, s14
v_xor_b32 v8, {64*(k&3)}, v7
buffer_load_dwordx4 v8, s[52:55], s13 offen {ntk} lds
s_add_u32 s14, s14, 1024
s_add_u32 s13, s13, {32768 if k != 3 else 32768 + 16*8192}""")
        for t in range(4):
            e(f"""v_or_b32 v8, {4*t}, v3
v_xor_b32 v8, v8, v2
v_lshl_add_u32 v{100+t}, v8, 4, v6""")
        e(f"""v_lshlrev_b32 v9, 4, v3
s_sub_u32 s14, s7, 4
s_lshl_b32 s14, s14, 6
v_lshl_add_u32 v8, v3, 3, s14
s_barrier""")
        self.get_nonce_lds(90)
        e("s_waitcnt vmcnt(0)")
        self.stamp(1)
        for t in range(4):
            e(f"ds_read_b128 v[{36+4*t}:{39+4*t}], v{100+t}\nds_read_b128 v[{52+4*t}:{55+4*t}], v{100+t} offset:4096")
        e("s_waitcnt lgkmcnt(0)\ns_barrier")
        for t in range(4):
            e(f"ds_read_b128 v[{120+4*t}:{123+4*t}], v9 offset:{QBF + 64*t}")
        for t in range(4):
            c0 = "0" if t == 0 else "v[116:119]"
            c1 = "0" if t == 0 else "v[136:139]"
            e(f"s_waitcnt lgkmcnt({3-t})")
            e(f"v_mfma_f32_16x16x32_bf16 v[116:119], v[{36+4*t}:{39+4*t}], v[{120+4*t}:{123+4*t}], {c0}")
            e(f"v_mfma_f32_16x16x32_bf16 v[136:139], v[{52+4*t}:{55+4*t}], v[{120+4*t}:{123+4*t}], {c1}")
        e(f"""s_nop 6
v_cvt_pk_bf16_f32 v140, v116, v117
v_cvt_pk_bf16_f32 v141, v118, v119
v_cvt_pk_bf16_f32 v142, v136, v137
v_cvt_pk_bf16_f32 v143, v138, v139
ds_write_b64 v8, v[140:141] offset:{QAL}
ds_write_b64 v8, v[142:143] offset:{QAL + 32}
s_waitcnt lgkmcnt(0)
s_barrier""")
        self.label("L_w_join")
        self.masks(72, 2, 92, True)
        if self.opt("sl_de", 0):
            e(f"s_sleep {self.opt('sl_de', 0)}")
        nto = self.opt("nt_wo", nt)
        e("""s_lshr_b32 s10, s6, 1
s_and_b32 s11, s6, 1
v_lshrrev_b32 v6, 3, v2
v_lshl_add_u32 v6, v6, 2, v3
v_lshlrev_b32 v7, 4, v6
v_lshlrev_b32 v6, 13, v6
v_and_b32 v8, 7, v2
v_lshl_add_u32 v6, v8, 4, v6
s_lshl_b32 s12, s10, 8
s_lshl_b32 s13, s7, 5
s_add_u32 s12, s12, s13
s_lshl_b32 s12, s12, 13
s_lshl_b32 s13, s5, 8
s_add_u32 s12, s12, s13
s_lshl_b32 s13, s11, 7
s_add_u32 s12, s12, s13
v_add_u32 v6, s12, v6""")
        for t in range(4):
            e(f"global_load_dwordx4 v[{16+4*t}:{19+4*t}], v6, s[24:25] {nt}")
            if t < 3:
                e("v_add_u32 v6, 0x10000, v6")
        lwo = self.newlabel("w_nowo")
        e(f"""s_cmp_ge_u32 s7, 4
s_cbranch_scc1 {lwo}
v_mul_u32_u24 v6, 5120, v3
v_lshl_add_u32 v6, v2, 4, v6
s_lshl_b32 s12, s5, 7
s_lshl_b32 s13, s11, 6
s_add_u32 s12, s12, s13
s_lshl_b32 s13, s7, 4
s_add_u32 s12, s12, s13
s_mul_i32 s12, s12, 1280
v_add_u32 v6, s12, v6""")
        for t in range(4):
            for b in range(5):
                r = 160 + (t * 5 + b) * 4
                e(f"global_load_dwordx4 v[{r}:{r+3}], v6, s[26:27] offset:{1280*(t%2) + 256*b} {nto}")
            if t == 1:
                e("v_add_u32 v6, 2560, v6")
        lfp = self.newlabel("w_fgp")
        e(f"s_branch {lfp}")
        self.label(lwo)
        if self.opt("pf_fg", 0):
            pol = self.opt("pf_pol", "none").replace("none", "")
            e(f"""s_lshr_b32 s12, s9, 2
s_lshl_b32 s12, s12, 3
s_add_u32 s12, s12, s8
s_cmp_ge_u32 s12, 27
s_cbranch_scc1 {lfp}
s_and_b32 s13, s9, 3
s_sub_u32 s14, s7, 4
s_mul_i32 s14, s14, 40
v_add_u32 v6, s14, v1
s_lshl_b32 s15, s12, 2
s_add_u32 s15, s15, s13
s_mul_i32 s15, s15, 20480
v_lshlrev_b32 v8, 7, v6
v_add_u32 v8, s15, v8
s_mul_i32 s13, s13, 160
v_add_u32 v6, s13, v6
v_mul_u32_u24 v6, 3456, v6
s_lshl_b32 s12, s12, 7
v_add_u32 v6, s12, v6
s_mov_b32 exec_hi, 0xff
global_load_dword v160, v8, s[32:33] {pol}
global_load_dword v161, v6, s[30:31] {pol}
s_mov_b64 exec, -1""")
        self.label(lfp)
        e(f"""v_and_b32 v8, 1, v3
v_lshlrev_b32 v8, 1, v8
v_lshrrev_b32 v9, 1, v3
v_or_b32 v8, v8, v9
v_and_b32 v9, 1, v1
v_lshl_add_u32 v8, v9, 2, v8
v_bfe_u32 v9, v1, 1, 2
v_lshl_add_u32 v8, v8, 2, v9
v_lshlrev_b32 v8, 2, v8
s_lshl_b32 s12, s7, 7
v_add_u32 v8, s12, v8
v_add_u32 v7, s12, v7
v_lshrrev_b32 v9, 3, v1
v_lshlrev_b32 v10, 4, v9
v_lshlrev_b32 v9, 9, v9
v_and_b32 v6, 7, v1
v_lshl_add_u32 v9, v6, 4, v9
s_lshl_b32 s12, s5, 2
s_lshl_b32 s13, s10, 1
s_add_u32 s12, s12, s13
s_lshr_b32 s13, s7, 2
s_add_u32 s12, s12, s13
s_lshl_b32 s12, s12, 14
s_and_b32 s13, s7, 3
s_lshl_b32 s13, s13, 7
s_add_u32 s12, s12, s13
s_add_u32 s12, s12, {OB}
s_add_u32 s13, s12, 4096
s_add_u32 s14, s12, 8192
s_add_u32 s15, s12, 12288
s_lshl_b32 s68, s5, 9
s_add_u32 s68, s68, {OS}
v_and_b32 v36, 7, v2
v_lshlrev_b32 v36, 5, v36
v_lshl_add_u32 v36, v3, 4, v36
s_lshl_b32 s61, s7, 8
v_add_u32 v36, s61, v36
s_lshl_b32 s61, s7, 6
v_lshl_add_u32 v37, v3, 4, s61
v_lshlrev_b32 v38, 5, v2
v_lshl_add_u32 v38, v3, 4, v38
s_mul_i32 s61, s7, 2560
v_add_u32 v38, s61, v38
v_subrev_u32 v39, 256, v0
v_lshrrev_b32 v40, 3, v39
v_lshlrev_b32 v40, 11, v40
v_and_b32 v41, 7, v39
v_lshl_add_u32 v40, v41, 4, v40
v_lshlrev_b32 v41, 4, v39
s_mul_i32 s69, s8, {20*2048}
s_lshl_b32 s61, s9, 7
s_add_u32 s69, s69, s61
s_add_u32 s69, s69, {EL}
s_and_b32 s61, s4, 0x67
v_mov_b32 v42, s65
s_mov_b32 s62, {LOG2E:#x}""")
        self.sig_prep(1, 70, "s61")
        self.sig_prep(2, 71)
        self.sig_prep(3, 72)
        e("s_waitcnt vmcnt(0)")
        self.stamp(5)
        lrq = self.newlabel("w_rq")
        lpe = self.newlabel("w_pe")
        e(f"""s_cmp_lg_u32 s7, 0
s_cbranch_scc1 {lrq}
s_mov_b32 exec_hi, 0
buffer_store_dwordx4 v[120:123], v5, s[40:43], s73 offen sc1
s_mov_b64 exec, -1""")
        self.label(lrq)
        e(f"""s_sub_u32 s61, s7, 4
s_lshl_b32 s61, s61, 4
s_add_u32 s61, s61, s9
s_cmp_ge_u32 s61, 20
s_cbranch_scc1 {lpe}
s_mul_i32 s63, s8, 20
s_add_u32 s63, s63, s61
s_lshl_b32 s63, s63, 11
s_add_u32 s63, s63, {EL}
v_lshlrev_b32 v44, 5, v1
buffer_load_dword v45, v44, s[40:43], s63 offen sc1""")
        self.label(lpe)
        self.sig_wait(71, 44, 11, self.opt("sl_h3", 44))
        self.stamp(6)
        loads = [(f"buffer_load_dwordx4 v[{48+4*k}:{51+4*k}], v10, s[40:43], s68 offen offset:{128*k} sc1", 48 + 4 * k, 4) for k in range(4)]
        loads += [(f"buffer_load_dwordx4 v[{120+4*k}:{123+4*k}], v9, s[40:43], s{12+k} offen sc1", 120 + 4 * k, 4) for k in range(4)]
        self.poll(loads, 'tag', 44)
        self.stamp(7)
        for k in range(4):
            e(f"v_and_b32 v{48+4*k}, s64, v{48+4*k}")
        e(f"""v_max3_f32 v44, v48, v52, v56
v_max_f32 v44, v44, v60
s_nop 1
v_max_f32_dpp v44, v44, v44 row_ror:8 row_mask:0xf bank_mask:0xf
s_nop 0
v_mov_b32 v45, v44
s_nop 1
v_permlane16_swap_b32 v44, v45
s_nop 0
v_max_f32 v44, v44, v45
v_mov_b32 v45, v44
s_nop 1
v_permlane32_swap_b32 v44, v45
s_nop 0
v_max_f32 v44, v44, v45
v_mul_f32 v44, s62, v44""")
        for k in range(4):
            e(f"v_fma_f32 v{48+4*k}, v{48+4*k}, s62, -v44")
        for k in range(4):
            e(f"v_exp_f32 v{48+4*k}, v{48+4*k}")
        e("s_nop 0\nv_mul_f32 v46, v48, v49")
        for k in range(1, 4):
            e(f"v_fmac_f32 v46, v{48+4*k}, v{49+4*k}")
        for r in (0, 2):
            e(f"v_pk_mul_f32 v[{120+r}:{121+r}], v[{120+r}:{121+r}], v[48:49] op_sel_hi:[1,0]")
        e("v_add_f32_dpp v46, v46, v46 row_ror:8 row_mask:0xf bank_mask:0xf")
        for k in range(1, 4):
            for r in (0, 2):
                e(f"v_pk_fma_f32 v[{120+r}:{121+r}], v[{120+4*k+r}:{121+4*k+r}], v[{48+4*k}:{49+4*k}], v[{120+r}:{121+r}] op_sel_hi:[1,0,1]")
            if k == 1:
                e("v_mov_b32 v45, v46")
            if k == 2:
                e("v_permlane16_swap_b32 v46, v45")
        e(f"""v_add_f32 v46, v46, v45
v_permlane32_swap_b32 v120, v121
v_mov_b32 v45, v46
v_permlane32_swap_b32 v122, v123
v_add_f32 v120, v120, v121
v_permlane32_swap_b32 v46, v45
v_add_f32 v122, v122, v123
v_add_f32 v46, v46, v45
s_nop 0
v_permlane16_swap_b32 v120, v122
v_rcp_f32 v46, v46
v_add_f32 v120, v120, v122
s_nop 1
v_add_f32_dpp v120, v120, v120 row_ror:8 row_mask:0xf bank_mask:0xf
s_nop 0
v_mul_f32 v120, v120, v46
v_cvt_pk_bf16_f32 v120, v120, v120
ds_write_b32 v8, v120 offset:{CLX}
s_waitcnt lgkmcnt(0)
ds_read_b128 v[120:123], v7 offset:{CLX}
s_waitcnt lgkmcnt(0)""")
        for t in range(4):
            for r in range(4):
                e(f"v_and_b32 v{96+4*t+r}, v{120+t}, v{72+r}")
            if t > 0:
                c = "0" if t == 1 else "v[116:119]"
                e(f"v_mfma_f32_16x16x32_bf16 v[116:119], v[{96+4*(t-1)}:{99+4*(t-1)}], v[{16+4*(t-1)}:{19+4*(t-1)}], {c}")
        e("s_nop 0\nv_mfma_f32_16x16x32_bf16 v[116:119], v[108:111], v[28:31], v[116:119]\ns_nop 7")
        for r in range(4):
            e(f"v_mov_b32 v{124+r}, v{116+r}")
        for r in range(4):
            e(f"v_permlane32_swap_b32 v{116+r}, v{124+r}")
        for r in range(4):
            e(f"v_add_f32_dpp v{116+r}, v{124+r}, v{116+r} row_ror:8 row_mask:0xf bank_mask:0xf")
        e(f"""s_mov_b32 exec_lo, 0x00ff00ff
s_mov_b32 exec_hi, 0
ds_write_b128 v36, v[116:119] offset:{RED}
s_mov_b64 exec, -1
s_waitcnt lgkmcnt(0)
s_barrier""")
        lhi = self.newlabel("w_hi")
        e(f"s_cmp_ge_u32 s7, 4\ns_cbranch_scc1 {lhi}")
        for p in range(8):
            e(f"ds_read_b128 v[{120+4*p}:{123+4*p}], v37 offset:{RED + 256*p}")
        e("s_waitcnt lgkmcnt(0)")
        self.tree_sum(120, 8)
        for t in range(4):
            e(f"v_cvt_pk_bf16_f32 v{124+t}, v{120+t}, v{120+t}")
        for t in range(4):
            for r in range(4):
                e(f"v_and_b32 v{96+4*t+r}, v{124+t}, v{68+r}")
            e("s_nop 1")
            for b in range(5):
                r = 160 + (t * 5 + b) * 4
                c = "0" if t == 0 else f"v[{136+4*b}:{139+4*b}]"
                e(f"v_mfma_f32_16x16x32_bf16 v[{136+4*b}:{139+4*b}], v[{96+4*t}:{99+4*t}], v[{r}:{r+3}], {c}")
        e("s_mov_b32 exec_hi, 0\ns_nop 3")
        for b in range(5):
            if b == 4:
                e("s_nop 3")
            e(f"ds_write_b128 v38, v[{136+4*b}:{139+4*b}] offset:{RED2 + 512*b}")
        e("s_mov_b64 exec, -1\ns_waitcnt lgkmcnt(0)\ns_barrier")
        self.stamp(8)
        self.dbgtime(8, 5)
        e("""s_cmp_ge_u32 s4, 40
s_cbranch_scc1 L_fin
s_cmp_lg_u32 s7, 0
s_cbranch_scc1 L_fin""")
        self.colidx(8, 9)
        self.srd(44, 16, 1280)
        self.srd(52, 34, 1280)
        e(f"""s_lshl_b32 s12, s4, 5
v_lshlrev_b32 v9, 1, v8
buffer_load_ushort v50, v9, s[44:47], s12 offen
s_mul_i32 s12, s4, 7168
s_add_u32 s12, s12, {FB}
s_add_u32 s13, s12, 4096
v_cmp_gt_u32 vcc, 48, v1
v_add_u32 v10, 1024, v5
s_nop 0
v_cndmask_b32 v10, v5, v10, vcc
v_bfe_u32 v51, v1, 2, 3
v_mul_u32_u24 v51, 2560, v51
v_and_b32 v52, 3, v1
v_lshl_add_u32 v51, v52, 4, v51
s_lshl_b32 s14, s4, 6
s_add_u32 s14, s14, {XB}""")
        self.sig_prep(4, 70)
        self.sig_wait(72, 16, 11, self.opt("sl_h5", 8) + 8)
        self.poll([("buffer_load_dwordx4 v[44:47], v51, s[40:43], s14 offen sc1", 44, 4)], 'tag', 53)
        e("v_cmp_gt_u32 vcc, 32, v1\ns_nop 1")
        for r in range(4):
            e(f"v_cndmask_b32 v{44+r}, 0, v{44+r}, vcc")
        self.reduce16(44, 1)
        e(f"""v_cvt_pk_bf16_f32 v44, v44, v44
v_and_b32 v44, 0xffff0000, v44
v_lshlrev_b32 v50, 16, v50
v_add_f32 v44, v44, v50
v_cvt_pk_bf16_f32 v44, v44, v44
v_and_b32 v44, 0xffff0000, v44
s_lshl_b32 s15, s4, 5
s_mov_b32 s62, 0x000f000f
s_mov_b32 s63, 0x000f000f
v_cmp_gt_u32 s[68:69], 48, v1""")
        self.sig_wait(70, 16, 11, self.opt("sl_h6", 8))
        loads = [(f"buffer_load_dwordx4 v[{16+4*k}:{19+4*k}], v5, s[40:43], s{12 + k//4} offen offset:{1024*(k%4)} sc1", 16 + 4 * k, 4) for k in range(6)]
        loads += [("buffer_load_dwordx4 v[40:43], v10, s[40:43], s13 offen offset:1024 sc1", 40, 4)]
        self.poll(loads, 'tag', 53)
        self.stamp(9)
        for r in range(4):
            e(f"v_cndmask_b32 v{40+r}, 0, v{40+r}, s[68:69]")
        self.reduce16(16, 7)
        e(f"""s_nop 0
v_cvt_pk_bf16_f32 v16, v16, v16
v_and_b32 v16, 0xffff0000, v16
v_add_f32 v16, v16, v44
v_cvt_pk_bf16_f32 v16, v16, v16
s_mov_b64 exec, s[62:63]
buffer_store_short v16, v9, s[52:55], s15 offen
s_mov_b64 exec, -1""")
        self.stamp(10)
        self.dbgtime(2, 0)
        self.dbgtime(3, 39)
        e("s_branch L_fin")
        self.label(lhi)
        e(f"""s_sub_u32 s10, s7, 4
s_lshl_b32 s10, s10, 4
s_add_u32 s10, s10, s9
s_mul_i32 s12, s8, 20
s_add_u32 s12, s12, s10
s_lshl_b32 s12, s12, 11
s_add_u32 s12, s12, {EL}
s_mul_i32 s13, s8, 2560
s_lshl_b32 s14, s10, 7
s_add_u32 s13, s13, s14
s_add_u32 s13, s13, {XB}
v_cmp_gt_u32 vcc, 160, v39
s_and_saveexec_b64 s[62:63], vcc
s_barrier
s_cbranch_execz L_fin""")
        for wv in range(4):
            e(f"ds_read_b128 v[{120+4*wv}:{123+4*wv}], v41 offset:{RED2 + 2560*wv}")
        e("s_waitcnt lgkmcnt(0)")
        self.tree_sum(120, 4)
        self.tag4(120)
        e("buffer_store_dwordx4 v[120:123], v40, s[40:43], s69 offen")
        self.stamp(8)

        def restore_el():
            e("buffer_store_dwordx4 v[120:123], v40, s[40:43], s69 offen sc1")
        lnr = self.newlabel("w_nored")
        e(f"s_cmp_ge_u32 s10, 20\ns_cbranch_scc1 {lnr}")
        self.poll([(f"buffer_load_dwordx4 v[{124+4*k}:{127+4*k}], v5, s[40:43], s12 offen offset:{1024*k} sc1", 124 + 4 * k, 4) for k in range(2)], 'tag', 44, restore=restore_el)
        self.stamp(9)
        lns = self.newlabel("w_nosig")
        e(f"s_cmp_lg_u32 s7, 4\ns_cbranch_scc1 {lns}")
        self.sig_send(72, 42, 11)
        self.label(lns)
        self.tree_sum(124, 2)
        e("s_nop 0")
        for r in range(4):
            e(f"v_add_f32_dpp v{124+r}, v{124+r}, v{124+r} row_ror:8 row_mask:0xf bank_mask:0xf")
        for r in range(4):
            e(f"v_mov_b32 v{128+r}, v{124+r}")
        for r in range(4):
            e(f"v_permlane16_swap_b32 v{124+r}, v{128+r}")
        self.tree_sum(124, 2)
        for r in range(4):
            e(f"v_mov_b32 v{128+r}, v{124+r}")
        for r in range(4):
            e(f"v_permlane32_swap_b32 v{124+r}, v{128+r}")
        self.tree_sum(124, 2)
        self.tag4(124)
        e("""s_mov_b64 exec, 0xff
buffer_store_dwordx4 v[124:127], v5, s[40:43], s13 offen sc1
s_mov_b64 exec, -1""")
        self.stamp(10)
        self.label(lnr)
        e(f"s_sleep {self.opt('sl_el', 64)}")
        restore_el()
        e("s_branch L_fin")

    def colidx(self, vd, vt):
        self.e(f"""v_and_b32 v{vd}, 1, v3
v_lshlrev_b32 v{vd}, 1, v{vd}
v_lshrrev_b32 v{vt}, 1, v3
v_or_b32 v{vd}, v{vd}, v{vt}
v_and_b32 v{vt}, 3, v1
v_lshl_add_u32 v{vd}, v{vt}, 2, v{vd}""")

    def reduce16(self, v0, n):
        e = self.e
        self.tree_sum(v0, n)
        a = v0
        e(f"""s_nop 1
v_permlane32_swap_b32 v{a}, v{a+1}
v_permlane32_swap_b32 v{a+2}, v{a+3}
s_nop 0
v_add_f32 v{a}, v{a}, v{a+1}
v_add_f32 v{a+2}, v{a+2}, v{a+3}
s_nop 1
v_permlane16_swap_b32 v{a}, v{a+2}
s_nop 0
v_add_f32 v{a}, v{a}, v{a+2}
s_nop 1
v_add_f32_dpp v{a}, v{a}, v{a} row_ror:8 row_mask:0xf bank_mask:0xf
s_nop 1
v_add_f32_dpp v{a}, v{a}, v{a} row_ror:4 row_mask:0xf bank_mask:0xf""")

    def acc(self, k):
        return 168 + 4 * k if k < 11 else 64 + 4 * (k - 11)

    def roleKV(self, nt):
        e = self.e
        RT, BT, QL, XCH, PL, SL = 0, 67584, 4096, 49152, 4096, 64
        W1L, HN, HF = 24576, 45056, 50176

        def ids():
            e(f"""s_bfe_u32 s10, s9, 0x20002
s_lshl_b32 s5, s8, 2
s_add_u32 s5, s5, s10
s_and_b32 s6, s9, 3""")
            self.srd(44, 18, 8388608)
            e(f"""s_lshl_b32 s10, s5, 3
s_lshl_b32 s11, s6, 1
s_add_u32 s10, s10, s11
s_mul_i32 s68, s10, {2*PMSG}
s_add_u32 s68, s68, {PB}
s_lshl_b32 s69, s5, 7
s_add_u32 s69, s69, {RDY}""")

        def rows(done):
            e(f"""s_sub_u32 s15, s7, 1
s_lshl_b32 s12, s5, 8
s_lshl_b32 s13, s6, 6
s_add_u32 s12, s12, s13
s_add_u32 s12, s12, s15
s_lshl_b32 s12, s12, 10
s_mul_i32 s14, s15, 1040
s_add_u32 s14, s14, {RT}""")
            for k in range(11):
                if k == 10:
                    e(f"s_cmp_ge_u32 s15, 4\ns_cbranch_scc1 {done}")
                e(f"""s_mov_b32 m0, s14
s_add_u32 s14, s14, {6*1040}
buffer_load_dwordx4 v5, s[44:47], s12 offen {nt} lds
s_add_u32 s12, s12, {6*1024}""")
        lj = "L_kv_join"
        self.label("L_kv_w0")
        ids()
        e(f"s_branch {lj}")
        self.label("L_kv_lo")
        ids()
        rows(lj)
        e(f"s_branch {lj}")
        self.label("L_kv_hi")
        ids()
        l7 = self.newlabel("kv_w7")
        lrd = self.newlabel("kv_rowsd")
        e(f"s_cmp_eq_u32 s7, 7\ns_cbranch_scc1 {l7}")
        if self.opt("sl_ckv", 28):
            e(f"s_sleep {self.opt('sl_ckv', 28)}")
        rows(lrd)
        self.label(lrd)
        e(f"s_barrier\ns_branch {lj}")
        self.label(l7)
        e("""v_mov_b32 v20, -1
v_mov_b32 v21, -1
v_mov_b32 v22, -1
v_mov_b32 v23, -1
buffer_store_dwordx4 v[20:23], v5, s[40:43], s68 offen sc1
buffer_store_dwordx4 v[20:23], v5, s[40:43], s68 offen offset:1024 sc1
buffer_store_dwordx4 v[20:23], v5, s[40:43], s68 offen offset:2048 sc1
buffer_store_dwordx4 v[20:23], v5, s[40:43], s68 offen offset:3072 sc1
buffer_store_dwordx4 v[20:23], v5, s[40:43], s68 offen offset:3584 sc1""")
        e(f"""ds_write_b32 v227, v11 offset:{FLG}
ds_write_b32 v227, v11 offset:{FLG+4}
s_waitcnt lgkmcnt(0)
s_barrier
ds_read_b32 v60, v227 offset:{NON}
s_lshl_b32 s12, s6, 4
s_add_u32 s12, s12, s69
s_waitcnt vmcnt(0) lgkmcnt(0)
s_getreg_b32 s13, hwreg(HW_REG_XCC_ID)
v_mov_b32 v61, s13
v_mov_b32 v62, v60
v_mov_b32 v63, v60
s_mov_b64 exec, 1
buffer_store_dwordx4 v[60:63], v11, s[40:43], s12 offen sc1
s_mov_b64 exec, -1
v_readfirstlane_b32 s65, v60
s_mov_b32 s60, 0""")
        lr = self.newlabel("kv_rdy")
        lrdn = self.newlabel("kv_rdyd")
        self.label(lr)
        e(f"""s_load_dwordx16 s[76:91], s[38:39], s69 glc
s_add_u32 s60, s60, 1
s_cmp_ge_u32 s60, {SPIN_LIMIT}
s_cbranch_scc1 {lrdn}
s_waitcnt lgkmcnt(0)
s_xor_b32 s76, s76, s65
s_xor_b32 s80, s80, s65
s_xor_b32 s84, s84, s65
s_xor_b32 s88, s88, s65
s_or_b32 s76, s76, s80
s_or_b32 s84, s84, s88
s_or_b32 s76, s76, s84
s_cbranch_scc1 {lr}""")
        self.label(lrdn)
        e(f"""s_waitcnt lgkmcnt(0)
s_xor_b32 s77, s77, s13
s_xor_b32 s81, s81, s13
s_xor_b32 s85, s85, s13
s_xor_b32 s89, s89, s13
s_or_b32 s77, s77, s81
s_or_b32 s85, s85, s89
s_or_b32 s77, s77, s85
v_mov_b32 v8, s77
ds_write_b32 v227, v8 offset:8
s_mul_i32 s12, s5, {16*PMSG}
s_add_u32 s12, s12, {PB}
v_mul_u32_u24 v8, 96, v1
buffer_load_dword v250, v8, s[40:43], s12 offen sc1
s_add_u32 s12, s12, 6144
buffer_load_dword v251, v8, s[40:43], s12 offen sc1
s_add_u32 s12, s12, 6144
buffer_load_dword v252, v8, s[40:43], s12 offen sc1
s_waitcnt lgkmcnt(0)""")
        self.label(lj)
        e(f"""s_lshr_b32 s10, s7, 2
s_lshl_b32 s10, s10, 9
s_bfe_u32 s11, s7, 0x10001
s_mul_i32 s11, s11, {32*1040}
s_add_u32 s10, s10, s11
s_add_u32 s10, s10, {RT}
v_mul_u32_u24 v231, 1040, v2
v_lshl_add_u32 v231, v3, 4, v231
v_add_u32 v231, s10, v231""")
        e(f"""s_lshl_b32 s48, s7, 10
s_add_u32 s49, s48, {QA}
s_add_u32 s48, s48, {QL}
s_lshr_b32 s10, s7, 2
s_mul_i32 s10, s10, {11*1024}
s_and_b32 s11, s7, 1
s_mul_i32 s12, s11, {22*1024}
s_add_u32 s10, s10, s12
v_lshlrev_b32 v10, 6, v2
v_lshl_add_u32 v10, v3, 4, v10
v_add_u32 v6, s10, v10
s_and_b32 s10, s7, 3
s_lshl_b32 s10, s10, 11
v_add_u32 v9, s10, v5
s_lshl_b32 s10, s7, 11
v_add_u32 v7, s10, v5
s_and_b32 s10, s7, 3
s_mul_i32 s10, s10, {PMSG}
s_add_u32 s50, s68, s10
v_lshlrev_b32 v212, 3, v2
s_mul_i32 s51, s5, {16*PMSG}
s_mul_i32 s10, s7, {2*PMSG}
s_add_u32 s51, s51, s10
s_add_u32 s51, s51, {PB}
v_and_b32 v213, 1, v3
v_mul_u32_u24 v213, {PMSG}, v213
v_add_u32 v213, v213, v212
v_and_b32 v214, 31, v1
v_lshlrev_b32 v214, 6, v214
s_lshl_b32 s10, s7, 3
v_add_u32 v214, s10, v214
s_lshl_b32 s10, s11, 10
v_add_u32 v215, s10, v10
s_lshl_b32 s10, s11, 4
v_add_u32 v216, s10, v2
v_lshlrev_b32 v217, 6, v216
v_lshlrev_b32 v218, 16, v216
v_lshl_add_u32 v218, v3, 4, v218
s_lshl_b32 s52, s6, 5
s_add_u32 s52, s52, s5
s_lshl_b32 s52, s52, 9
s_lshr_b32 s10, s7, 1
s_lshl_b32 s10, s10, 7
s_add_u32 s52, s52, s10
s_add_u32 s52, s52, {OB}
v_lshlrev_b32 v219, 9, v216
s_lshl_b32 s53, s5, 4
s_add_u32 s53, s53, {OS}
s_mov_b32 s54, {SCALE:#x}
s_mov_b32 s55, {LOG2E:#x}
v_mov_b32 v221, 1
v_lshlrev_b32 v8, 1, v3
v_xor_b32 v8, v8, v2
v_lshlrev_b32 v222, 10, v3
v_lshl_add_u32 v222, v8, 4, v222
v_xor_b32 v226, 0x80, v222
s_lshl_b32 s74, s5, 8
s_lshl_b32 s13, s7, 5
s_add_u32 s74, s74, s13
s_lshl_b32 s74, s74, 10
s_lshl_b32 s14, s6, 8
s_add_u32 s74, s74, s14
s_lshl_b32 s75, s7, 13
s_add_u32 s75, s75, {BT}
v_lshrrev_b32 v223, 2, v2
v_lshl_add_u32 v223, v3, 2, v223
v_and_b32 v229, 7, v223
s_lshr_b32 s12, s7, 1
s_lshl_b32 s12, s12, 1
v_xor_b32 v229, s12, v229
v_lshlrev_b32 v223, 8, v223
v_lshl_add_u32 v223, v229, 5, v223
v_and_b32 v8, 3, v2
v_lshl_add_u32 v223, v8, 3, v223
v_add_u32 v223, {BT}, v223
v_xor_b32 v229, 32, v223
v_lshlrev_b32 v230, 2, v2""")
        self.sig_prep(0, 70)
        self.sig_prep(1, 71)
        self.sig_prep(2, 72)
        nt2 = self.opt("nt_block", nt)

        def blk_dma():
            for k in range(8):
                e(f"""s_mov_b32 m0, s75
s_add_u32 s75, s75, 1024
buffer_load_dwordx4 v{222 if k % 2 == 0 else 226}, s[44:47], s74 offen {nt2} lds
s_add_u32 s74, s74, 4096""")

        def tr_reads():
            for p in range(8):
                for ctl in range(2):
                    for hh in range(2):
                        r = 104 + (p * 2 + ctl) * 4 + 2 * hh
                        e(f"ds_read_b64_tr_b16 v[{r}:{r+1}], v{223 if ctl == 0 else 229} offset:{8192*p + 4096*hh}")
                if p % 3 == 2:
                    e("s_waitcnt lgkmcnt(3)")
        self.tr_reads = tr_reads
        early = 1
        self.get_nonce_lds(240)
        e("v_mov_b32 v220, s65\ns_mov_b32 s73x, 0".replace("s73x", "s47x").replace("s47x", "s3"))
        def rq():
            lrq = self.newlabel("kv_rq")
            e(f"""s_cmp_lg_u32 s7, 0
s_cbranch_scc1 {lrq}
s_mov_b32 exec_hi, 0
buffer_store_dwordx4 v[232:235], v5, s[40:43], s73 offen sc1
s_mov_b64 exec, -1""")
            self.label(lrq)
        if self.opt("sl_blk", 0):
            e(f"s_sleep {self.opt('sl_blk', 0)}")
        lb7 = self.newlabel("kv_b7")
        lb0 = self.newlabel("kv_b0")
        e(f"s_cmp_eq_u32 s7, 7\ns_cbranch_scc1 {lb7}")
        blk_dma()
        e(f"s_cmp_lg_u32 s7, 0\ns_cbranch_scc1 {lb0}\ns_add_u32 s74, s74, {192*1024}\ns_add_u32 s75, s75, {48*1024}")
        blk_dma()
        e(f"s_branch {lb7}")
        self.label(lb0)
        e("s_waitcnt vmcnt(8)")
        self.label(lb7)
        e("s_barrier")
        self.stamp(3)
        for u in range(8):
            e(f"ds_read_b128 v[{16+4*u}:{19+4*u}], v231 offset:{64*u}")
        for u in range(8):
            if u == 7:
                e("s_waitcnt lgkmcnt(8)")
            e(f"ds_read_b128 v[{60+4*u}:{63+4*u}], v231 offset:{16*1040 + 64*u}")
        e("s_load_dword s66, s[38:39], s70 glc\nds_read_b32 v237, v227 offset:8")
        e("v_mov_b32 v232, v120\nv_mov_b32 v233, v121\nv_mov_b32 v234, v122\nv_mov_b32 v235, v123\ns_waitcnt lgkmcnt(0)")
        for a in range(2):
            for z in range(3):
                for i in range(3):
                    sidx = 3 * z + i
                    d = 16 + 44 * a + 4 * (8 + z) + i
                    if sidx < 8:
                        e(f"v_mov_b32 v{d}, v{16+44*a+4*sidx+3}")
                    else:
                        e(f"v_mov_b32 v{d}, 0")
                e(f"v_mov_b32 v{16+44*a+4*(8+z)+3}, 0")
        e("v_readfirstlane_b32 s75, v237")
        if self.opt("dbg1", 0): self.stamp(9)
        e("s_waitcnt vmcnt(0)")
        if self.opt("dbg1", 0): self.stamp(10)
        e("s_barrier")
        if self.opt("dbg1", 0): self.stamp(1)
        lsk0 = self.newlabel("kv_sig0ok")
        e(f"s_cmp_eq_u32 s66, s65\ns_cbranch_scc1 {lsk0}")
        self.sig_wait(70, 240, 11, self.opt("sl_h2", 0), restore=rq)
        self.label(lsk0)
        self.stamp(11)
        e("s_mov_b32 s60, 0")
        lsw = self.newlabel("kv_sweep")
        self.label(lsw)
        e("s_mov_b32 s10, s48\ns_mov_b32 s11, s49")
        for k in range(6):
            if k == 5:
                l5 = self.newlabel("kv_sw5")
                e(f"s_cmp_ge_u32 s7, 4\ns_cbranch_scc1 {l5}")
            e(f"""s_mov_b32 m0, s10
s_add_u32 s10, s10, 8192
buffer_load_dwordx4 v5, s[40:43], s11 offen sc1 lds
s_add_u32 s11, s11, 8192""")
            if k == 5:
                self.label(l5)
        ltr = self.newlabel("kv_notr")
        e(f"s_cmp_lg_u32 s60, 0\ns_cbranch_scc1 {ltr}")
        tr_reads()
        self.label(ltr)
        e("s_waitcnt vmcnt(0) lgkmcnt(0)\ns_barrier")
        for u in range(11):
            e(f"ds_read_b128 v[{168+4*u}:{171+4*u}], v6 offset:{QL + 1024*u}")
        self.stamp(4)

        def chk(u):
            r = 168 + 4 * u + 3
            e(f"s_waitcnt lgkmcnt({10 - u})")
            if u == 0:
                e(f"v_xor_b32 v224, s67, v{r}")
            else:
                e(f"v_bitop3_b32 v224, v224, v{r}, s67 bitop3:0xf6")
            e(f"v_mov_b32 v{r}, 0")
        chk(0)
        for u in range(11):
            if u + 1 < 11:
                chk(u + 1)
            else:
                e("v_cmp_ne_u32 vcc, 0, v224\nv_add_u32 v225, s3, v227")
            r = 168 + 4 * u
            for a in range(2):
                c = "0" if u == 0 else f"v[{240+4*a}:{243+4*a}]"
                e(f"v_mfma_f32_16x16x32_bf16 v[{240+4*a}:{243+4*a}], v[{16+44*a+4*u}:{19+44*a+4*u}], v[{r}:{r+3}], {c}")
        lok = self.newlabel("kv_ok")
        e(f"""s_cmp_eq_u64 vcc, 0
s_cbranch_scc1 {lok}
ds_write_b32 v225, v221 offset:{FLG}""")
        self.label(lok)
        lnx = self.newlabel("kv_nox")
        e(f"""s_cmp_lt_u32 s7, 4
s_cbranch_scc1 {lnx}
s_nop 3
ds_write_b128 v9, v[240:243] offset:{XCH}
ds_write_b128 v9, v[244:247] offset:{XCH + 1024}""")
        self.label(lnx)
        e(f"""s_waitcnt lgkmcnt(0)
s_barrier
ds_read_b32 v224, v225 offset:{FLG}
ds_read_b128 v[168:171], v9 offset:{XCH}
ds_read_b128 v[172:175], v9 offset:{XCH + 1024}""")
        lgo = self.newlabel("kv_go")
        e(f"""s_waitcnt lgkmcnt(2)
v_readfirstlane_b32 s10, v224
s_nop 0
s_cmp_eq_u32 s10, 0
s_cbranch_scc1 {lgo}
s_waitcnt lgkmcnt(0)
s_xor_b32 s3, s3, 4
v_add_u32 v225, s3, v227
ds_write_b32 v225, v11 offset:{FLG}
s_add_u32 s60, s60, 1
s_waitcnt lgkmcnt(0)
s_barrier""")
        rq()
        e(f"""s_cmp_lt_u32 s60, {SPIN_LIMIT}
s_cbranch_scc1 {lsw}""")
        self.label(lgo)
        self.stamp(5)
        lnsm = self.newlabel("kv_nosm")
        e(f"s_cmp_ge_u32 s7, 4\ns_cbranch_scc1 {lnsm}\ns_waitcnt lgkmcnt(0)")
        for k in range(4):
            e(f"v_pk_add_f32 v[{168+2*k}:{169+2*k}], v[{168+2*k}:{169+2*k}], v[{240+2*k}:{241+2*k}]")
        for k in range(4):
            e(f"v_cvt_pk_bf16_f32 v{176+k}, v{168+2*k}, v{169+2*k}")
        for k in range(4):
            e(f"v_lshlrev_b32 v{168+2*k}, 16, v{176+k}\nv_and_b32 v{169+2*k}, 0xffff0000, v{176+k}")
        for k in range(8):
            e(f"v_mul_f32 v{168+k}, s54, v{168+k}")
        for k in range(4):
            e(f"v_cvt_pk_bf16_f32 v{176+k}, v{168+2*k}, v{169+2*k}")
        for k in range(4):
            e(f"v_lshlrev_b32 v{168+2*k}, 16, v{176+k}\nv_and_b32 v{169+2*k}, 0xffff0000, v{176+k}")
        e("""v_max3_f32 v248, v168, v169, v170
v_max3_f32 v180, v171, v172, v173
v_max3_f32 v248, v248, v174, v175
v_max_f32 v248, v248, v180
v_mov_b32 v180, v248
s_nop 1
v_permlane16_swap_b32 v248, v180
s_nop 0
v_max_f32 v248, v248, v180
v_mov_b32 v180, v248
s_nop 1
v_permlane32_swap_b32 v248, v180
s_nop 0
v_max_f32 v248, v248, v180
v_mul_f32 v180, s55, v248""")
        for k in range(8):
            e(f"v_fma_f32 v{168+k}, v{168+k}, s55, -v180")
        for k in range(8):
            e(f"v_exp_f32 v{168+k}, v{168+k}")
        e("s_nop 0")
        for k in range(4):
            e(f"v_cvt_pk_bf16_f32 v{252+k}, v{168+2*k}, v{169+2*k}")
        e("""buffer_store_dwordx4 v[252:255], v10, s[40:43], s50 offen
v_pk_add_f32 v[168:169], v[168:169], v[170:171]
v_pk_add_f32 v[172:173], v[172:173], v[174:175]
v_pk_add_f32 v[168:169], v[168:169], v[172:173]
v_add_f32 v249, v168, v169
v_mov_b32 v180, v249
s_nop 1
v_permlane16_swap_b32 v249, v180
s_nop 0
v_add_f32 v249, v249, v180
v_mov_b32 v180, v249
s_nop 1
v_permlane32_swap_b32 v249, v180
s_nop 0
v_add_f32 v249, v249, v180
s_mov_b64 exec, 0xffff
buffer_store_dwordx2 v[248:249], v212, s[40:43], s50 offen offset:1024
s_mov_b64 exec, -1""")
        self.stamp(6)
        if not early:
            lsj = self.newlabel("kv_sj")
            e(f"s_branch {lsj}")
            self.label(lnsm)
            e("s_waitcnt vmcnt(0)")
            self.label(lsj)
            e("s_barrier")
            tr_reads()
        else:
            self.label(lnsm)

        def restore_p():
            l = self.newlabel("rp")
            e(f"""s_cmp_ge_u32 s7, 4
s_cbranch_scc1 {l}
buffer_store_dwordx4 v[252:255], v10, s[40:43], s50 offen sc1
s_mov_b64 exec, 0xffff
buffer_store_dwordx2 v[248:249], v212, s[40:43], s50 offen offset:1024 sc1
s_mov_b64 exec, -1""")
            self.label(l)
        lsame = self.newlabel("kv_same")
        e(f"s_cmp_eq_u32 s75, 0\ns_cbranch_scc1 {lsame}")
        restore_p()
        self.label(lsame)
        self.poll([("buffer_load_dwordx4 v[168:171], v5, s[40:43], s51 offen sc1", 168, 4),
                   (f"buffer_load_dwordx4 v[172:175], v5, s[40:43], s51 offen offset:{PMSG} sc1", 172, 4),
                   ("buffer_load_dwordx2 v[176:177], v213, s[40:43], s51 offen offset:1024 sc1", 176, 2)], 'sent', 224)
        e(f"""ds_write_b128 v7, v[168:171] offset:{PL}
ds_write_b128 v7, v[172:175] offset:{PL + 1024}
ds_write_b64 v214, v[176:177] offset:{SL}
s_waitcnt lgkmcnt(0)
s_barrier""")
        self.stamp(7)
        if self.opt("sig2_early", 1):
            l0e = self.newlabel("kv_sig")
            e(f"s_cmp_lg_u32 s7, 7\ns_cbranch_scc1 {l0e}")
            self.sig_send(72, 220, 11)
            self.label(l0e)
        for k in range(4):
            e(f"ds_read_b128 v[{48+4*k}:{51+4*k}], v217 offset:{SL + 16*k}")
        for p in range(8):
            e(f"ds_read_b128 v[{16+4*p}:{19+4*p}], v215 offset:{PL + 2048*p}")
        stats = []
        stats.append("v_max3_f32 v238, v48, v50, v52")
        stats.append("v_max3_f32 v239, v54, v56, v58")
        stats.append("v_max3_f32 v238, v238, v60, v62")
        stats.append("v_max_f32 v238, v238, v239")
        stats.append("v_mul_f32 v239, s55, v238")
        for p in range(8):
            stats.append(f"v_fma_f32 v{48+2*p}, v{48+2*p}, s55, -v239")
        for p in range(8):
            stats.append(f"v_exp_f32 v{48+2*p}, v{48+2*p}")
        stats.append("v_and_or_b32 v240, v238, s64, v12")
        stats.append("v_mul_f32 v239, v48, v49")
        for p in range(1, 8):
            stats.append(f"v_fmac_f32 v239, v{48+2*p}, v{49+2*p}")
        si = 0
        for p in range(8):
            e(f"s_waitcnt lgkmcnt({7 - p})")
            for ctl in range(2):
                ar = 104 + (p * 2 + ctl) * 4
                ac = self.acc(p * 2 + ctl)
                e(f"v_mfma_f32_16x16x32_bf16 v[{ac}:{ac+3}], v[{ar}:{ar+3}], v[{16+4*p}:{19+4*p}], 0")
                for _ in range(2):
                    if si < len(stats):
                        e(stats[si]); si += 1
        while si < len(stats):
            e(stats[si]); si += 1
        lno = self.newlabel("kv_noos")
        e(f"""s_cmp_lg_u32 s6, 0
s_cbranch_scc1 {lno}
s_cmp_ge_u32 s7, 2
s_cbranch_scc1 {lno}
v_and_or_b32 v241, v239, s64, v13
v_mov_b32 v242, v14
v_mov_b32 v243, v15
s_mov_b64 exec, 0xffff
buffer_store_dwordx4 v[240:243], v219, s[40:43], s53 offen sc1
s_mov_b64 exec, -1""")
        self.label(lno)
        for r in range(0, 8, 2):
            e(f"v_pk_mul_f32 v[{168+r}:{169+r}], v[{168+r}:{169+r}], v[48:49] op_sel_hi:[1,0]")
        for p in range(1, 8):
            for ctl in range(2):
                for r in (0, 2):
                    a = self.acc(2 * p + ctl) + r
                    o = 168 + 4 * ctl + r
                    e(f"v_pk_fma_f32 v[{o}:{o+1}], v[{a}:{a+1}], v[{48+2*p}:{49+2*p}], v[{o}:{o+1}] op_sel_hi:[1,0,1]")
        self.tag4(168)
        e("buffer_store_dwordx4 v[168:171], v218, s[40:43], s52 offen sc1")
        self.tag4(172)
        e("buffer_store_dwordx4 v[172:175], v218, s[40:43], s52 offen offset:64 sc1")
        self.stamp(8)
        e("s_barrier")
        self.dbgtime(6, 128)
        self.dbgtime(7, 201)
        if not self.opt("sig2_early", 1):
            l0 = self.newlabel("kv_sig")
            e(f"s_cmp_lg_u32 s7, 0\ns_cbranch_scc1 {l0}")
            self.sig_send(72, 220, 11)
            self.label(l0)
        lnf = self.newlabel("kv_nofg")
        llo = self.newlabel("kv_fglo")
        e(f"""v_mov_b32 v236, v220
s_bfe_u32 s10, s9, 0x20002
s_lshl_b32 s10, s10, 3
s_add_u32 s10, s10, s8
s_cmp_ge_u32 s10, 27
s_cbranch_scc1 {lnf}
s_lshl_b32 s10, s10, 2
s_add_u32 s10, s10, s6""")
        if self.opt("sl_fg", 0):
            e(f"s_sleep {self.opt('sl_fg', 0)}")
        e(f"s_cmp_lt_u32 s7, 4\ns_cbranch_scc1 {llo}")
        self.srd(44, 30, 2211840)
        e(f"""v_lshrrev_b32 v6, 1, v1
v_mul_u32_u24 v6, 3456, v6
v_and_b32 v7, 1, v1
v_lshl_add_u32 v6, v7, 4, v6
s_sub_u32 s11, s7, 4
s_mul_i32 s11, s11, 160
s_mul_i32 s12, s11, 3456
s_lshl_b32 s13, s10, 5
s_add_u32 s12, s12, s13
s_lshl_b32 s13, s11, 5
s_add_u32 s13, s13, {W1L}""")
        for k in range(5):
            e(f"""s_mov_b32 m0, s13
s_add_u32 s13, s13, 1024
buffer_load_dwordx4 v6, s[44:47], s12 offen {nt} lds
s_add_u32 s12, s12, {32*3456}""")
        e("s_waitcnt vmcnt(0)")
        if self.opt("dbg2", 0): self.stamp(2)
        e("s_barrier\ns_branch L_fin")
        self.label(lnf)
        rq()
        e("s_branch L_fin")
        self.label(llo)
        self.srd(44, 16, 1280)
        e(f"""v_lshlrev_b32 v8, 3, v1
s_mul_i32 s11, s7, 320
buffer_load_dwordx2 v[48:49], v8, s[44:47], s11 offen
v_mul_u32_u24 v7, 5120, v3
v_lshl_add_u32 v7, v2, 4, v7
s_mul_i32 s12, s10, 20480
s_lshl_b32 s13, s7, 8
s_add_u32 s12, s12, s13
v_add_u32 v7, s12, v7""")
        for t in range(4):
            e(f"global_load_dwordx4 v[{16+4*t}:{19+4*t}], v7, s[32:33] offset:{1280*t} {nt}")
        lb4 = self.newlabel("kv_b4")
        e(f"s_cmp_lg_u32 s7, 0\ns_cbranch_scc1 {lb4}\nv_add_u32 v7, 1024, v7")
        for t in range(4):
            e(f"global_load_dwordx4 v[{32+4*t}:{35+4*t}], v7, s[32:33] offset:{1280*t} {nt}")
        self.label(lb4)
        rq()
        self.masks(52, 2, 60, False)
        e(f"""v_lshrrev_b32 v8, 2, v2
v_lshl_add_u32 v8, v3, 3, v8
v_lshlrev_b32 v8, 5, v8
v_and_b32 v9, 3, v2
v_lshl_add_u32 v8, v9, 3, v8
s_waitcnt vmcnt(0)""")
        if self.opt("dbg2", 0): self.stamp(2)
        e("s_barrier")
        if self.opt("dbg2", 0): self.stamp(3)
        for t in range(20):
            for hh in range(2):
                e(f"ds_read_b64_tr_b16 v[{80+4*t+2*hh}:{81+4*t+2*hh}], v8 offset:{W1L + 1024*t + 128*hh}")
            if t % 4 == 3:
                e("s_waitcnt lgkmcnt(0)")
        e(f"""s_mul_i32 s12, s7, 640
s_add_u32 s12, s12, {XB}
s_add_u32 s13, s12, 5120
s_add_u32 s14, s12, 10240
s_add_u32 s15, s12, 15360
v_lshlrev_b32 v56, 16, v48
v_and_b32 v57, 0xffff0000, v48
v_lshlrev_b32 v58, 16, v49
v_and_b32 v59, 0xffff0000, v49
v_lshlrev_b32 v8, 3, v1
s_mul_i32 s11, s7, 320
v_add_u32 v9, s11, v8
s_mul_i32 s11, s7, 1280
v_add_u32 v10, s11, v8
v_add_u32 v228, s11, v4
v_lshl_add_u32 v229, v3, 4, s11
v_lshrrev_b32 v230, 1, v2
v_mul_u32_u24 v230, 7168, v230
v_and_b32 v231, 1, v2
v_lshl_add_u32 v230, v231, 5, v230
v_lshl_add_u32 v230, v3, 4, v230
s_mul_i32 s52, s7, {8*7168}
s_lshl_b32 s53, s10, 6
s_add_u32 s52, s52, s53
s_add_u32 s52, s52, {FB}
s_add_u32 s53, s52, {32*7168}""")
        self.sig_prep(3, 70)
        self.sig_prep(4, 71)
        if not self.opt('dbg1', 0): self.stamp(9)
        self.sig_wait(70, 60, 11, self.opt("sl_h5", 8))
        e("s_mov_b32 exec_hi, 0xff")
        self.poll([(f"buffer_load_dwordx4 v[{160+4*x}:{163+4*x}], v5, s[40:43], s{12 + x//2} offen offset:{2560*(x%2)} sc1", 160 + 4 * x, 4) for x in range(8)], 'tag', 60)
        self.tree_sum(160, 8)
        e(f"""v_cvt_pk_bf16_f32 v60, v160, v161
v_cvt_pk_bf16_f32 v61, v162, v163
v_lshlrev_b32 v160, 16, v60
v_and_b32 v161, 0xffff0000, v60
v_lshlrev_b32 v162, 16, v61
v_and_b32 v163, 0xffff0000, v61
v_pk_add_f32 v[160:161], v[160:161], v[56:57]
v_pk_add_f32 v[162:163], v[162:163], v[58:59]
v_cvt_pk_bf16_f32 v60, v160, v161
v_cvt_pk_bf16_f32 v61, v162, v163
ds_write_b64 v9, v[60:61] offset:{HF}
s_mov_b64 exec, -1
s_waitcnt lgkmcnt(0)
s_barrier
ds_read_b64 v[70:71], v8 offset:{HF}
ds_read_b64 v[72:73], v8 offset:{HF + 512}
ds_read_b32 v74, v4 offset:{HF + 1024}
s_waitcnt lgkmcnt(0)""")
        if not self.opt('dbg1', 0): self.stamp(10)
        for k in range(5):
            e(f"v_lshlrev_b32 v{60+2*k}, 16, v{70+k}\nv_and_b32 v{61+2*k}, 0xffff0000, v{70+k}")
        self.layernorm(60, 70, 62, 63)
        e(f"""v_cvt_pk_bf16_f32 v70, v60, v61
v_cvt_pk_bf16_f32 v71, v62, v63
v_cvt_pk_bf16_f32 v72, v64, v65
v_cvt_pk_bf16_f32 v73, v66, v67
v_cvt_pk_bf16_f32 v74, v68, v69
ds_write_b64 v10, v[70:71] offset:{HN}
ds_write_b64 v10, v[72:73] offset:{HN + 512}
ds_write_b32 v228, v74 offset:{HN + 1024}
s_waitcnt lgkmcnt(0)""")
        for t in range(14):
            e(f"ds_read_b128 v[{160+4*t}:{163+4*t}], v229 offset:{HN + 64*t}")
        for t in range(20):
            issued = min(t + 14, 20)
            e(f"s_waitcnt lgkmcnt({issued - t - 1})")
            c = "0" if t == 0 else "v[56:59]"
            e(f"v_mfma_f32_16x16x32_bf16 v[56:59], v[{80+4*t}:{83+4*t}], v[{self.fb(t)}:{self.fb(t)+3}], {c}")
            if t + 14 < 20:
                e(f"ds_read_b128 v[{self.fb(t+14)}:{self.fb(t+14)+3}], v229 offset:{HN + 64*(t+14)}")
        ls4 = self.newlabel("kv_s4")
        e(f"s_cmp_lg_u32 s7, 1\ns_cbranch_scc1 {ls4}")
        self.sig_send(71, 236, 11)
        self.label(ls4)
        e("s_nop 4")
        for r in range(4):
            e(f"v_max_f32 v{56+r}, 0, v{56+r}")
        for t in range(4):
            e(f"v_cvt_pk_bf16_f32 v{240+t}, v{56+t}, v{56+t}")
        for t in range(4):
            for r in range(4):
                e(f"v_and_b32 v{80+4*t+r}, v{240+t}, v{52+r}")
        for t in range(4):
            c = "0" if t == 0 else "v[64:67]"
            e(f"v_mfma_f32_16x16x32_bf16 v[64:67], v[{80+4*t}:{83+4*t}], v[{16+4*t}:{19+4*t}], {c}")
        lb5 = self.newlabel("kv_b5")
        e(f"s_cmp_lg_u32 s7, 0\ns_cbranch_scc1 {lb5}")
        for t in range(4):
            c = "0" if t == 0 else "v[68:71]"
            e(f"v_mfma_f32_16x16x32_bf16 v[68:71], v[{80+4*t}:{83+4*t}], v[{32+4*t}:{35+4*t}], {c}")
        e("s_nop 3")
        self.tag4(64)
        e("""s_mov_b32 exec_hi, 0
buffer_store_dwordx4 v[64:67], v230, s[40:43], s52 offen sc1""")
        self.tag4(68)
        e("buffer_store_dwordx4 v[68:71], v230, s[40:43], s53 offen sc1")
        e("s_mov_b64 exec, -1")
        if not self.opt('dbg1', 0): self.stamp(1)
        e("s_branch L_fin")
        self.label(lb5)
        e("s_nop 5")
        self.tag4(64)
        e("""s_mov_b32 exec_hi, 0
buffer_store_dwordx4 v[64:67], v230, s[40:43], s52 offen sc1
s_mov_b64 exec, -1""")

    def fb(self, t):
        if t < 14:
            return 160 + 4 * t
        return [60, 64, 68, 72, 76, 244][t - 14]


if __name__ == "__main__":
    import argparse
    ap = argparse.ArgumentParser()
    ap.add_argument("out")
    ap.add_argument("--stamps", action="store_true")
    ap.add_argument("--opt", action="append", default=[])
    a = ap.parse_args()
    opts = {}
    for o in a.opt:
        k, v = o.split("=")
        opts[k] = int(v) if v.lstrip("-").isdigit() else v
    g = Gen(stamps=a.stamps, opts=opts)
    open(a.out, "w").write(g.build())
```

```python
import sys

KN = "sequential_preLN__compressed_kv_cla__dense_activation_relu__decode_kernel"

Q1 = 0x000000
QA = 0x020000
PB = 0x030000
PMSG = 1152
OB = 0x0C0000
OS = 0x2C0000
EL = 0x2C4000
XB = 0x314000
FB = 0x319000
SIG = 0x360000
RDY = 0x374000
assert PB + 512 * PMSG <= OB
STAMP = 0x400000
WS_RECORDS = 0x400000 + 256 * 128

SPIN_LIMIT = 100000
RESTORE_IT = 10
LOG2E = 0x3fb8aa3b
SCALE = 0x3db504f3
LDS_BYTES = 146432
NB = 133120
NON, FLG = 0, 16


class Gen:
    def __init__(self, stamps=False, opts=None):
        self.o = []
        self.nl = 0
        self.stamps = stamps
        self.opts = opts or {}

    def opt(self, k, d):
        return self.opts.get(k, d)

    def e(self, s):
        for line in s.strip("\n").split("\n"):
            self.o.append("  " + line.strip())

    def label(self, name):
        self.o.append(name + ":")

    def newlabel(self, base):
        self.nl += 1
        return f"L_{base}_{self.nl}"

    def srd(self, d, ptr, nbytes):
        self.e(f"""s_mov_b32 s{d}, s{ptr}
s_and_b32 s{d+1}, s{ptr+1}, 0xffff
s_mov_b32 s{d+2}, {nbytes}
s_mov_b32 s{d+3}, 0x00020000""")

    def stamp(self, idx):
        if self.stamps:
            self.e(f"s_memrealtime s[{76+2*idx}:{77+2*idx}]")

    def stamp_dump(self):
        if not self.stamps:
            return
        self.e("""s_and_b32 s60, s7, 3
s_cmp_lg_u32 s60, 0
s_cbranch_scc1 L_end
s_waitcnt lgkmcnt(0)
s_mov_b64 exec, 1
v_mov_b32 v251, 0""")
        self.e(f"s_lshl_b32 s60, s2, 7\ns_lshl_b32 s61, s7, 4\ns_add_u32 s60, s60, s61\ns_add_u32 s60, s60, {STAMP}")
        for i in range(12):
            self.e(f"v_mov_b32 v250, s{76+2*i}\nbuffer_store_dword v250, v251, s[40:43], s60 offen offset:{4*i}")

    def dbgtime(self, word, wg):
        if not self.opt("dbgt", 0):
            return
        l = self.newlabel("dt")
        self.e(f"""s_cmp_lg_u32 s2, {wg}
s_cbranch_scc1 {l}
s_memrealtime s[10:11]
s_load_dword s12, s[36:37], 4 glc
s_waitcnt lgkmcnt(0)
s_sub_u32 s10, s10, s12
v_mov_b32 v250, s10
v_mov_b32 v251, {4*word}
global_store_dword v251, v250, s[36:37]""")
        self.label(l)

    def wave_sum(self, v, sd):
        ins = "v_add_f32_dpp"
        for sh in (1, 2, 4, 8):
            self.e(f"s_nop 1\n{ins} v{v}, v{v}, v{v} row_shr:{sh} row_mask:0xf bank_mask:0xf bound_ctrl:0")
        self.e(f"s_nop 1\n{ins} v{v}, v{v}, v{v} row_bcast:15 row_mask:0xa bank_mask:0xf")
        self.e(f"s_nop 1\n{ins} v{v}, v{v}, v{v} row_bcast:31 row_mask:0xc bank_mask:0xf")
        self.e(f"s_nop 0\nv_readlane_b32 s{sd}, v{v}, 63")

    def wait_nonce(self, vt):
        d = self.newlabel("nnd")
        for k in range(4):
            self.e(f"""s_load_dword s65, s[36:37], {64*k}
s_waitcnt lgkmcnt(0)
s_cmp_lg_u32 s65, 0
s_cbranch_scc1 {d}
s_sleep 4""")
        l = self.newlabel("nn")
        self.e("s_mov_b32 s60, 0")
        self.label(l)
        self.e(f"""buffer_load_dword v{vt}, v11, s[56:59], 0 offen sc1
s_add_u32 s60, s60, 1
s_waitcnt vmcnt(0)
v_readfirstlane_b32 s65, v{vt}
s_cmp_ge_u32 s60, {SPIN_LIMIT}
s_cbranch_scc1 {d}
s_cmp_eq_u32 s65, 0
s_cbranch_scc1 {l}""")
        self.label(d)

    def set_tags(self):
        self.e("""s_mov_b32 s64, 0xffffff00
s_and_b32 s61, s65, 0xff
v_mov_b32 v12, s61
s_bfe_u32 s61, s65, 0x80008
v_mov_b32 v13, s61
s_bfe_u32 s61, s65, 0x80010
v_mov_b32 v14, s61
s_lshr_b32 s61, s65, 24
v_mov_b32 v15, s61
s_and_b32 s67, s65, 0xbfffbfff""")

    def tag4(self, v):
        for r in range(4):
            self.e(f"v_and_or_b32 v{v+r}, v{v+r}, s64, v{12+r}")

    def sig_prep(self, k, sd, sid="s4"):
        self.e(f"s_lshl_b32 s{sd}, {sid}, 7\ns_add_u32 s{sd}, s{sd}, {SIG + k * 16384}")

    def sig_send(self, sd, vtag, vzero):
        self.e(f"buffer_store_dword v{vtag}, v{vzero}, s[40:43], s{sd} offen sc1")

    def sig_wait(self, sd, vt, vzero, sleep=0, restore=None):
        l = self.newlabel("sg")
        d = self.newlabel("sgd")
        self.e("s_mov_b32 s60, 0")
        self.label(l)
        self.e(f"""s_load_dword s66, s[38:39], s{sd} glc
s_add_u32 s60, s60, 1""")
        if restore:
            nr = self.newlabel("snr")
            self.e(f"s_cmp_lg_u32 s60, {RESTORE_IT}\ns_cbranch_scc1 {nr}")
            restore()
            self.label(nr)
        self.e(f"""s_cmp_ge_u32 s60, {SPIN_LIMIT}
s_cbranch_scc1 {d}
s_waitcnt lgkmcnt(0)
s_cmp_lg_u32 s66, s65
s_cbranch_scc1 {l}""")
        self.label(d)
        self.e("s_waitcnt lgkmcnt(0)")
        if sleep:
            self.e(f"s_sleep {sleep}")

    def check(self, regs, kind, vacc, first=True):
        e = self.e
        if kind == 'tag':
            for i, r in enumerate(regs):
                t = 12 + (i % 4)
                if first and i == 0:
                    e(f"v_xor_b32 v{vacc}, v{r}, v{t}")
                else:
                    e(f"v_bitop3_b32 v{vacc}, v{vacc}, v{r}, v{t} bitop3:0xf6")
        else:
            i = 0
            while i < len(regs):
                if first and i == 0:
                    if len(regs) >= 3:
                        e(f"v_max3_u32 v{vacc}, v{regs[0]}, v{regs[1]}, v{regs[2]}"); i = 3
                    elif len(regs) == 2:
                        e(f"v_max_u32 v{vacc}, v{regs[0]}, v{regs[1]}"); i = 2
                    else:
                        e(f"v_mov_b32 v{vacc}, v{regs[0]}"); i = 1
                elif len(regs) - i >= 2:
                    e(f"v_max3_u32 v{vacc}, v{vacc}, v{regs[i]}, v{regs[i+1]}"); i += 2
                else:
                    e(f"v_max_u32 v{vacc}, v{vacc}, v{regs[i]}"); i += 1

    def verdict(self, kind, vacc):
        if kind == 'tag':
            self.e(f"v_and_b32 v{vacc}, 0xff, v{vacc}\nv_cmp_ne_u32 vcc, 0, v{vacc}\ns_cmp_lg_u64 vcc, 0")
        else:
            self.e(f"v_cmp_eq_u32 vcc, -1, v{vacc}\ns_cmp_lg_u64 vcc, 0")

    def poll(self, loads, kind, vacc, restore=None):
        e = self.e
        l = self.newlabel("pl")
        d = self.newlabel("pld")
        e("s_mov_b32 s60, 0")
        self.label(l)
        for ins in loads:
            e(ins[0])
        e("s_add_u32 s60, s60, 1")
        if restore:
            nr = self.newlabel("pnr")
            e(f"s_cmp_lg_u32 s60, {self.opt('rit', RESTORE_IT)}\ns_cbranch_scc1 {nr}")
            restore()
            self.label(nr)
        e(f"s_cmp_ge_u32 s60, {SPIN_LIMIT}\ns_cbranch_scc1 {d}\ns_waitcnt vmcnt(0)")
        for k, ins in enumerate(loads):
            self.check(list(range(ins[1], ins[1] + ins[2])), kind, vacc, first=(k == 0))
        self.verdict(kind, vacc)
        e(f"s_cbranch_scc1 {l}")
        self.label(d)
        e("s_waitcnt vmcnt(0)")

    def masks(self, m0, vi, vt, lo_rows):
        self.e(f"""v_and_b32 v{vt}, 1, v{vi}
v_cmp_eq_u32 vcc, 1, v{vt}
v_mov_b32 v{vt}, 0x0000ffff
v_mov_b32 v{vt+1}, 0xffff0000
v_cndmask_b32 v{vt}, v{vt}, v{vt+1}, vcc""")
        if lo_rows:
            self.e(f"v_bfe_u32 v{vt+1}, v{vi}, 1, 2")
        else:
            self.e(f"v_lshrrev_b32 v{vt+1}, 1, v{vi}")
        for r in range(4):
            self.e(f"""v_cmp_eq_u32 vcc, {r}, v{vt+1}
s_nop 1
v_cndmask_b32 v{m0+r}, 0, v{vt}, vcc""")

    def layernorm(self, vx, vt, sA, sB):
        e = self.e
        inv = 0x3acccccd
        e(f"""v_pk_add_f32 v[{vt}:{vt+1}], v[{vx}:{vx+1}], v[{vx+2}:{vx+3}]
v_pk_add_f32 v[{vt+2}:{vt+3}], v[{vx+4}:{vx+5}], v[{vx+6}:{vx+7}]
v_pk_add_f32 v[{vt}:{vt+1}], v[{vt}:{vt+1}], v[{vx+8}:{vx+9}]
v_pk_add_f32 v[{vt}:{vt+1}], v[{vt}:{vt+1}], v[{vt+2}:{vt+3}]
v_add_f32 v{vt}, v{vt}, v{vt+1}""")
        self.wave_sum(vt, sA)
        e(f"v_mov_b32 v{vt+4}, {inv:#x}\ns_nop 0\nv_mul_f32 v{vt+4}, s{sA}, v{vt+4}")
        for k in range(0, 10, 2):
            e(f"v_pk_add_f32 v[{vt+2}:{vt+3}], v[{vx+k}:{vx+k+1}], v[{vt+4}:{vt+5}] op_sel_hi:[1,0] neg_lo:[0,1] neg_hi:[0,1]")
            if k == 0:
                e(f"v_pk_mul_f32 v[{vt}:{vt+1}], v[{vt+2}:{vt+3}], v[{vt+2}:{vt+3}]")
            else:
                e(f"v_pk_fma_f32 v[{vt}:{vt+1}], v[{vt+2}:{vt+3}], v[{vt+2}:{vt+3}], v[{vt}:{vt+1}]")
        e(f"v_add_f32 v{vt}, v{vt}, v{vt+1}")
        self.wave_sum(vt, sB)
        e(f"""v_mov_b32 v{vt+2}, {inv:#x}
s_nop 0
v_mul_f32 v{vt+2}, s{sB}, v{vt+2}
v_cvt_pk_bf16_f32 v{vt+3}, v{vt+4}, v{vt+2}
v_lshlrev_b32 v{vt+4}, 16, v{vt+3}
v_and_b32 v{vt+2}, 0xffff0000, v{vt+3}
v_add_f32 v{vt+2}, 0x3727c5ac, v{vt+2}
v_cvt_pk_bf16_f32 v{vt+2}, v{vt+2}, v{vt+2}
v_and_b32 v{vt+2}, 0xffff0000, v{vt+2}
v_sqrt_f32 v{vt+2}, v{vt+2}""")
        for k in range(0, 10, 2):
            e(f"v_pk_add_f32 v[{vx+k}:{vx+k+1}], v[{vx+k}:{vx+k+1}], v[{vt+4}:{vt+5}] op_sel_hi:[1,0] neg_lo:[0,1] neg_hi:[0,1]")
        e(f"""v_cvt_pk_bf16_f32 v{vt+2}, v{vt+2}, v{vt+2}
v_and_b32 v{vt+2}, 0xffff0000, v{vt+2}
v_rcp_f32 v{vt+2}, v{vt+2}""")
        for k in range(0, 10, 2):
            a, b = vx + k, vx + k + 1
            e(f"""v_cvt_pk_bf16_f32 v{vt}, v{a}, v{b}
v_lshlrev_b32 v{a}, 16, v{vt}
v_and_b32 v{b}, 0xffff0000, v{vt}
v_pk_mul_f32 v[{a}:{b}], v[{a}:{b}], v[{vt+2}:{vt+3}] op_sel_hi:[1,0]""")

    def tree_sum(self, v0, n, width=4, stride=None):
        stride = stride or width
        step = 1
        while step < n:
            for k in range(0, n - step, 2 * step):
                for r in range(0, width, 2):
                    a = v0 + stride * k + r
                    b = v0 + stride * (k + step) + r
                    self.e(f"v_pk_add_f32 v[{a}:{a+1}], v[{a}:{a+1}], v[{b}:{b+1}]")
            step *= 2

    def build(self):
        nt = self.opt("nt", "nt")
        nt = "" if nt == "none" else nt
        e = self.e
        self.o.append(f"; @launch grid=(256,1,1) block=(512,1,1) lds={LDS_BYTES}")
        self.o.append('.amdgcn_target "amdgcn-amd-amdhsa--gfx950"')
        self.o.append(".text")
        self.o.append(f".globl {KN}")
        self.o.append(".p2align 8")
        self.o.append(f".type {KN},@function")
        self.label(KN)
        e("""s_load_dwordx16 s[16:31], s[0:1], 0
s_load_dwordx8 s[32:39], s[0:1], 64
s_memrealtime s[62:63]
s_cmp_ge_u32 s2, 256
s_cbranch_scc1 L_end
s_cmp_ge_u32 s2, 16
s_cbranch_scc1 L_nocp
s_getpc_b64 s[60:61]
v_lshlrev_b32 v6, 6, v0
v_min_u32 v6, (L_codeend-L_nocp-64), v6
global_load_dword v255, v6, s[60:61]
L_nocp:
s_and_b32 s8, s2, 7
s_lshr_b32 s9, s2, 3
s_and_b32 s4, s2, 127
v_lshrrev_b32 v1, 6, v0
v_and_b32 v2, 15, v0
v_readfirstlane_b32 s7, v1
v_and_b32 v1, 63, v0
v_bfe_u32 v3, v0, 4, 2
v_lshlrev_b32 v4, 2, v1
v_lshlrev_b32 v5, 4, v1
s_and_b32 s10, s9, 3
s_lshl_b32 s5, s8, 2
s_add_u32 s5, s5, s10
s_lshr_b32 s6, s9, 2
v_mov_b32 v11, 0""")
        if self.stamps:
            for i in range(76, 100):
                e(f"s_mov_b32 s{i}, 0")
        self.stamp(0)
        e("""s_or_b32 s10, s2, s7
s_cmp_lg_u32 s10, 0
s_cbranch_scc1 L_nomaster
s_waitcnt lgkmcnt(0)
s_mov_b32 s63, s62
s_mul_i32 s62, s62, 0x9e3779b1
s_or_b32 s62, s62, 1
v_mov_b32 v16, s62
v_mov_b32 v17, s63
v_lshlrev_b32 v18, 6, v1
s_mov_b64 exec, 15
global_store_dwordx2 v18, v[16:17], s[36:37] sc1
s_mov_b64 exec, -1
L_nomaster:
s_cmp_ge_u32 s7, 4
s_cbranch_scc1 L_hi""")
        self.commonA(nt)
        self.roleW(nt)
        self.roleKV(nt)
        self.label("L_fin")
        self.stamp_dump()
        self.label("L_end")
        e("s_endpgm")
        self.label("L_codeend")
        self.o.append(f""".section .rodata,"a"
.p2align 6
.amdhsa_kernel {KN}
  .amdhsa_next_free_vgpr 256
  .amdhsa_next_free_sgpr 100
  .amdhsa_accum_offset 256
  .amdhsa_group_segment_fixed_size 0
  .amdhsa_kernarg_size 96
  .amdhsa_user_sgpr_count 2
  .amdhsa_user_sgpr_kernarg_segment_ptr 1
  .amdhsa_system_sgpr_workgroup_id_x 1
.end_amdhsa_kernel""")
        return "\n".join(self.o) + "\n"

    def commonA(self, nt):
        e = self.e
        AB = 133248
        XT, QRED = AB, AB + 10240
        e("""s_mul_i32 s10, s6, 80
s_mul_i32 s11, s7, 20
s_add_u32 s10, s10, s11
s_lshl_b32 s11, s10, 13
s_lshl_b32 s12, s5, 8
s_add_u32 s11, s11, s12
v_lshlrev_b32 v6, 13, v3
v_lshl_add_u32 v6, v2, 4, v6
v_add_u32 v6, s11, v6
s_waitcnt lgkmcnt(0)""")
        for k in range(5):
            e(f"global_load_dword v{76+k}, v4, s[16:17] offset:{256*k}")
        for t in range(5):
            e(f"global_load_dwordx4 v[{16+4*t}:{19+4*t}], v6, s[20:21] {nt}")
            if t < 4:
                e("v_add_u32 v6, 0x8000, v6")
        self.srd(40, 38, WS_RECORDS)
        self.srd(56, 36, 256)
        self.masks(68, 2, 92, False)
        e(f"""s_mul_i32 s14, s7, 2560
s_add_u32 s14, s14, {XT}
v_lshlrev_b32 v8, 3, v1
v_add_u32 v8, s14, v8
s_lshl_b32 s15, s10, 2
s_add_u32 s15, s15, s14
v_lshl_add_u32 v9, v3, 2, s15
v_lshlrev_b32 v10, 5, v2
v_lshl_add_u32 v10, v3, 4, v10
s_lshl_b32 s14, s7, 9
s_add_u32 s14, s14, {QRED}
v_add_u32 v10, s14, v10
v_mov_b32 v227, {NB}
v_add_u32 v7, {QRED}, v5
s_lshl_b32 s68, s5, 12
s_add_u32 s68, s68, {Q1}
s_lshl_b32 s69, s6, 9
s_add_u32 s69, s69, s68
s_waitcnt vmcnt(5)""")
        for k in range(5):
            e(f"v_lshlrev_b32 v{82+2*k}, 16, v{76+k}\nv_and_b32 v{83+2*k}, 0xffff0000, v{76+k}")
        self.layernorm(82, 92, 62, 63)
        for k in range(5):
            e(f"""v_cvt_pk_bf16_f32 v{92+2*(k%2)}, v{82+2*k}, v{82+2*k}
v_cvt_pk_bf16_f32 v{93+2*(k%2)}, v{83+2*k}, v{83+2*k}
ds_write_b64 v8, v[{92+2*(k%2)}:{93+2*(k%2)}] offset:{512*k}""")
        e("s_waitcnt lgkmcnt(0)")
        for t in range(5):
            e(f"ds_read_b32 v{82+t}, v9 offset:{16*t}")
        e("s_waitcnt lgkmcnt(0)")
        for t in range(5):
            for r in range(4):
                e(f"v_and_b32 v{96+4*t+r}, v{82+t}, v{68+r}")
        ln = self.newlabel("a_nn")
        e(f"s_cmp_lg_u32 s7, 0\ns_cbranch_scc1 {ln}")
        self.wait_nonce(90)
        e(f"v_mov_b32 v90, s65\nds_write_b32 v227, v90 offset:{NON}")
        self.label(ln)
        for t in range(5):
            c = "0" if t == 0 else "v[116:119]"
            e(f"s_waitcnt vmcnt({4-t})")
            e(f"v_mfma_f32_16x16x32_bf16 v[116:119], v[{96+4*t}:{99+4*t}], v[{16+4*t}:{19+4*t}], {c}")
        self.stamp(1)
        e("s_nop 2")
        e(f"""s_nop 4
s_mov_b32 exec_hi, 0
ds_write_b128 v10, v[116:119]
s_mov_b64 exec, -1
s_waitcnt lgkmcnt(0)
s_barrier""")
        self.stamp(2)
        e("s_cmp_lg_u32 s7, 0\ns_cbranch_scc1 L_lo123")
        for wv in range(4):
            e(f"ds_read_b128 v[{120+4*wv}:{123+4*wv}], v7 offset:{512*wv}")
        self.set_tags()
        e("s_waitcnt lgkmcnt(0)")
        self.tree_sum(120, 4)
        self.tag4(120)
        e("""s_mov_b32 exec_hi, 0
buffer_store_dwordx4 v[120:123], v5, s[40:43], s69 offen
s_mov_b64 exec, -1
s_mov_b32 s73, s69
s_cmp_ge_u32 s9, 16
s_cbranch_scc1 L_kv_w0""")

    def get_nonce_lds(self, vt):
        self.e(f"""ds_read_b32 v{vt}, v227 offset:{NON}
s_waitcnt lgkmcnt(0)
v_readfirstlane_b32 s65, v{vt}""")
        self.set_tags()

    def roleW(self, nt):
        e = self.e
        QBF, QAL, CLX, RED, RED2 = 24576, 24832, 25600, 26624, 28672
        e("""v_and_b32 v8, 31, v1
v_lshlrev_b32 v8, 3, v8
v_lshrrev_b32 v9, 5, v1
v_lshl_add_u32 v8, v9, 2, v8""")

        def restore_q1():
            e("""s_mov_b32 exec_hi, 0
buffer_store_dwordx4 v[120:123], v5, s[40:43], s73 offen sc1
s_mov_b64 exec, -1""")
        self.restore_q1 = restore_q1
        self.poll([(f"buffer_load_dwordx4 v[{124+4*k}:{127+4*k}], v5, s[40:43], s68 offen offset:{1024*k} sc1", 124 + 4 * k, 4) for k in range(4)], 'tag', 90, restore=restore_q1)
        self.stamp(3)
        self.tree_sum(124, 4)
        e(f"""s_nop 0
v_permlane32_swap_b32 v124, v126
v_permlane32_swap_b32 v125, v127
s_nop 0
v_pk_add_f32 v[124:125], v[124:125], v[126:127]
v_cvt_pk_bf16_f32 v124, v124, v125
ds_write_b32 v8, v124 offset:{QBF}
ds_write_b32 v11, v11 offset:{QAL + 268}
ds_write_b32 v11, v11 offset:{QAL + 284}
s_waitcnt lgkmcnt(0)
s_barrier""")
        e(f"""v_lshrrev_b32 v8, 1, v1
v_and_b32 v9, 1, v1
v_cmp_gt_u32 vcc, 8, v8
v_lshlrev_b32 v128, 5, v8
v_mul_u32_u24 v129, 96, v8
v_add_u32 v129, {-768+12 & 0xffffffff:#x}, v129
v_cndmask_b32 v128, v129, v128, vcc
v_lshl_add_u32 v128, v9, 4, v128
v_mov_b32 v129, 32
v_cndmask_b32 v130, v129, 4, vcc
v_add_u32 v129, v128, v130
v_add_u32 v130, v129, v130
v_lshlrev_b32 v8, 10, v8
v_lshl_add_u32 v8, v9, 4, v8
s_lshr_b32 s10, s5, 4
s_mul_i32 s10, s10, {22*1024}
s_lshr_b32 s11, s6, 1
s_mul_i32 s11, s11, {11*1024}
s_add_u32 s10, s10, s11
s_and_b32 s11, s5, 15
s_lshl_b32 s11, s11, 6
s_add_u32 s10, s10, s11
s_and_b32 s11, s6, 1
s_lshl_b32 s11, s11, 5
s_add_u32 s10, s10, s11
s_add_u32 s10, s10, {QA}
v_mov_b32 v127, s67
v_mov_b32 v90, s65""")
        self.sig_prep(0, 70)
        if self.opt("sig0_early", 1):
            self.sig_send(70, 90, 11)
        e(f"""s_mov_b32 exec_lo, 0x3fffff
s_mov_b32 exec_hi, 0
s_barrier
ds_read_b32 v124, v128 offset:{QAL}
ds_read_b32 v125, v129 offset:{QAL}
ds_read_b32 v126, v130 offset:{QAL}
s_waitcnt lgkmcnt(0)
buffer_store_dwordx4 v[124:127], v8, s[40:43], s10 offen sc1
s_mov_b64 exec, -1""")
        if not self.opt("sig0_early", 1):
            self.sig_send(70, 90, 11)
        self.stamp(4)
        self.dbgtime(4, 0)
        self.dbgtime(5, 77)
        e("s_branch L_w_join")
        self.label("L_lo123")
        e("s_cmp_ge_u32 s9, 16\ns_cbranch_scc1 L_kv_lo")
        self.get_nonce_lds(90)
        e("s_barrier\ns_barrier\ns_branch L_w_join")
        self.label("L_hi")
        e(f"""s_lshr_b32 s13, s6, 1
s_lshl_b32 s13, s13, 8
s_and_b32 s14, s6, 1
s_lshl_b32 s14, s14, 4
s_add_u32 s13, s13, s14
s_sub_u32 s14, s7, 4
s_lshl_b32 s14, s14, 6
s_add_u32 s13, s13, s14
s_lshl_b32 s13, s13, 13
s_lshl_b32 s12, s5, 8
s_add_u32 s13, s13, s12
v_xor_b32 v7, v2, v3
v_lshlrev_b32 v7, 4, v7
v_lshl_add_u32 v7, v3, 13, v7
v_mov_b32 v227, {NB}
s_waitcnt lgkmcnt(0)""")
        self.srd(56, 36, 256)
        self.srd(40, 38, WS_RECORDS)
        e("s_cmp_ge_u32 s9, 16\ns_cbranch_scc1 L_kv_hi")
        lpw = self.newlabel("w_pw")
        e(f"""s_cmp_lg_u32 s7, 4
s_cbranch_scc1 {lpw}
s_lshl_b32 s68, s5, 12
s_add_u32 s68, s68, {Q1}
v_lshlrev_b32 v8, 6, v1
buffer_load_dword v91, v8, s[40:43], s68 offen sc1""")
        self.label(lpw)
        ntk = self.opt("nt_wuk", nt)
        if ntk == "none":
            ntk = ""
        if self.opt("sl_wuk", 1):
            e(f"s_sleep {self.opt('sl_wuk', 1)}")
        WKL = 32768
        self.srd(52, 22, 4194304)
        e(f"""s_sub_u32 s14, s7, 4
s_lshl_b32 s14, s14, 13
s_add_u32 s14, s14, {WKL}
v_lshlrev_b32 v6, 8, v2
v_add_u32 v6, s14, v6""")
        for k in range(8):
            e(f"""s_mov_b32 m0, s14
v_xor_b32 v8, {64*(k&3)}, v7
buffer_load_dwordx4 v8, s[52:55], s13 offen {ntk} lds
s_add_u32 s14, s14, 1024
s_add_u32 s13, s13, {32768 if k != 3 else 32768 + 16*8192}""")
        for t in range(4):
            e(f"""v_or_b32 v8, {4*t}, v3
v_xor_b32 v8, v8, v2
v_lshl_add_u32 v{100+t}, v8, 4, v6""")
        e(f"""v_lshlrev_b32 v9, 4, v3
s_sub_u32 s14, s7, 4
s_lshl_b32 s14, s14, 6
v_lshl_add_u32 v8, v3, 3, s14
s_barrier""")
        self.get_nonce_lds(90)
        e("s_waitcnt vmcnt(0)")
        self.stamp(1)
        for t in range(4):
            e(f"ds_read_b128 v[{36+4*t}:{39+4*t}], v{100+t}\nds_read_b128 v[{52+4*t}:{55+4*t}], v{100+t} offset:4096")
        e("s_waitcnt lgkmcnt(0)\ns_barrier")
        for t in range(4):
            e(f"ds_read_b128 v[{120+4*t}:{123+4*t}], v9 offset:{QBF + 64*t}")
        for t in range(4):
            c0 = "0" if t == 0 else "v[116:119]"
            c1 = "0" if t == 0 else "v[136:139]"
            e(f"s_waitcnt lgkmcnt({3-t})")
            e(f"v_mfma_f32_16x16x32_bf16 v[116:119], v[{36+4*t}:{39+4*t}], v[{120+4*t}:{123+4*t}], {c0}")
            e(f"v_mfma_f32_16x16x32_bf16 v[136:139], v[{52+4*t}:{55+4*t}], v[{120+4*t}:{123+4*t}], {c1}")
        e(f"""s_nop 6
v_cvt_pk_bf16_f32 v140, v116, v117
v_cvt_pk_bf16_f32 v141, v118, v119
v_cvt_pk_bf16_f32 v142, v136, v137
v_cvt_pk_bf16_f32 v143, v138, v139
ds_write_b64 v8, v[140:141] offset:{QAL}
ds_write_b64 v8, v[142:143] offset:{QAL + 32}
s_waitcnt lgkmcnt(0)
s_barrier""")
        self.label("L_w_join")
        self.masks(72, 2, 92, True)
        if self.opt("sl_de", 0):
            e(f"s_sleep {self.opt('sl_de', 0)}")
        nto = self.opt("nt_wo", nt)
        e("""s_lshr_b32 s10, s6, 1
s_and_b32 s11, s6, 1
v_lshrrev_b32 v6, 3, v2
v_lshl_add_u32 v6, v6, 2, v3
v_lshlrev_b32 v7, 4, v6
v_lshlrev_b32 v6, 13, v6
v_and_b32 v8, 7, v2
v_lshl_add_u32 v6, v8, 4, v6
s_lshl_b32 s12, s10, 8
s_lshl_b32 s13, s7, 5
s_add_u32 s12, s12, s13
s_lshl_b32 s12, s12, 13
s_lshl_b32 s13, s5, 8
s_add_u32 s12, s12, s13
s_lshl_b32 s13, s11, 7
s_add_u32 s12, s12, s13
v_add_u32 v6, s12, v6""")
        for t in range(4):
            e(f"global_load_dwordx4 v[{16+4*t}:{19+4*t}], v6, s[24:25] {nt}")
            if t < 3:
                e("v_add_u32 v6, 0x10000, v6")
        lwo = self.newlabel("w_nowo")
        e(f"""s_cmp_ge_u32 s7, 4
s_cbranch_scc1 {lwo}
v_mul_u32_u24 v6, 5120, v3
v_lshl_add_u32 v6, v2, 4, v6
s_lshl_b32 s12, s5, 7
s_lshl_b32 s13, s11, 6
s_add_u32 s12, s12, s13
s_lshl_b32 s13, s7, 4
s_add_u32 s12, s12, s13
s_mul_i32 s12, s12, 1280
v_add_u32 v6, s12, v6""")
        for t in range(4):
            for b in range(5):
                r = 160 + (t * 5 + b) * 4
                e(f"global_load_dwordx4 v[{r}:{r+3}], v6, s[26:27] offset:{1280*(t%2) + 256*b} {nto}")
            if t == 1:
                e("v_add_u32 v6, 2560, v6")
        lfp = self.newlabel("w_fgp")
        e(f"s_branch {lfp}")
        self.label(lwo)
        if self.opt("pf_fg", 0):
            pol = self.opt("pf_pol", "none").replace("none", "")
            e(f"""s_lshr_b32 s12, s9, 2
s_lshl_b32 s12, s12, 3
s_add_u32 s12, s12, s8
s_cmp_ge_u32 s12, 27
s_cbranch_scc1 {lfp}
s_and_b32 s13, s9, 3
s_sub_u32 s14, s7, 4
s_mul_i32 s14, s14, 40
v_add_u32 v6, s14, v1
s_lshl_b32 s15, s12, 2
s_add_u32 s15, s15, s13
s_mul_i32 s15, s15, 20480
v_lshlrev_b32 v8, 7, v6
v_add_u32 v8, s15, v8
s_mul_i32 s13, s13, 160
v_add_u32 v6, s13, v6
v_mul_u32_u24 v6, 3456, v6
s_lshl_b32 s12, s12, 7
v_add_u32 v6, s12, v6
s_mov_b32 exec_hi, 0xff
global_load_dword v160, v8, s[32:33] {pol}
global_load_dword v161, v6, s[30:31] {pol}
s_mov_b64 exec, -1""")
        self.label(lfp)
        e(f"""v_and_b32 v8, 1, v3
v_lshlrev_b32 v8, 1, v8
v_lshrrev_b32 v9, 1, v3
v_or_b32 v8, v8, v9
v_and_b32 v9, 1, v1
v_lshl_add_u32 v8, v9, 2, v8
v_bfe_u32 v9, v1, 1, 2
v_lshl_add_u32 v8, v8, 2, v9
v_lshlrev_b32 v8, 2, v8
s_lshl_b32 s12, s7, 7
v_add_u32 v8, s12, v8
v_add_u32 v7, s12, v7
v_lshrrev_b32 v9, 3, v1
v_lshlrev_b32 v10, 4, v9
v_lshlrev_b32 v9, 9, v9
v_and_b32 v6, 7, v1
v_lshl_add_u32 v9, v6, 4, v9
s_lshl_b32 s12, s5, 2
s_lshl_b32 s13, s10, 1
s_add_u32 s12, s12, s13
s_lshr_b32 s13, s7, 2
s_add_u32 s12, s12, s13
s_lshl_b32 s12, s12, 14
s_and_b32 s13, s7, 3
s_lshl_b32 s13, s13, 7
s_add_u32 s12, s12, s13
s_add_u32 s12, s12, {OB}
s_add_u32 s13, s12, 4096
s_add_u32 s14, s12, 8192
s_add_u32 s15, s12, 12288
s_lshl_b32 s68, s5, 9
s_add_u32 s68, s68, {OS}
v_and_b32 v36, 7, v2
v_lshlrev_b32 v36, 5, v36
v_lshl_add_u32 v36, v3, 4, v36
s_lshl_b32 s61, s7, 8
v_add_u32 v36, s61, v36
s_lshl_b32 s61, s7, 6
v_lshl_add_u32 v37, v3, 4, s61
v_lshlrev_b32 v38, 5, v2
v_lshl_add_u32 v38, v3, 4, v38
s_mul_i32 s61, s7, 2560
v_add_u32 v38, s61, v38
v_subrev_u32 v39, 256, v0
v_lshrrev_b32 v40, 3, v39
v_lshlrev_b32 v40, 11, v40
v_and_b32 v41, 7, v39
v_lshl_add_u32 v40, v41, 4, v40
v_lshlrev_b32 v41, 4, v39
s_mul_i32 s69, s8, {20*2048}
s_lshl_b32 s61, s9, 7
s_add_u32 s69, s69, s61
s_add_u32 s69, s69, {EL}
s_and_b32 s61, s4, 0x67
v_mov_b32 v42, s65
s_mov_b32 s62, {LOG2E:#x}""")
        self.sig_prep(1, 70, "s61")
        self.sig_prep(2, 71)
        self.sig_prep(3, 72)
        e("s_waitcnt vmcnt(0)")
        self.stamp(5)
        lrq = self.newlabel("w_rq")
        lpe = self.newlabel("w_pe")
        e(f"""s_cmp_lg_u32 s7, 0
s_cbranch_scc1 {lrq}
s_mov_b32 exec_hi, 0
buffer_store_dwordx4 v[120:123], v5, s[40:43], s73 offen sc1
s_mov_b64 exec, -1""")
        self.label(lrq)
        e(f"""s_sub_u32 s61, s7, 4
s_lshl_b32 s61, s61, 4
s_add_u32 s61, s61, s9
s_cmp_ge_u32 s61, 20
s_cbranch_scc1 {lpe}
s_mul_i32 s63, s8, 20
s_add_u32 s63, s63, s61
s_lshl_b32 s63, s63, 11
s_add_u32 s63, s63, {EL}
v_lshlrev_b32 v44, 5, v1
buffer_load_dword v45, v44, s[40:43], s63 offen sc1""")
        self.label(lpe)
        self.sig_wait(71, 44, 11, self.opt("sl_h3", 44))
        self.stamp(6)
        loads = [(f"buffer_load_dwordx4 v[{48+4*k}:{51+4*k}], v10, s[40:43], s68 offen offset:{128*k} sc1", 48 + 4 * k, 4) for k in range(4)]
        loads += [(f"buffer_load_dwordx4 v[{120+4*k}:{123+4*k}], v9, s[40:43], s{12+k} offen sc1", 120 + 4 * k, 4) for k in range(4)]
        self.poll(loads, 'tag', 44)
        self.stamp(7)
        for k in range(4):
            e(f"v_and_b32 v{48+4*k}, s64, v{48+4*k}")
        e(f"""v_max3_f32 v44, v48, v52, v56
v_max_f32 v44, v44, v60
s_nop 1
v_max_f32_dpp v44, v44, v44 row_ror:8 row_mask:0xf bank_mask:0xf
s_nop 0
v_mov_b32 v45, v44
s_nop 1
v_permlane16_swap_b32 v44, v45
s_nop 0
v_max_f32 v44, v44, v45
v_mov_b32 v45, v44
s_nop 1
v_permlane32_swap_b32 v44, v45
s_nop 0
v_max_f32 v44, v44, v45
v_mul_f32 v44, s62, v44""")
        for k in range(4):
            e(f"v_fma_f32 v{48+4*k}, v{48+4*k}, s62, -v44")
        for k in range(4):
            e(f"v_exp_f32 v{48+4*k}, v{48+4*k}")
        e("s_nop 0\nv_mul_f32 v46, v48, v49")
        for k in range(1, 4):
            e(f"v_fmac_f32 v46, v{48+4*k}, v{49+4*k}")
        for r in (0, 2):
            e(f"v_pk_mul_f32 v[{120+r}:{121+r}], v[{120+r}:{121+r}], v[48:49] op_sel_hi:[1,0]")
        e("v_add_f32_dpp v46, v46, v46 row_ror:8 row_mask:0xf bank_mask:0xf")
        for k in range(1, 4):
            for r in (0, 2):
                e(f"v_pk_fma_f32 v[{120+r}:{121+r}], v[{120+4*k+r}:{121+4*k+r}], v[{48+4*k}:{49+4*k}], v[{120+r}:{121+r}] op_sel_hi:[1,0,1]")
            if k == 1:
                e("v_mov_b32 v45, v46")
            if k == 2:
                e("v_permlane16_swap_b32 v46, v45")
        e(f"""v_add_f32 v46, v46, v45
v_permlane32_swap_b32 v120, v121
v_mov_b32 v45, v46
v_permlane32_swap_b32 v122, v123
v_add_f32 v120, v120, v121
v_permlane32_swap_b32 v46, v45
v_add_f32 v122, v122, v123
v_add_f32 v46, v46, v45
s_nop 0
v_permlane16_swap_b32 v120, v122
v_rcp_f32 v46, v46
v_add_f32 v120, v120, v122
s_nop 1
v_add_f32_dpp v120, v120, v120 row_ror:8 row_mask:0xf bank_mask:0xf
s_nop 0
v_mul_f32 v120, v120, v46
v_cvt_pk_bf16_f32 v120, v120, v120
ds_write_b32 v8, v120 offset:{CLX}
s_waitcnt lgkmcnt(0)
ds_read_b128 v[120:123], v7 offset:{CLX}
s_waitcnt lgkmcnt(0)""")
        for t in range(4):
            for r in range(4):
                e(f"v_and_b32 v{96+4*t+r}, v{120+t}, v{72+r}")
            if t > 0:
                c = "0" if t == 1 else "v[116:119]"
                e(f"v_mfma_f32_16x16x32_bf16 v[116:119], v[{96+4*(t-1)}:{99+4*(t-1)}], v[{16+4*(t-1)}:{19+4*(t-1)}], {c}")
        e("s_nop 0\nv_mfma_f32_16x16x32_bf16 v[116:119], v[108:111], v[28:31], v[116:119]\ns_nop 7")
        for r in range(4):
            e(f"v_mov_b32 v{124+r}, v{116+r}")
        for r in range(4):
            e(f"v_permlane32_swap_b32 v{116+r}, v{124+r}")
        for r in range(4):
            e(f"v_add_f32_dpp v{116+r}, v{124+r}, v{116+r} row_ror:8 row_mask:0xf bank_mask:0xf")
        e(f"""s_mov_b32 exec_lo, 0x00ff00ff
s_mov_b32 exec_hi, 0
ds_write_b128 v36, v[116:119] offset:{RED}
s_mov_b64 exec, -1
s_waitcnt lgkmcnt(0)
s_barrier""")
        lhi = self.newlabel("w_hi")
        e(f"s_cmp_ge_u32 s7, 4\ns_cbranch_scc1 {lhi}")
        for p in range(8):
            e(f"ds_read_b128 v[{120+4*p}:{123+4*p}], v37 offset:{RED + 256*p}")
        e("s_waitcnt lgkmcnt(0)")
        self.tree_sum(120, 8)
        for t in range(4):
            e(f"v_cvt_pk_bf16_f32 v{124+t}, v{120+t}, v{120+t}")
        for t in range(4):
            for r in range(4):
                e(f"v_and_b32 v{96+4*t+r}, v{124+t}, v{68+r}")
            e("s_nop 1")
            for b in range(5):
                r = 160 + (t * 5 + b) * 4
                c = "0" if t == 0 else f"v[{136+4*b}:{139+4*b}]"
                e(f"v_mfma_f32_16x16x32_bf16 v[{136+4*b}:{139+4*b}], v[{96+4*t}:{99+4*t}], v[{r}:{r+3}], {c}")
        e("s_mov_b32 exec_hi, 0\ns_nop 3")
        for b in range(5):
            if b == 4:
                e("s_nop 3")
            e(f"ds_write_b128 v38, v[{136+4*b}:{139+4*b}] offset:{RED2 + 512*b}")
        e("s_mov_b64 exec, -1\ns_waitcnt lgkmcnt(0)\ns_barrier")
        self.stamp(8)
        self.dbgtime(8, 5)
        e("""s_cmp_ge_u32 s4, 40
s_cbranch_scc1 L_fin
s_cmp_lg_u32 s7, 0
s_cbranch_scc1 L_fin""")
        self.colidx(8, 9)
        self.srd(44, 16, 1280)
        self.srd(52, 34, 1280)
        e(f"""s_lshl_b32 s12, s4, 5
v_lshlrev_b32 v9, 1, v8
buffer_load_ushort v50, v9, s[44:47], s12 offen
s_mul_i32 s12, s4, 7168
s_add_u32 s12, s12, {FB}
s_add_u32 s13, s12, 4096
v_cmp_gt_u32 vcc, 48, v1
v_add_u32 v10, 1024, v5
s_nop 0
v_cndmask_b32 v10, v5, v10, vcc
v_bfe_u32 v51, v1, 2, 3
v_mul_u32_u24 v51, 2560, v51
v_and_b32 v52, 3, v1
v_lshl_add_u32 v51, v52, 4, v51
s_lshl_b32 s14, s4, 6
s_add_u32 s14, s14, {XB}""")
        self.sig_prep(4, 70)
        self.sig_wait(72, 16, 11, self.opt("sl_h5", 8) + 8)
        self.poll([("buffer_load_dwordx4 v[44:47], v51, s[40:43], s14 offen sc1", 44, 4)], 'tag', 53)
        e("v_cmp_gt_u32 vcc, 32, v1\ns_nop 1")
        for r in range(4):
            e(f"v_cndmask_b32 v{44+r}, 0, v{44+r}, vcc")
        self.reduce16(44, 1)
        e(f"""v_cvt_pk_bf16_f32 v44, v44, v44
v_and_b32 v44, 0xffff0000, v44
v_lshlrev_b32 v50, 16, v50
v_add_f32 v44, v44, v50
v_cvt_pk_bf16_f32 v44, v44, v44
v_and_b32 v44, 0xffff0000, v44
s_lshl_b32 s15, s4, 5
s_mov_b32 s62, 0x000f000f
s_mov_b32 s63, 0x000f000f
v_cmp_gt_u32 s[68:69], 48, v1""")
        self.sig_wait(70, 16, 11, self.opt("sl_h6", 8))
        loads = [(f"buffer_load_dwordx4 v[{16+4*k}:{19+4*k}], v5, s[40:43], s{12 + k//4} offen offset:{1024*(k%4)} sc1", 16 + 4 * k, 4) for k in range(6)]
        loads += [("buffer_load_dwordx4 v[40:43], v10, s[40:43], s13 offen offset:1024 sc1", 40, 4)]
        self.poll(loads, 'tag', 53)
        self.stamp(9)
        for r in range(4):
            e(f"v_cndmask_b32 v{40+r}, 0, v{40+r}, s[68:69]")
        self.reduce16(16, 7)
        e(f"""s_nop 0
v_cvt_pk_bf16_f32 v16, v16, v16
v_and_b32 v16, 0xffff0000, v16
v_add_f32 v16, v16, v44
v_cvt_pk_bf16_f32 v16, v16, v16
s_mov_b64 exec, s[62:63]
buffer_store_short v16, v9, s[52:55], s15 offen
s_mov_b64 exec, -1""")
        self.stamp(10)
        if self.opt("pad", 0):
            lp = self.newlabel("pad")
            e("s_load_dword s12, s[36:37], 4 glc\ns_waitcnt lgkmcnt(0)")
            self.label(lp)
            e(f"""s_memrealtime s[10:11]
s_waitcnt lgkmcnt(0)
s_sub_u32 s10, s10, s12
s_cmp_lt_u32 s10, {self.opt("pad", 0)}
s_cbranch_scc1 {lp}""")
        self.dbgtime(2, 0)
        self.dbgtime(3, 39)
        e("s_branch L_fin")
        self.label(lhi)
        e(f"""s_sub_u32 s10, s7, 4
s_lshl_b32 s10, s10, 4
s_add_u32 s10, s10, s9
s_mul_i32 s12, s8, 20
s_add_u32 s12, s12, s10
s_lshl_b32 s12, s12, 11
s_add_u32 s12, s12, {EL}
s_mul_i32 s13, s8, 2560
s_lshl_b32 s14, s10, 7
s_add_u32 s13, s13, s14
s_add_u32 s13, s13, {XB}
v_cmp_gt_u32 vcc, 160, v39
s_and_saveexec_b64 s[62:63], vcc
s_barrier
s_cbranch_execz L_fin""")
        for wv in range(4):
            e(f"ds_read_b128 v[{120+4*wv}:{123+4*wv}], v41 offset:{RED2 + 2560*wv}")
        e("s_waitcnt lgkmcnt(0)")
        self.tree_sum(120, 4)
        self.tag4(120)
        e("buffer_store_dwordx4 v[120:123], v40, s[40:43], s69 offen")
        self.stamp(8)

        def restore_el():
            e("buffer_store_dwordx4 v[120:123], v40, s[40:43], s69 offen sc1")
        lnr = self.newlabel("w_nored")
        e(f"s_cmp_ge_u32 s10, 20\ns_cbranch_scc1 {lnr}")
        self.poll([(f"buffer_load_dwordx4 v[{124+4*k}:{127+4*k}], v5, s[40:43], s12 offen offset:{1024*k} sc1", 124 + 4 * k, 4) for k in range(2)], 'tag', 44, restore=restore_el)
        self.stamp(9)
        lns = self.newlabel("w_nosig")
        e(f"s_cmp_lg_u32 s7, 4\ns_cbranch_scc1 {lns}")
        self.sig_send(72, 42, 11)
        self.label(lns)
        self.tree_sum(124, 2)
        e("s_nop 0")
        for r in range(4):
            e(f"v_add_f32_dpp v{124+r}, v{124+r}, v{124+r} row_ror:8 row_mask:0xf bank_mask:0xf")
        for r in range(4):
            e(f"v_mov_b32 v{128+r}, v{124+r}")
        for r in range(4):
            e(f"v_permlane16_swap_b32 v{124+r}, v{128+r}")
        self.tree_sum(124, 2)
        for r in range(4):
            e(f"v_mov_b32 v{128+r}, v{124+r}")
        for r in range(4):
            e(f"v_permlane32_swap_b32 v{124+r}, v{128+r}")
        self.tree_sum(124, 2)
        self.tag4(124)
        e("""s_mov_b64 exec, 0xff
buffer_store_dwordx4 v[124:127], v5, s[40:43], s13 offen sc1
s_mov_b64 exec, -1""")
        self.stamp(10)
        self.label(lnr)
        e(f"s_sleep {self.opt('sl_el', 64)}")
        restore_el()
        e("s_branch L_fin")

    def colidx(self, vd, vt):
        self.e(f"""v_and_b32 v{vd}, 1, v3
v_lshlrev_b32 v{vd}, 1, v{vd}
v_lshrrev_b32 v{vt}, 1, v3
v_or_b32 v{vd}, v{vd}, v{vt}
v_and_b32 v{vt}, 3, v1
v_lshl_add_u32 v{vd}, v{vt}, 2, v{vd}""")

    def reduce16(self, v0, n):
        e = self.e
        self.tree_sum(v0, n)
        a = v0
        e(f"""s_nop 1
v_permlane32_swap_b32 v{a}, v{a+1}
v_permlane32_swap_b32 v{a+2}, v{a+3}
s_nop 0
v_add_f32 v{a}, v{a}, v{a+1}
v_add_f32 v{a+2}, v{a+2}, v{a+3}
s_nop 1
v_permlane16_swap_b32 v{a}, v{a+2}
s_nop 0
v_add_f32 v{a}, v{a}, v{a+2}
s_nop 1
v_add_f32_dpp v{a}, v{a}, v{a} row_ror:8 row_mask:0xf bank_mask:0xf
s_nop 1
v_add_f32_dpp v{a}, v{a}, v{a} row_ror:4 row_mask:0xf bank_mask:0xf""")

    def acc(self, k):
        return 168 + 4 * k if k < 11 else 64 + 4 * (k - 11)

    def roleKV(self, nt):
        e = self.e
        RT, BT, QL, XCH, PL, SL = 0, 67584, 4096, 49152, 4096, 64
        W1L, HN, HF = 24576, 45056, 50176

        def ids():
            e(f"""s_bfe_u32 s10, s9, 0x20002
s_lshl_b32 s5, s8, 2
s_add_u32 s5, s5, s10
s_and_b32 s6, s9, 3""")
            self.srd(44, 18, 8388608)
            e(f"""s_lshl_b32 s10, s5, 3
s_lshl_b32 s11, s6, 1
s_add_u32 s10, s10, s11
s_mul_i32 s68, s10, {2*PMSG}
s_add_u32 s68, s68, {PB}
s_lshl_b32 s69, s5, 7
s_add_u32 s69, s69, {RDY}""")

        def rows(done):
            e(f"""s_sub_u32 s15, s7, 1
s_lshl_b32 s12, s5, 8
s_lshl_b32 s13, s6, 6
s_add_u32 s12, s12, s13
s_add_u32 s12, s12, s15
s_lshl_b32 s12, s12, 10
s_mul_i32 s14, s15, 1040
s_add_u32 s14, s14, {RT}""")
            for k in range(11):
                if k == 10:
                    e(f"s_cmp_ge_u32 s15, 4\ns_cbranch_scc1 {done}")
                e(f"""s_mov_b32 m0, s14
s_add_u32 s14, s14, {6*1040}
buffer_load_dwordx4 v5, s[44:47], s12 offen {nt} lds
s_add_u32 s12, s12, {6*1024}""")
        lj = "L_kv_join"
        self.label("L_kv_w0")
        ids()
        e(f"s_branch {lj}")
        self.label("L_kv_lo")
        ids()
        rows(lj)
        e(f"s_branch {lj}")
        self.label("L_kv_hi")
        ids()
        l7 = self.newlabel("kv_w7")
        lrd = self.newlabel("kv_rowsd")
        e(f"s_cmp_eq_u32 s7, 7\ns_cbranch_scc1 {l7}")
        if self.opt("sl_ckv", 28):
            e(f"s_sleep {self.opt('sl_ckv', 28)}")
        rows(lrd)
        self.label(lrd)
        e(f"s_barrier\ns_branch {lj}")
        self.label(l7)
        e("""v_mov_b32 v20, -1
v_mov_b32 v21, -1
v_mov_b32 v22, -1
v_mov_b32 v23, -1
buffer_store_dwordx4 v[20:23], v5, s[40:43], s68 offen sc1
buffer_store_dwordx4 v[20:23], v5, s[40:43], s68 offen offset:1024 sc1
buffer_store_dwordx4 v[20:23], v5, s[40:43], s68 offen offset:2048 sc1
buffer_store_dwordx4 v[20:23], v5, s[40:43], s68 offen offset:3072 sc1
buffer_store_dwordx4 v[20:23], v5, s[40:43], s68 offen offset:3584 sc1""")
        e(f"""ds_write_b32 v227, v11 offset:{FLG}
ds_write_b32 v227, v11 offset:{FLG+4}
s_waitcnt lgkmcnt(0)
s_barrier
ds_read_b32 v60, v227 offset:{NON}
s_lshl_b32 s12, s6, 4
s_add_u32 s12, s12, s69
s_waitcnt vmcnt(0) lgkmcnt(0)
s_getreg_b32 s13, hwreg(HW_REG_XCC_ID)
v_mov_b32 v61, s13
v_mov_b32 v62, v60
v_mov_b32 v63, v60
s_mov_b64 exec, 1
buffer_store_dwordx4 v[60:63], v11, s[40:43], s12 offen sc1
s_mov_b64 exec, -1
v_readfirstlane_b32 s65, v60
s_mov_b32 s60, 0""")
        lr = self.newlabel("kv_rdy")
        lrdn = self.newlabel("kv_rdyd")
        self.label(lr)
        e(f"""s_load_dwordx16 s[76:91], s[38:39], s69 glc
s_add_u32 s60, s60, 1
s_cmp_ge_u32 s60, {SPIN_LIMIT}
s_cbranch_scc1 {lrdn}
s_waitcnt lgkmcnt(0)
s_xor_b32 s76, s76, s65
s_xor_b32 s80, s80, s65
s_xor_b32 s84, s84, s65
s_xor_b32 s88, s88, s65
s_or_b32 s76, s76, s80
s_or_b32 s84, s84, s88
s_or_b32 s76, s76, s84
s_cbranch_scc1 {lr}""")
        self.label(lrdn)
        e(f"""s_waitcnt lgkmcnt(0)
s_xor_b32 s77, s77, s13
s_xor_b32 s81, s81, s13
s_xor_b32 s85, s85, s13
s_xor_b32 s89, s89, s13
s_or_b32 s77, s77, s81
s_or_b32 s85, s85, s89
s_or_b32 s77, s77, s85
v_mov_b32 v8, s77
ds_write_b32 v227, v8 offset:8
s_mul_i32 s12, s5, {16*PMSG}
s_add_u32 s12, s12, {PB}
v_mul_u32_u24 v8, 96, v1
buffer_load_dword v250, v8, s[40:43], s12 offen sc1
s_add_u32 s12, s12, 6144
buffer_load_dword v251, v8, s[40:43], s12 offen sc1
s_add_u32 s12, s12, 6144
buffer_load_dword v252, v8, s[40:43], s12 offen sc1
s_waitcnt lgkmcnt(0)""")
        self.label(lj)
        e(f"""s_lshr_b32 s10, s7, 2
s_lshl_b32 s10, s10, 9
s_bfe_u32 s11, s7, 0x10001
s_mul_i32 s11, s11, {32*1040}
s_add_u32 s10, s10, s11
s_add_u32 s10, s10, {RT}
v_mul_u32_u24 v231, 1040, v2
v_lshl_add_u32 v231, v3, 4, v231
v_add_u32 v231, s10, v231""")
        e(f"""s_lshl_b32 s48, s7, 10
s_add_u32 s49, s48, {QA}
s_add_u32 s48, s48, {QL}
s_lshr_b32 s10, s7, 2
s_mul_i32 s10, s10, {11*1024}
s_and_b32 s11, s7, 1
s_mul_i32 s12, s11, {22*1024}
s_add_u32 s10, s10, s12
v_lshlrev_b32 v10, 6, v2
v_lshl_add_u32 v10, v3, 4, v10
v_add_u32 v6, s10, v10
s_and_b32 s10, s7, 3
s_lshl_b32 s10, s10, 11
v_add_u32 v9, s10, v5
s_lshl_b32 s10, s7, 11
v_add_u32 v7, s10, v5
s_and_b32 s10, s7, 3
s_mul_i32 s10, s10, {PMSG}
s_add_u32 s50, s68, s10
v_lshlrev_b32 v212, 3, v2
s_mul_i32 s51, s5, {16*PMSG}
s_mul_i32 s10, s7, {2*PMSG}
s_add_u32 s51, s51, s10
s_add_u32 s51, s51, {PB}
v_and_b32 v213, 1, v3
v_mul_u32_u24 v213, {PMSG}, v213
v_add_u32 v213, v213, v212
v_and_b32 v214, 31, v1
v_lshlrev_b32 v214, 6, v214
s_lshl_b32 s10, s7, 3
v_add_u32 v214, s10, v214
s_lshl_b32 s10, s11, 10
v_add_u32 v215, s10, v10
s_lshl_b32 s10, s11, 4
v_add_u32 v216, s10, v2
v_lshlrev_b32 v217, 6, v216
v_lshlrev_b32 v218, 16, v216
v_lshl_add_u32 v218, v3, 4, v218
s_lshl_b32 s52, s6, 5
s_add_u32 s52, s52, s5
s_lshl_b32 s52, s52, 9
s_lshr_b32 s10, s7, 1
s_lshl_b32 s10, s10, 7
s_add_u32 s52, s52, s10
s_add_u32 s52, s52, {OB}
v_lshlrev_b32 v219, 9, v216
s_lshl_b32 s53, s5, 4
s_add_u32 s53, s53, {OS}
s_mov_b32 s54, {SCALE:#x}
s_mov_b32 s55, {LOG2E:#x}
v_mov_b32 v221, 1
v_lshlrev_b32 v8, 1, v3
v_xor_b32 v8, v8, v2
v_lshlrev_b32 v222, 10, v3
v_lshl_add_u32 v222, v8, 4, v222
v_xor_b32 v226, 0x80, v222
s_lshl_b32 s74, s5, 8
s_lshl_b32 s13, s7, 5
s_add_u32 s74, s74, s13
s_lshl_b32 s74, s74, 10
s_lshl_b32 s14, s6, 8
s_add_u32 s74, s74, s14
s_lshl_b32 s75, s7, 13
s_add_u32 s75, s75, {BT}
v_lshrrev_b32 v223, 2, v2
v_lshl_add_u32 v223, v3, 2, v223
v_and_b32 v229, 7, v223
s_lshr_b32 s12, s7, 1
s_lshl_b32 s12, s12, 1
v_xor_b32 v229, s12, v229
v_lshlrev_b32 v223, 8, v223
v_lshl_add_u32 v223, v229, 5, v223
v_and_b32 v8, 3, v2
v_lshl_add_u32 v223, v8, 3, v223
v_add_u32 v223, {BT}, v223
v_xor_b32 v229, 32, v223
v_lshlrev_b32 v230, 2, v2""")
        self.sig_prep(0, 70)
        self.sig_prep(1, 71)
        self.sig_prep(2, 72)
        nt2 = self.opt("nt_block", nt)

        def blk_dma():
            for k in range(8):
                e(f"""s_mov_b32 m0, s75
s_add_u32 s75, s75, 1024
buffer_load_dwordx4 v{222 if k % 2 == 0 else 226}, s[44:47], s74 offen {nt2} lds
s_add_u32 s74, s74, 4096""")

        def tr_reads():
            for p in range(8):
                for ctl in range(2):
                    for hh in range(2):
                        r = 104 + (p * 2 + ctl) * 4 + 2 * hh
                        e(f"ds_read_b64_tr_b16 v[{r}:{r+1}], v{223 if ctl == 0 else 229} offset:{8192*p + 4096*hh}")
                if p % 3 == 2:
                    e("s_waitcnt lgkmcnt(3)")
        self.tr_reads = tr_reads
        early = 1
        self.get_nonce_lds(240)
        e("v_mov_b32 v220, s65\ns_mov_b32 s73x, 0".replace("s73x", "s47x").replace("s47x", "s3"))
        def rq():
            lrq = self.newlabel("kv_rq")
            e(f"""s_cmp_lg_u32 s7, 0
s_cbranch_scc1 {lrq}
s_mov_b32 exec_hi, 0
buffer_store_dwordx4 v[232:235], v5, s[40:43], s73 offen sc1
s_mov_b64 exec, -1""")
            self.label(lrq)
        if self.opt("sl_blk", 0):
            e(f"s_sleep {self.opt('sl_blk', 0)}")
        lb7 = self.newlabel("kv_b7")
        lb0 = self.newlabel("kv_b0")
        e(f"s_cmp_eq_u32 s7, 7\ns_cbranch_scc1 {lb7}")
        blk_dma()
        e(f"s_cmp_lg_u32 s7, 0\ns_cbranch_scc1 {lb0}\ns_add_u32 s74, s74, {192*1024}\ns_add_u32 s75, s75, {48*1024}")
        blk_dma()
        e(f"s_branch {lb7}")
        self.label(lb0)
        e("s_waitcnt vmcnt(8)")
        self.label(lb7)
        e("s_barrier")
        self.stamp(3)
        for u in range(8):
            e(f"ds_read_b128 v[{16+4*u}:{19+4*u}], v231 offset:{64*u}")
        for u in range(8):
            if u == 7:
                e("s_waitcnt lgkmcnt(8)")
            e(f"ds_read_b128 v[{60+4*u}:{63+4*u}], v231 offset:{16*1040 + 64*u}")
        e("s_load_dword s66, s[38:39], s70 glc\nds_read_b32 v237, v227 offset:8")
        e("v_mov_b32 v232, v120\nv_mov_b32 v233, v121\nv_mov_b32 v234, v122\nv_mov_b32 v235, v123\ns_waitcnt lgkmcnt(0)")
        for a in range(2):
            for z in range(3):
                for i in range(3):
                    sidx = 3 * z + i
                    d = 16 + 44 * a + 4 * (8 + z) + i
                    if sidx < 8:
                        e(f"v_mov_b32 v{d}, v{16+44*a+4*sidx+3}")
                    else:
                        e(f"v_mov_b32 v{d}, 0")
                e(f"v_mov_b32 v{16+44*a+4*(8+z)+3}, 0")
        e("v_readfirstlane_b32 s75, v237")
        if self.opt("dbg1", 0): self.stamp(9)
        e("s_waitcnt vmcnt(0)")
        if self.opt("dbg1", 0): self.stamp(10)
        e("s_barrier")
        if self.opt("dbg1", 0): self.stamp(1)
        lsk0 = self.newlabel("kv_sig0ok")
        e(f"s_cmp_eq_u32 s66, s65\ns_cbranch_scc1 {lsk0}")
        self.sig_wait(70, 240, 11, self.opt("sl_h2", 0), restore=rq)
        self.label(lsk0)
        self.stamp(11)
        e("s_mov_b32 s60, 0")
        lsw = self.newlabel("kv_sweep")
        self.label(lsw)
        e("s_mov_b32 s10, s48\ns_mov_b32 s11, s49")
        for k in range(6):
            if k == 5:
                l5 = self.newlabel("kv_sw5")
                e(f"s_cmp_ge_u32 s7, 4\ns_cbranch_scc1 {l5}")
            e(f"""s_mov_b32 m0, s10
s_add_u32 s10, s10, 8192
buffer_load_dwordx4 v5, s[40:43], s11 offen sc1 lds
s_add_u32 s11, s11, 8192""")
            if k == 5:
                self.label(l5)
        ltr = self.newlabel("kv_notr")
        e(f"s_cmp_lg_u32 s60, 0\ns_cbranch_scc1 {ltr}")
        tr_reads()
        self.label(ltr)
        e("s_waitcnt vmcnt(0) lgkmcnt(0)\ns_barrier")
        for u in range(11):
            e(f"ds_read_b128 v[{168+4*u}:{171+4*u}], v6 offset:{QL + 1024*u}")
        self.stamp(4)

        def chk(u):
            r = 168 + 4 * u + 3
            e(f"s_waitcnt lgkmcnt({10 - u})")
            if u == 0:
                e(f"v_xor_b32 v224, s67, v{r}")
            else:
                e(f"v_bitop3_b32 v224, v224, v{r}, s67 bitop3:0xf6")
            e(f"v_mov_b32 v{r}, 0")
        chk(0)
        for u in range(11):
            if u + 1 < 11:
                chk(u + 1)
            else:
                e("v_cmp_ne_u32 vcc, 0, v224\nv_add_u32 v225, s3, v227")
            r = 168 + 4 * u
            for a in range(2):
                c = "0" if u == 0 else f"v[{240+4*a}:{243+4*a}]"
                e(f"v_mfma_f32_16x16x32_bf16 v[{240+4*a}:{243+4*a}], v[{16+44*a+4*u}:{19+44*a+4*u}], v[{r}:{r+3}], {c}")
        lok = self.newlabel("kv_ok")
        e(f"""s_cmp_eq_u64 vcc, 0
s_cbranch_scc1 {lok}
ds_write_b32 v225, v221 offset:{FLG}""")
        self.label(lok)
        lnx = self.newlabel("kv_nox")
        e(f"""s_cmp_lt_u32 s7, 4
s_cbranch_scc1 {lnx}
s_nop 3
ds_write_b128 v9, v[240:243] offset:{XCH}
ds_write_b128 v9, v[244:247] offset:{XCH + 1024}""")
        self.label(lnx)
        e(f"""s_waitcnt lgkmcnt(0)
s_barrier
ds_read_b32 v224, v225 offset:{FLG}
ds_read_b128 v[168:171], v9 offset:{XCH}
ds_read_b128 v[172:175], v9 offset:{XCH + 1024}""")
        lgo = self.newlabel("kv_go")
        e(f"""s_waitcnt lgkmcnt(2)
v_readfirstlane_b32 s10, v224
s_nop 0
s_cmp_eq_u32 s10, 0
s_cbranch_scc1 {lgo}
s_waitcnt lgkmcnt(0)
s_xor_b32 s3, s3, 4
v_add_u32 v225, s3, v227
ds_write_b32 v225, v11 offset:{FLG}
s_add_u32 s60, s60, 1
s_waitcnt lgkmcnt(0)
s_barrier""")
        rq()
        e(f"""s_cmp_lt_u32 s60, {SPIN_LIMIT}
s_cbranch_scc1 {lsw}""")
        self.label(lgo)
        self.stamp(5)
        lnsm = self.newlabel("kv_nosm")
        e(f"s_cmp_ge_u32 s7, 4\ns_cbranch_scc1 {lnsm}\ns_waitcnt lgkmcnt(0)")
        for k in range(4):
            e(f"v_pk_add_f32 v[{168+2*k}:{169+2*k}], v[{168+2*k}:{169+2*k}], v[{240+2*k}:{241+2*k}]")
        for k in range(4):
            e(f"v_cvt_pk_bf16_f32 v{176+k}, v{168+2*k}, v{169+2*k}")
        for k in range(4):
            e(f"v_lshlrev_b32 v{168+2*k}, 16, v{176+k}\nv_and_b32 v{169+2*k}, 0xffff0000, v{176+k}")
        for k in range(8):
            e(f"v_mul_f32 v{168+k}, s54, v{168+k}")
        for k in range(4):
            e(f"v_cvt_pk_bf16_f32 v{176+k}, v{168+2*k}, v{169+2*k}")
        for k in range(4):
            e(f"v_lshlrev_b32 v{168+2*k}, 16, v{176+k}\nv_and_b32 v{169+2*k}, 0xffff0000, v{176+k}")
        e("""v_max3_f32 v248, v168, v169, v170
v_max3_f32 v180, v171, v172, v173
v_max3_f32 v248, v248, v174, v175
v_max_f32 v248, v248, v180
v_mov_b32 v180, v248
s_nop 1
v_permlane16_swap_b32 v248, v180
s_nop 0
v_max_f32 v248, v248, v180
v_mov_b32 v180, v248
s_nop 1
v_permlane32_swap_b32 v248, v180
s_nop 0
v_max_f32 v248, v248, v180
v_mul_f32 v180, s55, v248""")
        for k in range(8):
            e(f"v_fma_f32 v{168+k}, v{168+k}, s55, -v180")
        for k in range(8):
            e(f"v_exp_f32 v{168+k}, v{168+k}")
        e("s_nop 0")
        for k in range(4):
            e(f"v_cvt_pk_bf16_f32 v{252+k}, v{168+2*k}, v{169+2*k}")
        e("""buffer_store_dwordx4 v[252:255], v10, s[40:43], s50 offen
v_pk_add_f32 v[168:169], v[168:169], v[170:171]
v_pk_add_f32 v[172:173], v[172:173], v[174:175]
v_pk_add_f32 v[168:169], v[168:169], v[172:173]
v_add_f32 v249, v168, v169
v_mov_b32 v180, v249
s_nop 1
v_permlane16_swap_b32 v249, v180
s_nop 0
v_add_f32 v249, v249, v180
v_mov_b32 v180, v249
s_nop 1
v_permlane32_swap_b32 v249, v180
s_nop 0
v_add_f32 v249, v249, v180
s_mov_b64 exec, 0xffff
buffer_store_dwordx2 v[248:249], v212, s[40:43], s50 offen offset:1024
s_mov_b64 exec, -1""")
        self.stamp(6)
        if not early:
            lsj = self.newlabel("kv_sj")
            e(f"s_branch {lsj}")
            self.label(lnsm)
            e("s_waitcnt vmcnt(0)")
            self.label(lsj)
            e("s_barrier")
            tr_reads()
        else:
            self.label(lnsm)

        def restore_p():
            l = self.newlabel("rp")
            e(f"""s_cmp_ge_u32 s7, 4
s_cbranch_scc1 {l}
buffer_store_dwordx4 v[252:255], v10, s[40:43], s50 offen sc1
s_mov_b64 exec, 0xffff
buffer_store_dwordx2 v[248:249], v212, s[40:43], s50 offen offset:1024 sc1
s_mov_b64 exec, -1""")
            self.label(l)
        lsame = self.newlabel("kv_same")
        e(f"s_cmp_eq_u32 s75, 0\ns_cbranch_scc1 {lsame}")
        restore_p()
        self.label(lsame)
        self.poll([("buffer_load_dwordx4 v[168:171], v5, s[40:43], s51 offen sc1", 168, 4),
                   (f"buffer_load_dwordx4 v[172:175], v5, s[40:43], s51 offen offset:{PMSG} sc1", 172, 4),
                   ("buffer_load_dwordx2 v[176:177], v213, s[40:43], s51 offen offset:1024 sc1", 176, 2)], 'sent', 224)
        e(f"""ds_write_b128 v7, v[168:171] offset:{PL}
ds_write_b128 v7, v[172:175] offset:{PL + 1024}
ds_write_b64 v214, v[176:177] offset:{SL}
s_waitcnt lgkmcnt(0)
s_barrier""")
        self.stamp(7)
        if self.opt("sig2_early", 1):
            l0e = self.newlabel("kv_sig")
            e(f"s_cmp_lg_u32 s7, 7\ns_cbranch_scc1 {l0e}")
            self.sig_send(72, 220, 11)
            self.label(l0e)
        for k in range(4):
            e(f"ds_read_b128 v[{48+4*k}:{51+4*k}], v217 offset:{SL + 16*k}")
        for p in range(8):
            e(f"ds_read_b128 v[{16+4*p}:{19+4*p}], v215 offset:{PL + 2048*p}")
        stats = []
        stats.append("v_max3_f32 v238, v48, v50, v52")
        stats.append("v_max3_f32 v239, v54, v56, v58")
        stats.append("v_max3_f32 v238, v238, v60, v62")
        stats.append("v_max_f32 v238, v238, v239")
        stats.append("v_mul_f32 v239, s55, v238")
        for p in range(8):
            stats.append(f"v_fma_f32 v{48+2*p}, v{48+2*p}, s55, -v239")
        for p in range(8):
            stats.append(f"v_exp_f32 v{48+2*p}, v{48+2*p}")
        stats.append("v_and_or_b32 v240, v238, s64, v12")
        stats.append("v_mul_f32 v239, v48, v49")
        for p in range(1, 8):
            stats.append(f"v_fmac_f32 v239, v{48+2*p}, v{49+2*p}")
        si = 0
        for p in range(8):
            e(f"s_waitcnt lgkmcnt({7 - p})")
            for ctl in range(2):
                ar = 104 + (p * 2 + ctl) * 4
                ac = self.acc(p * 2 + ctl)
                e(f"v_mfma_f32_16x16x32_bf16 v[{ac}:{ac+3}], v[{ar}:{ar+3}], v[{16+4*p}:{19+4*p}], 0")
                for _ in range(2):
                    if si < len(stats):
                        e(stats[si]); si += 1
        while si < len(stats):
            e(stats[si]); si += 1
        lno = self.newlabel("kv_noos")
        e(f"""s_cmp_lg_u32 s6, 0
s_cbranch_scc1 {lno}
s_cmp_ge_u32 s7, 2
s_cbranch_scc1 {lno}
v_and_or_b32 v241, v239, s64, v13
v_mov_b32 v242, v14
v_mov_b32 v243, v15
s_mov_b64 exec, 0xffff
buffer_store_dwordx4 v[240:243], v219, s[40:43], s53 offen sc1
s_mov_b64 exec, -1""")
        self.label(lno)
        for r in range(0, 8, 2):
            e(f"v_pk_mul_f32 v[{168+r}:{169+r}], v[{168+r}:{169+r}], v[48:49] op_sel_hi:[1,0]")
        for p in range(1, 8):
            for ctl in range(2):
                for r in (0, 2):
                    a = self.acc(2 * p + ctl) + r
                    o = 168 + 4 * ctl + r
                    e(f"v_pk_fma_f32 v[{o}:{o+1}], v[{a}:{a+1}], v[{48+2*p}:{49+2*p}], v[{o}:{o+1}] op_sel_hi:[1,0,1]")
        self.tag4(168)
        e("buffer_store_dwordx4 v[168:171], v218, s[40:43], s52 offen sc1")
        self.tag4(172)
        e("buffer_store_dwordx4 v[172:175], v218, s[40:43], s52 offen offset:64 sc1")
        self.stamp(8)
        e("s_barrier")
        self.dbgtime(6, 128)
        self.dbgtime(7, 201)
        if not self.opt("sig2_early", 1):
            l0 = self.newlabel("kv_sig")
            e(f"s_cmp_lg_u32 s7, 0\ns_cbranch_scc1 {l0}")
            self.sig_send(72, 220, 11)
            self.label(l0)
        lnf = self.newlabel("kv_nofg")
        llo = self.newlabel("kv_fglo")
        e(f"""v_mov_b32 v236, v220
s_bfe_u32 s10, s9, 0x20002
s_lshl_b32 s10, s10, 3
s_add_u32 s10, s10, s8
s_cmp_ge_u32 s10, 27
s_cbranch_scc1 {lnf}
s_lshl_b32 s10, s10, 2
s_add_u32 s10, s10, s6""")
        if self.opt("sl_fg", 0):
            e(f"s_sleep {self.opt('sl_fg', 0)}")
        e(f"s_cmp_lt_u32 s7, 4\ns_cbranch_scc1 {llo}")
        self.srd(44, 30, 2211840)
        e(f"""v_lshrrev_b32 v6, 1, v1
v_mul_u32_u24 v6, 3456, v6
v_and_b32 v7, 1, v1
v_lshl_add_u32 v6, v7, 4, v6
s_sub_u32 s11, s7, 4
s_mul_i32 s11, s11, 160
s_mul_i32 s12, s11, 3456
s_lshl_b32 s13, s10, 5
s_add_u32 s12, s12, s13
s_lshl_b32 s13, s11, 5
s_add_u32 s13, s13, {W1L}""")
        for k in range(5):
            e(f"""s_mov_b32 m0, s13
s_add_u32 s13, s13, 1024
buffer_load_dwordx4 v6, s[44:47], s12 offen {nt} lds
s_add_u32 s12, s12, {32*3456}""")
        e("s_waitcnt vmcnt(0)")
        if self.opt("dbg2", 0): self.stamp(2)
        e("s_barrier\ns_branch L_fin")
        self.label(lnf)
        rq()
        e("s_branch L_fin")
        self.label(llo)
        self.srd(44, 16, 1280)
        e(f"""v_lshlrev_b32 v8, 3, v1
s_mul_i32 s11, s7, 320
buffer_load_dwordx2 v[48:49], v8, s[44:47], s11 offen
v_mul_u32_u24 v7, 5120, v3
v_lshl_add_u32 v7, v2, 4, v7
s_mul_i32 s12, s10, 20480
s_lshl_b32 s13, s7, 8
s_add_u32 s12, s12, s13
v_add_u32 v7, s12, v7""")
        for t in range(4):
            e(f"global_load_dwordx4 v[{16+4*t}:{19+4*t}], v7, s[32:33] offset:{1280*t} {nt}")
        lb4 = self.newlabel("kv_b4")
        e(f"s_cmp_lg_u32 s7, 0\ns_cbranch_scc1 {lb4}\nv_add_u32 v7, 1024, v7")
        for t in range(4):
            e(f"global_load_dwordx4 v[{32+4*t}:{35+4*t}], v7, s[32:33] offset:{1280*t} {nt}")
        self.label(lb4)
        rq()
        self.masks(52, 2, 60, False)
        e(f"""v_lshrrev_b32 v8, 2, v2
v_lshl_add_u32 v8, v3, 3, v8
v_lshlrev_b32 v8, 5, v8
v_and_b32 v9, 3, v2
v_lshl_add_u32 v8, v9, 3, v8
s_waitcnt vmcnt(0)""")
        if self.opt("dbg2", 0): self.stamp(2)
        e("s_barrier")
        if self.opt("dbg2", 0): self.stamp(3)
        for t in range(20):
            for hh in range(2):
                e(f"ds_read_b64_tr_b16 v[{80+4*t+2*hh}:{81+4*t+2*hh}], v8 offset:{W1L + 1024*t + 128*hh}")
            if t % 4 == 3:
                e("s_waitcnt lgkmcnt(0)")
        e(f"""s_mul_i32 s12, s7, 640
s_add_u32 s12, s12, {XB}
s_add_u32 s13, s12, 5120
s_add_u32 s14, s12, 10240
s_add_u32 s15, s12, 15360
v_lshlrev_b32 v56, 16, v48
v_and_b32 v57, 0xffff0000, v48
v_lshlrev_b32 v58, 16, v49
v_and_b32 v59, 0xffff0000, v49
v_lshlrev_b32 v8, 3, v1
s_mul_i32 s11, s7, 320
v_add_u32 v9, s11, v8
s_mul_i32 s11, s7, 1280
v_add_u32 v10, s11, v8
v_add_u32 v228, s11, v4
v_lshl_add_u32 v229, v3, 4, s11
v_lshrrev_b32 v230, 1, v2
v_mul_u32_u24 v230, 7168, v230
v_and_b32 v231, 1, v2
v_lshl_add_u32 v230, v231, 5, v230
v_lshl_add_u32 v230, v3, 4, v230
s_mul_i32 s52, s7, {8*7168}
s_lshl_b32 s53, s10, 6
s_add_u32 s52, s52, s53
s_add_u32 s52, s52, {FB}
s_add_u32 s53, s52, {32*7168}""")
        self.sig_prep(3, 70)
        self.sig_prep(4, 71)
        if not self.opt('dbg1', 0): self.stamp(9)
        self.sig_wait(70, 60, 11, self.opt("sl_h5", 8))
        e("s_mov_b32 exec_hi, 0xff")
        self.poll([(f"buffer_load_dwordx4 v[{160+4*x}:{163+4*x}], v5, s[40:43], s{12 + x//2} offen offset:{2560*(x%2)} sc1", 160 + 4 * x, 4) for x in range(8)], 'tag', 60)
        self.tree_sum(160, 8)
        e(f"""v_cvt_pk_bf16_f32 v60, v160, v161
v_cvt_pk_bf16_f32 v61, v162, v163
v_lshlrev_b32 v160, 16, v60
v_and_b32 v161, 0xffff0000, v60
v_lshlrev_b32 v162, 16, v61
v_and_b32 v163, 0xffff0000, v61
v_pk_add_f32 v[160:161], v[160:161], v[56:57]
v_pk_add_f32 v[162:163], v[162:163], v[58:59]
v_cvt_pk_bf16_f32 v60, v160, v161
v_cvt_pk_bf16_f32 v61, v162, v163
ds_write_b64 v9, v[60:61] offset:{HF}
s_mov_b64 exec, -1
s_waitcnt lgkmcnt(0)
s_barrier
ds_read_b64 v[70:71], v8 offset:{HF}
ds_read_b64 v[72:73], v8 offset:{HF + 512}
ds_read_b32 v74, v4 offset:{HF + 1024}
s_waitcnt lgkmcnt(0)""")
        if not self.opt('dbg1', 0): self.stamp(10)
        for k in range(5):
            e(f"v_lshlrev_b32 v{60+2*k}, 16, v{70+k}\nv_and_b32 v{61+2*k}, 0xffff0000, v{70+k}")
        self.layernorm(60, 70, 62, 63)
        e(f"""v_cvt_pk_bf16_f32 v70, v60, v61
v_cvt_pk_bf16_f32 v71, v62, v63
v_cvt_pk_bf16_f32 v72, v64, v65
v_cvt_pk_bf16_f32 v73, v66, v67
v_cvt_pk_bf16_f32 v74, v68, v69
ds_write_b64 v10, v[70:71] offset:{HN}
ds_write_b64 v10, v[72:73] offset:{HN + 512}
ds_write_b32 v228, v74 offset:{HN + 1024}
s_waitcnt lgkmcnt(0)""")
        for t in range(14):
            e(f"ds_read_b128 v[{160+4*t}:{163+4*t}], v229 offset:{HN + 64*t}")
        for t in range(20):
            issued = min(t + 14, 20)
            e(f"s_waitcnt lgkmcnt({issued - t - 1})")
            c = "0" if t == 0 else "v[56:59]"
            e(f"v_mfma_f32_16x16x32_bf16 v[56:59], v[{80+4*t}:{83+4*t}], v[{self.fb(t)}:{self.fb(t)+3}], {c}")
            if t + 14 < 20:
                e(f"ds_read_b128 v[{self.fb(t+14)}:{self.fb(t+14)+3}], v229 offset:{HN + 64*(t+14)}")
        ls4 = self.newlabel("kv_s4")
        e(f"s_cmp_lg_u32 s7, 1\ns_cbranch_scc1 {ls4}")
        self.sig_send(71, 236, 11)
        self.label(ls4)
        e("s_nop 4")
        for r in range(4):
            e(f"v_max_f32 v{56+r}, 0, v{56+r}")
        for t in range(4):
            e(f"v_cvt_pk_bf16_f32 v{240+t}, v{56+t}, v{56+t}")
        for t in range(4):
            for r in range(4):
                e(f"v_and_b32 v{80+4*t+r}, v{240+t}, v{52+r}")
        for t in range(4):
            c = "0" if t == 0 else "v[64:67]"
            e(f"v_mfma_f32_16x16x32_bf16 v[64:67], v[{80+4*t}:{83+4*t}], v[{16+4*t}:{19+4*t}], {c}")
        lb5 = self.newlabel("kv_b5")
        e(f"s_cmp_lg_u32 s7, 0\ns_cbranch_scc1 {lb5}")
        for t in range(4):
            c = "0" if t == 0 else "v[68:71]"
            e(f"v_mfma_f32_16x16x32_bf16 v[68:71], v[{80+4*t}:{83+4*t}], v[{32+4*t}:{35+4*t}], {c}")
        e("s_nop 3")
        self.tag4(64)
        e("""s_mov_b32 exec_hi, 0
buffer_store_dwordx4 v[64:67], v230, s[40:43], s52 offen sc1""")
        self.tag4(68)
        e("buffer_store_dwordx4 v[68:71], v230, s[40:43], s53 offen sc1")
        e("s_mov_b64 exec, -1")
        if not self.opt('dbg1', 0): self.stamp(1)
        e("s_branch L_fin")
        self.label(lb5)
        e("s_nop 5")
        self.tag4(64)
        e("""s_mov_b32 exec_hi, 0
buffer_store_dwordx4 v[64:67], v230, s[40:43], s52 offen sc1
s_mov_b64 exec, -1""")

    def fb(self, t):
        if t < 14:
            return 160 + 4 * t
        return [60, 64, 68, 72, 76, 244][t - 14]


if __name__ == "__main__":
    import argparse
    ap = argparse.ArgumentParser()
    ap.add_argument("out")
    ap.add_argument("--stamps", action="store_true")
    ap.add_argument("--opt", action="append", default=[])
    a = ap.parse_args()
    opts = {}
    for o in a.opt:
        k, v = o.split("=")
        opts[k] = int(v) if v.lstrip("-").isdigit() else v
    g = Gen(stamps=a.stamps, opts=opts)
    open(a.out, "w").write(g.build())
```

```python
import sys

KN = "sequential_preLN__compressed_kv_cla__dense_activation_relu__decode_kernel"

Q1 = 0x000000
QA = 0x020000
PB = 0x030000
PMSG = 1152
OB = 0x0C0000
OS = 0x2C0000
EL = 0x2C4000
XB = 0x314000
FB = 0x319000
SIG = 0x360000
RDY = 0x374000
assert PB + 512 * PMSG <= OB
STAMP = 0x400000
WS_RECORDS = 0x400000 + 256 * 128

SPIN_LIMIT = 100000
RESTORE_IT = 10
LOG2E = 0x3fb8aa3b
SCALE = 0x3db504f3
LDS_BYTES = 146432
NB = 133120
NON, FLG = 0, 16


class Gen:
    def __init__(self, stamps=False, opts=None):
        self.o = []
        self.nl = 0
        self.stamps = stamps
        self.opts = opts or {}

    def opt(self, k, d):
        return self.opts.get(k, d)

    def e(self, s):
        for line in s.strip("\n").split("\n"):
            self.o.append("  " + line.strip())

    def label(self, name):
        self.o.append(name + ":")

    def newlabel(self, base):
        self.nl += 1
        return f"L_{base}_{self.nl}"

    def srd(self, d, ptr, nbytes):
        self.e(f"""s_mov_b32 s{d}, s{ptr}
s_and_b32 s{d+1}, s{ptr+1}, 0xffff
s_mov_b32 s{d+2}, {nbytes}
s_mov_b32 s{d+3}, 0x00020000""")

    def stamp(self, idx):
        if self.stamps:
            self.e(f"s_memrealtime s[{76+2*idx}:{77+2*idx}]")

    def stamp_dump(self):
        if not self.stamps:
            return
        self.e("""s_and_b32 s60, s7, 3
s_cmp_lg_u32 s60, 0
s_cbranch_scc1 L_end
s_waitcnt lgkmcnt(0)
s_mov_b64 exec, 1
v_mov_b32 v251, 0""")
        self.e(f"s_lshl_b32 s60, s2, 7\ns_lshl_b32 s61, s7, 4\ns_add_u32 s60, s60, s61\ns_add_u32 s60, s60, {STAMP}")
        for i in range(12):
            self.e(f"v_mov_b32 v250, s{76+2*i}\nbuffer_store_dword v250, v251, s[40:43], s60 offen offset:{4*i}")

    def dbgtime(self, word, wg):
        if not self.opt("dbgt", 0):
            return
        l = self.newlabel("dt")
        self.e(f"""s_cmp_lg_u32 s2, {wg}
s_cbranch_scc1 {l}
s_memrealtime s[10:11]
s_load_dword s12, s[36:37], 4 glc
s_waitcnt lgkmcnt(0)
s_sub_u32 s10, s10, s12
v_mov_b32 v250, s10
v_mov_b32 v251, {4*word}
global_store_dword v251, v250, s[36:37]""")
        self.label(l)

    def wave_sum(self, v, sd):
        ins = "v_add_f32_dpp"
        for sh in (1, 2, 4, 8):
            self.e(f"s_nop 1\n{ins} v{v}, v{v}, v{v} row_shr:{sh} row_mask:0xf bank_mask:0xf bound_ctrl:0")
        self.e(f"s_nop 1\n{ins} v{v}, v{v}, v{v} row_bcast:15 row_mask:0xa bank_mask:0xf")
        self.e(f"s_nop 1\n{ins} v{v}, v{v}, v{v} row_bcast:31 row_mask:0xc bank_mask:0xf")
        self.e(f"s_nop 0\nv_readlane_b32 s{sd}, v{v}, 63")

    def wait_nonce(self, vt):
        d = self.newlabel("nnd")
        for k in range(4):
            self.e(f"""s_load_dword s65, s[36:37], {64*k}
s_waitcnt lgkmcnt(0)
s_cmp_lg_u32 s65, 0
s_cbranch_scc1 {d}
s_sleep 4""")
        l = self.newlabel("nn")
        self.e("s_mov_b32 s60, 0")
        self.label(l)
        self.e(f"""buffer_load_dword v{vt}, v11, s[56:59], 0 offen sc1
s_add_u32 s60, s60, 1
s_waitcnt vmcnt(0)
v_readfirstlane_b32 s65, v{vt}
s_cmp_ge_u32 s60, {SPIN_LIMIT}
s_cbranch_scc1 {d}
s_cmp_eq_u32 s65, 0
s_cbranch_scc1 {l}""")
        self.label(d)

    def set_tags(self):
        self.e("""s_mov_b32 s64, 0xffffff00
s_and_b32 s61, s65, 0xff
v_mov_b32 v12, s61
s_bfe_u32 s61, s65, 0x80008
v_mov_b32 v13, s61
s_bfe_u32 s61, s65, 0x80010
v_mov_b32 v14, s61
s_lshr_b32 s61, s65, 24
v_mov_b32 v15, s61
s_and_b32 s67, s65, 0xbfffbfff""")

    def tag4(self, v):
        for r in range(4):
            self.e(f"v_and_or_b32 v{v+r}, v{v+r}, s64, v{12+r}")

    def sig_prep(self, k, sd, sid="s4"):
        self.e(f"s_lshl_b32 s{sd}, {sid}, 7\ns_add_u32 s{sd}, s{sd}, {SIG + k * 16384}")

    def sig_send(self, sd, vtag, vzero):
        self.e(f"buffer_store_dword v{vtag}, v{vzero}, s[40:43], s{sd} offen sc1")

    def sig_wait(self, sd, vt, vzero, sleep=0, restore=None):
        l = self.newlabel("sg")
        d = self.newlabel("sgd")
        self.e("s_mov_b32 s60, 0")
        self.label(l)
        self.e(f"""s_load_dword s66, s[38:39], s{sd} glc
s_add_u32 s60, s60, 1""")
        if restore:
            nr = self.newlabel("snr")
            self.e(f"s_cmp_lg_u32 s60, {RESTORE_IT}\ns_cbranch_scc1 {nr}")
            restore()
            self.label(nr)
        self.e(f"""s_cmp_ge_u32 s60, {SPIN_LIMIT}
s_cbranch_scc1 {d}
s_waitcnt lgkmcnt(0)
s_cmp_lg_u32 s66, s65
s_cbranch_scc1 {l}""")
        self.label(d)
        self.e("s_waitcnt lgkmcnt(0)")
        if sleep:
            self.e(f"s_sleep {sleep}")

    def check(self, regs, kind, vacc, first=True):
        e = self.e
        if kind == 'tag':
            for i, r in enumerate(regs):
                t = 12 + (i % 4)
                if first and i == 0:
                    e(f"v_xor_b32 v{vacc}, v{r}, v{t}")
                else:
                    e(f"v_bitop3_b32 v{vacc}, v{vacc}, v{r}, v{t} bitop3:0xf6")
        else:
            i = 0
            while i < len(regs):
                if first and i == 0:
                    if len(regs) >= 3:
                        e(f"v_max3_u32 v{vacc}, v{regs[0]}, v{regs[1]}, v{regs[2]}"); i = 3
                    elif len(regs) == 2:
                        e(f"v_max_u32 v{vacc}, v{regs[0]}, v{regs[1]}"); i = 2
                    else:
                        e(f"v_mov_b32 v{vacc}, v{regs[0]}"); i = 1
                elif len(regs) - i >= 2:
                    e(f"v_max3_u32 v{vacc}, v{vacc}, v{regs[i]}, v{regs[i+1]}"); i += 2
                else:
                    e(f"v_max_u32 v{vacc}, v{vacc}, v{regs[i]}"); i += 1

    def verdict(self, kind, vacc):
        if kind == 'tag':
            self.e(f"v_and_b32 v{vacc}, 0xff, v{vacc}\nv_cmp_ne_u32 vcc, 0, v{vacc}\ns_cmp_lg_u64 vcc, 0")
        else:
            self.e(f"v_cmp_eq_u32 vcc, -1, v{vacc}\ns_cmp_lg_u64 vcc, 0")

    def poll(self, loads, kind, vacc, restore=None):
        e = self.e
        l = self.newlabel("pl")
        d = self.newlabel("pld")
        e("s_mov_b32 s60, 0")
        self.label(l)
        for ins in loads:
            e(ins[0])
        e("s_add_u32 s60, s60, 1")
        if restore:
            nr = self.newlabel("pnr")
            e(f"s_cmp_lg_u32 s60, {self.opt('rit', RESTORE_IT)}\ns_cbranch_scc1 {nr}")
            restore()
            self.label(nr)
        e(f"s_cmp_ge_u32 s60, {SPIN_LIMIT}\ns_cbranch_scc1 {d}\ns_waitcnt vmcnt(0)")
        for k, ins in enumerate(loads):
            self.check(list(range(ins[1], ins[1] + ins[2])), kind, vacc, first=(k == 0))
        self.verdict(kind, vacc)
        e(f"s_cbranch_scc1 {l}")
        self.label(d)
        e("s_waitcnt vmcnt(0)")

    def masks(self, m0, vi, vt, lo_rows):
        self.e(f"""v_and_b32 v{vt}, 1, v{vi}
v_cmp_eq_u32 vcc, 1, v{vt}
v_mov_b32 v{vt}, 0x0000ffff
v_mov_b32 v{vt+1}, 0xffff0000
v_cndmask_b32 v{vt}, v{vt}, v{vt+1}, vcc""")
        if lo_rows:
            self.e(f"v_bfe_u32 v{vt+1}, v{vi}, 1, 2")
        else:
            self.e(f"v_lshrrev_b32 v{vt+1}, 1, v{vi}")
        for r in range(4):
            self.e(f"""v_cmp_eq_u32 vcc, {r}, v{vt+1}
s_nop 1
v_cndmask_b32 v{m0+r}, 0, v{vt}, vcc""")

    def layernorm(self, vx, vt, sA, sB):
        e = self.e
        inv = 0x3acccccd
        e(f"""v_pk_add_f32 v[{vt}:{vt+1}], v[{vx}:{vx+1}], v[{vx+2}:{vx+3}]
v_pk_add_f32 v[{vt+2}:{vt+3}], v[{vx+4}:{vx+5}], v[{vx+6}:{vx+7}]
v_pk_add_f32 v[{vt}:{vt+1}], v[{vt}:{vt+1}], v[{vx+8}:{vx+9}]
v_pk_add_f32 v[{vt}:{vt+1}], v[{vt}:{vt+1}], v[{vt+2}:{vt+3}]
v_add_f32 v{vt}, v{vt}, v{vt+1}""")
        self.wave_sum(vt, sA)
        e(f"v_mov_b32 v{vt+4}, {inv:#x}\ns_nop 0\nv_mul_f32 v{vt+4}, s{sA}, v{vt+4}")
        for k in range(0, 10, 2):
            e(f"v_pk_add_f32 v[{vt+2}:{vt+3}], v[{vx+k}:{vx+k+1}], v[{vt+4}:{vt+5}] op_sel_hi:[1,0] neg_lo:[0,1] neg_hi:[0,1]")
            if k == 0:
                e(f"v_pk_mul_f32 v[{vt}:{vt+1}], v[{vt+2}:{vt+3}], v[{vt+2}:{vt+3}]")
            else:
                e(f"v_pk_fma_f32 v[{vt}:{vt+1}], v[{vt+2}:{vt+3}], v[{vt+2}:{vt+3}], v[{vt}:{vt+1}]")
        e(f"v_add_f32 v{vt}, v{vt}, v{vt+1}")
        self.wave_sum(vt, sB)
        e(f"""v_mov_b32 v{vt+2}, {inv:#x}
s_nop 0
v_mul_f32 v{vt+2}, s{sB}, v{vt+2}
v_cvt_pk_bf16_f32 v{vt+3}, v{vt+4}, v{vt+2}
v_lshlrev_b32 v{vt+4}, 16, v{vt+3}
v_and_b32 v{vt+2}, 0xffff0000, v{vt+3}
v_add_f32 v{vt+2}, 0x3727c5ac, v{vt+2}
v_cvt_pk_bf16_f32 v{vt+2}, v{vt+2}, v{vt+2}
v_and_b32 v{vt+2}, 0xffff0000, v{vt+2}
v_sqrt_f32 v{vt+2}, v{vt+2}""")
        for k in range(0, 10, 2):
            e(f"v_pk_add_f32 v[{vx+k}:{vx+k+1}], v[{vx+k}:{vx+k+1}], v[{vt+4}:{vt+5}] op_sel_hi:[1,0] neg_lo:[0,1] neg_hi:[0,1]")
        e(f"""v_cvt_pk_bf16_f32 v{vt+2}, v{vt+2}, v{vt+2}
v_and_b32 v{vt+2}, 0xffff0000, v{vt+2}
v_rcp_f32 v{vt+2}, v{vt+2}""")
        for k in range(0, 10, 2):
            a, b = vx + k, vx + k + 1
            e(f"""v_cvt_pk_bf16_f32 v{vt}, v{a}, v{b}
v_lshlrev_b32 v{a}, 16, v{vt}
v_and_b32 v{b}, 0xffff0000, v{vt}
v_pk_mul_f32 v[{a}:{b}], v[{a}:{b}], v[{vt+2}:{vt+3}] op_sel_hi:[1,0]""")

    def tree_sum(self, v0, n, width=4, stride=None):
        stride = stride or width
        step = 1
        while step < n:
            for k in range(0, n - step, 2 * step):
                for r in range(0, width, 2):
                    a = v0 + stride * k + r
                    b = v0 + stride * (k + step) + r
                    self.e(f"v_pk_add_f32 v[{a}:{a+1}], v[{a}:{a+1}], v[{b}:{b+1}]")
            step *= 2

    def build(self):
        nt = self.opt("nt", "nt")
        nt = "" if nt == "none" else nt
        e = self.e
        self.o.append(f"; @launch grid=(256,1,1) block=(512,1,1) lds={LDS_BYTES}")
        self.o.append('.amdgcn_target "amdgcn-amd-amdhsa--gfx950"')
        self.o.append(".text")
        self.o.append(f".globl {KN}")
        self.o.append(".p2align 8")
        self.o.append(f".type {KN},@function")
        self.label(KN)
        e("""s_load_dwordx16 s[16:31], s[0:1], 0
s_load_dwordx8 s[32:39], s[0:1], 64
s_memrealtime s[62:63]
s_cmp_ge_u32 s2, 256
s_cbranch_scc1 L_end
s_cmp_ge_u32 s2, 16
s_cbranch_scc1 L_nocp
s_getpc_b64 s[60:61]
v_lshlrev_b32 v6, 6, v0
v_min_u32 v6, (L_codeend-L_nocp-64), v6
global_load_dword v255, v6, s[60:61]
L_nocp:
s_and_b32 s8, s2, 7
s_lshr_b32 s9, s2, 3
s_and_b32 s4, s2, 127
v_lshrrev_b32 v1, 6, v0
v_and_b32 v2, 15, v0
v_readfirstlane_b32 s7, v1
v_and_b32 v1, 63, v0
v_bfe_u32 v3, v0, 4, 2
v_lshlrev_b32 v4, 2, v1
v_lshlrev_b32 v5, 4, v1
s_and_b32 s10, s9, 3
s_lshl_b32 s5, s8, 2
s_add_u32 s5, s5, s10
s_lshr_b32 s6, s9, 2
v_mov_b32 v11, 0""")
        if self.stamps:
            for i in range(76, 100):
                e(f"s_mov_b32 s{i}, 0")
        self.stamp(0)
        e("""s_or_b32 s10, s2, s7
s_cmp_lg_u32 s10, 0
s_cbranch_scc1 L_nomaster
s_waitcnt lgkmcnt(0)
s_mov_b32 s63, s62
s_mul_i32 s62, s62, 0x9e3779b1
s_or_b32 s62, s62, 1
v_mov_b32 v16, s62
v_mov_b32 v17, s63
v_lshlrev_b32 v18, 6, v1
s_mov_b64 exec, 15
global_store_dwordx2 v18, v[16:17], s[36:37] sc1
s_mov_b64 exec, -1
L_nomaster:
s_cmp_ge_u32 s7, 4
s_cbranch_scc1 L_hi""")
        self.commonA(nt)
        self.roleW(nt)
        self.roleKV(nt)
        self.label("L_fin")
        self.stamp_dump()
        self.label("L_end")
        e("s_endpgm")
        self.label("L_codeend")
        self.o.append(f""".section .rodata,"a"
.p2align 6
.amdhsa_kernel {KN}
  .amdhsa_next_free_vgpr 256
  .amdhsa_next_free_sgpr 100
  .amdhsa_accum_offset 256
  .amdhsa_group_segment_fixed_size 0
  .amdhsa_kernarg_size 96
  .amdhsa_user_sgpr_count 2
  .amdhsa_user_sgpr_kernarg_segment_ptr 1
  .amdhsa_system_sgpr_workgroup_id_x 1
.end_amdhsa_kernel""")
        return "\n".join(self.o) + "\n"

    def commonA(self, nt):
        e = self.e
        AB = 133248
        XT, QRED = AB, AB + 10240
        e("""s_mul_i32 s10, s6, 80
s_mul_i32 s11, s7, 20
s_add_u32 s10, s10, s11
s_lshl_b32 s11, s10, 13
s_lshl_b32 s12, s5, 8
s_add_u32 s11, s11, s12
v_lshlrev_b32 v6, 13, v3
v_lshl_add_u32 v6, v2, 4, v6
v_add_u32 v6, s11, v6
s_waitcnt lgkmcnt(0)""")
        for k in range(5):
            e(f"global_load_dword v{76+k}, v4, s[16:17] offset:{256*k}")
        for t in range(5):
            e(f"global_load_dwordx4 v[{16+4*t}:{19+4*t}], v6, s[20:21] {nt}")
            if t < 4:
                e("v_add_u32 v6, 0x8000, v6")
        self.srd(40, 38, WS_RECORDS)
        self.srd(56, 36, 256)
        self.masks(68, 2, 92, False)
        e(f"""s_mul_i32 s14, s7, 2560
s_add_u32 s14, s14, {XT}
v_lshlrev_b32 v8, 3, v1
v_add_u32 v8, s14, v8
s_lshl_b32 s15, s10, 2
s_add_u32 s15, s15, s14
v_lshl_add_u32 v9, v3, 2, s15
v_lshlrev_b32 v10, 5, v2
v_lshl_add_u32 v10, v3, 4, v10
s_lshl_b32 s14, s7, 9
s_add_u32 s14, s14, {QRED}
v_add_u32 v10, s14, v10
v_mov_b32 v227, {NB}
v_add_u32 v7, {QRED}, v5
s_lshl_b32 s68, s5, 12
s_add_u32 s68, s68, {Q1}
s_lshl_b32 s69, s6, 9
s_add_u32 s69, s69, s68
s_waitcnt vmcnt(5)""")
        for k in range(5):
            e(f"v_lshlrev_b32 v{82+2*k}, 16, v{76+k}\nv_and_b32 v{83+2*k}, 0xffff0000, v{76+k}")
        self.layernorm(82, 92, 62, 63)
        for k in range(5):
            e(f"""v_cvt_pk_bf16_f32 v{92+2*(k%2)}, v{82+2*k}, v{82+2*k}
v_cvt_pk_bf16_f32 v{93+2*(k%2)}, v{83+2*k}, v{83+2*k}
ds_write_b64 v8, v[{92+2*(k%2)}:{93+2*(k%2)}] offset:{512*k}""")
        e("s_waitcnt lgkmcnt(0)")
        for t in range(5):
            e(f"ds_read_b32 v{82+t}, v9 offset:{16*t}")
        e("s_waitcnt lgkmcnt(0)")
        for t in range(5):
            for r in range(4):
                e(f"v_and_b32 v{96+4*t+r}, v{82+t}, v{68+r}")
        ln = self.newlabel("a_nn")
        e(f"s_cmp_lg_u32 s7, 0\ns_cbranch_scc1 {ln}")
        self.wait_nonce(90)
        e(f"v_mov_b32 v90, s65\nds_write_b32 v227, v90 offset:{NON}")
        self.label(ln)
        for t in range(5):
            c = "0" if t == 0 else "v[116:119]"
            e(f"s_waitcnt vmcnt({4-t})")
            e(f"v_mfma_f32_16x16x32_bf16 v[116:119], v[{96+4*t}:{99+4*t}], v[{16+4*t}:{19+4*t}], {c}")
        self.stamp(1)
        e("s_nop 2")
        e(f"""s_nop 4
s_mov_b32 exec_hi, 0
ds_write_b128 v10, v[116:119]
s_mov_b64 exec, -1
s_waitcnt lgkmcnt(0)
s_barrier""")
        self.stamp(2)
        e("s_cmp_lg_u32 s7, 0\ns_cbranch_scc1 L_lo123")
        for wv in range(4):
            e(f"ds_read_b128 v[{120+4*wv}:{123+4*wv}], v7 offset:{512*wv}")
        self.set_tags()
        e("s_waitcnt lgkmcnt(0)")
        self.tree_sum(120, 4)
        self.tag4(120)
        e("""s_mov_b32 exec_hi, 0
buffer_store_dwordx4 v[120:123], v5, s[40:43], s69 offen
s_mov_b64 exec, -1
s_mov_b32 s73, s69
s_cmp_ge_u32 s9, 16
s_cbranch_scc1 L_kv_w0""")

    def get_nonce_lds(self, vt):
        self.e(f"""ds_read_b32 v{vt}, v227 offset:{NON}
s_waitcnt lgkmcnt(0)
v_readfirstlane_b32 s65, v{vt}""")
        self.set_tags()

    def roleW(self, nt):
        e = self.e
        QBF, QAL, CLX, RED, RED2 = 24576, 24832, 25600, 26624, 28672
        e("""v_and_b32 v8, 31, v1
v_lshlrev_b32 v8, 3, v8
v_lshrrev_b32 v9, 5, v1
v_lshl_add_u32 v8, v9, 2, v8""")

        def restore_q1():
            e("""s_mov_b32 exec_hi, 0
buffer_store_dwordx4 v[120:123], v5, s[40:43], s73 offen sc1
s_mov_b64 exec, -1""")
        self.restore_q1 = restore_q1
        self.poll([(f"buffer_load_dwordx4 v[{124+4*k}:{127+4*k}], v5, s[40:43], s68 offen offset:{1024*k} sc1", 124 + 4 * k, 4) for k in range(4)], 'tag', 90, restore=restore_q1)
        self.stamp(3)
        self.tree_sum(124, 4)
        e(f"""s_nop 0
v_permlane32_swap_b32 v124, v126
v_permlane32_swap_b32 v125, v127
s_nop 0
v_pk_add_f32 v[124:125], v[124:125], v[126:127]
v_cvt_pk_bf16_f32 v124, v124, v125
ds_write_b32 v8, v124 offset:{QBF}
ds_write_b32 v11, v11 offset:{QAL + 268}
ds_write_b32 v11, v11 offset:{QAL + 284}
s_waitcnt lgkmcnt(0)
s_barrier""")
        e(f"""v_lshrrev_b32 v8, 1, v1
v_and_b32 v9, 1, v1
v_cmp_gt_u32 vcc, 8, v8
v_lshlrev_b32 v128, 5, v8
v_mul_u32_u24 v129, 96, v8
v_add_u32 v129, {-768+12 & 0xffffffff:#x}, v129
v_cndmask_b32 v128, v129, v128, vcc
v_lshl_add_u32 v128, v9, 4, v128
v_mov_b32 v129, 32
v_cndmask_b32 v130, v129, 4, vcc
v_add_u32 v129, v128, v130
v_add_u32 v130, v129, v130
v_lshlrev_b32 v8, 10, v8
v_lshl_add_u32 v8, v9, 4, v8
s_lshr_b32 s10, s5, 4
s_mul_i32 s10, s10, {22*1024}
s_lshr_b32 s11, s6, 1
s_mul_i32 s11, s11, {11*1024}
s_add_u32 s10, s10, s11
s_and_b32 s11, s5, 15
s_lshl_b32 s11, s11, 6
s_add_u32 s10, s10, s11
s_and_b32 s11, s6, 1
s_lshl_b32 s11, s11, 5
s_add_u32 s10, s10, s11
s_add_u32 s10, s10, {QA}
v_mov_b32 v127, s67
v_mov_b32 v90, s65""")
        self.sig_prep(0, 70)
        if self.opt("sig0_early", 1):
            self.sig_send(70, 90, 11)
        e(f"""s_mov_b32 exec_lo, 0x3fffff
s_mov_b32 exec_hi, 0
s_barrier
ds_read_b32 v124, v128 offset:{QAL}
ds_read_b32 v125, v129 offset:{QAL}
ds_read_b32 v126, v130 offset:{QAL}
s_waitcnt lgkmcnt(0)
buffer_store_dwordx4 v[124:127], v8, s[40:43], s10 offen sc1
s_mov_b64 exec, -1""")
        if not self.opt("sig0_early", 1):
            self.sig_send(70, 90, 11)
        self.stamp(4)
        self.dbgtime(4, 0)
        self.dbgtime(5, 77)
        e("s_branch L_w_join")
        self.label("L_lo123")
        e("s_cmp_ge_u32 s9, 16\ns_cbranch_scc1 L_kv_lo")
        self.get_nonce_lds(90)
        e("s_barrier\ns_barrier\ns_branch L_w_join")
        self.label("L_hi")
        e(f"""s_lshr_b32 s13, s6, 1
s_lshl_b32 s13, s13, 8
s_and_b32 s14, s6, 1
s_lshl_b32 s14, s14, 4
s_add_u32 s13, s13, s14
s_sub_u32 s14, s7, 4
s_lshl_b32 s14, s14, 6
s_add_u32 s13, s13, s14
s_lshl_b32 s13, s13, 13
s_lshl_b32 s12, s5, 8
s_add_u32 s13, s13, s12
v_xor_b32 v7, v2, v3
v_lshlrev_b32 v7, 4, v7
v_lshl_add_u32 v7, v3, 13, v7
v_mov_b32 v227, {NB}
s_waitcnt lgkmcnt(0)""")
        self.srd(56, 36, 256)
        self.srd(40, 38, WS_RECORDS)
        e("s_cmp_ge_u32 s9, 16\ns_cbranch_scc1 L_kv_hi")
        lpw = self.newlabel("w_pw")
        e(f"""s_cmp_lg_u32 s7, 4
s_cbranch_scc1 {lpw}
s_lshl_b32 s68, s5, 12
s_add_u32 s68, s68, {Q1}
v_lshlrev_b32 v8, 6, v1
buffer_load_dword v91, v8, s[40:43], s68 offen sc1""")
        self.label(lpw)
        ntk = self.opt("nt_wuk", nt)
        if ntk == "none":
            ntk = ""
        if self.opt("sl_wuk", 1):
            e(f"s_sleep {self.opt('sl_wuk', 1)}")
        WKL = 32768
        self.srd(52, 22, 4194304)
        e(f"""s_sub_u32 s14, s7, 4
s_lshl_b32 s14, s14, 13
s_add_u32 s14, s14, {WKL}
v_lshlrev_b32 v6, 8, v2
v_add_u32 v6, s14, v6""")
        for k in range(8):
            e(f"""s_mov_b32 m0, s14
v_xor_b32 v8, {64*(k&3)}, v7
buffer_load_dwordx4 v8, s[52:55], s13 offen {ntk} lds
s_add_u32 s14, s14, 1024
s_add_u32 s13, s13, {32768 if k != 3 else 32768 + 16*8192}""")
        for t in range(4):
            e(f"""v_or_b32 v8, {4*t}, v3
v_xor_b32 v8, v8, v2
v_lshl_add_u32 v{100+t}, v8, 4, v6""")
        e(f"""v_lshlrev_b32 v9, 4, v3
s_sub_u32 s14, s7, 4
s_lshl_b32 s14, s14, 6
v_lshl_add_u32 v8, v3, 3, s14
s_barrier""")
        self.get_nonce_lds(90)
        e("s_waitcnt vmcnt(0)")
        self.stamp(1)
        for t in range(4):
            e(f"ds_read_b128 v[{36+4*t}:{39+4*t}], v{100+t}\nds_read_b128 v[{52+4*t}:{55+4*t}], v{100+t} offset:4096")
        e("s_waitcnt lgkmcnt(0)\ns_barrier")
        for t in range(4):
            e(f"ds_read_b128 v[{120+4*t}:{123+4*t}], v9 offset:{QBF + 64*t}")
        for t in range(4):
            c0 = "0" if t == 0 else "v[116:119]"
            c1 = "0" if t == 0 else "v[136:139]"
            e(f"s_waitcnt lgkmcnt({3-t})")
            e(f"v_mfma_f32_16x16x32_bf16 v[116:119], v[{36+4*t}:{39+4*t}], v[{120+4*t}:{123+4*t}], {c0}")
            e(f"v_mfma_f32_16x16x32_bf16 v[136:139], v[{52+4*t}:{55+4*t}], v[{120+4*t}:{123+4*t}], {c1}")
        e(f"""s_nop 6
v_cvt_pk_bf16_f32 v140, v116, v117
v_cvt_pk_bf16_f32 v141, v118, v119
v_cvt_pk_bf16_f32 v142, v136, v137
v_cvt_pk_bf16_f32 v143, v138, v139
ds_write_b64 v8, v[140:141] offset:{QAL}
ds_write_b64 v8, v[142:143] offset:{QAL + 32}
s_waitcnt lgkmcnt(0)
s_barrier""")
        self.label("L_w_join")
        self.masks(72, 2, 92, True)
        if self.opt("sl_de", 0):
            e(f"s_sleep {self.opt('sl_de', 0)}")
        nto = self.opt("nt_wo", nt)
        e("""s_lshr_b32 s10, s6, 1
s_and_b32 s11, s6, 1
v_lshrrev_b32 v6, 3, v2
v_lshl_add_u32 v6, v6, 2, v3
v_lshlrev_b32 v7, 4, v6
v_lshlrev_b32 v6, 13, v6
v_and_b32 v8, 7, v2
v_lshl_add_u32 v6, v8, 4, v6
s_lshl_b32 s12, s10, 8
s_lshl_b32 s13, s7, 5
s_add_u32 s12, s12, s13
s_lshl_b32 s12, s12, 13
s_lshl_b32 s13, s5, 8
s_add_u32 s12, s12, s13
s_lshl_b32 s13, s11, 7
s_add_u32 s12, s12, s13
v_add_u32 v6, s12, v6""")
        for t in range(4):
            e(f"global_load_dwordx4 v[{16+4*t}:{19+4*t}], v6, s[24:25] {nt}")
            if t < 3:
                e("v_add_u32 v6, 0x10000, v6")
        lwo = self.newlabel("w_nowo")
        e(f"""s_cmp_ge_u32 s7, 4
s_cbranch_scc1 {lwo}
v_mul_u32_u24 v6, 5120, v3
v_lshl_add_u32 v6, v2, 4, v6
s_lshl_b32 s12, s5, 7
s_lshl_b32 s13, s11, 6
s_add_u32 s12, s12, s13
s_lshl_b32 s13, s7, 4
s_add_u32 s12, s12, s13
s_mul_i32 s12, s12, 1280
v_add_u32 v6, s12, v6""")
        for t in range(4):
            for b in range(5):
                r = 160 + (t * 5 + b) * 4
                e(f"global_load_dwordx4 v[{r}:{r+3}], v6, s[26:27] offset:{1280*(t%2) + 256*b} {nto}")
            if t == 1:
                e("v_add_u32 v6, 2560, v6")
        lfp = self.newlabel("w_fgp")
        e(f"s_branch {lfp}")
        self.label(lwo)
        if self.opt("pf_fg", 0):
            pol = self.opt("pf_pol", "none").replace("none", "")
            e(f"""s_lshr_b32 s12, s9, 2
s_lshl_b32 s12, s12, 3
s_add_u32 s12, s12, s8
s_cmp_ge_u32 s12, 27
s_cbranch_scc1 {lfp}
s_and_b32 s13, s9, 3
s_sub_u32 s14, s7, 4
s_mul_i32 s14, s14, 40
v_add_u32 v6, s14, v1
s_lshl_b32 s15, s12, 2
s_add_u32 s15, s15, s13
s_mul_i32 s15, s15, 20480
v_lshlrev_b32 v8, 7, v6
v_add_u32 v8, s15, v8
s_mul_i32 s13, s13, 160
v_add_u32 v6, s13, v6
v_mul_u32_u24 v6, 3456, v6
s_lshl_b32 s12, s12, 7
v_add_u32 v6, s12, v6
s_mov_b32 exec_hi, 0xff
global_load_dword v160, v8, s[32:33] {pol}
global_load_dword v161, v6, s[30:31] {pol}
s_mov_b64 exec, -1""")
        self.label(lfp)
        e(f"""v_and_b32 v8, 1, v3
v_lshlrev_b32 v8, 1, v8
v_lshrrev_b32 v9, 1, v3
v_or_b32 v8, v8, v9
v_and_b32 v9, 1, v1
v_lshl_add_u32 v8, v9, 2, v8
v_bfe_u32 v9, v1, 1, 2
v_lshl_add_u32 v8, v8, 2, v9
v_lshlrev_b32 v8, 2, v8
s_lshl_b32 s12, s7, 7
v_add_u32 v8, s12, v8
v_add_u32 v7, s12, v7
v_lshrrev_b32 v9, 3, v1
v_lshlrev_b32 v10, 4, v9
v_lshlrev_b32 v9, 9, v9
v_and_b32 v6, 7, v1
v_lshl_add_u32 v9, v6, 4, v9
s_lshl_b32 s12, s5, 2
s_lshl_b32 s13, s10, 1
s_add_u32 s12, s12, s13
s_lshr_b32 s13, s7, 2
s_add_u32 s12, s12, s13
s_lshl_b32 s12, s12, 14
s_and_b32 s13, s7, 3
s_lshl_b32 s13, s13, 7
s_add_u32 s12, s12, s13
s_add_u32 s12, s12, {OB}
s_add_u32 s13, s12, 4096
s_add_u32 s14, s12, 8192
s_add_u32 s15, s12, 12288
s_lshl_b32 s68, s5, 9
s_add_u32 s68, s68, {OS}
v_and_b32 v36, 7, v2
v_lshlrev_b32 v36, 5, v36
v_lshl_add_u32 v36, v3, 4, v36
s_lshl_b32 s61, s7, 8
v_add_u32 v36, s61, v36
s_lshl_b32 s61, s7, 6
v_lshl_add_u32 v37, v3, 4, s61
v_lshlrev_b32 v38, 5, v2
v_lshl_add_u32 v38, v3, 4, v38
s_mul_i32 s61, s7, 2560
v_add_u32 v38, s61, v38
v_subrev_u32 v39, 256, v0
v_lshrrev_b32 v40, 3, v39
v_lshlrev_b32 v40, 11, v40
v_and_b32 v41, 7, v39
v_lshl_add_u32 v40, v41, 4, v40
v_lshlrev_b32 v41, 4, v39
s_mul_i32 s69, s8, {20*2048}
s_lshl_b32 s61, s9, 7
s_add_u32 s69, s69, s61
s_add_u32 s69, s69, {EL}
s_and_b32 s61, s4, 0x67
v_mov_b32 v42, s65
s_mov_b32 s62, {LOG2E:#x}""")
        self.sig_prep(1, 70, "s61")
        self.sig_prep(2, 71)
        self.sig_prep(3, 72)
        e("s_waitcnt vmcnt(0)")
        self.stamp(5)
        lrq = self.newlabel("w_rq")
        lpe = self.newlabel("w_pe")
        e(f"""s_cmp_lg_u32 s7, 0
s_cbranch_scc1 {lrq}
s_mov_b32 exec_hi, 0
buffer_store_dwordx4 v[120:123], v5, s[40:43], s73 offen sc1
s_mov_b64 exec, -1""")
        self.label(lrq)
        e(f"""s_sub_u32 s61, s7, 4
s_lshl_b32 s61, s61, 4
s_add_u32 s61, s61, s9
s_cmp_ge_u32 s61, 20
s_cbranch_scc1 {lpe}
s_mul_i32 s63, s8, 20
s_add_u32 s63, s63, s61
s_lshl_b32 s63, s63, 11
s_add_u32 s63, s63, {EL}
v_lshlrev_b32 v44, 5, v1
buffer_load_dword v45, v44, s[40:43], s63 offen sc1""")
        self.label(lpe)
        self.sig_wait(71, 44, 11, self.opt("sl_h3", 44))
        self.stamp(6)
        loads = [(f"buffer_load_dwordx4 v[{48+4*k}:{51+4*k}], v10, s[40:43], s68 offen offset:{128*k} sc1", 48 + 4 * k, 4) for k in range(4)]
        loads += [(f"buffer_load_dwordx4 v[{120+4*k}:{123+4*k}], v9, s[40:43], s{12+k} offen sc1", 120 + 4 * k, 4) for k in range(4)]
        self.poll(loads, 'tag', 44)
        self.stamp(7)
        for k in range(4):
            e(f"v_and_b32 v{48+4*k}, s64, v{48+4*k}")
        e(f"""v_max3_f32 v44, v48, v52, v56
v_max_f32 v44, v44, v60
s_nop 1
v_max_f32_dpp v44, v44, v44 row_ror:8 row_mask:0xf bank_mask:0xf
s_nop 0
v_mov_b32 v45, v44
s_nop 1
v_permlane16_swap_b32 v44, v45
s_nop 0
v_max_f32 v44, v44, v45
v_mov_b32 v45, v44
s_nop 1
v_permlane32_swap_b32 v44, v45
s_nop 0
v_max_f32 v44, v44, v45
v_mul_f32 v44, s62, v44""")
        for k in range(4):
            e(f"v_fma_f32 v{48+4*k}, v{48+4*k}, s62, -v44")
        for k in range(4):
            e(f"v_exp_f32 v{48+4*k}, v{48+4*k}")
        e("s_nop 0\nv_mul_f32 v46, v48, v49")
        for k in range(1, 4):
            e(f"v_fmac_f32 v46, v{48+4*k}, v{49+4*k}")
        for r in (0, 2):
            e(f"v_pk_mul_f32 v[{120+r}:{121+r}], v[{120+r}:{121+r}], v[48:49] op_sel_hi:[1,0]")
        e("v_add_f32_dpp v46, v46, v46 row_ror:8 row_mask:0xf bank_mask:0xf")
        for k in range(1, 4):
            for r in (0, 2):
                e(f"v_pk_fma_f32 v[{120+r}:{121+r}], v[{120+4*k+r}:{121+4*k+r}], v[{48+4*k}:{49+4*k}], v[{120+r}:{121+r}] op_sel_hi:[1,0,1]")
            if k == 1:
                e("v_mov_b32 v45, v46")
            if k == 2:
                e("v_permlane16_swap_b32 v46, v45")
        e(f"""v_add_f32 v46, v46, v45
v_permlane32_swap_b32 v120, v121
v_mov_b32 v45, v46
v_permlane32_swap_b32 v122, v123
v_add_f32 v120, v120, v121
v_permlane32_swap_b32 v46, v45
v_add_f32 v122, v122, v123
v_add_f32 v46, v46, v45
s_nop 0
v_permlane16_swap_b32 v120, v122
v_rcp_f32 v46, v46
v_add_f32 v120, v120, v122
s_nop 1
v_add_f32_dpp v120, v120, v120 row_ror:8 row_mask:0xf bank_mask:0xf
s_nop 0
v_mul_f32 v120, v120, v46
v_cvt_pk_bf16_f32 v120, v120, v120
ds_write_b32 v8, v120 offset:{CLX}
s_waitcnt lgkmcnt(0)
ds_read_b128 v[120:123], v7 offset:{CLX}
s_waitcnt lgkmcnt(0)""")
        for t in range(4):
            for r in range(4):
                e(f"v_and_b32 v{96+4*t+r}, v{120+t}, v{72+r}")
            if t > 0:
                c = "0" if t == 1 else "v[116:119]"
                e(f"v_mfma_f32_16x16x32_bf16 v[116:119], v[{96+4*(t-1)}:{99+4*(t-1)}], v[{16+4*(t-1)}:{19+4*(t-1)}], {c}")
        e("s_nop 0\nv_mfma_f32_16x16x32_bf16 v[116:119], v[108:111], v[28:31], v[116:119]\ns_nop 7")
        for r in range(4):
            e(f"v_mov_b32 v{124+r}, v{116+r}")
        for r in range(4):
            e(f"v_permlane32_swap_b32 v{116+r}, v{124+r}")
        for r in range(4):
            e(f"v_add_f32_dpp v{116+r}, v{124+r}, v{116+r} row_ror:8 row_mask:0xf bank_mask:0xf")
        e(f"""s_mov_b32 exec_lo, 0x00ff00ff
s_mov_b32 exec_hi, 0
ds_write_b128 v36, v[116:119] offset:{RED}
s_mov_b64 exec, -1
s_waitcnt lgkmcnt(0)
s_barrier""")
        lhi = self.newlabel("w_hi")
        e(f"s_cmp_ge_u32 s7, 4\ns_cbranch_scc1 {lhi}")
        for p in range(8):
            e(f"ds_read_b128 v[{120+4*p}:{123+4*p}], v37 offset:{RED + 256*p}")
        e("s_waitcnt lgkmcnt(0)")
        self.tree_sum(120, 8)
        for t in range(4):
            e(f"v_cvt_pk_bf16_f32 v{124+t}, v{120+t}, v{120+t}")
        for t in range(4):
            for r in range(4):
                e(f"v_and_b32 v{96+4*t+r}, v{124+t}, v{68+r}")
            e("s_nop 1")
            for b in range(5):
                r = 160 + (t * 5 + b) * 4
                c = "0" if t == 0 else f"v[{136+4*b}:{139+4*b}]"
                e(f"v_mfma_f32_16x16x32_bf16 v[{136+4*b}:{139+4*b}], v[{96+4*t}:{99+4*t}], v[{r}:{r+3}], {c}")
        e("s_mov_b32 exec_hi, 0\ns_nop 3")
        for b in range(5):
            if b == 4:
                e("s_nop 3")
            e(f"ds_write_b128 v38, v[{136+4*b}:{139+4*b}] offset:{RED2 + 512*b}")
        e("s_mov_b64 exec, -1\ns_waitcnt lgkmcnt(0)\ns_barrier")
        self.stamp(8)
        self.dbgtime(8, 5)
        e("""s_cmp_ge_u32 s4, 40
s_cbranch_scc1 L_fin
s_cmp_lg_u32 s7, 0
s_cbranch_scc1 L_fin""")
        self.colidx(8, 9)
        self.srd(44, 16, 1280)
        self.srd(52, 34, 1280)
        e(f"""s_lshl_b32 s12, s4, 5
v_lshlrev_b32 v9, 1, v8
buffer_load_ushort v50, v9, s[44:47], s12 offen
s_mul_i32 s12, s4, 7168
s_add_u32 s12, s12, {FB}
s_add_u32 s13, s12, 4096
v_cmp_gt_u32 vcc, 48, v1
v_add_u32 v10, 1024, v5
s_nop 0
v_cndmask_b32 v10, v5, v10, vcc
v_bfe_u32 v51, v1, 2, 3
v_mul_u32_u24 v51, 2560, v51
v_and_b32 v52, 3, v1
v_lshl_add_u32 v51, v52, 4, v51
s_lshl_b32 s14, s4, 6
s_add_u32 s14, s14, {XB}""")
        self.sig_prep(4, 70)
        self.sig_wait(72, 16, 11, self.opt("sl_h5", 8) + 8)
        self.poll([("buffer_load_dwordx4 v[44:47], v51, s[40:43], s14 offen sc1", 44, 4)], 'tag', 53)
        e("v_cmp_gt_u32 vcc, 32, v1\ns_nop 1")
        for r in range(4):
            e(f"v_cndmask_b32 v{44+r}, 0, v{44+r}, vcc")
        self.reduce16(44, 1)
        e(f"""v_cvt_pk_bf16_f32 v44, v44, v44
v_and_b32 v44, 0xffff0000, v44
v_lshlrev_b32 v50, 16, v50
v_add_f32 v44, v44, v50
v_cvt_pk_bf16_f32 v44, v44, v44
v_and_b32 v44, 0xffff0000, v44
s_lshl_b32 s15, s4, 5
s_mov_b32 s62, 0x000f000f
s_mov_b32 s63, 0x000f000f
v_cmp_gt_u32 s[68:69], 48, v1""")
        self.sig_wait(70, 16, 11, self.opt("sl_h6", 8))
        loads = [(f"buffer_load_dwordx4 v[{16+4*k}:{19+4*k}], v5, s[40:43], s{12 + k//4} offen offset:{1024*(k%4)} sc1", 16 + 4 * k, 4) for k in range(6)]
        loads += [("buffer_load_dwordx4 v[40:43], v10, s[40:43], s13 offen offset:1024 sc1", 40, 4)]
        self.poll(loads, 'tag', 53)
        self.stamp(9)
        for r in range(4):
            e(f"v_cndmask_b32 v{40+r}, 0, v{40+r}, s[68:69]")
        self.reduce16(16, 7)
        e(f"""s_nop 0
v_cvt_pk_bf16_f32 v16, v16, v16
v_and_b32 v16, 0xffff0000, v16
v_add_f32 v16, v16, v44
v_cvt_pk_bf16_f32 v16, v16, v16
s_mov_b64 exec, s[62:63]
buffer_store_short v16, v9, s[52:55], s15 offen
s_mov_b64 exec, -1""")
        self.stamp(10)
        if self.opt("pad", 0):
            lp = self.newlabel("pad")
            e("s_load_dword s12, s[36:37], 4 glc\ns_waitcnt lgkmcnt(0)")
            self.label(lp)
            e(f"""s_memrealtime s[10:11]
s_waitcnt lgkmcnt(0)
s_sub_u32 s10, s10, s12
s_cmp_lt_u32 s10, {self.opt("pad", 0)}
s_cbranch_scc1 {lp}""")
        self.dbgtime(2, 0)
        self.dbgtime(3, 39)
        e("s_branch L_fin")
        self.label(lhi)
        e(f"""s_sub_u32 s10, s7, 4
s_lshl_b32 s10, s10, 4
s_add_u32 s10, s10, s9
s_mul_i32 s12, s8, 20
s_add_u32 s12, s12, s10
s_lshl_b32 s12, s12, 11
s_add_u32 s12, s12, {EL}
s_mul_i32 s13, s8, 2560
s_lshl_b32 s14, s10, 7
s_add_u32 s13, s13, s14
s_add_u32 s13, s13, {XB}
v_cmp_gt_u32 vcc, 160, v39
s_and_saveexec_b64 s[62:63], vcc
s_barrier
s_cbranch_execz L_fin""")
        for wv in range(4):
            e(f"ds_read_b128 v[{120+4*wv}:{123+4*wv}], v41 offset:{RED2 + 2560*wv}")
        e("s_waitcnt lgkmcnt(0)")
        self.tree_sum(120, 4)
        self.tag4(120)
        e("buffer_store_dwordx4 v[120:123], v40, s[40:43], s69 offen")
        self.stamp(8)

        def restore_el():
            e("buffer_store_dwordx4 v[120:123], v40, s[40:43], s69 offen sc1")
        lnr = self.newlabel("w_nored")
        e(f"s_cmp_ge_u32 s10, 20\ns_cbranch_scc1 {lnr}")
        self.poll([(f"buffer_load_dwordx4 v[{124+4*k}:{127+4*k}], v5, s[40:43], s12 offen offset:{1024*k} sc1", 124 + 4 * k, 4) for k in range(2)], 'tag', 44, restore=restore_el)
        self.stamp(9)
        lns = self.newlabel("w_nosig")
        e(f"s_cmp_lg_u32 s7, 4\ns_cbranch_scc1 {lns}")
        self.sig_send(72, 42, 11)
        self.label(lns)
        self.tree_sum(124, 2)
        e("s_nop 0")
        for r in range(4):
            e(f"v_add_f32_dpp v{124+r}, v{124+r}, v{124+r} row_ror:8 row_mask:0xf bank_mask:0xf")
        for r in range(4):
            e(f"v_mov_b32 v{128+r}, v{124+r}")
        for r in range(4):
            e(f"v_permlane16_swap_b32 v{124+r}, v{128+r}")
        self.tree_sum(124, 2)
        for r in range(4):
            e(f"v_mov_b32 v{128+r}, v{124+r}")
        for r in range(4):
            e(f"v_permlane32_swap_b32 v{124+r}, v{128+r}")
        self.tree_sum(124, 2)
        self.tag4(124)
        e("""s_mov_b64 exec, 0xff
buffer_store_dwordx4 v[124:127], v5, s[40:43], s13 offen sc1
s_mov_b64 exec, -1""")
        self.stamp(10)
        self.label(lnr)
        e(f"s_sleep {self.opt('sl_el', 64)}")
        restore_el()
        e("s_branch L_fin")

    def colidx(self, vd, vt):
        self.e(f"""v_and_b32 v{vd}, 1, v3
v_lshlrev_b32 v{vd}, 1, v{vd}
v_lshrrev_b32 v{vt}, 1, v3
v_or_b32 v{vd}, v{vd}, v{vt}
v_and_b32 v{vt}, 3, v1
v_lshl_add_u32 v{vd}, v{vt}, 2, v{vd}""")

    def reduce16(self, v0, n):
        e = self.e
        self.tree_sum(v0, n)
        a = v0
        e(f"""s_nop 1
v_permlane32_swap_b32 v{a}, v{a+1}
v_permlane32_swap_b32 v{a+2}, v{a+3}
s_nop 0
v_add_f32 v{a}, v{a}, v{a+1}
v_add_f32 v{a+2}, v{a+2}, v{a+3}
s_nop 1
v_permlane16_swap_b32 v{a}, v{a+2}
s_nop 0
v_add_f32 v{a}, v{a}, v{a+2}
s_nop 1
v_add_f32_dpp v{a}, v{a}, v{a} row_ror:8 row_mask:0xf bank_mask:0xf
s_nop 1
v_add_f32_dpp v{a}, v{a}, v{a} row_ror:4 row_mask:0xf bank_mask:0xf""")

    def acc(self, k):
        return 168 + 4 * k if k < 11 else 64 + 4 * (k - 11)

    def roleKV(self, nt):
        e = self.e
        RT, BT, QL, XCH, PL, SL = 0, 67584, 4096, 49152, 4096, 64
        W1L, HN, HF = 24576, 45056, 50176

        def ids():
            e(f"""s_bfe_u32 s10, s9, 0x20002
s_lshl_b32 s5, s8, 2
s_add_u32 s5, s5, s10
s_and_b32 s6, s9, 3""")
            self.srd(44, 18, 8388608)
            e(f"""s_lshl_b32 s10, s5, 3
s_lshl_b32 s11, s6, 1
s_add_u32 s10, s10, s11
s_mul_i32 s68, s10, {2*PMSG}
s_add_u32 s68, s68, {PB}
s_lshl_b32 s69, s5, 7
s_add_u32 s69, s69, {RDY}""")

        def rows(done):
            e(f"""s_sub_u32 s15, s7, 1
s_lshl_b32 s12, s5, 8
s_lshl_b32 s13, s6, 6
s_add_u32 s12, s12, s13
s_add_u32 s12, s12, s15
s_lshl_b32 s12, s12, 10
s_mul_i32 s14, s15, 1040
s_add_u32 s14, s14, {RT}""")
            for k in range(11):
                if k == 10:
                    e(f"s_cmp_ge_u32 s15, 4\ns_cbranch_scc1 {done}")
                e(f"""s_mov_b32 m0, s14
s_add_u32 s14, s14, {6*1040}
buffer_load_dwordx4 v5, s[44:47], s12 offen {nt} lds
s_add_u32 s12, s12, {6*1024}""")
        lj = "L_kv_join"
        self.label("L_kv_w0")
        ids()
        e(f"s_branch {lj}")
        self.label("L_kv_lo")
        ids()
        rows(lj)
        e(f"s_branch {lj}")
        self.label("L_kv_hi")
        ids()
        l7 = self.newlabel("kv_w7")
        lrd = self.newlabel("kv_rowsd")
        e(f"s_cmp_eq_u32 s7, 7\ns_cbranch_scc1 {l7}")
        if self.opt("sl_ckv", 28):
            e(f"s_sleep {self.opt('sl_ckv', 28)}")
        rows(lrd)
        self.label(lrd)
        e(f"s_barrier\ns_branch {lj}")
        self.label(l7)
        e("""v_mov_b32 v20, -1
v_mov_b32 v21, -1
v_mov_b32 v22, -1
v_mov_b32 v23, -1
buffer_store_dwordx4 v[20:23], v5, s[40:43], s68 offen sc1
buffer_store_dwordx4 v[20:23], v5, s[40:43], s68 offen offset:1024 sc1
buffer_store_dwordx4 v[20:23], v5, s[40:43], s68 offen offset:2048 sc1
buffer_store_dwordx4 v[20:23], v5, s[40:43], s68 offen offset:3072 sc1
buffer_store_dwordx4 v[20:23], v5, s[40:43], s68 offen offset:3584 sc1""")
        e(f"""ds_write_b32 v227, v11 offset:{FLG}
ds_write_b32 v227, v11 offset:{FLG+4}
s_waitcnt lgkmcnt(0)
s_barrier
ds_read_b32 v60, v227 offset:{NON}
s_lshl_b32 s12, s6, 4
s_add_u32 s12, s12, s69
s_waitcnt vmcnt(0) lgkmcnt(0)
s_getreg_b32 s13, hwreg(HW_REG_XCC_ID)
v_mov_b32 v61, s13
v_mov_b32 v62, v60
v_mov_b32 v63, v60
s_mov_b64 exec, 1
buffer_store_dwordx4 v[60:63], v11, s[40:43], s12 offen sc1
s_mov_b64 exec, -1
v_readfirstlane_b32 s65, v60
s_mov_b32 s60, 0""")
        lr = self.newlabel("kv_rdy")
        lrdn = self.newlabel("kv_rdyd")
        self.label(lr)
        e(f"""s_load_dwordx16 s[76:91], s[38:39], s69 glc
s_add_u32 s60, s60, 1
s_cmp_ge_u32 s60, {SPIN_LIMIT}
s_cbranch_scc1 {lrdn}
s_waitcnt lgkmcnt(0)
s_xor_b32 s76, s76, s65
s_xor_b32 s80, s80, s65
s_xor_b32 s84, s84, s65
s_xor_b32 s88, s88, s65
s_or_b32 s76, s76, s80
s_or_b32 s84, s84, s88
s_or_b32 s76, s76, s84
s_cbranch_scc1 {lr}""")
        self.label(lrdn)
        e(f"""s_waitcnt lgkmcnt(0)
s_xor_b32 s77, s77, s13
s_xor_b32 s81, s81, s13
s_xor_b32 s85, s85, s13
s_xor_b32 s89, s89, s13
s_or_b32 s77, s77, s81
s_or_b32 s85, s85, s89
s_or_b32 s77, s77, s85
v_mov_b32 v8, s77
ds_write_b32 v227, v8 offset:8
s_mul_i32 s12, s5, {16*PMSG}
s_add_u32 s12, s12, {PB}
v_mul_u32_u24 v8, 96, v1
buffer_load_dword v250, v8, s[40:43], s12 offen sc1
s_add_u32 s12, s12, 6144
buffer_load_dword v251, v8, s[40:43], s12 offen sc1
s_add_u32 s12, s12, 6144
buffer_load_dword v252, v8, s[40:43], s12 offen sc1
s_waitcnt lgkmcnt(0)""")
        self.label(lj)
        e(f"""s_lshr_b32 s10, s7, 2
s_lshl_b32 s10, s10, 9
s_bfe_u32 s11, s7, 0x10001
s_mul_i32 s11, s11, {32*1040}
s_add_u32 s10, s10, s11
s_add_u32 s10, s10, {RT}
v_mul_u32_u24 v231, 1040, v2
v_lshl_add_u32 v231, v3, 4, v231
v_add_u32 v231, s10, v231""")
        e(f"""s_lshl_b32 s48, s7, 10
s_add_u32 s49, s48, {QA}
s_add_u32 s48, s48, {QL}
s_lshr_b32 s10, s7, 2
s_mul_i32 s10, s10, {11*1024}
s_and_b32 s11, s7, 1
s_mul_i32 s12, s11, {22*1024}
s_add_u32 s10, s10, s12
v_lshlrev_b32 v10, 6, v2
v_lshl_add_u32 v10, v3, 4, v10
v_add_u32 v6, s10, v10
s_and_b32 s10, s7, 3
s_lshl_b32 s10, s10, 11
v_add_u32 v9, s10, v5
s_lshl_b32 s10, s7, 11
v_add_u32 v7, s10, v5
s_and_b32 s10, s7, 3
s_mul_i32 s10, s10, {PMSG}
s_add_u32 s50, s68, s10
v_lshlrev_b32 v212, 3, v2
s_mul_i32 s51, s5, {16*PMSG}
s_mul_i32 s10, s7, {2*PMSG}
s_add_u32 s51, s51, s10
s_add_u32 s51, s51, {PB}
v_and_b32 v213, 1, v3
v_mul_u32_u24 v213, {PMSG}, v213
v_add_u32 v213, v213, v212
v_and_b32 v214, 31, v1
v_lshlrev_b32 v214, 6, v214
s_lshl_b32 s10, s7, 3
v_add_u32 v214, s10, v214
s_lshl_b32 s10, s11, 10
v_add_u32 v215, s10, v10
s_lshl_b32 s10, s11, 4
v_add_u32 v216, s10, v2
v_lshlrev_b32 v217, 6, v216
v_lshlrev_b32 v218, 16, v216
v_lshl_add_u32 v218, v3, 4, v218
s_lshl_b32 s52, s6, 5
s_add_u32 s52, s52, s5
s_lshl_b32 s52, s52, 9
s_lshr_b32 s10, s7, 1
s_lshl_b32 s10, s10, 7
s_add_u32 s52, s52, s10
s_add_u32 s52, s52, {OB}
v_lshlrev_b32 v219, 9, v216
s_lshl_b32 s53, s5, 4
s_add_u32 s53, s53, {OS}
s_mov_b32 s54, {SCALE:#x}
s_mov_b32 s55, {LOG2E:#x}
v_mov_b32 v221, 1
v_lshlrev_b32 v8, 1, v3
v_xor_b32 v8, v8, v2
v_lshlrev_b32 v222, 10, v3
v_lshl_add_u32 v222, v8, 4, v222
v_xor_b32 v226, 0x80, v222
s_lshl_b32 s74, s5, 8
s_lshl_b32 s13, s7, 5
s_add_u32 s74, s74, s13
s_lshl_b32 s74, s74, 10
s_lshl_b32 s14, s6, 8
s_add_u32 s74, s74, s14
s_lshl_b32 s75, s7, 13
s_add_u32 s75, s75, {BT}
v_lshrrev_b32 v223, 2, v2
v_lshl_add_u32 v223, v3, 2, v223
v_and_b32 v229, 7, v223
s_lshr_b32 s12, s7, 1
s_lshl_b32 s12, s12, 1
v_xor_b32 v229, s12, v229
v_lshlrev_b32 v223, 8, v223
v_lshl_add_u32 v223, v229, 5, v223
v_and_b32 v8, 3, v2
v_lshl_add_u32 v223, v8, 3, v223
v_add_u32 v223, {BT}, v223
v_xor_b32 v229, 32, v223
v_lshlrev_b32 v230, 2, v2""")
        self.sig_prep(0, 70)
        self.sig_prep(1, 71)
        self.sig_prep(2, 72)
        nt2 = self.opt("nt_block", nt)

        def blk_dma():
            for k in range(8):
                e(f"""s_mov_b32 m0, s75
s_add_u32 s75, s75, 1024
buffer_load_dwordx4 v{222 if k % 2 == 0 else 226}, s[44:47], s74 offen {nt2} lds
s_add_u32 s74, s74, 4096""")

        def tr_reads():
            for p in range(8):
                for ctl in range(2):
                    for hh in range(2):
                        r = 104 + (p * 2 + ctl) * 4 + 2 * hh
                        e(f"ds_read_b64_tr_b16 v[{r}:{r+1}], v{223 if ctl == 0 else 229} offset:{8192*p + 4096*hh}")
                if p % 3 == 2:
                    e("s_waitcnt lgkmcnt(3)")
        self.tr_reads = tr_reads
        early = 1
        self.get_nonce_lds(240)
        e("v_mov_b32 v220, s65\ns_mov_b32 s73x, 0".replace("s73x", "s47x").replace("s47x", "s3"))
        def rq():
            lrq = self.newlabel("kv_rq")
            e(f"""s_cmp_lg_u32 s7, 0
s_cbranch_scc1 {lrq}
s_mov_b32 exec_hi, 0
buffer_store_dwordx4 v[232:235], v5, s[40:43], s73 offen sc1
s_mov_b64 exec, -1""")
            self.label(lrq)
        if self.opt("sl_blk", 0):
            e(f"s_sleep {self.opt('sl_blk', 0)}")
        lb7 = self.newlabel("kv_b7")
        lb0 = self.newlabel("kv_b0")
        e(f"s_cmp_eq_u32 s7, 7\ns_cbranch_scc1 {lb7}")
        blk_dma()
        e(f"s_cmp_lg_u32 s7, 0\ns_cbranch_scc1 {lb0}\ns_add_u32 s74, s74, {192*1024}\ns_add_u32 s75, s75, {48*1024}")
        blk_dma()
        e(f"s_branch {lb7}")
        self.label(lb0)
        e("s_waitcnt vmcnt(8)")
        self.label(lb7)
        e("s_barrier")
        self.stamp(3)
        for u in range(8):
            e(f"ds_read_b128 v[{16+4*u}:{19+4*u}], v231 offset:{64*u}")
        for u in range(8):
            if u == 7:
                e("s_waitcnt lgkmcnt(8)")
            e(f"ds_read_b128 v[{60+4*u}:{63+4*u}], v231 offset:{16*1040 + 64*u}")
        e("s_load_dword s66, s[38:39], s70 glc\nds_read_b32 v237, v227 offset:8")
        e("v_mov_b32 v232, v120\nv_mov_b32 v233, v121\nv_mov_b32 v234, v122\nv_mov_b32 v235, v123\ns_waitcnt lgkmcnt(0)")
        for a in range(2):
            for z in range(3):
                for i in range(3):
                    sidx = 3 * z + i
                    d = 16 + 44 * a + 4 * (8 + z) + i
                    if sidx < 8:
                        e(f"v_mov_b32 v{d}, v{16+44*a+4*sidx+3}")
                    else:
                        e(f"v_mov_b32 v{d}, 0")
                e(f"v_mov_b32 v{16+44*a+4*(8+z)+3}, 0")
        e("v_readfirstlane_b32 s75, v237")
        if self.opt("dbg1", 0): self.stamp(9)
        e("s_waitcnt vmcnt(0)")
        if self.opt("dbg1", 0): self.stamp(10)
        e("s_barrier")
        if self.opt("dbg1", 0): self.stamp(1)
        lsk0 = self.newlabel("kv_sig0ok")
        e(f"s_cmp_eq_u32 s66, s65\ns_cbranch_scc1 {lsk0}")
        self.sig_wait(70, 240, 11, self.opt("sl_h2", 0), restore=rq)
        self.label(lsk0)
        self.stamp(11)
        e("s_mov_b32 s60, 0")
        lsw = self.newlabel("kv_sweep")
        self.label(lsw)
        e("s_mov_b32 s10, s48\ns_mov_b32 s11, s49")
        for k in range(6):
            if k == 5:
                l5 = self.newlabel("kv_sw5")
                e(f"s_cmp_ge_u32 s7, 4\ns_cbranch_scc1 {l5}")
            e(f"""s_mov_b32 m0, s10
s_add_u32 s10, s10, 8192
buffer_load_dwordx4 v5, s[40:43], s11 offen sc1 lds
s_add_u32 s11, s11, 8192""")
            if k == 5:
                self.label(l5)
        ltr = self.newlabel("kv_notr")
        e(f"s_cmp_lg_u32 s60, 0\ns_cbranch_scc1 {ltr}")
        tr_reads()
        self.label(ltr)
        e("s_waitcnt vmcnt(0) lgkmcnt(0)\ns_barrier")
        for u in range(11):
            e(f"ds_read_b128 v[{168+4*u}:{171+4*u}], v6 offset:{QL + 1024*u}")
        self.stamp(4)

        def chk(u):
            r = 168 + 4 * u + 3
            e(f"s_waitcnt lgkmcnt({10 - u})")
            if u == 0:
                e(f"v_xor_b32 v224, s67, v{r}")
            else:
                e(f"v_bitop3_b32 v224, v224, v{r}, s67 bitop3:0xf6")
            e(f"v_mov_b32 v{r}, 0")
        chk(0)
        for u in range(11):
            if u + 1 < 11:
                chk(u + 1)
            else:
                e("v_cmp_ne_u32 vcc, 0, v224\nv_add_u32 v225, s3, v227")
            r = 168 + 4 * u
            for a in range(2):
                c = "0" if u == 0 else f"v[{240+4*a}:{243+4*a}]"
                e(f"v_mfma_f32_16x16x32_bf16 v[{240+4*a}:{243+4*a}], v[{16+44*a+4*u}:{19+44*a+4*u}], v[{r}:{r+3}], {c}")
        lok = self.newlabel("kv_ok")
        e(f"""s_cmp_eq_u64 vcc, 0
s_cbranch_scc1 {lok}
ds_write_b32 v225, v221 offset:{FLG}""")
        self.label(lok)
        lnx = self.newlabel("kv_nox")
        e(f"""s_cmp_lt_u32 s7, 4
s_cbranch_scc1 {lnx}
s_nop 3
ds_write_b128 v9, v[240:243] offset:{XCH}
ds_write_b128 v9, v[244:247] offset:{XCH + 1024}""")
        self.label(lnx)
        e(f"""s_waitcnt lgkmcnt(0)
s_barrier
ds_read_b32 v224, v225 offset:{FLG}
ds_read_b128 v[168:171], v9 offset:{XCH}
ds_read_b128 v[172:175], v9 offset:{XCH + 1024}""")
        lgo = self.newlabel("kv_go")
        e(f"""s_waitcnt lgkmcnt(2)
v_readfirstlane_b32 s10, v224
s_nop 0
s_cmp_eq_u32 s10, 0
s_cbranch_scc1 {lgo}
s_waitcnt lgkmcnt(0)
s_xor_b32 s3, s3, 4
v_add_u32 v225, s3, v227
ds_write_b32 v225, v11 offset:{FLG}
s_add_u32 s60, s60, 1
s_waitcnt lgkmcnt(0)
s_barrier""")
        rq()
        e(f"""s_cmp_lt_u32 s60, {SPIN_LIMIT}
s_cbranch_scc1 {lsw}""")
        self.label(lgo)
        self.stamp(5)
        lnsm = self.newlabel("kv_nosm")
        e(f"s_cmp_ge_u32 s7, 4\ns_cbranch_scc1 {lnsm}\ns_waitcnt lgkmcnt(0)")
        for k in range(4):
            e(f"v_pk_add_f32 v[{168+2*k}:{169+2*k}], v[{168+2*k}:{169+2*k}], v[{240+2*k}:{241+2*k}]")
        for k in range(4):
            e(f"v_cvt_pk_bf16_f32 v{176+k}, v{168+2*k}, v{169+2*k}")
        for k in range(4):
            e(f"v_lshlrev_b32 v{168+2*k}, 16, v{176+k}\nv_and_b32 v{169+2*k}, 0xffff0000, v{176+k}")
        for k in range(8):
            e(f"v_mul_f32 v{168+k}, s54, v{168+k}")
        for k in range(4):
            e(f"v_cvt_pk_bf16_f32 v{176+k}, v{168+2*k}, v{169+2*k}")
        for k in range(4):
            e(f"v_lshlrev_b32 v{168+2*k}, 16, v{176+k}\nv_and_b32 v{169+2*k}, 0xffff0000, v{176+k}")
        e("""v_max3_f32 v248, v168, v169, v170
v_max3_f32 v180, v171, v172, v173
v_max3_f32 v248, v248, v174, v175
v_max_f32 v248, v248, v180
v_mov_b32 v180, v248
s_nop 1
v_permlane16_swap_b32 v248, v180
s_nop 0
v_max_f32 v248, v248, v180
v_mov_b32 v180, v248
s_nop 1
v_permlane32_swap_b32 v248, v180
s_nop 0
v_max_f32 v248, v248, v180
v_mul_f32 v180, s55, v248""")
        for k in range(8):
            e(f"v_fma_f32 v{168+k}, v{168+k}, s55, -v180")
        for k in range(8):
            e(f"v_exp_f32 v{168+k}, v{168+k}")
        e("s_nop 0")
        for k in range(4):
            e(f"v_cvt_pk_bf16_f32 v{252+k}, v{168+2*k}, v{169+2*k}")
        e("""buffer_store_dwordx4 v[252:255], v10, s[40:43], s50 offen
v_pk_add_f32 v[168:169], v[168:169], v[170:171]
v_pk_add_f32 v[172:173], v[172:173], v[174:175]
v_pk_add_f32 v[168:169], v[168:169], v[172:173]
v_add_f32 v249, v168, v169
v_mov_b32 v180, v249
s_nop 1
v_permlane16_swap_b32 v249, v180
s_nop 0
v_add_f32 v249, v249, v180
v_mov_b32 v180, v249
s_nop 1
v_permlane32_swap_b32 v249, v180
s_nop 0
v_add_f32 v249, v249, v180
s_mov_b64 exec, 0xffff
buffer_store_dwordx2 v[248:249], v212, s[40:43], s50 offen offset:1024
s_mov_b64 exec, -1""")
        self.stamp(6)
        if not early:
            lsj = self.newlabel("kv_sj")
            e(f"s_branch {lsj}")
            self.label(lnsm)
            e("s_waitcnt vmcnt(0)")
            self.label(lsj)
            e("s_barrier")
            tr_reads()
        else:
            self.label(lnsm)

        def restore_p():
            l = self.newlabel("rp")
            e(f"""s_cmp_ge_u32 s7, 4
s_cbranch_scc1 {l}
buffer_store_dwordx4 v[252:255], v10, s[40:43], s50 offen sc1
s_mov_b64 exec, 0xffff
buffer_store_dwordx2 v[248:249], v212, s[40:43], s50 offen offset:1024 sc1
s_mov_b64 exec, -1""")
            self.label(l)
        lsame = self.newlabel("kv_same")
        e(f"s_cmp_eq_u32 s75, 0\ns_cbranch_scc1 {lsame}")
        restore_p()
        self.label(lsame)
        self.poll([("buffer_load_dwordx4 v[168:171], v5, s[40:43], s51 offen sc1", 168, 4),
                   (f"buffer_load_dwordx4 v[172:175], v5, s[40:43], s51 offen offset:{PMSG} sc1", 172, 4),
                   ("buffer_load_dwordx2 v[176:177], v213, s[40:43], s51 offen offset:1024 sc1", 176, 2)], 'sent', 224)
        e(f"""ds_write_b128 v7, v[168:171] offset:{PL}
ds_write_b128 v7, v[172:175] offset:{PL + 1024}
ds_write_b64 v214, v[176:177] offset:{SL}
s_waitcnt lgkmcnt(0)
s_barrier""")
        self.stamp(7)
        if self.opt("sig2_early", 1):
            l0e = self.newlabel("kv_sig")
            e(f"s_cmp_lg_u32 s7, 7\ns_cbranch_scc1 {l0e}")
            self.sig_send(72, 220, 11)
            self.label(l0e)
        for k in range(4):
            e(f"ds_read_b128 v[{48+4*k}:{51+4*k}], v217 offset:{SL + 16*k}")
        for p in range(8):
            e(f"ds_read_b128 v[{16+4*p}:{19+4*p}], v215 offset:{PL + 2048*p}")
        stats = []
        stats.append("v_max3_f32 v238, v48, v50, v52")
        stats.append("v_max3_f32 v239, v54, v56, v58")
        stats.append("v_max3_f32 v238, v238, v60, v62")
        stats.append("v_max_f32 v238, v238, v239")
        stats.append("v_mul_f32 v239, s55, v238")
        for p in range(8):
            stats.append(f"v_fma_f32 v{48+2*p}, v{48+2*p}, s55, -v239")
        for p in range(8):
            stats.append(f"v_exp_f32 v{48+2*p}, v{48+2*p}")
        stats.append("v_and_or_b32 v240, v238, s64, v12")
        stats.append("v_mul_f32 v239, v48, v49")
        for p in range(1, 8):
            stats.append(f"v_fmac_f32 v239, v{48+2*p}, v{49+2*p}")
        si = 0
        for p in range(8):
            e(f"s_waitcnt lgkmcnt({7 - p})")
            for ctl in range(2):
                ar = 104 + (p * 2 + ctl) * 4
                ac = self.acc(p * 2 + ctl)
                e(f"v_mfma_f32_16x16x32_bf16 v[{ac}:{ac+3}], v[{ar}:{ar+3}], v[{16+4*p}:{19+4*p}], 0")
                for _ in range(2):
                    if si < len(stats):
                        e(stats[si]); si += 1
        while si < len(stats):
            e(stats[si]); si += 1
        lno = self.newlabel("kv_noos")
        e(f"""s_cmp_lg_u32 s6, 0
s_cbranch_scc1 {lno}
s_cmp_ge_u32 s7, 2
s_cbranch_scc1 {lno}
v_and_or_b32 v241, v239, s64, v13
v_mov_b32 v242, v14
v_mov_b32 v243, v15
s_mov_b64 exec, 0xffff
buffer_store_dwordx4 v[240:243], v219, s[40:43], s53 offen sc1
s_mov_b64 exec, -1""")
        self.label(lno)
        for r in range(0, 8, 2):
            e(f"v_pk_mul_f32 v[{168+r}:{169+r}], v[{168+r}:{169+r}], v[48:49] op_sel_hi:[1,0]")
        for p in range(1, 8):
            for ctl in range(2):
                for r in (0, 2):
                    a = self.acc(2 * p + ctl) + r
                    o = 168 + 4 * ctl + r
                    e(f"v_pk_fma_f32 v[{o}:{o+1}], v[{a}:{a+1}], v[{48+2*p}:{49+2*p}], v[{o}:{o+1}] op_sel_hi:[1,0,1]")
        self.tag4(168)
        e("buffer_store_dwordx4 v[168:171], v218, s[40:43], s52 offen sc1")
        self.tag4(172)
        e("buffer_store_dwordx4 v[172:175], v218, s[40:43], s52 offen offset:64 sc1")
        self.stamp(8)
        e("s_barrier")
        self.dbgtime(6, 128)
        self.dbgtime(7, 201)
        if not self.opt("sig2_early", 1):
            l0 = self.newlabel("kv_sig")
            e(f"s_cmp_lg_u32 s7, 0\ns_cbranch_scc1 {l0}")
            self.sig_send(72, 220, 11)
            self.label(l0)
        lnf = self.newlabel("kv_nofg")
        llo = self.newlabel("kv_fglo")
        e(f"""v_mov_b32 v236, v220
s_bfe_u32 s10, s9, 0x20002
s_lshl_b32 s10, s10, 3
s_add_u32 s10, s10, s8
s_cmp_ge_u32 s10, 27
s_cbranch_scc1 {lnf}
s_lshl_b32 s10, s10, 2
s_add_u32 s10, s10, s6""")
        if self.opt("sl_fg", 0):
            e(f"s_sleep {self.opt('sl_fg', 0)}")
        e(f"s_cmp_lt_u32 s7, 4\ns_cbranch_scc1 {llo}")
        self.srd(44, 30, 2211840)
        e(f"""v_lshrrev_b32 v6, 1, v1
v_mul_u32_u24 v6, 3456, v6
v_and_b32 v7, 1, v1
v_lshl_add_u32 v6, v7, 4, v6
s_sub_u32 s11, s7, 4
s_mul_i32 s11, s11, 160
s_mul_i32 s12, s11, 3456
s_lshl_b32 s13, s10, 5
s_add_u32 s12, s12, s13
s_lshl_b32 s13, s11, 5
s_add_u32 s13, s13, {W1L}""")
        for k in range(5):
            e(f"""s_mov_b32 m0, s13
s_add_u32 s13, s13, 1024
buffer_load_dwordx4 v6, s[44:47], s12 offen {nt} lds
s_add_u32 s12, s12, {32*3456}""")
        e("s_waitcnt vmcnt(0)")
        if self.opt("dbg2", 0): self.stamp(2)
        e("s_barrier\ns_branch L_fin")
        self.label(lnf)
        rq()
        if self.opt("clean_p", 0):
            restore_p()
        e("s_branch L_fin")
        self.label(llo)
        self.srd(44, 16, 1280)
        e(f"""v_lshlrev_b32 v8, 3, v1
s_mul_i32 s11, s7, 320
buffer_load_dwordx2 v[48:49], v8, s[44:47], s11 offen
v_mul_u32_u24 v7, 5120, v3
v_lshl_add_u32 v7, v2, 4, v7
s_mul_i32 s12, s10, 20480
s_lshl_b32 s13, s7, 8
s_add_u32 s12, s12, s13
v_add_u32 v7, s12, v7""")
        for t in range(4):
            e(f"global_load_dwordx4 v[{16+4*t}:{19+4*t}], v7, s[32:33] offset:{1280*t} {nt}")
        lb4 = self.newlabel("kv_b4")
        e(f"s_cmp_lg_u32 s7, 0\ns_cbranch_scc1 {lb4}\nv_add_u32 v7, 1024, v7")
        for t in range(4):
            e(f"global_load_dwordx4 v[{32+4*t}:{35+4*t}], v7, s[32:33] offset:{1280*t} {nt}")
        self.label(lb4)
        rq()
        if self.opt("clean_p", 0):
            restore_p()
        self.masks(52, 2, 60, False)
        e(f"""v_lshrrev_b32 v8, 2, v2
v_lshl_add_u32 v8, v3, 3, v8
v_lshlrev_b32 v8, 5, v8
v_and_b32 v9, 3, v2
v_lshl_add_u32 v8, v9, 3, v8
s_waitcnt vmcnt(0)""")
        if self.opt("dbg2", 0): self.stamp(2)
        e("s_barrier")
        if self.opt("dbg2", 0): self.stamp(3)
        for t in range(20):
            for hh in range(2):
                e(f"ds_read_b64_tr_b16 v[{80+4*t+2*hh}:{81+4*t+2*hh}], v8 offset:{W1L + 1024*t + 128*hh}")
            if t % 4 == 3:
                e("s_waitcnt lgkmcnt(0)")
        e(f"""s_mul_i32 s12, s7, 640
s_add_u32 s12, s12, {XB}
s_add_u32 s13, s12, 5120
s_add_u32 s14, s12, 10240
s_add_u32 s15, s12, 15360
v_lshlrev_b32 v56, 16, v48
v_and_b32 v57, 0xffff0000, v48
v_lshlrev_b32 v58, 16, v49
v_and_b32 v59, 0xffff0000, v49
v_lshlrev_b32 v8, 3, v1
s_mul_i32 s11, s7, 320
v_add_u32 v9, s11, v8
s_mul_i32 s11, s7, 1280
v_add_u32 v10, s11, v8
v_add_u32 v228, s11, v4
v_lshl_add_u32 v229, v3, 4, s11
v_lshrrev_b32 v230, 1, v2
v_mul_u32_u24 v230, 7168, v230
v_and_b32 v231, 1, v2
v_lshl_add_u32 v230, v231, 5, v230
v_lshl_add_u32 v230, v3, 4, v230
s_mul_i32 s52, s7, {8*7168}
s_lshl_b32 s53, s10, 6
s_add_u32 s52, s52, s53
s_add_u32 s52, s52, {FB}
s_add_u32 s53, s52, {32*7168}""")
        self.sig_prep(3, 70)
        self.sig_prep(4, 71)
        if not self.opt('dbg1', 0): self.stamp(9)
        self.sig_wait(70, 60, 11, self.opt("sl_h5", 8))
        e("s_mov_b32 exec_hi, 0xff")
        self.poll([(f"buffer_load_dwordx4 v[{160+4*x}:{163+4*x}], v5, s[40:43], s{12 + x//2} offen offset:{2560*(x%2)} sc1", 160 + 4 * x, 4) for x in range(8)], 'tag', 60)
        self.tree_sum(160, 8)
        e(f"""v_cvt_pk_bf16_f32 v60, v160, v161
v_cvt_pk_bf16_f32 v61, v162, v163
v_lshlrev_b32 v160, 16, v60
v_and_b32 v161, 0xffff0000, v60
v_lshlrev_b32 v162, 16, v61
v_and_b32 v163, 0xffff0000, v61
v_pk_add_f32 v[160:161], v[160:161], v[56:57]
v_pk_add_f32 v[162:163], v[162:163], v[58:59]
v_cvt_pk_bf16_f32 v60, v160, v161
v_cvt_pk_bf16_f32 v61, v162, v163
ds_write_b64 v9, v[60:61] offset:{HF}
s_mov_b64 exec, -1
s_waitcnt lgkmcnt(0)
s_barrier
ds_read_b64 v[70:71], v8 offset:{HF}
ds_read_b64 v[72:73], v8 offset:{HF + 512}
ds_read_b32 v74, v4 offset:{HF + 1024}
s_waitcnt lgkmcnt(0)""")
        if not self.opt('dbg1', 0): self.stamp(10)
        for k in range(5):
            e(f"v_lshlrev_b32 v{60+2*k}, 16, v{70+k}\nv_and_b32 v{61+2*k}, 0xffff0000, v{70+k}")
        self.layernorm(60, 70, 62, 63)
        e(f"""v_cvt_pk_bf16_f32 v70, v60, v61
v_cvt_pk_bf16_f32 v71, v62, v63
v_cvt_pk_bf16_f32 v72, v64, v65
v_cvt_pk_bf16_f32 v73, v66, v67
v_cvt_pk_bf16_f32 v74, v68, v69
ds_write_b64 v10, v[70:71] offset:{HN}
ds_write_b64 v10, v[72:73] offset:{HN + 512}
ds_write_b32 v228, v74 offset:{HN + 1024}
s_waitcnt lgkmcnt(0)""")
        for t in range(14):
            e(f"ds_read_b128 v[{160+4*t}:{163+4*t}], v229 offset:{HN + 64*t}")
        for t in range(20):
            issued = min(t + 14, 20)
            e(f"s_waitcnt lgkmcnt({issued - t - 1})")
            c = "0" if t == 0 else "v[56:59]"
            e(f"v_mfma_f32_16x16x32_bf16 v[56:59], v[{80+4*t}:{83+4*t}], v[{self.fb(t)}:{self.fb(t)+3}], {c}")
            if t + 14 < 20:
                e(f"ds_read_b128 v[{self.fb(t+14)}:{self.fb(t+14)+3}], v229 offset:{HN + 64*(t+14)}")
        ls4 = self.newlabel("kv_s4")
        e(f"s_cmp_lg_u32 s7, 1\ns_cbranch_scc1 {ls4}")
        self.sig_send(71, 236, 11)
        self.label(ls4)
        e("s_nop 4")
        for r in range(4):
            e(f"v_max_f32 v{56+r}, 0, v{56+r}")
        for t in range(4):
            e(f"v_cvt_pk_bf16_f32 v{240+t}, v{56+t}, v{56+t}")
        for t in range(4):
            for r in range(4):
                e(f"v_and_b32 v{80+4*t+r}, v{240+t}, v{52+r}")
        for t in range(4):
            c = "0" if t == 0 else "v[64:67]"
            e(f"v_mfma_f32_16x16x32_bf16 v[64:67], v[{80+4*t}:{83+4*t}], v[{16+4*t}:{19+4*t}], {c}")
        lb5 = self.newlabel("kv_b5")
        e(f"s_cmp_lg_u32 s7, 0\ns_cbranch_scc1 {lb5}")
        for t in range(4):
            c = "0" if t == 0 else "v[68:71]"
            e(f"v_mfma_f32_16x16x32_bf16 v[68:71], v[{80+4*t}:{83+4*t}], v[{32+4*t}:{35+4*t}], {c}")
        e("s_nop 3")
        self.tag4(64)
        e("""s_mov_b32 exec_hi, 0
buffer_store_dwordx4 v[64:67], v230, s[40:43], s52 offen sc1""")
        self.tag4(68)
        e("buffer_store_dwordx4 v[68:71], v230, s[40:43], s53 offen sc1")
        e("s_mov_b64 exec, -1")
        if not self.opt('dbg1', 0): self.stamp(1)
        e("s_branch L_fin")
        self.label(lb5)
        e("s_nop 5")
        self.tag4(64)
        e("""s_mov_b32 exec_hi, 0
buffer_store_dwordx4 v[64:67], v230, s[40:43], s52 offen sc1
s_mov_b64 exec, -1""")

    def fb(self, t):
        if t < 14:
            return 160 + 4 * t
        return [60, 64, 68, 72, 76, 244][t - 14]


if __name__ == "__main__":
    import argparse
    ap = argparse.ArgumentParser()
    ap.add_argument("out")
    ap.add_argument("--stamps", action="store_true")
    ap.add_argument("--opt", action="append", default=[])
    a = ap.parse_args()
    opts = {}
    for o in a.opt:
        k, v = o.split("=")
        opts[k] = int(v) if v.lstrip("-").isdigit() else v
    g = Gen(stamps=a.stamps, opts=opts)
    open(a.out, "w").write(g.build())
```

```python
import sys

KN = "sequential_preLN__compressed_kv_cla__dense_activation_relu__decode_kernel"

Q1 = 0x000000
QA = 0x020000
PB = 0x030000
PMSG = 1152
OB = 0x0C0000
OS = 0x2C0000
EL = 0x2C4000
XB = 0x314000
FB = 0x319000
SIG = 0x360000
RDY = 0x374000
assert PB + 512 * PMSG <= OB
STAMP = 0x400000
WS_RECORDS = 0x400000 + 256 * 128

SPIN_LIMIT = 100000
RESTORE_IT = 10
LOG2E = 0x3fb8aa3b
SCALE = 0x3db504f3
LDS_BYTES = 146432
NB = 133120
NON, FLG = 0, 16


class Gen:
    def __init__(self, stamps=False, opts=None):
        self.o = []
        self.nl = 0
        self.stamps = stamps
        self.opts = opts or {}

    def opt(self, k, d):
        return self.opts.get(k, d)

    def e(self, s):
        for line in s.strip("\n").split("\n"):
            self.o.append("  " + line.strip())

    def label(self, name):
        self.o.append(name + ":")

    def newlabel(self, base):
        self.nl += 1
        return f"L_{base}_{self.nl}"

    def srd(self, d, ptr, nbytes):
        self.e(f"""s_mov_b32 s{d}, s{ptr}
s_and_b32 s{d+1}, s{ptr+1}, 0xffff
s_mov_b32 s{d+2}, {nbytes}
s_mov_b32 s{d+3}, 0x00020000""")

    def stamp(self, idx):
        if self.stamps:
            self.e(f"s_memrealtime s[{76+2*idx}:{77+2*idx}]")

    def stamp_dump(self):
        if not self.stamps:
            return
        self.e("""s_and_b32 s60, s7, 3
s_cmp_lg_u32 s60, 0
s_cbranch_scc1 L_end
s_waitcnt lgkmcnt(0)
s_mov_b64 exec, 1
v_mov_b32 v251, 0""")
        self.e(f"s_lshl_b32 s60, s2, 7\ns_lshl_b32 s61, s7, 4\ns_add_u32 s60, s60, s61\ns_add_u32 s60, s60, {STAMP}")
        for i in range(12):
            self.e(f"v_mov_b32 v250, s{76+2*i}\nbuffer_store_dword v250, v251, s[40:43], s60 offen offset:{4*i}")

    def dbgtime(self, word, wg):
        if not self.opt("dbgt", 0):
            return
        l = self.newlabel("dt")
        self.e(f"""s_cmp_lg_u32 s2, {wg}
s_cbranch_scc1 {l}
s_memrealtime s[10:11]
s_load_dword s12, s[36:37], 4 glc
s_waitcnt lgkmcnt(0)
s_sub_u32 s10, s10, s12
v_mov_b32 v250, s10
v_mov_b32 v251, {4*word}
global_store_dword v251, v250, s[36:37]""")
        self.label(l)

    def wave_sum(self, v, sd):
        ins = "v_add_f32_dpp"
        for sh in (1, 2, 4, 8):
            self.e(f"s_nop 1\n{ins} v{v}, v{v}, v{v} row_shr:{sh} row_mask:0xf bank_mask:0xf bound_ctrl:0")
        self.e(f"s_nop 1\n{ins} v{v}, v{v}, v{v} row_bcast:15 row_mask:0xa bank_mask:0xf")
        self.e(f"s_nop 1\n{ins} v{v}, v{v}, v{v} row_bcast:31 row_mask:0xc bank_mask:0xf")
        self.e(f"s_nop 0\nv_readlane_b32 s{sd}, v{v}, 63")

    def wait_nonce(self, vt):
        d = self.newlabel("nnd")
        for k in range(4):
            self.e(f"""s_load_dword s65, s[36:37], {64*k}
s_waitcnt lgkmcnt(0)
s_cmp_lg_u32 s65, 0
s_cbranch_scc1 {d}
s_sleep 4""")
        l = self.newlabel("nn")
        self.e("s_mov_b32 s60, 0")
        self.label(l)
        self.e(f"""buffer_load_dword v{vt}, v11, s[56:59], 0 offen sc1
s_add_u32 s60, s60, 1
s_waitcnt vmcnt(0)
v_readfirstlane_b32 s65, v{vt}
s_cmp_ge_u32 s60, {SPIN_LIMIT}
s_cbranch_scc1 {d}
s_cmp_eq_u32 s65, 0
s_cbranch_scc1 {l}""")
        self.label(d)

    def set_tags(self):
        self.e("""s_mov_b32 s64, 0xffffff00
s_and_b32 s61, s65, 0xff
v_mov_b32 v12, s61
s_bfe_u32 s61, s65, 0x80008
v_mov_b32 v13, s61
s_bfe_u32 s61, s65, 0x80010
v_mov_b32 v14, s61
s_lshr_b32 s61, s65, 24
v_mov_b32 v15, s61
s_and_b32 s67, s65, 0xbfffbfff""")

    def tag4(self, v):
        for r in range(4):
            self.e(f"v_and_or_b32 v{v+r}, v{v+r}, s64, v{12+r}")

    def sig_prep(self, k, sd, sid="s4"):
        self.e(f"s_lshl_b32 s{sd}, {sid}, 7\ns_add_u32 s{sd}, s{sd}, {SIG + k * 16384}")

    def sig_send(self, sd, vtag, vzero):
        self.e(f"""s_memrealtime s[0:1]
s_waitcnt lgkmcnt(0)
v_mov_b32 v{vtag+1}, s0
buffer_store_dwordx2 v[{vtag}:{vtag+1}], v{vzero}, s[40:43], s{sd} offen sc1""")

    def until(self, delta):
        l = self.newlabel("un")
        self.label(l)
        self.e(f"""s_memrealtime s[0:1]
s_waitcnt lgkmcnt(0)
s_sub_u32 s0, s0, s29
s_cmp_lt_u32 s0, {delta}
s_cbranch_scc1 {l}""")

    def sig_wait(self, sd, vt, vzero, delta=0, restore=None):
        l = self.newlabel("sg")
        d = self.newlabel("sgd")
        self.e("s_mov_b32 s60, 0")
        self.label(l)
        self.e(f"""s_load_dwordx2 s[28:29], s[38:39], s{sd} glc
s_add_u32 s60, s60, 1""")
        if restore:
            nr = self.newlabel("snr")
            self.e(f"s_cmp_lg_u32 s60, {RESTORE_IT}\ns_cbranch_scc1 {nr}")
            restore()
            self.label(nr)
        self.e(f"""s_cmp_ge_u32 s60, {SPIN_LIMIT}
s_cbranch_scc1 {d}
s_waitcnt lgkmcnt(0)
s_cmp_lg_u32 s28, s65
s_cbranch_scc1 {l}""")
        if delta:
            self.until(delta)
        self.label(d)
        self.e("s_waitcnt lgkmcnt(0)")

    def check(self, regs, kind, vacc, first=True):
        e = self.e
        if kind == 'tag':
            for i, r in enumerate(regs):
                t = 12 + (i % 4)
                if first and i == 0:
                    e(f"v_xor_b32 v{vacc}, v{r}, v{t}")
                else:
                    e(f"v_bitop3_b32 v{vacc}, v{vacc}, v{r}, v{t} bitop3:0xf6")
        else:
            i = 0
            while i < len(regs):
                if first and i == 0:
                    if len(regs) >= 3:
                        e(f"v_max3_u32 v{vacc}, v{regs[0]}, v{regs[1]}, v{regs[2]}"); i = 3
                    elif len(regs) == 2:
                        e(f"v_max_u32 v{vacc}, v{regs[0]}, v{regs[1]}"); i = 2
                    else:
                        e(f"v_mov_b32 v{vacc}, v{regs[0]}"); i = 1
                elif len(regs) - i >= 2:
                    e(f"v_max3_u32 v{vacc}, v{vacc}, v{regs[i]}, v{regs[i+1]}"); i += 2
                else:
                    e(f"v_max_u32 v{vacc}, v{vacc}, v{regs[i]}"); i += 1

    def verdict(self, kind, vacc):
        if kind == 'tag':
            self.e(f"v_and_b32 v{vacc}, 0xff, v{vacc}\nv_cmp_ne_u32 vcc, 0, v{vacc}\ns_cmp_lg_u64 vcc, 0")
        else:
            self.e(f"v_cmp_eq_u32 vcc, -1, v{vacc}\ns_cmp_lg_u64 vcc, 0")

    def poll(self, loads, kind, vacc, restore=None):
        e = self.e
        l = self.newlabel("pl")
        d = self.newlabel("pld")
        e("s_mov_b32 s60, 0")
        self.label(l)
        for ins in loads:
            e(ins[0])
        e("s_add_u32 s60, s60, 1")
        if restore:
            nr = self.newlabel("pnr")
            e(f"s_cmp_lg_u32 s60, {self.opt('rit', RESTORE_IT)}\ns_cbranch_scc1 {nr}")
            restore()
            self.label(nr)
        e(f"s_cmp_ge_u32 s60, {SPIN_LIMIT}\ns_cbranch_scc1 {d}\ns_waitcnt vmcnt(0)")
        for k, ins in enumerate(loads):
            self.check(list(range(ins[1], ins[1] + ins[2])), kind, vacc, first=(k == 0))
        self.verdict(kind, vacc)
        e(f"s_cbranch_scc1 {l}")
        self.label(d)
        e("s_waitcnt vmcnt(0)")

    def masks(self, m0, vi, vt, lo_rows):
        self.e(f"""v_and_b32 v{vt}, 1, v{vi}
v_cmp_eq_u32 vcc, 1, v{vt}
v_mov_b32 v{vt}, 0x0000ffff
v_mov_b32 v{vt+1}, 0xffff0000
v_cndmask_b32 v{vt}, v{vt}, v{vt+1}, vcc""")
        if lo_rows:
            self.e(f"v_bfe_u32 v{vt+1}, v{vi}, 1, 2")
        else:
            self.e(f"v_lshrrev_b32 v{vt+1}, 1, v{vi}")
        for r in range(4):
            self.e(f"""v_cmp_eq_u32 vcc, {r}, v{vt+1}
s_nop 1
v_cndmask_b32 v{m0+r}, 0, v{vt}, vcc""")

    def layernorm(self, vx, vt, sA, sB):
        e = self.e
        inv = 0x3acccccd
        e(f"""v_pk_add_f32 v[{vt}:{vt+1}], v[{vx}:{vx+1}], v[{vx+2}:{vx+3}]
v_pk_add_f32 v[{vt+2}:{vt+3}], v[{vx+4}:{vx+5}], v[{vx+6}:{vx+7}]
v_pk_add_f32 v[{vt}:{vt+1}], v[{vt}:{vt+1}], v[{vx+8}:{vx+9}]
v_pk_add_f32 v[{vt}:{vt+1}], v[{vt}:{vt+1}], v[{vt+2}:{vt+3}]
v_add_f32 v{vt}, v{vt}, v{vt+1}""")
        self.wave_sum(vt, sA)
        e(f"v_mov_b32 v{vt+4}, {inv:#x}\ns_nop 0\nv_mul_f32 v{vt+4}, s{sA}, v{vt+4}")
        for k in range(0, 10, 2):
            e(f"v_pk_add_f32 v[{vt+2}:{vt+3}], v[{vx+k}:{vx+k+1}], v[{vt+4}:{vt+5}] op_sel_hi:[1,0] neg_lo:[0,1] neg_hi:[0,1]")
            if k == 0:
                e(f"v_pk_mul_f32 v[{vt}:{vt+1}], v[{vt+2}:{vt+3}], v[{vt+2}:{vt+3}]")
            else:
                e(f"v_pk_fma_f32 v[{vt}:{vt+1}], v[{vt+2}:{vt+3}], v[{vt+2}:{vt+3}], v[{vt}:{vt+1}]")
        e(f"v_add_f32 v{vt}, v{vt}, v{vt+1}")
        self.wave_sum(vt, sB)
        e(f"""v_mov_b32 v{vt+2}, {inv:#x}
s_nop 0
v_mul_f32 v{vt+2}, s{sB}, v{vt+2}
v_cvt_pk_bf16_f32 v{vt+3}, v{vt+4}, v{vt+2}
v_lshlrev_b32 v{vt+4}, 16, v{vt+3}
v_and_b32 v{vt+2}, 0xffff0000, v{vt+3}
v_add_f32 v{vt+2}, 0x3727c5ac, v{vt+2}
v_cvt_pk_bf16_f32 v{vt+2}, v{vt+2}, v{vt+2}
v_and_b32 v{vt+2}, 0xffff0000, v{vt+2}
v_sqrt_f32 v{vt+2}, v{vt+2}""")
        for k in range(0, 10, 2):
            e(f"v_pk_add_f32 v[{vx+k}:{vx+k+1}], v[{vx+k}:{vx+k+1}], v[{vt+4}:{vt+5}] op_sel_hi:[1,0] neg_lo:[0,1] neg_hi:[0,1]")
        e(f"""v_cvt_pk_bf16_f32 v{vt+2}, v{vt+2}, v{vt+2}
v_and_b32 v{vt+2}, 0xffff0000, v{vt+2}
v_rcp_f32 v{vt+2}, v{vt+2}""")
        for k in range(0, 10, 2):
            a, b = vx + k, vx + k + 1
            e(f"""v_cvt_pk_bf16_f32 v{vt}, v{a}, v{b}
v_lshlrev_b32 v{a}, 16, v{vt}
v_and_b32 v{b}, 0xffff0000, v{vt}
v_pk_mul_f32 v[{a}:{b}], v[{a}:{b}], v[{vt+2}:{vt+3}] op_sel_hi:[1,0]""")

    def tree_sum(self, v0, n, width=4, stride=None):
        stride = stride or width
        step = 1
        while step < n:
            for k in range(0, n - step, 2 * step):
                for r in range(0, width, 2):
                    a = v0 + stride * k + r
                    b = v0 + stride * (k + step) + r
                    self.e(f"v_pk_add_f32 v[{a}:{a+1}], v[{a}:{a+1}], v[{b}:{b+1}]")
            step *= 2

    def build(self):
        nt = self.opt("nt", "nt")
        nt = "" if nt == "none" else nt
        e = self.e
        self.o.append(f"; @launch grid=(256,1,1) block=(512,1,1) lds={LDS_BYTES}")
        self.o.append('.amdgcn_target "amdgcn-amd-amdhsa--gfx950"')
        self.o.append(".text")
        self.o.append(f".globl {KN}")
        self.o.append(".p2align 8")
        self.o.append(f".type {KN},@function")
        self.label(KN)
        e("""s_load_dwordx16 s[16:31], s[0:1], 0
s_load_dwordx8 s[32:39], s[0:1], 64
s_memrealtime s[62:63]
s_cmp_ge_u32 s2, 256
s_cbranch_scc1 L_end
s_cmp_ge_u32 s2, 16
s_cbranch_scc1 L_nocp
s_getpc_b64 s[60:61]
v_lshlrev_b32 v6, 6, v0
v_min_u32 v6, (L_codeend-L_nocp-64), v6
global_load_dword v255, v6, s[60:61]
L_nocp:
s_and_b32 s8, s2, 7
s_lshr_b32 s9, s2, 3
s_and_b32 s4, s2, 127
v_lshrrev_b32 v1, 6, v0
v_and_b32 v2, 15, v0
v_readfirstlane_b32 s7, v1
v_and_b32 v1, 63, v0
v_bfe_u32 v3, v0, 4, 2
v_lshlrev_b32 v4, 2, v1
v_lshlrev_b32 v5, 4, v1
s_and_b32 s10, s9, 3
s_lshl_b32 s5, s8, 2
s_add_u32 s5, s5, s10
s_lshr_b32 s6, s9, 2
v_mov_b32 v11, 0""")
        if self.stamps:
            for i in range(76, 100):
                e(f"s_mov_b32 s{i}, 0")
        self.stamp(0)
        e("""s_or_b32 s10, s2, s7
s_cmp_lg_u32 s10, 0
s_cbranch_scc1 L_nomaster
s_waitcnt lgkmcnt(0)
s_mov_b32 s63, s62
s_mul_i32 s62, s62, 0x9e3779b1
s_or_b32 s62, s62, 1
v_mov_b32 v16, s62
v_mov_b32 v17, s63
v_lshlrev_b32 v18, 6, v1
s_mov_b64 exec, 15
global_store_dwordx2 v18, v[16:17], s[36:37] sc1
s_mov_b64 exec, -1
L_nomaster:
s_cmp_ge_u32 s7, 4
s_cbranch_scc1 L_hi""")
        self.commonA(nt)
        self.roleW(nt)
        self.roleKV(nt)
        self.label("L_fin")
        self.stamp_dump()
        self.label("L_end")
        e("s_endpgm")
        self.label("L_codeend")
        self.o.append(f""".section .rodata,"a"
.p2align 6
.amdhsa_kernel {KN}
  .amdhsa_next_free_vgpr 256
  .amdhsa_next_free_sgpr 100
  .amdhsa_accum_offset 256
  .amdhsa_group_segment_fixed_size 0
  .amdhsa_kernarg_size 96
  .amdhsa_user_sgpr_count 2
  .amdhsa_user_sgpr_kernarg_segment_ptr 1
  .amdhsa_system_sgpr_workgroup_id_x 1
.end_amdhsa_kernel""")
        return "\n".join(self.o) + "\n"

    def commonA(self, nt):
        e = self.e
        AB = 133248
        XT, QRED = AB, AB + 10240
        e("""s_mul_i32 s10, s6, 80
s_mul_i32 s11, s7, 20
s_add_u32 s10, s10, s11
s_lshl_b32 s11, s10, 13
s_lshl_b32 s12, s5, 8
s_add_u32 s11, s11, s12
v_lshlrev_b32 v6, 13, v3
v_lshl_add_u32 v6, v2, 4, v6
v_add_u32 v6, s11, v6
s_waitcnt lgkmcnt(0)""")
        for k in range(5):
            e(f"global_load_dword v{76+k}, v4, s[16:17] offset:{256*k}")
        for t in range(5):
            e(f"global_load_dwordx4 v[{16+4*t}:{19+4*t}], v6, s[20:21] {nt}")
            if t < 4:
                e("v_add_u32 v6, 0x8000, v6")
        self.srd(40, 38, WS_RECORDS)
        self.srd(56, 36, 256)
        self.masks(68, 2, 92, False)
        e(f"""s_mul_i32 s14, s7, 2560
s_add_u32 s14, s14, {XT}
v_lshlrev_b32 v8, 3, v1
v_add_u32 v8, s14, v8
s_lshl_b32 s15, s10, 2
s_add_u32 s15, s15, s14
v_lshl_add_u32 v9, v3, 2, s15
v_lshlrev_b32 v10, 5, v2
v_lshl_add_u32 v10, v3, 4, v10
s_lshl_b32 s14, s7, 9
s_add_u32 s14, s14, {QRED}
v_add_u32 v10, s14, v10
v_mov_b32 v227, {NB}
v_add_u32 v7, {QRED}, v5
s_lshl_b32 s68, s5, 12
s_add_u32 s68, s68, {Q1}
s_lshl_b32 s69, s6, 9
s_add_u32 s69, s69, s68
s_waitcnt vmcnt(5)""")
        for k in range(5):
            e(f"v_lshlrev_b32 v{82+2*k}, 16, v{76+k}\nv_and_b32 v{83+2*k}, 0xffff0000, v{76+k}")
        self.layernorm(82, 92, 62, 63)
        for k in range(5):
            e(f"""v_cvt_pk_bf16_f32 v{92+2*(k%2)}, v{82+2*k}, v{82+2*k}
v_cvt_pk_bf16_f32 v{93+2*(k%2)}, v{83+2*k}, v{83+2*k}
ds_write_b64 v8, v[{92+2*(k%2)}:{93+2*(k%2)}] offset:{512*k}""")
        e("s_waitcnt lgkmcnt(0)")
        for t in range(5):
            e(f"ds_read_b32 v{82+t}, v9 offset:{16*t}")
        e("s_waitcnt lgkmcnt(0)")
        for t in range(5):
            for r in range(4):
                e(f"v_and_b32 v{96+4*t+r}, v{82+t}, v{68+r}")
        ln = self.newlabel("a_nn")
        e(f"s_cmp_lg_u32 s7, 0\ns_cbranch_scc1 {ln}")
        self.wait_nonce(90)
        e(f"v_mov_b32 v90, s65\nds_write_b32 v227, v90 offset:{NON}")
        self.label(ln)
        for t in range(5):
            c = "0" if t == 0 else "v[116:119]"
            e(f"s_waitcnt vmcnt({4-t})")
            e(f"v_mfma_f32_16x16x32_bf16 v[116:119], v[{96+4*t}:{99+4*t}], v[{16+4*t}:{19+4*t}], {c}")
        self.stamp(1)
        e("s_nop 2")
        e(f"""s_nop 4
s_mov_b32 exec_hi, 0
ds_write_b128 v10, v[116:119]
s_mov_b64 exec, -1
s_waitcnt lgkmcnt(0)
s_barrier""")
        self.stamp(2)
        e("s_cmp_lg_u32 s7, 0\ns_cbranch_scc1 L_lo123")
        for wv in range(4):
            e(f"ds_read_b128 v[{120+4*wv}:{123+4*wv}], v7 offset:{512*wv}")
        self.set_tags()
        e("s_waitcnt lgkmcnt(0)")
        self.tree_sum(120, 4)
        self.tag4(120)
        e("""s_mov_b32 exec_hi, 0
buffer_store_dwordx4 v[120:123], v5, s[40:43], s69 offen
s_mov_b64 exec, -1
s_mov_b32 s73, s69
s_cmp_ge_u32 s9, 16
s_cbranch_scc1 L_kv_w0""")

    def get_nonce_lds(self, vt):
        self.e(f"""ds_read_b32 v{vt}, v227 offset:{NON}
s_waitcnt lgkmcnt(0)
v_readfirstlane_b32 s65, v{vt}""")
        self.set_tags()

    def roleW(self, nt):
        e = self.e
        QBF, QAL, CLX, RED, RED2 = 24576, 24832, 25600, 26624, 28672
        e("""v_and_b32 v8, 31, v1
v_lshlrev_b32 v8, 3, v8
v_lshrrev_b32 v9, 5, v1
v_lshl_add_u32 v8, v9, 2, v8""")

        def restore_q1():
            e("""s_mov_b32 exec_hi, 0
buffer_store_dwordx4 v[120:123], v5, s[40:43], s73 offen sc1
s_mov_b64 exec, -1""")
        self.restore_q1 = restore_q1
        self.poll([(f"buffer_load_dwordx4 v[{124+4*k}:{127+4*k}], v5, s[40:43], s68 offen offset:{1024*k} sc1", 124 + 4 * k, 4) for k in range(4)], 'tag', 90, restore=restore_q1)
        self.stamp(3)
        self.tree_sum(124, 4)
        e(f"""s_nop 0
v_permlane32_swap_b32 v124, v126
v_permlane32_swap_b32 v125, v127
s_nop 0
v_pk_add_f32 v[124:125], v[124:125], v[126:127]
v_cvt_pk_bf16_f32 v124, v124, v125
ds_write_b32 v8, v124 offset:{QBF}
ds_write_b32 v11, v11 offset:{QAL + 268}
ds_write_b32 v11, v11 offset:{QAL + 284}
s_waitcnt lgkmcnt(0)
s_barrier""")
        e(f"""v_lshrrev_b32 v8, 1, v1
v_and_b32 v9, 1, v1
v_cmp_gt_u32 vcc, 8, v8
v_lshlrev_b32 v128, 5, v8
v_mul_u32_u24 v129, 96, v8
v_add_u32 v129, {-768+12 & 0xffffffff:#x}, v129
v_cndmask_b32 v128, v129, v128, vcc
v_lshl_add_u32 v128, v9, 4, v128
v_mov_b32 v129, 32
v_cndmask_b32 v130, v129, 4, vcc
v_add_u32 v129, v128, v130
v_add_u32 v130, v129, v130
v_mov_b32 v8, v5
s_lshl_b32 s10, s6, 5
s_add_u32 s10, s10, s5
s_mul_i32 s10, s10, 352
s_add_u32 s10, s10, {QA}
v_mov_b32 v127, s67
v_mov_b32 v90, s65""")
        self.sig_prep(0, 70)
        if self.opt("sig0_early", 1):
            self.sig_send(70, 90, 11)
        e(f"""s_mov_b32 exec_lo, 0x3fffff
s_mov_b32 exec_hi, 0
s_barrier
ds_read_b32 v124, v128 offset:{QAL}
ds_read_b32 v125, v129 offset:{QAL}
ds_read_b32 v126, v130 offset:{QAL}
s_waitcnt lgkmcnt(0)
buffer_store_dwordx4 v[124:127], v8, s[40:43], s10 offen sc1
s_mov_b64 exec, -1""")
        if not self.opt("sig0_early", 1):
            self.sig_send(70, 90, 11)
        self.stamp(4)
        self.dbgtime(4, 0)
        self.dbgtime(5, 77)
        e("s_branch L_w_join")
        self.label("L_lo123")
        e("s_cmp_ge_u32 s9, 16\ns_cbranch_scc1 L_kv_lo")
        self.get_nonce_lds(90)
        e("s_barrier\ns_barrier\ns_branch L_w_join")
        self.label("L_hi")
        e(f"""s_lshr_b32 s13, s6, 1
s_lshl_b32 s13, s13, 8
s_and_b32 s14, s6, 1
s_lshl_b32 s14, s14, 4
s_add_u32 s13, s13, s14
s_sub_u32 s14, s7, 4
s_lshl_b32 s14, s14, 6
s_add_u32 s13, s13, s14
s_lshl_b32 s13, s13, 13
s_lshl_b32 s12, s5, 8
s_add_u32 s13, s13, s12
v_xor_b32 v7, v2, v3
v_lshlrev_b32 v7, 4, v7
v_lshl_add_u32 v7, v3, 13, v7
v_mov_b32 v227, {NB}
s_waitcnt lgkmcnt(0)""")
        self.srd(56, 36, 256)
        self.srd(40, 38, WS_RECORDS)
        e("s_cmp_ge_u32 s9, 16\ns_cbranch_scc1 L_kv_hi")
        lpw = self.newlabel("w_pw")
        e(f"""s_cmp_lg_u32 s7, 4
s_cbranch_scc1 {lpw}
s_lshl_b32 s68, s5, 12
s_add_u32 s68, s68, {Q1}
v_lshlrev_b32 v8, 6, v1
buffer_load_dword v91, v8, s[40:43], s68 offen sc1""")
        self.label(lpw)
        ntk = self.opt("nt_wuk", nt)
        if ntk == "none":
            ntk = ""
        if self.opt("sl_wuk", 1):
            e(f"s_sleep {self.opt('sl_wuk', 1)}")
        WKL = 32768
        self.srd(52, 22, 4194304)
        e(f"""s_sub_u32 s14, s7, 4
s_lshl_b32 s14, s14, 13
s_add_u32 s14, s14, {WKL}
v_lshlrev_b32 v6, 8, v2
v_add_u32 v6, s14, v6""")
        for k in range(8):
            e(f"""s_mov_b32 m0, s14
v_xor_b32 v8, {64*(k&3)}, v7
buffer_load_dwordx4 v8, s[52:55], s13 offen {ntk} lds
s_add_u32 s14, s14, 1024
s_add_u32 s13, s13, {32768 if k != 3 else 32768 + 16*8192}""")
        for t in range(4):
            e(f"""v_or_b32 v8, {4*t}, v3
v_xor_b32 v8, v8, v2
v_lshl_add_u32 v{100+t}, v8, 4, v6""")
        e(f"""v_lshlrev_b32 v9, 4, v3
s_sub_u32 s14, s7, 4
s_lshl_b32 s14, s14, 6
v_lshl_add_u32 v8, v3, 3, s14
s_barrier""")
        self.get_nonce_lds(90)
        e("s_waitcnt vmcnt(0)")
        self.stamp(1)
        for t in range(4):
            e(f"ds_read_b128 v[{36+4*t}:{39+4*t}], v{100+t}\nds_read_b128 v[{52+4*t}:{55+4*t}], v{100+t} offset:4096")
        e("s_waitcnt lgkmcnt(0)\ns_barrier")
        for t in range(4):
            e(f"ds_read_b128 v[{120+4*t}:{123+4*t}], v9 offset:{QBF + 64*t}")
        for t in range(4):
            c0 = "0" if t == 0 else "v[116:119]"
            c1 = "0" if t == 0 else "v[136:139]"
            e(f"s_waitcnt lgkmcnt({3-t})")
            e(f"v_mfma_f32_16x16x32_bf16 v[116:119], v[{36+4*t}:{39+4*t}], v[{120+4*t}:{123+4*t}], {c0}")
            e(f"v_mfma_f32_16x16x32_bf16 v[136:139], v[{52+4*t}:{55+4*t}], v[{120+4*t}:{123+4*t}], {c1}")
        e(f"""s_nop 6
v_cvt_pk_bf16_f32 v140, v116, v117
v_cvt_pk_bf16_f32 v141, v118, v119
v_cvt_pk_bf16_f32 v142, v136, v137
v_cvt_pk_bf16_f32 v143, v138, v139
ds_write_b64 v8, v[140:141] offset:{QAL}
ds_write_b64 v8, v[142:143] offset:{QAL + 32}
s_waitcnt lgkmcnt(0)
s_barrier""")
        self.label("L_w_join")
        self.masks(72, 2, 92, True)
        if self.opt("sl_de", 0):
            e(f"s_sleep {self.opt('sl_de', 0)}")
        nto = self.opt("nt_wo", nt)
        e("""s_lshr_b32 s10, s6, 1
s_and_b32 s11, s6, 1
v_lshrrev_b32 v6, 3, v2
v_lshl_add_u32 v6, v6, 2, v3
v_lshlrev_b32 v7, 4, v6
v_lshlrev_b32 v6, 13, v6
v_and_b32 v8, 7, v2
v_lshl_add_u32 v6, v8, 4, v6
s_lshl_b32 s12, s10, 8
s_lshl_b32 s13, s7, 5
s_add_u32 s12, s12, s13
s_lshl_b32 s12, s12, 13
s_lshl_b32 s13, s5, 8
s_add_u32 s12, s12, s13
s_lshl_b32 s13, s11, 7
s_add_u32 s12, s12, s13
v_add_u32 v6, s12, v6""")
        for t in range(4):
            e(f"global_load_dwordx4 v[{16+4*t}:{19+4*t}], v6, s[24:25] {nt}")
            if t < 3:
                e("v_add_u32 v6, 0x10000, v6")
        lwo = self.newlabel("w_nowo")
        e(f"""s_cmp_ge_u32 s7, 4
s_cbranch_scc1 {lwo}
v_mul_u32_u24 v6, 5120, v3
v_lshl_add_u32 v6, v2, 4, v6
s_lshl_b32 s12, s5, 7
s_lshl_b32 s13, s11, 6
s_add_u32 s12, s12, s13
s_lshl_b32 s13, s7, 4
s_add_u32 s12, s12, s13
s_mul_i32 s12, s12, 1280
v_add_u32 v6, s12, v6""")
        for t in range(4):
            for b in range(5):
                r = 160 + (t * 5 + b) * 4
                e(f"global_load_dwordx4 v[{r}:{r+3}], v6, s[26:27] offset:{1280*(t%2) + 256*b} {nto}")
            if t == 1:
                e("v_add_u32 v6, 2560, v6")
        lfp = self.newlabel("w_fgp")
        e(f"s_branch {lfp}")
        self.label(lwo)
        if self.opt("pf_fg", 0):
            pol = self.opt("pf_pol", "none").replace("none", "")
            e(f"""s_lshr_b32 s12, s9, 2
s_lshl_b32 s12, s12, 3
s_add_u32 s12, s12, s8
s_cmp_ge_u32 s12, 27
s_cbranch_scc1 {lfp}
s_and_b32 s13, s9, 3
s_sub_u32 s14, s7, 4
s_mul_i32 s14, s14, 40
v_add_u32 v6, s14, v1
s_lshl_b32 s15, s12, 2
s_add_u32 s15, s15, s13
s_mul_i32 s15, s15, 20480
v_lshlrev_b32 v8, 7, v6
v_add_u32 v8, s15, v8
s_mul_i32 s13, s13, 160
v_add_u32 v6, s13, v6
v_mul_u32_u24 v6, 3456, v6
s_lshl_b32 s12, s12, 7
v_add_u32 v6, s12, v6
s_mov_b32 exec_hi, 0xff
global_load_dword v160, v8, s[32:33] {pol}
global_load_dword v161, v6, s[30:31] {pol}
s_mov_b64 exec, -1""")
        self.label(lfp)
        e(f"""v_and_b32 v8, 1, v3
v_lshlrev_b32 v8, 1, v8
v_lshrrev_b32 v9, 1, v3
v_or_b32 v8, v8, v9
v_and_b32 v9, 1, v1
v_lshl_add_u32 v8, v9, 2, v8
v_bfe_u32 v9, v1, 1, 2
v_lshl_add_u32 v8, v8, 2, v9
v_lshlrev_b32 v8, 2, v8
s_lshl_b32 s12, s7, 7
v_add_u32 v8, s12, v8
v_add_u32 v7, s12, v7
v_lshrrev_b32 v9, 3, v1
v_lshlrev_b32 v10, 4, v9
v_lshlrev_b32 v9, 9, v9
v_and_b32 v6, 7, v1
v_lshl_add_u32 v9, v6, 4, v9
s_lshl_b32 s12, s5, 2
s_lshl_b32 s13, s10, 1
s_add_u32 s12, s12, s13
s_lshr_b32 s13, s7, 2
s_add_u32 s12, s12, s13
s_lshl_b32 s12, s12, 14
s_and_b32 s13, s7, 3
s_lshl_b32 s13, s13, 7
s_add_u32 s12, s12, s13
s_add_u32 s12, s12, {OB}
s_add_u32 s13, s12, 4096
s_add_u32 s14, s12, 8192
s_add_u32 s15, s12, 12288
s_lshl_b32 s68, s5, 9
s_add_u32 s68, s68, {OS}
v_and_b32 v36, 7, v2
v_lshlrev_b32 v36, 5, v36
v_lshl_add_u32 v36, v3, 4, v36
s_lshl_b32 s61, s7, 8
v_add_u32 v36, s61, v36
s_lshl_b32 s61, s7, 6
v_lshl_add_u32 v37, v3, 4, s61
v_lshlrev_b32 v38, 5, v2
v_lshl_add_u32 v38, v3, 4, v38
s_mul_i32 s61, s7, 2560
v_add_u32 v38, s61, v38
v_subrev_u32 v39, 256, v0
v_lshrrev_b32 v40, 3, v39
v_lshlrev_b32 v40, 11, v40
v_and_b32 v41, 7, v39
v_lshl_add_u32 v40, v41, 4, v40
v_lshlrev_b32 v41, 4, v39
s_mul_i32 s69, s8, {20*2048}
s_lshl_b32 s61, s9, 7
s_add_u32 s69, s69, s61
s_add_u32 s69, s69, {EL}
s_and_b32 s61, s4, 0x67
v_mov_b32 v42, s65
s_mov_b32 s62, {LOG2E:#x}""")
        self.sig_prep(1, 70, "s61")
        self.sig_prep(2, 71)
        self.sig_prep(3, 72)
        e("s_waitcnt vmcnt(0)")
        self.stamp(5)
        lrq = self.newlabel("w_rq")
        lpe = self.newlabel("w_pe")
        e(f"""s_cmp_lg_u32 s7, 0
s_cbranch_scc1 {lrq}
s_mov_b32 exec_hi, 0
buffer_store_dwordx4 v[120:123], v5, s[40:43], s73 offen sc1
s_mov_b64 exec, -1""")
        self.label(lrq)
        e(f"""s_sub_u32 s61, s7, 4
s_lshl_b32 s61, s61, 4
s_add_u32 s61, s61, s9
s_cmp_ge_u32 s61, 20
s_cbranch_scc1 {lpe}
s_mul_i32 s63, s8, 20
s_add_u32 s63, s63, s61
s_lshl_b32 s63, s63, 11
s_add_u32 s63, s63, {EL}
v_lshlrev_b32 v44, 5, v1
buffer_load_dword v45, v44, s[40:43], s63 offen sc1""")
        self.label(lpe)
        self.sig_wait(71, 44, 11, self.opt("t_h3", 160))
        self.stamp(6)
        loads = [(f"buffer_load_dwordx4 v[{48+4*k}:{51+4*k}], v10, s[40:43], s68 offen offset:{128*k} sc1", 48 + 4 * k, 4) for k in range(4)]
        loads += [(f"buffer_load_dwordx4 v[{120+4*k}:{123+4*k}], v9, s[40:43], s{12+k} offen sc1", 120 + 4 * k, 4) for k in range(4)]
        self.poll(loads, 'tag', 44)
        self.stamp(7)
        for k in range(4):
            e(f"v_and_b32 v{48+4*k}, s64, v{48+4*k}")
        e(f"""v_max3_f32 v44, v48, v52, v56
v_max_f32 v44, v44, v60
s_nop 1
v_max_f32_dpp v44, v44, v44 row_ror:8 row_mask:0xf bank_mask:0xf
s_nop 0
v_mov_b32 v45, v44
s_nop 1
v_permlane16_swap_b32 v44, v45
s_nop 0
v_max_f32 v44, v44, v45
v_mov_b32 v45, v44
s_nop 1
v_permlane32_swap_b32 v44, v45
s_nop 0
v_max_f32 v44, v44, v45
v_mul_f32 v44, s62, v44""")
        for k in range(4):
            e(f"v_fma_f32 v{48+4*k}, v{48+4*k}, s62, -v44")
        for k in range(4):
            e(f"v_exp_f32 v{48+4*k}, v{48+4*k}")
        e("s_nop 0\nv_mul_f32 v46, v48, v49")
        for k in range(1, 4):
            e(f"v_fmac_f32 v46, v{48+4*k}, v{49+4*k}")
        for r in (0, 2):
            e(f"v_pk_mul_f32 v[{120+r}:{121+r}], v[{120+r}:{121+r}], v[48:49] op_sel_hi:[1,0]")
        e("v_add_f32_dpp v46, v46, v46 row_ror:8 row_mask:0xf bank_mask:0xf")
        for k in range(1, 4):
            for r in (0, 2):
                e(f"v_pk_fma_f32 v[{120+r}:{121+r}], v[{120+4*k+r}:{121+4*k+r}], v[{48+4*k}:{49+4*k}], v[{120+r}:{121+r}] op_sel_hi:[1,0,1]")
            if k == 1:
                e("v_mov_b32 v45, v46")
            if k == 2:
                e("v_permlane16_swap_b32 v46, v45")
        e(f"""v_add_f32 v46, v46, v45
v_permlane32_swap_b32 v120, v121
v_mov_b32 v45, v46
v_permlane32_swap_b32 v122, v123
v_add_f32 v120, v120, v121
v_permlane32_swap_b32 v46, v45
v_add_f32 v122, v122, v123
v_add_f32 v46, v46, v45
s_nop 0
v_permlane16_swap_b32 v120, v122
v_rcp_f32 v46, v46
v_add_f32 v120, v120, v122
s_nop 1
v_add_f32_dpp v120, v120, v120 row_ror:8 row_mask:0xf bank_mask:0xf
s_nop 0
v_mul_f32 v120, v120, v46
v_cvt_pk_bf16_f32 v120, v120, v120
ds_write_b32 v8, v120 offset:{CLX}
s_waitcnt lgkmcnt(0)
ds_read_b128 v[120:123], v7 offset:{CLX}
s_waitcnt lgkmcnt(0)""")
        for t in range(4):
            for r in range(4):
                e(f"v_and_b32 v{96+4*t+r}, v{120+t}, v{72+r}")
            if t > 0:
                c = "0" if t == 1 else "v[116:119]"
                e(f"v_mfma_f32_16x16x32_bf16 v[116:119], v[{96+4*(t-1)}:{99+4*(t-1)}], v[{16+4*(t-1)}:{19+4*(t-1)}], {c}")
        e("s_nop 0\nv_mfma_f32_16x16x32_bf16 v[116:119], v[108:111], v[28:31], v[116:119]\ns_nop 7")
        for r in range(4):
            e(f"v_mov_b32 v{124+r}, v{116+r}")
        for r in range(4):
            e(f"v_permlane32_swap_b32 v{116+r}, v{124+r}")
        for r in range(4):
            e(f"v_add_f32_dpp v{116+r}, v{124+r}, v{116+r} row_ror:8 row_mask:0xf bank_mask:0xf")
        e(f"""s_mov_b32 exec_lo, 0x00ff00ff
s_mov_b32 exec_hi, 0
ds_write_b128 v36, v[116:119] offset:{RED}
s_mov_b64 exec, -1
s_waitcnt lgkmcnt(0)
s_barrier""")
        lhi = self.newlabel("w_hi")
        e(f"s_cmp_ge_u32 s7, 4\ns_cbranch_scc1 {lhi}")
        for p in range(8):
            e(f"ds_read_b128 v[{120+4*p}:{123+4*p}], v37 offset:{RED + 256*p}")
        e("s_waitcnt lgkmcnt(0)")
        self.tree_sum(120, 8)
        for t in range(4):
            e(f"v_cvt_pk_bf16_f32 v{124+t}, v{120+t}, v{120+t}")
        for t in range(4):
            for r in range(4):
                e(f"v_and_b32 v{96+4*t+r}, v{124+t}, v{68+r}")
            e("s_nop 1")
            for b in range(5):
                r = 160 + (t * 5 + b) * 4
                c = "0" if t == 0 else f"v[{136+4*b}:{139+4*b}]"
                e(f"v_mfma_f32_16x16x32_bf16 v[{136+4*b}:{139+4*b}], v[{96+4*t}:{99+4*t}], v[{r}:{r+3}], {c}")
        e("s_mov_b32 exec_hi, 0\ns_nop 3")
        for b in range(5):
            if b == 4:
                e("s_nop 3")
            e(f"ds_write_b128 v38, v[{136+4*b}:{139+4*b}] offset:{RED2 + 512*b}")
        e("s_mov_b64 exec, -1\ns_waitcnt lgkmcnt(0)\ns_barrier")
        self.stamp(8)
        self.dbgtime(8, 5)
        e("""s_cmp_ge_u32 s4, 40
s_cbranch_scc1 L_fin
s_cmp_lg_u32 s7, 0
s_cbranch_scc1 L_fin""")
        self.colidx(8, 9)
        self.srd(44, 16, 1280)
        self.srd(52, 34, 1280)
        e(f"""s_lshl_b32 s12, s4, 5
v_lshlrev_b32 v9, 1, v8
buffer_load_ushort v50, v9, s[44:47], s12 offen
s_mul_i32 s12, s4, 7168
s_add_u32 s12, s12, {FB}
s_add_u32 s13, s12, 4096
v_cmp_gt_u32 vcc, 48, v1
v_add_u32 v10, 1024, v5
s_nop 0
v_cndmask_b32 v10, v5, v10, vcc
v_bfe_u32 v51, v1, 2, 3
v_mul_u32_u24 v51, 2560, v51
v_and_b32 v52, 3, v1
v_lshl_add_u32 v51, v52, 4, v51
s_lshl_b32 s14, s4, 6
s_add_u32 s14, s14, {XB}""")
        self.sig_prep(4, 70)
        self.sig_wait(72, 16, 11, self.opt("t_h5", 65) + 25)
        self.poll([("buffer_load_dwordx4 v[44:47], v51, s[40:43], s14 offen sc1", 44, 4)], 'tag', 53)
        e("v_cmp_gt_u32 vcc, 32, v1\ns_nop 1")
        for r in range(4):
            e(f"v_cndmask_b32 v{44+r}, 0, v{44+r}, vcc")
        self.reduce16(44, 1)
        e(f"""v_cvt_pk_bf16_f32 v44, v44, v44
v_and_b32 v44, 0xffff0000, v44
v_lshlrev_b32 v50, 16, v50
v_add_f32 v44, v44, v50
v_cvt_pk_bf16_f32 v44, v44, v44
v_and_b32 v44, 0xffff0000, v44
s_lshl_b32 s15, s4, 5
s_mov_b32 s62, 0x000f000f
s_mov_b32 s63, 0x000f000f
v_cmp_gt_u32 s[68:69], 48, v1""")
        self.sig_wait(70, 16, 11, self.opt("t_h6", 65))
        loads = [(f"buffer_load_dwordx4 v[{16+4*k}:{19+4*k}], v5, s[40:43], s{12 + k//4} offen offset:{1024*(k%4)} sc1", 16 + 4 * k, 4) for k in range(6)]
        loads += [("buffer_load_dwordx4 v[40:43], v10, s[40:43], s13 offen offset:1024 sc1", 40, 4)]
        self.poll(loads, 'tag', 53)
        self.stamp(9)
        for r in range(4):
            e(f"v_cndmask_b32 v{40+r}, 0, v{40+r}, s[68:69]")
        self.reduce16(16, 7)
        e(f"""s_nop 0
v_cvt_pk_bf16_f32 v16, v16, v16
v_and_b32 v16, 0xffff0000, v16
v_add_f32 v16, v16, v44
v_cvt_pk_bf16_f32 v16, v16, v16
s_mov_b64 exec, s[62:63]
buffer_store_short v16, v9, s[52:55], s15 offen
s_mov_b64 exec, -1""")
        self.stamp(10)
        if self.opt("pad", 0):
            lp = self.newlabel("pad")
            e("s_load_dword s12, s[36:37], 4 glc\ns_waitcnt lgkmcnt(0)")
            self.label(lp)
            e(f"""s_memrealtime s[10:11]
s_waitcnt lgkmcnt(0)
s_sub_u32 s10, s10, s12
s_cmp_lt_u32 s10, {self.opt("pad", 0)}
s_cbranch_scc1 {lp}""")
        self.dbgtime(2, 0)
        self.dbgtime(3, 39)
        e("s_branch L_fin")
        self.label(lhi)
        e(f"""s_sub_u32 s10, s7, 4
s_lshl_b32 s10, s10, 4
s_add_u32 s10, s10, s9
s_mul_i32 s12, s8, 20
s_add_u32 s12, s12, s10
s_lshl_b32 s12, s12, 11
s_add_u32 s12, s12, {EL}
s_mul_i32 s13, s8, 2560
s_lshl_b32 s14, s10, 7
s_add_u32 s13, s13, s14
s_add_u32 s13, s13, {XB}
v_cmp_gt_u32 vcc, 160, v39
s_and_saveexec_b64 s[62:63], vcc
s_barrier
s_cbranch_execz L_fin""")
        for wv in range(4):
            e(f"ds_read_b128 v[{120+4*wv}:{123+4*wv}], v41 offset:{RED2 + 2560*wv}")
        e("s_waitcnt lgkmcnt(0)")
        self.tree_sum(120, 4)
        self.tag4(120)
        e("buffer_store_dwordx4 v[120:123], v40, s[40:43], s69 offen")
        self.stamp(8)

        def restore_el():
            e("buffer_store_dwordx4 v[120:123], v40, s[40:43], s69 offen sc1")
        lnr = self.newlabel("w_nored")
        e(f"s_cmp_ge_u32 s10, 20\ns_cbranch_scc1 {lnr}")
        self.poll([(f"buffer_load_dwordx4 v[{124+4*k}:{127+4*k}], v5, s[40:43], s12 offen offset:{1024*k} sc1", 124 + 4 * k, 4) for k in range(2)], 'tag', 44, restore=restore_el)
        self.stamp(9)
        lns = self.newlabel("w_nosig")
        e(f"s_cmp_lg_u32 s7, 4\ns_cbranch_scc1 {lns}")
        self.sig_send(72, 42, 11)
        self.label(lns)
        self.tree_sum(124, 2)
        e("s_nop 0")
        for r in range(4):
            e(f"v_add_f32_dpp v{124+r}, v{124+r}, v{124+r} row_ror:8 row_mask:0xf bank_mask:0xf")
        for r in range(4):
            e(f"v_mov_b32 v{128+r}, v{124+r}")
        for r in range(4):
            e(f"v_permlane16_swap_b32 v{124+r}, v{128+r}")
        self.tree_sum(124, 2)
        for r in range(4):
            e(f"v_mov_b32 v{128+r}, v{124+r}")
        for r in range(4):
            e(f"v_permlane32_swap_b32 v{124+r}, v{128+r}")
        self.tree_sum(124, 2)
        self.tag4(124)
        e("""s_mov_b64 exec, 0xff
buffer_store_dwordx4 v[124:127], v5, s[40:43], s13 offen sc1
s_mov_b64 exec, -1""")
        self.stamp(10)
        self.label(lnr)
        e(f"s_sleep {self.opt('sl_el', 64)}")
        restore_el()
        e("s_branch L_fin")

    def colidx(self, vd, vt):
        self.e(f"""v_and_b32 v{vd}, 1, v3
v_lshlrev_b32 v{vd}, 1, v{vd}
v_lshrrev_b32 v{vt}, 1, v3
v_or_b32 v{vd}, v{vd}, v{vt}
v_and_b32 v{vt}, 3, v1
v_lshl_add_u32 v{vd}, v{vt}, 2, v{vd}""")

    def reduce16(self, v0, n):
        e = self.e
        self.tree_sum(v0, n)
        a = v0
        e(f"""s_nop 1
v_permlane32_swap_b32 v{a}, v{a+1}
v_permlane32_swap_b32 v{a+2}, v{a+3}
s_nop 0
v_add_f32 v{a}, v{a}, v{a+1}
v_add_f32 v{a+2}, v{a+2}, v{a+3}
s_nop 1
v_permlane16_swap_b32 v{a}, v{a+2}
s_nop 0
v_add_f32 v{a}, v{a}, v{a+2}
s_nop 1
v_add_f32_dpp v{a}, v{a}, v{a} row_ror:8 row_mask:0xf bank_mask:0xf
s_nop 1
v_add_f32_dpp v{a}, v{a}, v{a} row_ror:4 row_mask:0xf bank_mask:0xf""")

    def acc(self, k):
        return 168 + 4 * k if k < 11 else 64 + 4 * (k - 11)

    def roleKV(self, nt):
        e = self.e
        RT, BT, QL, XCH, PL, SL = 65536, 65536, 4096, 49152, 4096, 64
        W1L, HN, HF = 24576, 45056, 50176

        def ids():
            e(f"""s_bfe_u32 s10, s9, 0x20002
s_lshl_b32 s5, s8, 2
s_add_u32 s5, s5, s10
s_and_b32 s6, s9, 3""")
            self.srd(44, 18, 8388608)
            e(f"""s_lshl_b32 s10, s5, 3
s_lshl_b32 s11, s6, 1
s_add_u32 s10, s10, s11
s_mul_i32 s68, s10, {2*PMSG}
s_add_u32 s68, s68, {PB}
s_lshl_b32 s69, s5, 7
s_add_u32 s69, s69, {RDY}""")

        def rows(done):
            e(f"""s_sub_u32 s15, s7, 1
s_lshl_b32 s12, s5, 8
s_lshl_b32 s13, s6, 6
s_add_u32 s12, s12, s13
s_add_u32 s12, s12, s15
s_lshl_b32 s12, s12, 10
s_mul_i32 s14, s15, 1040
s_add_u32 s14, s14, {RT}""")
            for k in range(11):
                if k == 10:
                    e(f"s_cmp_ge_u32 s15, 4\ns_cbranch_scc1 {done}")
                e(f"""s_mov_b32 m0, s14
s_add_u32 s14, s14, {6*1040}
buffer_load_dwordx4 v5, s[44:47], s12 offen {nt} lds
s_add_u32 s12, s12, {6*1024}""")
        lj = "L_kv_join"
        self.label("L_kv_w0")
        ids()
        e(f"s_branch {lj}")
        self.label("L_kv_lo")
        ids()
        rows(lj)
        e(f"s_branch {lj}")
        self.label("L_kv_hi")
        ids()
        l7 = self.newlabel("kv_w7")
        lrd = self.newlabel("kv_rowsd")
        e(f"s_cmp_eq_u32 s7, 7\ns_cbranch_scc1 {l7}")
        if self.opt("sl_ckv", 28):
            e(f"s_sleep {self.opt('sl_ckv', 28)}")
        rows(lrd)
        self.label(lrd)
        e(f"s_barrier\ns_branch {lj}")
        self.label(l7)
        e("""v_mov_b32 v20, -1
v_mov_b32 v21, -1
v_mov_b32 v22, -1
v_mov_b32 v23, -1
buffer_store_dwordx4 v[20:23], v5, s[40:43], s68 offen sc1
buffer_store_dwordx4 v[20:23], v5, s[40:43], s68 offen offset:1024 sc1
buffer_store_dwordx4 v[20:23], v5, s[40:43], s68 offen offset:2048 sc1
buffer_store_dwordx4 v[20:23], v5, s[40:43], s68 offen offset:3072 sc1
buffer_store_dwordx4 v[20:23], v5, s[40:43], s68 offen offset:3584 sc1""")
        e(f"""ds_write_b32 v227, v11 offset:{FLG}
ds_write_b32 v227, v11 offset:{FLG+4}
s_waitcnt lgkmcnt(0)
s_barrier
ds_read_b32 v60, v227 offset:{NON}
s_lshl_b32 s12, s6, 4
s_add_u32 s12, s12, s69
s_waitcnt vmcnt(0) lgkmcnt(0)
s_getreg_b32 s13, hwreg(HW_REG_XCC_ID)
v_mov_b32 v61, s13
v_mov_b32 v62, v60
v_mov_b32 v63, v60
s_mov_b64 exec, 1
buffer_store_dwordx4 v[60:63], v11, s[40:43], s12 offen sc1
s_mov_b64 exec, -1
v_readfirstlane_b32 s65, v60
s_mov_b32 s60, 0""")
        lr = self.newlabel("kv_rdy")
        lrdn = self.newlabel("kv_rdyd")
        self.label(lr)
        e(f"""s_load_dwordx16 s[76:91], s[38:39], s69 glc
s_add_u32 s60, s60, 1
s_cmp_ge_u32 s60, {SPIN_LIMIT}
s_cbranch_scc1 {lrdn}
s_waitcnt lgkmcnt(0)
s_xor_b32 s76, s76, s65
s_xor_b32 s80, s80, s65
s_xor_b32 s84, s84, s65
s_xor_b32 s88, s88, s65
s_or_b32 s76, s76, s80
s_or_b32 s84, s84, s88
s_or_b32 s76, s76, s84
s_cbranch_scc1 {lr}""")
        self.label(lrdn)
        e(f"""s_waitcnt lgkmcnt(0)
s_xor_b32 s77, s77, s13
s_xor_b32 s81, s81, s13
s_xor_b32 s85, s85, s13
s_xor_b32 s89, s89, s13
s_or_b32 s77, s77, s81
s_or_b32 s85, s85, s89
s_or_b32 s77, s77, s85
v_mov_b32 v8, s77
ds_write_b32 v227, v8 offset:8
s_mul_i32 s12, s5, {16*PMSG}
s_add_u32 s12, s12, {PB}
v_mul_u32_u24 v8, 96, v1
buffer_load_dword v250, v8, s[40:43], s12 offen sc1
s_add_u32 s12, s12, 6144
buffer_load_dword v251, v8, s[40:43], s12 offen sc1
s_add_u32 s12, s12, 6144
buffer_load_dword v252, v8, s[40:43], s12 offen sc1
s_waitcnt lgkmcnt(0)""")
        self.label(lj)
        e(f"""s_lshr_b32 s10, s7, 2
s_lshl_b32 s10, s10, 9
s_bfe_u32 s11, s7, 0x10001
s_mul_i32 s11, s11, {32*1040}
s_add_u32 s10, s10, s11
s_add_u32 s10, s10, {RT}
v_mul_u32_u24 v231, 1040, v2
v_lshl_add_u32 v231, v3, 4, v231
v_add_u32 v231, s10, v231""")
        e(f"""s_lshl_b32 s48, s7, 10
s_add_u32 s49, s48, {QA}
s_add_u32 s48, s48, {QL}
s_lshr_b32 s10, s7, 2
s_mul_i32 s10, s10, {64*352}
s_and_b32 s11, s7, 1
s_mul_i32 s12, s11, {16*352}
s_add_u32 s10, s10, s12
v_lshlrev_b32 v10, 6, v2
v_lshl_add_u32 v10, v3, 4, v10
v_lshrrev_b32 v6, 1, v3
v_lshl_add_u32 v6, v6, 5, v2
v_mul_u32_u24 v6, 352, v6
v_and_b32 v8, 1, v3
v_lshl_add_u32 v6, v8, 4, v6
v_add_u32 v6, s10, v6
s_and_b32 s10, s7, 3
s_lshl_b32 s10, s10, 11
v_add_u32 v9, s10, v5
s_lshl_b32 s10, s7, 11
v_add_u32 v7, s10, v5
s_and_b32 s10, s7, 3
s_mul_i32 s10, s10, {PMSG}
s_add_u32 s50, s68, s10
v_lshlrev_b32 v212, 3, v2
s_mul_i32 s51, s5, {16*PMSG}
s_mul_i32 s10, s7, {2*PMSG}
s_add_u32 s51, s51, s10
s_add_u32 s51, s51, {PB}
v_and_b32 v213, 1, v3
v_mul_u32_u24 v213, {PMSG}, v213
v_add_u32 v213, v213, v212
v_and_b32 v214, 31, v1
v_lshlrev_b32 v214, 6, v214
s_lshl_b32 s10, s7, 3
v_add_u32 v214, s10, v214
s_lshl_b32 s10, s11, 10
v_add_u32 v215, s10, v10
s_lshl_b32 s10, s11, 4
v_add_u32 v216, s10, v2
v_lshlrev_b32 v217, 6, v216
v_lshlrev_b32 v218, 16, v216
v_lshl_add_u32 v218, v3, 4, v218
s_lshl_b32 s52, s6, 5
s_add_u32 s52, s52, s5
s_lshl_b32 s52, s52, 9
s_lshr_b32 s10, s7, 1
s_lshl_b32 s10, s10, 7
s_add_u32 s52, s52, s10
s_add_u32 s52, s52, {OB}
v_lshlrev_b32 v219, 9, v216
s_lshl_b32 s53, s5, 4
s_add_u32 s53, s53, {OS}
s_mov_b32 s54, {SCALE:#x}
s_mov_b32 s55, {LOG2E:#x}
v_mov_b32 v221, 1
v_lshlrev_b32 v8, 1, v3
v_xor_b32 v8, v8, v2
v_lshlrev_b32 v222, 10, v3
v_lshl_add_u32 v222, v8, 4, v222
v_xor_b32 v226, 0x80, v222
s_lshl_b32 s74, s5, 8
s_lshl_b32 s13, s7, 5
s_add_u32 s74, s74, s13
s_lshl_b32 s74, s74, 10
s_lshl_b32 s14, s6, 8
s_add_u32 s74, s74, s14
s_lshl_b32 s75, s7, 13
s_add_u32 s75, s75, {BT}
v_lshrrev_b32 v223, 2, v2
v_lshl_add_u32 v223, v3, 2, v223
v_and_b32 v229, 7, v223
s_lshr_b32 s12, s7, 1
s_lshl_b32 s12, s12, 1
v_xor_b32 v229, s12, v229
v_lshlrev_b32 v223, 8, v223
v_lshl_add_u32 v223, v229, 5, v223
v_and_b32 v8, 3, v2
v_lshl_add_u32 v223, v8, 3, v223
v_add_u32 v223, {BT}, v223
v_xor_b32 v229, 32, v223
v_lshlrev_b32 v230, 2, v2""")
        self.sig_prep(0, 70)
        self.sig_prep(1, 71)
        self.sig_prep(2, 72)
        nt2 = self.opt("nt_block", nt)

        def blk_dma():
            for k in range(8):
                e(f"""s_mov_b32 m0, s75
s_add_u32 s75, s75, 1024
buffer_load_dwordx4 v{222 if k % 2 == 0 else 226}, s[44:47], s74 offen {nt2} lds
s_add_u32 s74, s74, 4096""")

        def tr_reads():
            for p in range(8):
                for ctl in range(2):
                    for hh in range(2):
                        r = 104 + (p * 2 + ctl) * 4 + 2 * hh
                        e(f"ds_read_b64_tr_b16 v[{r}:{r+1}], v{223 if ctl == 0 else 229} offset:{8192*p + 4096*hh}")
                if p % 3 == 2:
                    e("s_waitcnt lgkmcnt(3)")
        self.tr_reads = tr_reads
        early = 0
        self.get_nonce_lds(240)
        e("v_mov_b32 v220, s65\ns_mov_b32 s73x, 0".replace("s73x", "s47x").replace("s47x", "s3"))
        def rq():
            lrq = self.newlabel("kv_rq")
            e(f"""s_cmp_lg_u32 s7, 0
s_cbranch_scc1 {lrq}
s_mov_b32 exec_hi, 0
buffer_store_dwordx4 v[232:235], v5, s[40:43], s73 offen sc1
s_mov_b64 exec, -1""")
            self.label(lrq)
        def sweep():
            e("s_mov_b32 s10, s48\ns_mov_b32 s11, s49")
            for k in range(6):
                if k == 5:
                    l5 = self.newlabel("kv_sw5")
                    e(f"s_cmp_ge_u32 s7, 4\ns_cbranch_scc1 {l5}")
                e(f"""s_mov_b32 m0, s10
s_add_u32 s10, s10, 8192
buffer_load_dwordx4 v5, s[40:43], s11 offen sc1 lds
s_add_u32 s11, s11, 8192""")
                if k == 5:
                    self.label(l5)
        TH2 = self.opt("t_h2", 115)
        e("v_mov_b32 v232, v120\nv_mov_b32 v233, v121\nv_mov_b32 v234, v122\nv_mov_b32 v235, v123")
        e("s_waitcnt vmcnt(2)\ns_load_dwordx2 s[28:29], s[38:39], s70 glc\ns_waitcnt vmcnt(0)\ns_barrier")
        self.stamp(3)
        lns = self.newlabel("kv_nosw")
        e(f"""s_memrealtime s[0:1]
s_mov_b32 s61, 0
s_waitcnt lgkmcnt(0)
s_cmp_lg_u32 s28, s65
s_cbranch_scc1 {lns}
s_sub_u32 s0, s0, s29
s_cmp_lt_u32 s0, {TH2}
s_cbranch_scc1 {lns}
s_mov_b32 s61, 1""")
        self.stamp(11)
        sweep()
        self.label(lns)
        for u in range(8):
            e(f"ds_read_b128 v[{16+4*u}:{19+4*u}], v231 offset:{64*u}")
        for u in range(8):
            if u == 7:
                e("s_waitcnt lgkmcnt(8)")
            e(f"ds_read_b128 v[{60+4*u}:{63+4*u}], v231 offset:{16*1040 + 64*u}")
        e("ds_read_b32 v237, v227 offset:8")
        lsd = self.newlabel("kv_swd")
        lhv = self.newlabel("kv_have")
        e(f"s_cmp_eq_u32 s61, 1\ns_cbranch_scc1 {lsd}\ns_cmp_eq_u32 s28, s65\ns_cbranch_scc1 {lhv}")
        self.sig_wait(70, 240, 11, 0, restore=rq)
        self.label(lhv)
        self.until(TH2)
        self.stamp(11)
        sweep()
        self.label(lsd)
        e("s_waitcnt lgkmcnt(0)")
        for a in range(2):
            for z in range(3):
                for i in range(3):
                    sidx = 3 * z + i
                    d = 16 + 44 * a + 4 * (8 + z) + i
                    if sidx < 8:
                        e(f"v_mov_b32 v{d}, v{16+44*a+4*sidx+3}")
                    else:
                        e(f"v_mov_b32 v{d}, 0")
                e(f"v_mov_b32 v{16+44*a+4*(8+z)+3}, 0")
        e("v_readfirstlane_b32 s66, v237\ns_mov_b32 s60, 0")
        lsw = self.newlabel("kv_sweep")
        lfirst = self.newlabel("kv_first")
        e(f"s_branch {lfirst}")
        self.label(lsw)
        sweep()
        self.label(lfirst)
        e("s_waitcnt vmcnt(0)\ns_barrier")
        for u in range(11):
            e(f"ds_read_b128 v[{168+4*u}:{171+4*u}], v6 offset:{QL + 32*u}")
        lnb = self.newlabel("kv_noblk")
        e(f"s_cmp_lg_u32 s60, 0\ns_cbranch_scc1 {lnb}")
        blk_dma()
        self.label(lnb)
        self.stamp(4)

        def chk(u):
            r = 168 + 4 * u + 3
            e(f"s_waitcnt lgkmcnt({10 - u})")
            if u == 0:
                e(f"v_xor_b32 v224, s67, v{r}")
            else:
                e(f"v_bitop3_b32 v224, v224, v{r}, s67 bitop3:0xf6")
            e(f"v_mov_b32 v{r}, 0")
        chk(0)
        for u in range(11):
            if u + 1 < 11:
                chk(u + 1)
            else:
                e("v_cmp_ne_u32 vcc, 0, v224\nv_add_u32 v225, s3, v227")
            r = 168 + 4 * u
            for a in range(2):
                c = "0" if u == 0 else f"v[{240+4*a}:{243+4*a}]"
                e(f"v_mfma_f32_16x16x32_bf16 v[{240+4*a}:{243+4*a}], v[{16+44*a+4*u}:{19+44*a+4*u}], v[{r}:{r+3}], {c}")
        lok = self.newlabel("kv_ok")
        e(f"""s_cmp_eq_u64 vcc, 0
s_cbranch_scc1 {lok}
ds_write_b32 v225, v221 offset:{FLG}""")
        self.label(lok)
        lnx = self.newlabel("kv_nox")
        e(f"""s_cmp_lt_u32 s7, 4
s_cbranch_scc1 {lnx}
s_nop 3
ds_write_b128 v9, v[240:243] offset:{XCH}
ds_write_b128 v9, v[244:247] offset:{XCH + 1024}""")
        self.label(lnx)
        e(f"""s_waitcnt lgkmcnt(0)
s_barrier
ds_read_b32 v224, v225 offset:{FLG}
ds_read_b128 v[168:171], v9 offset:{XCH}
ds_read_b128 v[172:175], v9 offset:{XCH + 1024}""")
        lgo = self.newlabel("kv_go")
        e(f"""s_waitcnt lgkmcnt(2)
v_readfirstlane_b32 s10, v224
s_nop 0
s_cmp_eq_u32 s10, 0
s_cbranch_scc1 {lgo}
s_waitcnt lgkmcnt(0)
s_xor_b32 s3, s3, 4
v_add_u32 v225, s3, v227
ds_write_b32 v225, v11 offset:{FLG}
s_add_u32 s60, s60, 1
s_waitcnt lgkmcnt(0)
s_barrier""")
        rq()
        e(f"""s_cmp_lt_u32 s60, {SPIN_LIMIT}
s_cbranch_scc1 {lsw}""")
        self.label(lgo)
        self.stamp(5)
        lnsm = self.newlabel("kv_nosm")
        e(f"s_cmp_ge_u32 s7, 4\ns_cbranch_scc1 {lnsm}\ns_waitcnt lgkmcnt(0)")
        for k in range(4):
            e(f"v_pk_add_f32 v[{168+2*k}:{169+2*k}], v[{168+2*k}:{169+2*k}], v[{240+2*k}:{241+2*k}]")
        for k in range(4):
            e(f"v_cvt_pk_bf16_f32 v{176+k}, v{168+2*k}, v{169+2*k}")
        for k in range(4):
            e(f"v_lshlrev_b32 v{168+2*k}, 16, v{176+k}\nv_and_b32 v{169+2*k}, 0xffff0000, v{176+k}")
        for k in range(8):
            e(f"v_mul_f32 v{168+k}, s54, v{168+k}")
        for k in range(4):
            e(f"v_cvt_pk_bf16_f32 v{176+k}, v{168+2*k}, v{169+2*k}")
        for k in range(4):
            e(f"v_lshlrev_b32 v{168+2*k}, 16, v{176+k}\nv_and_b32 v{169+2*k}, 0xffff0000, v{176+k}")
        e("""v_max3_f32 v248, v168, v169, v170
v_max3_f32 v180, v171, v172, v173
v_max3_f32 v248, v248, v174, v175
v_max_f32 v248, v248, v180
v_mov_b32 v180, v248
s_nop 1
v_permlane16_swap_b32 v248, v180
s_nop 0
v_max_f32 v248, v248, v180
v_mov_b32 v180, v248
s_nop 1
v_permlane32_swap_b32 v248, v180
s_nop 0
v_max_f32 v248, v248, v180
v_mul_f32 v180, s55, v248""")
        for k in range(8):
            e(f"v_fma_f32 v{168+k}, v{168+k}, s55, -v180")
        for k in range(8):
            e(f"v_exp_f32 v{168+k}, v{168+k}")
        e("s_nop 0")
        for k in range(4):
            e(f"v_cvt_pk_bf16_f32 v{252+k}, v{168+2*k}, v{169+2*k}")
        e("""buffer_store_dwordx4 v[252:255], v10, s[40:43], s50 offen
v_pk_add_f32 v[168:169], v[168:169], v[170:171]
v_pk_add_f32 v[172:173], v[172:173], v[174:175]
v_pk_add_f32 v[168:169], v[168:169], v[172:173]
v_add_f32 v249, v168, v169
v_mov_b32 v180, v249
s_nop 1
v_permlane16_swap_b32 v249, v180
s_nop 0
v_add_f32 v249, v249, v180
v_mov_b32 v180, v249
s_nop 1
v_permlane32_swap_b32 v249, v180
s_nop 0
v_add_f32 v249, v249, v180
s_mov_b64 exec, 0xffff
buffer_store_dwordx2 v[248:249], v212, s[40:43], s50 offen offset:1024
s_mov_b64 exec, -1""")
        self.stamp(6)
        if not early:
            lsj = self.newlabel("kv_sj")
            e(f"s_waitcnt vmcnt(2)\ns_branch {lsj}")
            self.label(lnsm)
            e("s_waitcnt vmcnt(0)")
            self.label(lsj)
            e("s_barrier")
            tr_reads()
        else:
            self.label(lnsm)

        def restore_p():
            l = self.newlabel("rp")
            e(f"""s_cmp_ge_u32 s7, 4
s_cbranch_scc1 {l}
buffer_store_dwordx4 v[252:255], v10, s[40:43], s50 offen sc1
s_mov_b64 exec, 0xffff
buffer_store_dwordx2 v[248:249], v212, s[40:43], s50 offen offset:1024 sc1
s_mov_b64 exec, -1""")
            self.label(l)
        lsame = self.newlabel("kv_same")
        e(f"s_cmp_eq_u32 s66, 0\ns_cbranch_scc1 {lsame}")
        restore_p()
        self.label(lsame)
        self.poll([("buffer_load_dwordx4 v[168:171], v5, s[40:43], s51 offen sc1", 168, 4),
                   (f"buffer_load_dwordx4 v[172:175], v5, s[40:43], s51 offen offset:{PMSG} sc1", 172, 4),
                   ("buffer_load_dwordx2 v[176:177], v213, s[40:43], s51 offen offset:1024 sc1", 176, 2)], 'sent', 224)
        e(f"""ds_write_b128 v7, v[168:171] offset:{PL}
ds_write_b128 v7, v[172:175] offset:{PL + 1024}
ds_write_b64 v214, v[176:177] offset:{SL}
s_waitcnt lgkmcnt(0)
s_barrier""")
        self.stamp(7)
        if self.opt("sig2_early", 1):
            l0e = self.newlabel("kv_sig")
            e(f"s_cmp_lg_u32 s7, 7\ns_cbranch_scc1 {l0e}")
            self.sig_send(72, 220, 11)
            self.label(l0e)
        for k in range(4):
            e(f"ds_read_b128 v[{48+4*k}:{51+4*k}], v217 offset:{SL + 16*k}")
        for p in range(8):
            e(f"ds_read_b128 v[{16+4*p}:{19+4*p}], v215 offset:{PL + 2048*p}")
        stats = []
        stats.append("v_max3_f32 v238, v48, v50, v52")
        stats.append("v_max3_f32 v239, v54, v56, v58")
        stats.append("v_max3_f32 v238, v238, v60, v62")
        stats.append("v_max_f32 v238, v238, v239")
        stats.append("v_mul_f32 v239, s55, v238")
        for p in range(8):
            stats.append(f"v_fma_f32 v{48+2*p}, v{48+2*p}, s55, -v239")
        for p in range(8):
            stats.append(f"v_exp_f32 v{48+2*p}, v{48+2*p}")
        stats.append("v_and_or_b32 v240, v238, s64, v12")
        stats.append("v_mul_f32 v239, v48, v49")
        for p in range(1, 8):
            stats.append(f"v_fmac_f32 v239, v{48+2*p}, v{49+2*p}")
        si = 0
        for p in range(8):
            e(f"s_waitcnt lgkmcnt({7 - p})")
            for ctl in range(2):
                ar = 104 + (p * 2 + ctl) * 4
                ac = self.acc(p * 2 + ctl)
                e(f"v_mfma_f32_16x16x32_bf16 v[{ac}:{ac+3}], v[{ar}:{ar+3}], v[{16+4*p}:{19+4*p}], 0")
                for _ in range(2):
                    if si < len(stats):
                        e(stats[si]); si += 1
        while si < len(stats):
            e(stats[si]); si += 1
        lno = self.newlabel("kv_noos")
        e(f"""s_cmp_lg_u32 s6, 0
s_cbranch_scc1 {lno}
s_cmp_ge_u32 s7, 2
s_cbranch_scc1 {lno}
v_and_or_b32 v241, v239, s64, v13
v_mov_b32 v242, v14
v_mov_b32 v243, v15
s_mov_b64 exec, 0xffff
buffer_store_dwordx4 v[240:243], v219, s[40:43], s53 offen sc1
s_mov_b64 exec, -1""")
        self.label(lno)
        for r in range(0, 8, 2):
            e(f"v_pk_mul_f32 v[{168+r}:{169+r}], v[{168+r}:{169+r}], v[48:49] op_sel_hi:[1,0]")
        for p in range(1, 8):
            for ctl in range(2):
                for r in (0, 2):
                    a = self.acc(2 * p + ctl) + r
                    o = 168 + 4 * ctl + r
                    e(f"v_pk_fma_f32 v[{o}:{o+1}], v[{a}:{a+1}], v[{48+2*p}:{49+2*p}], v[{o}:{o+1}] op_sel_hi:[1,0,1]")
        self.tag4(168)
        e("buffer_store_dwordx4 v[168:171], v218, s[40:43], s52 offen sc1")
        self.tag4(172)
        e("buffer_store_dwordx4 v[172:175], v218, s[40:43], s52 offen offset:64 sc1")
        self.stamp(8)
        e("s_barrier")
        self.dbgtime(6, 128)
        self.dbgtime(7, 201)
        if not self.opt("sig2_early", 1):
            l0 = self.newlabel("kv_sig")
            e(f"s_cmp_lg_u32 s7, 0\ns_cbranch_scc1 {l0}")
            self.sig_send(72, 220, 11)
            self.label(l0)
        lnf = self.newlabel("kv_nofg")
        llo = self.newlabel("kv_fglo")
        e(f"""v_mov_b32 v236, v220
s_bfe_u32 s10, s9, 0x20002
s_lshl_b32 s10, s10, 3
s_add_u32 s10, s10, s8
s_cmp_ge_u32 s10, 27
s_cbranch_scc1 {lnf}
s_lshl_b32 s10, s10, 2
s_add_u32 s10, s10, s6""")
        if self.opt("sl_fg", 0):
            e(f"s_sleep {self.opt('sl_fg', 0)}")
        e(f"s_cmp_lt_u32 s7, 4\ns_cbranch_scc1 {llo}")
        self.srd(44, 30, 2211840)
        e(f"""v_lshrrev_b32 v6, 1, v1
v_mul_u32_u24 v6, 3456, v6
v_and_b32 v7, 1, v1
v_lshl_add_u32 v6, v7, 4, v6
s_sub_u32 s11, s7, 4
s_mul_i32 s11, s11, 160
s_mul_i32 s12, s11, 3456
s_lshl_b32 s13, s10, 5
s_add_u32 s12, s12, s13
s_lshl_b32 s13, s11, 5
s_add_u32 s13, s13, {W1L}""")
        for k in range(5):
            e(f"""s_mov_b32 m0, s13
s_add_u32 s13, s13, 1024
buffer_load_dwordx4 v6, s[44:47], s12 offen {nt} lds
s_add_u32 s12, s12, {32*3456}""")
        e("s_waitcnt vmcnt(0)")
        if self.opt("dbg2", 0): self.stamp(2)
        e("s_barrier\ns_branch L_fin")
        self.label(lnf)
        rq()
        if self.opt("clean_p", 0):
            restore_p()
        e("s_branch L_fin")
        self.label(llo)
        self.srd(44, 16, 1280)
        e(f"""v_lshlrev_b32 v8, 3, v1
s_mul_i32 s11, s7, 320
buffer_load_dwordx2 v[48:49], v8, s[44:47], s11 offen
v_mul_u32_u24 v7, 5120, v3
v_lshl_add_u32 v7, v2, 4, v7
s_mul_i32 s12, s10, 20480
s_lshl_b32 s13, s7, 8
s_add_u32 s12, s12, s13
v_add_u32 v7, s12, v7""")
        for t in range(4):
            e(f"global_load_dwordx4 v[{16+4*t}:{19+4*t}], v7, s[32:33] offset:{1280*t} {nt}")
        lb4 = self.newlabel("kv_b4")
        e(f"s_cmp_lg_u32 s7, 0\ns_cbranch_scc1 {lb4}\nv_add_u32 v7, 1024, v7")
        for t in range(4):
            e(f"global_load_dwordx4 v[{32+4*t}:{35+4*t}], v7, s[32:33] offset:{1280*t} {nt}")
        self.label(lb4)
        rq()
        if self.opt("clean_p", 0):
            restore_p()
        self.masks(52, 2, 60, False)
        e(f"""v_lshrrev_b32 v8, 2, v2
v_lshl_add_u32 v8, v3, 3, v8
v_lshlrev_b32 v8, 5, v8
v_and_b32 v9, 3, v2
v_lshl_add_u32 v8, v9, 3, v8
s_waitcnt vmcnt(0)""")
        if self.opt("dbg2", 0): self.stamp(2)
        e("s_barrier")
        if self.opt("dbg2", 0): self.stamp(3)
        for t in range(20):
            for hh in range(2):
                e(f"ds_read_b64_tr_b16 v[{80+4*t+2*hh}:{81+4*t+2*hh}], v8 offset:{W1L + 1024*t + 128*hh}")
            if t % 4 == 3:
                e("s_waitcnt lgkmcnt(0)")
        e(f"""s_mul_i32 s12, s7, 640
s_add_u32 s12, s12, {XB}
s_add_u32 s13, s12, 5120
s_add_u32 s14, s12, 10240
s_add_u32 s15, s12, 15360
v_lshlrev_b32 v56, 16, v48
v_and_b32 v57, 0xffff0000, v48
v_lshlrev_b32 v58, 16, v49
v_and_b32 v59, 0xffff0000, v49
v_lshlrev_b32 v8, 3, v1
s_mul_i32 s11, s7, 320
v_add_u32 v9, s11, v8
s_mul_i32 s11, s7, 1280
v_add_u32 v10, s11, v8
v_add_u32 v228, s11, v4
v_lshl_add_u32 v229, v3, 4, s11
v_lshrrev_b32 v230, 1, v2
v_mul_u32_u24 v230, 7168, v230
v_and_b32 v231, 1, v2
v_lshl_add_u32 v230, v231, 5, v230
v_lshl_add_u32 v230, v3, 4, v230
s_mul_i32 s52, s7, {8*7168}
s_lshl_b32 s53, s10, 6
s_add_u32 s52, s52, s53
s_add_u32 s52, s52, {FB}
s_add_u32 s53, s52, {32*7168}""")
        self.sig_prep(3, 70)
        self.sig_prep(4, 71)
        if not self.opt('dbg1', 0): self.stamp(9)
        self.sig_wait(70, 60, 11, self.opt("t_h5", 65))
        e("s_mov_b32 exec_hi, 0xff")
        self.poll([(f"buffer_load_dwordx4 v[{160+4*x}:{163+4*x}], v5, s[40:43], s{12 + x//2} offen offset:{2560*(x%2)} sc1", 160 + 4 * x, 4) for x in range(8)], 'tag', 60)
        self.tree_sum(160, 8)
        e(f"""v_cvt_pk_bf16_f32 v60, v160, v161
v_cvt_pk_bf16_f32 v61, v162, v163
v_lshlrev_b32 v160, 16, v60
v_and_b32 v161, 0xffff0000, v60
v_lshlrev_b32 v162, 16, v61
v_and_b32 v163, 0xffff0000, v61
v_pk_add_f32 v[160:161], v[160:161], v[56:57]
v_pk_add_f32 v[162:163], v[162:163], v[58:59]
v_cvt_pk_bf16_f32 v60, v160, v161
v_cvt_pk_bf16_f32 v61, v162, v163
ds_write_b64 v9, v[60:61] offset:{HF}
s_mov_b64 exec, -1
s_waitcnt lgkmcnt(0)
s_barrier
ds_read_b64 v[70:71], v8 offset:{HF}
ds_read_b64 v[72:73], v8 offset:{HF + 512}
ds_read_b32 v74, v4 offset:{HF + 1024}
s_waitcnt lgkmcnt(0)""")
        if not self.opt('dbg1', 0): self.stamp(10)
        for k in range(5):
            e(f"v_lshlrev_b32 v{60+2*k}, 16, v{70+k}\nv_and_b32 v{61+2*k}, 0xffff0000, v{70+k}")
        self.layernorm(60, 70, 62, 63)
        e(f"""v_cvt_pk_bf16_f32 v70, v60, v61
v_cvt_pk_bf16_f32 v71, v62, v63
v_cvt_pk_bf16_f32 v72, v64, v65
v_cvt_pk_bf16_f32 v73, v66, v67
v_cvt_pk_bf16_f32 v74, v68, v69
ds_write_b64 v10, v[70:71] offset:{HN}
ds_write_b64 v10, v[72:73] offset:{HN + 512}
ds_write_b32 v228, v74 offset:{HN + 1024}
s_waitcnt lgkmcnt(0)""")
        for t in range(14):
            e(f"ds_read_b128 v[{160+4*t}:{163+4*t}], v229 offset:{HN + 64*t}")
        for t in range(20):
            issued = min(t + 14, 20)
            e(f"s_waitcnt lgkmcnt({issued - t - 1})")
            c = "0" if t == 0 else "v[56:59]"
            e(f"v_mfma_f32_16x16x32_bf16 v[56:59], v[{80+4*t}:{83+4*t}], v[{self.fb(t)}:{self.fb(t)+3}], {c}")
            if t + 14 < 20:
                e(f"ds_read_b128 v[{self.fb(t+14)}:{self.fb(t+14)+3}], v229 offset:{HN + 64*(t+14)}")
        ls4 = self.newlabel("kv_s4")
        e(f"s_cmp_lg_u32 s7, 1\ns_cbranch_scc1 {ls4}")
        self.sig_send(71, 236, 11)
        self.label(ls4)
        e("s_nop 4")
        for r in range(4):
            e(f"v_max_f32 v{56+r}, 0, v{56+r}")
        for t in range(4):
            e(f"v_cvt_pk_bf16_f32 v{240+t}, v{56+t}, v{56+t}")
        for t in range(4):
            for r in range(4):
                e(f"v_and_b32 v{80+4*t+r}, v{240+t}, v{52+r}")
        for t in range(4):
            c = "0" if t == 0 else "v[64:67]"
            e(f"v_mfma_f32_16x16x32_bf16 v[64:67], v[{80+4*t}:{83+4*t}], v[{16+4*t}:{19+4*t}], {c}")
        lb5 = self.newlabel("kv_b5")
        e(f"s_cmp_lg_u32 s7, 0\ns_cbranch_scc1 {lb5}")
        for t in range(4):
            c = "0" if t == 0 else "v[68:71]"
            e(f"v_mfma_f32_16x16x32_bf16 v[68:71], v[{80+4*t}:{83+4*t}], v[{32+4*t}:{35+4*t}], {c}")
        e("s_nop 3")
        self.tag4(64)
        e("""s_mov_b32 exec_hi, 0
buffer_store_dwordx4 v[64:67], v230, s[40:43], s52 offen sc1""")
        self.tag4(68)
        e("buffer_store_dwordx4 v[68:71], v230, s[40:43], s53 offen sc1")
        e("s_mov_b64 exec, -1")
        if not self.opt('dbg1', 0): self.stamp(1)
        e("s_branch L_fin")
        self.label(lb5)
        e("s_nop 5")
        self.tag4(64)
        e("""s_mov_b32 exec_hi, 0
buffer_store_dwordx4 v[64:67], v230, s[40:43], s52 offen sc1
s_mov_b64 exec, -1""")

    def fb(self, t):
        if t < 14:
            return 160 + 4 * t
        return [60, 64, 68, 72, 76, 244][t - 14]


if __name__ == "__main__":
    import argparse
    ap = argparse.ArgumentParser()
    ap.add_argument("out")
    ap.add_argument("--stamps", action="store_true")
    ap.add_argument("--opt", action="append", default=[])
    a = ap.parse_args()
    opts = {}
    for o in a.opt:
        k, v = o.split("=")
        opts[k] = int(v) if v.lstrip("-").isdigit() else v
    g = Gen(stamps=a.stamps, opts=opts)
    open(a.out, "w").write(g.build())
```

```python
import sys

KN = "sequential_preLN__compressed_kv_cla__dense_activation_relu__decode_kernel"

Q1 = 0x000000
QA = 0x020000
PB = 0x030000
PMSG = 1152
OB = 0x0C0000
OS = 0x2C0000
EL = 0x2C4000
XB = 0x314000
FB = 0x319000
SIG = 0x360000
RDY = 0x374000
assert PB + 512 * PMSG <= OB
STAMP = 0x400000
WS_RECORDS = 0x400000 + 256 * 128

SPIN_LIMIT = 100000
RESTORE_IT = 10
LOG2E = 0x3fb8aa3b
SCALE = 0x3db504f3
LDS_BYTES = 146432
NB = 133120
NON, FLG = 0, 16


class Gen:
    def __init__(self, stamps=False, opts=None):
        self.o = []
        self.nl = 0
        self.stamps = stamps
        self.opts = opts or {}

    def opt(self, k, d):
        return self.opts.get(k, d)

    def e(self, s):
        for line in s.strip("\n").split("\n"):
            self.o.append("  " + line.strip())

    def label(self, name):
        self.o.append(name + ":")

    def newlabel(self, base):
        self.nl += 1
        return f"L_{base}_{self.nl}"

    def srd(self, d, ptr, nbytes):
        self.e(f"""s_mov_b32 s{d}, s{ptr}
s_and_b32 s{d+1}, s{ptr+1}, 0xffff
s_mov_b32 s{d+2}, {nbytes}
s_mov_b32 s{d+3}, 0x00020000""")

    def stamp(self, idx):
        if self.stamps:
            self.e(f"s_memrealtime s[{76+2*idx}:{77+2*idx}]")

    def stamp_dump(self):
        if not self.stamps:
            return
        self.e("""s_and_b32 s60, s7, 3
s_cmp_lg_u32 s60, 0
s_cbranch_scc1 L_end
s_waitcnt lgkmcnt(0)
s_mov_b64 exec, 1
v_mov_b32 v251, 0""")
        self.e(f"s_lshl_b32 s60, s2, 7\ns_lshl_b32 s61, s7, 4\ns_add_u32 s60, s60, s61\ns_add_u32 s60, s60, {STAMP}")
        for i in range(12):
            self.e(f"v_mov_b32 v250, s{76+2*i}\nbuffer_store_dword v250, v251, s[40:43], s60 offen offset:{4*i}")

    def dbgtime(self, word, wg):
        if not self.opt("dbgt", 0):
            return
        l = self.newlabel("dt")
        self.e(f"""s_cmp_lg_u32 s2, {wg}
s_cbranch_scc1 {l}
s_memrealtime s[10:11]
s_load_dword s12, s[36:37], 4 glc
s_waitcnt lgkmcnt(0)
s_sub_u32 s10, s10, s12
v_mov_b32 v250, s10
v_mov_b32 v251, {4*word}
global_store_dword v251, v250, s[36:37]""")
        self.label(l)

    def wave_sum(self, v, sd):
        ins = "v_add_f32_dpp"
        for sh in (1, 2, 4, 8):
            self.e(f"s_nop 1\n{ins} v{v}, v{v}, v{v} row_shr:{sh} row_mask:0xf bank_mask:0xf bound_ctrl:0")
        self.e(f"s_nop 1\n{ins} v{v}, v{v}, v{v} row_bcast:15 row_mask:0xa bank_mask:0xf")
        self.e(f"s_nop 1\n{ins} v{v}, v{v}, v{v} row_bcast:31 row_mask:0xc bank_mask:0xf")
        self.e(f"s_nop 0\nv_readlane_b32 s{sd}, v{v}, 63")

    def wait_nonce(self, vt):
        d = self.newlabel("nnd")
        for k in range(4):
            self.e(f"""s_load_dwordx2 s[28:29], s[36:37], {64*k}
s_waitcnt lgkmcnt(0)
s_mov_b32 s65, s28
s_cmp_lg_u32 s65, 0
s_cbranch_scc1 {d}
s_sleep 4""")
        l = self.newlabel("nn")
        self.e("s_mov_b32 s60, 0")
        self.label(l)
        self.e(f"""buffer_load_dword v{vt}, v11, s[56:59], 0 offen sc1
s_add_u32 s60, s60, 1
s_waitcnt vmcnt(0)
v_readfirstlane_b32 s65, v{vt}
s_cmp_ge_u32 s60, {SPIN_LIMIT}
s_cbranch_scc1 {d}
s_cmp_eq_u32 s65, 0
s_cbranch_scc1 {l}""")
        self.label(d)

    def set_tags(self):
        self.e("""s_mov_b32 s64, 0xffffff00
s_and_b32 s61, s65, 0xff
v_mov_b32 v12, s61
s_bfe_u32 s61, s65, 0x80008
v_mov_b32 v13, s61
s_bfe_u32 s61, s65, 0x80010
v_mov_b32 v14, s61
s_lshr_b32 s61, s65, 24
v_mov_b32 v15, s61
s_and_b32 s67, s65, 0xbfffbfff""")

    def tag4(self, v):
        for r in range(4):
            self.e(f"v_and_or_b32 v{v+r}, v{v+r}, s64, v{12+r}")

    def sig_prep(self, k, sd, sid="s4"):
        self.e(f"s_lshl_b32 s{sd}, {sid}, 7\ns_add_u32 s{sd}, s{sd}, {SIG + k * 16384}")

    def sig_send(self, sd, vtag, vzero):
        self.e(f"""s_memrealtime s[0:1]
s_waitcnt lgkmcnt(0)
v_mov_b32 v{vtag+1}, s0
buffer_store_dwordx2 v[{vtag}:{vtag+1}], v{vzero}, s[40:43], s{sd} offen sc1""")

    def until(self, delta):
        l = self.newlabel("un")
        self.label(l)
        self.e(f"""s_memrealtime s[0:1]
s_waitcnt lgkmcnt(0)
s_sub_u32 s0, s0, s29
s_cmp_lt_u32 s0, {delta}
s_cbranch_scc1 {l}""")

    def sig_wait(self, sd, vt, vzero, delta=0, restore=None):
        l = self.newlabel("sg")
        d = self.newlabel("sgd")
        self.e("s_mov_b32 s60, 0")
        self.label(l)
        self.e(f"""s_load_dwordx2 s[28:29], s[38:39], s{sd} glc
s_add_u32 s60, s60, 1""")
        if restore:
            nr = self.newlabel("snr")
            self.e(f"s_cmp_lg_u32 s60, {RESTORE_IT}\ns_cbranch_scc1 {nr}")
            restore()
            self.label(nr)
        self.e(f"""s_cmp_ge_u32 s60, {SPIN_LIMIT}
s_cbranch_scc1 {d}
s_waitcnt lgkmcnt(0)
s_cmp_lg_u32 s28, s65
s_cbranch_scc1 {l}""")
        if delta:
            self.until(delta)
        self.label(d)
        self.e("s_waitcnt lgkmcnt(0)")

    def check(self, regs, kind, vacc, first=True):
        e = self.e
        if kind == 'tag':
            for i, r in enumerate(regs):
                t = 12 + (i % 4)
                if first and i == 0:
                    e(f"v_xor_b32 v{vacc}, v{r}, v{t}")
                else:
                    e(f"v_bitop3_b32 v{vacc}, v{vacc}, v{r}, v{t} bitop3:0xf6")
        else:
            i = 0
            while i < len(regs):
                if first and i == 0:
                    if len(regs) >= 3:
                        e(f"v_max3_u32 v{vacc}, v{regs[0]}, v{regs[1]}, v{regs[2]}"); i = 3
                    elif len(regs) == 2:
                        e(f"v_max_u32 v{vacc}, v{regs[0]}, v{regs[1]}"); i = 2
                    else:
                        e(f"v_mov_b32 v{vacc}, v{regs[0]}"); i = 1
                elif len(regs) - i >= 2:
                    e(f"v_max3_u32 v{vacc}, v{vacc}, v{regs[i]}, v{regs[i+1]}"); i += 2
                else:
                    e(f"v_max_u32 v{vacc}, v{vacc}, v{regs[i]}"); i += 1

    def verdict(self, kind, vacc):
        if kind == 'tag':
            self.e(f"v_and_b32 v{vacc}, 0xff, v{vacc}\nv_cmp_ne_u32 vcc, 0, v{vacc}\ns_cmp_lg_u64 vcc, 0")
        else:
            self.e(f"v_cmp_eq_u32 vcc, -1, v{vacc}\ns_cmp_lg_u64 vcc, 0")

    def poll(self, loads, kind, vacc, restore=None):
        e = self.e
        l = self.newlabel("pl")
        d = self.newlabel("pld")
        e("s_mov_b32 s60, 0")
        self.label(l)
        for ins in loads:
            e(ins[0])
        e("s_add_u32 s60, s60, 1")
        if restore:
            nr = self.newlabel("pnr")
            e(f"s_cmp_lg_u32 s60, {self.opt('rit', RESTORE_IT)}\ns_cbranch_scc1 {nr}")
            restore()
            self.label(nr)
        e(f"s_cmp_ge_u32 s60, {SPIN_LIMIT}\ns_cbranch_scc1 {d}\ns_waitcnt vmcnt(0)")
        for k, ins in enumerate(loads):
            self.check(list(range(ins[1], ins[1] + ins[2])), kind, vacc, first=(k == 0))
        self.verdict(kind, vacc)
        e(f"s_cbranch_scc1 {l}")
        self.label(d)
        e("s_waitcnt vmcnt(0)")

    def masks(self, m0, vi, vt, lo_rows):
        self.e(f"""v_and_b32 v{vt}, 1, v{vi}
v_cmp_eq_u32 vcc, 1, v{vt}
v_mov_b32 v{vt}, 0x0000ffff
v_mov_b32 v{vt+1}, 0xffff0000
v_cndmask_b32 v{vt}, v{vt}, v{vt+1}, vcc""")
        if lo_rows:
            self.e(f"v_bfe_u32 v{vt+1}, v{vi}, 1, 2")
        else:
            self.e(f"v_lshrrev_b32 v{vt+1}, 1, v{vi}")
        for r in range(4):
            self.e(f"""v_cmp_eq_u32 vcc, {r}, v{vt+1}
s_nop 1
v_cndmask_b32 v{m0+r}, 0, v{vt}, vcc""")

    def layernorm(self, vx, vt, sA, sB):
        e = self.e
        inv = 0x3acccccd
        e(f"""v_pk_add_f32 v[{vt}:{vt+1}], v[{vx}:{vx+1}], v[{vx+2}:{vx+3}]
v_pk_add_f32 v[{vt+2}:{vt+3}], v[{vx+4}:{vx+5}], v[{vx+6}:{vx+7}]
v_pk_add_f32 v[{vt}:{vt+1}], v[{vt}:{vt+1}], v[{vx+8}:{vx+9}]
v_pk_add_f32 v[{vt}:{vt+1}], v[{vt}:{vt+1}], v[{vt+2}:{vt+3}]
v_add_f32 v{vt}, v{vt}, v{vt+1}""")
        self.wave_sum(vt, sA)
        e(f"v_mov_b32 v{vt+4}, {inv:#x}\ns_nop 0\nv_mul_f32 v{vt+4}, s{sA}, v{vt+4}")
        for k in range(0, 10, 2):
            e(f"v_pk_add_f32 v[{vt+2}:{vt+3}], v[{vx+k}:{vx+k+1}], v[{vt+4}:{vt+5}] op_sel_hi:[1,0] neg_lo:[0,1] neg_hi:[0,1]")
            if k == 0:
                e(f"v_pk_mul_f32 v[{vt}:{vt+1}], v[{vt+2}:{vt+3}], v[{vt+2}:{vt+3}]")
            else:
                e(f"v_pk_fma_f32 v[{vt}:{vt+1}], v[{vt+2}:{vt+3}], v[{vt+2}:{vt+3}], v[{vt}:{vt+1}]")
        e(f"v_add_f32 v{vt}, v{vt}, v{vt+1}")
        self.wave_sum(vt, sB)
        e(f"""v_mov_b32 v{vt+2}, {inv:#x}
s_nop 0
v_mul_f32 v{vt+2}, s{sB}, v{vt+2}
v_cvt_pk_bf16_f32 v{vt+3}, v{vt+4}, v{vt+2}
v_lshlrev_b32 v{vt+4}, 16, v{vt+3}
v_and_b32 v{vt+2}, 0xffff0000, v{vt+3}
v_add_f32 v{vt+2}, 0x3727c5ac, v{vt+2}
v_cvt_pk_bf16_f32 v{vt+2}, v{vt+2}, v{vt+2}
v_and_b32 v{vt+2}, 0xffff0000, v{vt+2}
v_sqrt_f32 v{vt+2}, v{vt+2}""")
        for k in range(0, 10, 2):
            e(f"v_pk_add_f32 v[{vx+k}:{vx+k+1}], v[{vx+k}:{vx+k+1}], v[{vt+4}:{vt+5}] op_sel_hi:[1,0] neg_lo:[0,1] neg_hi:[0,1]")
        e(f"""v_cvt_pk_bf16_f32 v{vt+2}, v{vt+2}, v{vt+2}
v_and_b32 v{vt+2}, 0xffff0000, v{vt+2}
v_rcp_f32 v{vt+2}, v{vt+2}""")
        for k in range(0, 10, 2):
            a, b = vx + k, vx + k + 1
            e(f"""v_cvt_pk_bf16_f32 v{vt}, v{a}, v{b}
v_lshlrev_b32 v{a}, 16, v{vt}
v_and_b32 v{b}, 0xffff0000, v{vt}
v_pk_mul_f32 v[{a}:{b}], v[{a}:{b}], v[{vt+2}:{vt+3}] op_sel_hi:[1,0]""")

    def tree_sum(self, v0, n, width=4, stride=None):
        stride = stride or width
        step = 1
        while step < n:
            for k in range(0, n - step, 2 * step):
                for r in range(0, width, 2):
                    a = v0 + stride * k + r
                    b = v0 + stride * (k + step) + r
                    self.e(f"v_pk_add_f32 v[{a}:{a+1}], v[{a}:{a+1}], v[{b}:{b+1}]")
            step *= 2

    def build(self):
        nt = self.opt("nt", "none")
        nt = "" if nt == "none" else nt
        e = self.e
        self.o.append(f"; @launch grid=(256,1,1) block=(512,1,1) lds={LDS_BYTES}")
        self.o.append('.amdgcn_target "amdgcn-amd-amdhsa--gfx950"')
        self.o.append(".text")
        self.o.append(f".globl {KN}")
        self.o.append(".p2align 8")
        self.o.append(f".type {KN},@function")
        self.label(KN)
        e("""s_load_dwordx16 s[16:31], s[0:1], 0
s_load_dwordx8 s[32:39], s[0:1], 64
s_memrealtime s[62:63]
s_cmp_ge_u32 s2, 256
s_cbranch_scc1 L_end
s_cmp_ge_u32 s2, 16
s_cbranch_scc1 L_nocp
s_getpc_b64 s[60:61]
v_lshlrev_b32 v6, 6, v0
v_min_u32 v6, (L_codeend-L_nocp-64), v6
global_load_dword v255, v6, s[60:61]
L_nocp:
s_and_b32 s8, s2, 7
s_lshr_b32 s9, s2, 3
s_and_b32 s4, s2, 127
v_lshrrev_b32 v1, 6, v0
v_and_b32 v2, 15, v0
v_readfirstlane_b32 s7, v1
v_and_b32 v1, 63, v0
v_bfe_u32 v3, v0, 4, 2
v_lshlrev_b32 v4, 2, v1
v_lshlrev_b32 v5, 4, v1
s_and_b32 s10, s9, 3
s_lshl_b32 s5, s8, 2
s_add_u32 s5, s5, s10
s_lshr_b32 s6, s9, 2
v_mov_b32 v11, 0""")
        if self.stamps:
            for i in range(76, 100):
                e(f"s_mov_b32 s{i}, 0")
        self.stamp(0)
        e("""s_or_b32 s10, s2, s7
s_cmp_lg_u32 s10, 0
s_cbranch_scc1 L_nomaster
s_waitcnt lgkmcnt(0)
s_mov_b32 s63, s62
s_mul_i32 s62, s62, 0x9e3779b1
s_or_b32 s62, s62, 1
v_mov_b32 v16, s62
v_mov_b32 v17, s63
v_lshlrev_b32 v18, 6, v1
s_mov_b64 exec, 15
global_store_dwordx2 v18, v[16:17], s[36:37] sc1
s_mov_b64 exec, -1
L_nomaster:
s_cmp_ge_u32 s7, 4
s_cbranch_scc1 L_hi""")
        self.commonA(nt)
        self.roleW(nt)
        self.roleKV(nt)
        self.label("L_fin")
        self.stamp_dump()
        self.label("L_end")
        e("s_endpgm")
        self.label("L_codeend")
        self.o.append(f""".section .rodata,"a"
.p2align 6
.amdhsa_kernel {KN}
  .amdhsa_next_free_vgpr 256
  .amdhsa_next_free_sgpr 100
  .amdhsa_accum_offset 256
  .amdhsa_group_segment_fixed_size 0
  .amdhsa_kernarg_size 96
  .amdhsa_user_sgpr_count 2
  .amdhsa_user_sgpr_kernarg_segment_ptr 1
  .amdhsa_system_sgpr_workgroup_id_x 1
.end_amdhsa_kernel""")
        return "\n".join(self.o) + "\n"

    def commonA(self, nt):
        e = self.e
        AB = 133248
        XT, QRED = AB, AB + 10240
        e("""s_mul_i32 s10, s6, 80
s_mul_i32 s11, s7, 20
s_add_u32 s10, s10, s11
s_lshl_b32 s11, s10, 13
s_lshl_b32 s12, s5, 8
s_add_u32 s11, s11, s12
v_lshlrev_b32 v6, 13, v3
v_lshl_add_u32 v6, v2, 4, v6
v_add_u32 v6, s11, v6
s_waitcnt lgkmcnt(0)""")
        for k in range(5):
            e(f"global_load_dword v{76+k}, v4, s[16:17] offset:{256*k}")
        for t in range(5):
            e(f"global_load_dwordx4 v[{16+4*t}:{19+4*t}], v6, s[20:21] {nt}")
            if t < 4:
                e("v_add_u32 v6, 0x8000, v6")
        self.srd(40, 38, WS_RECORDS)
        self.srd(56, 36, 256)
        self.masks(68, 2, 92, False)
        e(f"""s_mul_i32 s14, s7, 2560
s_add_u32 s14, s14, {XT}
v_lshlrev_b32 v8, 3, v1
v_add_u32 v8, s14, v8
s_lshl_b32 s15, s10, 2
s_add_u32 s15, s15, s14
v_lshl_add_u32 v9, v3, 2, s15
v_lshlrev_b32 v10, 5, v2
v_lshl_add_u32 v10, v3, 4, v10
s_lshl_b32 s14, s7, 9
s_add_u32 s14, s14, {QRED}
v_add_u32 v10, s14, v10
v_mov_b32 v227, {NB}
v_add_u32 v7, {QRED}, v5
s_lshl_b32 s68, s5, 12
s_add_u32 s68, s68, {Q1}
s_lshl_b32 s69, s6, 9
s_add_u32 s69, s69, s68
s_waitcnt vmcnt(5)""")
        for k in range(5):
            e(f"v_lshlrev_b32 v{82+2*k}, 16, v{76+k}\nv_and_b32 v{83+2*k}, 0xffff0000, v{76+k}")
        self.layernorm(82, 92, 62, 63)
        for k in range(5):
            e(f"""v_cvt_pk_bf16_f32 v{92+2*(k%2)}, v{82+2*k}, v{82+2*k}
v_cvt_pk_bf16_f32 v{93+2*(k%2)}, v{83+2*k}, v{83+2*k}
ds_write_b64 v8, v[{92+2*(k%2)}:{93+2*(k%2)}] offset:{512*k}""")
        e("s_waitcnt lgkmcnt(0)")
        for t in range(5):
            e(f"ds_read_b32 v{82+t}, v9 offset:{16*t}")
        e("s_waitcnt lgkmcnt(0)")
        for t in range(5):
            for r in range(4):
                e(f"v_and_b32 v{96+4*t+r}, v{82+t}, v{68+r}")
        ln = self.newlabel("a_nn")
        e(f"s_cmp_lg_u32 s7, 0\ns_cbranch_scc1 {ln}")
        self.wait_nonce(90)
        e(f"v_mov_b32 v90, s65\nv_mov_b32 v91, s29\nds_write_b64 v227, v[90:91] offset:{NON}")
        self.label(ln)
        for t in range(5):
            c = "0" if t == 0 else "v[116:119]"
            e(f"s_waitcnt vmcnt({4-t})")
            e(f"v_mfma_f32_16x16x32_bf16 v[116:119], v[{96+4*t}:{99+4*t}], v[{16+4*t}:{19+4*t}], {c}")
        self.stamp(1)
        e("s_nop 2")
        e(f"""s_nop 4
s_mov_b32 exec_hi, 0
ds_write_b128 v10, v[116:119]
s_mov_b64 exec, -1
s_waitcnt lgkmcnt(0)
s_barrier""")
        self.stamp(2)
        e("s_cmp_lg_u32 s7, 0\ns_cbranch_scc1 L_lo123")
        for wv in range(4):
            e(f"ds_read_b128 v[{120+4*wv}:{123+4*wv}], v7 offset:{512*wv}")
        self.set_tags()
        e("s_waitcnt lgkmcnt(0)")
        self.tree_sum(120, 4)
        self.tag4(120)
        e("""s_mov_b32 exec_hi, 0
buffer_store_dwordx4 v[120:123], v5, s[40:43], s69 offen
s_mov_b64 exec, -1
s_mov_b32 s73, s69
s_cmp_ge_u32 s9, 16
s_cbranch_scc1 L_kv_w0""")

    def get_nonce_lds(self, vt):
        self.e(f"""ds_read_b32 v{vt}, v227 offset:{NON}
s_waitcnt lgkmcnt(0)
v_readfirstlane_b32 s65, v{vt}""")
        self.set_tags()

    def roleW(self, nt):
        e = self.e
        QBF, QAL, CLX, RED, RED2 = 24576, 24832, 25600, 26624, 28672
        e("""v_and_b32 v8, 31, v1
v_lshlrev_b32 v8, 3, v8
v_lshrrev_b32 v9, 5, v1
v_lshl_add_u32 v8, v9, 2, v8""")

        def restore_q1():
            e("""s_mov_b32 exec_hi, 0
buffer_store_dwordx4 v[120:123], v5, s[40:43], s73 offen sc1
s_mov_b64 exec, -1""")
        self.restore_q1 = restore_q1
        if self.opt("sl_h1", 0):
            e(f"s_sleep {self.opt('sl_h1', 0)}")
        self.poll([(f"buffer_load_dwordx4 v[{124+4*k}:{127+4*k}], v5, s[40:43], s68 offen offset:{1024*k} sc1", 124 + 4 * k, 4) for k in range(4)], 'tag', 90, restore=restore_q1)
        self.stamp(3)
        self.tree_sum(124, 4)
        e(f"""s_nop 0
v_permlane32_swap_b32 v124, v126
v_permlane32_swap_b32 v125, v127
s_nop 0
v_pk_add_f32 v[124:125], v[124:125], v[126:127]
v_cvt_pk_bf16_f32 v124, v124, v125
ds_write_b32 v8, v124 offset:{QBF}
ds_write_b32 v11, v11 offset:{QAL + 268}
ds_write_b32 v11, v11 offset:{QAL + 284}
s_waitcnt lgkmcnt(0)
s_barrier""")
        e(f"""v_lshrrev_b32 v8, 1, v1
v_and_b32 v9, 1, v1
v_cmp_gt_u32 vcc, 8, v8
v_lshlrev_b32 v128, 4, v8
v_mul_u32_u24 v129, 48, v8
v_add_u32 v129, {-384+12 & 0xffffffff:#x}, v129
v_cndmask_b32 v128, v129, v128, vcc
v_lshl_add_u32 v128, v9, 7, v128
v_mov_b32 v129, 16
v_cndmask_b32 v130, v129, 4, vcc
v_add_u32 v129, v128, v130
v_add_u32 v130, v129, v130
v_mov_b32 v8, v5
s_lshl_b32 s10, s6, 5
s_add_u32 s10, s10, s5
s_mul_i32 s10, s10, 352
s_add_u32 s10, s10, {QA}
v_mov_b32 v127, s67
v_mov_b32 v90, s65""")
        self.sig_prep(0, 70)
        if self.opt("sig0_early", 1):
            self.sig_send(70, 90, 11)
        e(f"""s_mov_b32 exec_lo, 0x3fffff
s_mov_b32 exec_hi, 0
s_barrier
ds_read_b32 v124, v128 offset:{QAL}
ds_read_b32 v125, v129 offset:{QAL}
ds_read_b32 v126, v130 offset:{QAL}
s_waitcnt lgkmcnt(0)
buffer_store_dwordx4 v[124:127], v8, s[40:43], s10 offen sc1
s_mov_b64 exec, -1""")
        if not self.opt("sig0_early", 1):
            self.sig_send(70, 90, 11)
        self.stamp(4)
        self.dbgtime(4, 0)
        self.dbgtime(5, 77)
        e("s_branch L_w_join")
        self.label("L_lo123")
        e("s_cmp_ge_u32 s9, 16\ns_cbranch_scc1 L_kv_lo")
        self.get_nonce_lds(90)
        e("s_barrier\ns_barrier\ns_branch L_w_join")
        self.label("L_hi")
        e(f"""s_lshr_b32 s13, s6, 1
s_lshl_b32 s13, s13, 6
s_and_b32 s14, s6, 1
s_lshl_b32 s14, s14, 8
s_add_u32 s13, s13, s14
s_bfe_u32 s14, s7, 0x10001
s_lshl_b32 s14, s14, 7
s_add_u32 s13, s13, s14
s_and_b32 s14, s7, 1
s_lshl_b32 s14, s14, 5
s_add_u32 s13, s13, s14
s_lshl_b32 s13, s13, 13
s_lshl_b32 s12, s5, 8
s_add_u32 s13, s13, s12
v_xor_b32 v7, v2, v3
v_lshlrev_b32 v7, 4, v7
v_lshl_add_u32 v7, v3, 13, v7
v_mov_b32 v227, {NB}
s_waitcnt lgkmcnt(0)""")
        self.srd(56, 36, 256)
        self.srd(40, 38, WS_RECORDS)
        e("s_cmp_ge_u32 s9, 16\ns_cbranch_scc1 L_kv_hi")
        lpw = self.newlabel("w_pw")
        e(f"""s_cmp_lg_u32 s7, 4
s_cbranch_scc1 {lpw}
s_lshl_b32 s68, s5, 12
s_add_u32 s68, s68, {Q1}
v_lshlrev_b32 v8, 6, v1
buffer_load_dword v91, v8, s[40:43], s68 offen sc1""")
        self.label(lpw)
        ntk = self.opt("nt_wuk", nt)
        if ntk == "none":
            ntk = ""
        if self.opt("sl_wuk", 1):
            e(f"s_sleep {self.opt('sl_wuk', 1)}")
        WKL = 32768
        self.srd(52, 22, 4194304)
        e(f"""s_sub_u32 s14, s7, 4
s_lshl_b32 s14, s14, 13
s_add_u32 s14, s14, {WKL}
v_lshlrev_b32 v6, 8, v2
v_add_u32 v6, s14, v6""")
        for k in range(8):
            e(f"""s_mov_b32 m0, s14
v_xor_b32 v8, {64*(k&3)}, v7
buffer_load_dwordx4 v8, s[52:55], s13 offen {ntk} lds
s_add_u32 s14, s14, 1024
s_add_u32 s13, s13, 32768""")
        for t in range(4):
            e(f"""v_or_b32 v8, {4*t}, v3
v_xor_b32 v8, v8, v2
v_lshl_add_u32 v{100+t}, v8, 4, v6""")
        e(f"""v_lshlrev_b32 v9, 4, v3
s_sub_u32 s14, s7, 4
s_lshl_b32 s14, s14, 6
v_lshl_add_u32 v8, v3, 3, s14
s_barrier""")
        self.get_nonce_lds(90)
        e("s_waitcnt vmcnt(0)")
        self.stamp(1)
        for t in range(4):
            e(f"ds_read_b128 v[{36+4*t}:{39+4*t}], v{100+t}\nds_read_b128 v[{52+4*t}:{55+4*t}], v{100+t} offset:4096")
        e("s_waitcnt lgkmcnt(0)\ns_barrier")
        for t in range(4):
            e(f"ds_read_b128 v[{120+4*t}:{123+4*t}], v9 offset:{QBF + 64*t}")
        for t in range(4):
            c0 = "0" if t == 0 else "v[116:119]"
            c1 = "0" if t == 0 else "v[136:139]"
            e(f"s_waitcnt lgkmcnt({3-t})")
            e(f"v_mfma_f32_16x16x32_bf16 v[116:119], v[{36+4*t}:{39+4*t}], v[{120+4*t}:{123+4*t}], {c0}")
            e(f"v_mfma_f32_16x16x32_bf16 v[136:139], v[{52+4*t}:{55+4*t}], v[{120+4*t}:{123+4*t}], {c1}")
        e(f"""s_nop 6
v_cvt_pk_bf16_f32 v140, v116, v117
v_cvt_pk_bf16_f32 v141, v118, v119
v_cvt_pk_bf16_f32 v142, v136, v137
v_cvt_pk_bf16_f32 v143, v138, v139
ds_write_b64 v8, v[140:141] offset:{QAL}
ds_write_b64 v8, v[142:143] offset:{QAL + 32}
s_waitcnt lgkmcnt(0)
s_barrier""")
        self.label("L_w_join")
        self.masks(72, 2, 92, True)
        if self.opt("sl_de", 0):
            e(f"s_sleep {self.opt('sl_de', 0)}")
        nto = self.opt("nt_wo", nt)
        e("""s_lshr_b32 s10, s6, 1
s_and_b32 s11, s6, 1
v_lshrrev_b32 v6, 3, v2
v_lshl_add_u32 v6, v6, 2, v3
v_lshlrev_b32 v7, 4, v6
v_lshlrev_b32 v6, 13, v6
v_and_b32 v8, 7, v2
v_lshl_add_u32 v6, v8, 4, v6
s_lshl_b32 s12, s10, 8
s_lshl_b32 s13, s7, 5
s_add_u32 s12, s12, s13
s_lshl_b32 s12, s12, 13
s_lshl_b32 s13, s5, 8
s_add_u32 s12, s12, s13
s_lshl_b32 s13, s11, 7
s_add_u32 s12, s12, s13
v_add_u32 v6, s12, v6""")
        for t in range(4):
            e(f"global_load_dwordx4 v[{16+4*t}:{19+4*t}], v6, s[24:25] {nt}")
            if t < 3:
                e("v_add_u32 v6, 0x10000, v6")
        lwo = self.newlabel("w_nowo")
        e(f"""s_cmp_ge_u32 s7, 4
s_cbranch_scc1 {lwo}
v_mul_u32_u24 v6, 5120, v3
v_lshl_add_u32 v6, v2, 4, v6
s_lshl_b32 s12, s5, 7
s_lshl_b32 s13, s11, 6
s_add_u32 s12, s12, s13
s_lshl_b32 s13, s7, 4
s_add_u32 s12, s12, s13
s_mul_i32 s12, s12, 1280
v_add_u32 v6, s12, v6""")
        for t in range(4):
            for b in range(5):
                r = 160 + (t * 5 + b) * 4
                e(f"global_load_dwordx4 v[{r}:{r+3}], v6, s[26:27] offset:{1280*(t%2) + 256*b} {nto}")
            if t == 1:
                e("v_add_u32 v6, 2560, v6")
        lfp = self.newlabel("w_fgp")
        e(f"s_branch {lfp}")
        self.label(lwo)
        if self.opt("pf_fg", 0):
            pol = self.opt("pf_pol", "none").replace("none", "")
            e(f"""s_lshr_b32 s12, s9, 2
s_lshl_b32 s12, s12, 3
s_add_u32 s12, s12, s8
s_cmp_ge_u32 s12, 27
s_cbranch_scc1 {lfp}
s_and_b32 s13, s9, 3
s_sub_u32 s14, s7, 4
s_mul_i32 s14, s14, 40
v_add_u32 v6, s14, v1
s_lshl_b32 s15, s12, 2
s_add_u32 s15, s15, s13
s_mul_i32 s15, s15, 20480
v_lshlrev_b32 v8, 7, v6
v_add_u32 v8, s15, v8
s_mul_i32 s13, s13, 160
v_add_u32 v6, s13, v6
v_mul_u32_u24 v6, 3456, v6
s_lshl_b32 s12, s12, 7
v_add_u32 v6, s12, v6
s_mov_b32 exec_hi, 0xff
global_load_dword v160, v8, s[32:33] {pol}
global_load_dword v161, v6, s[30:31] {pol}
s_mov_b64 exec, -1""")
        self.label(lfp)
        e(f"""v_and_b32 v8, 1, v3
v_lshlrev_b32 v8, 1, v8
v_lshrrev_b32 v9, 1, v3
v_or_b32 v8, v8, v9
v_and_b32 v9, 1, v1
v_lshl_add_u32 v8, v9, 2, v8
v_bfe_u32 v9, v1, 1, 2
v_lshl_add_u32 v8, v8, 2, v9
v_lshlrev_b32 v8, 2, v8
s_lshl_b32 s12, s7, 7
v_add_u32 v8, s12, v8
v_add_u32 v7, s12, v7
v_lshrrev_b32 v9, 3, v1
v_lshlrev_b32 v10, 4, v9
v_lshlrev_b32 v9, 9, v9
v_and_b32 v6, 7, v1
v_lshl_add_u32 v9, v6, 4, v9
s_lshl_b32 s12, s5, 2
s_lshl_b32 s13, s10, 1
s_add_u32 s12, s12, s13
s_lshr_b32 s13, s7, 2
s_add_u32 s12, s12, s13
s_lshl_b32 s12, s12, 14
s_and_b32 s13, s7, 3
s_lshl_b32 s13, s13, 7
s_add_u32 s12, s12, s13
s_add_u32 s12, s12, {OB}
s_add_u32 s13, s12, 4096
s_add_u32 s14, s12, 8192
s_add_u32 s15, s12, 12288
s_lshl_b32 s68, s5, 9
s_add_u32 s68, s68, {OS}
v_and_b32 v36, 7, v2
v_lshlrev_b32 v36, 5, v36
v_lshl_add_u32 v36, v3, 4, v36
s_lshl_b32 s61, s7, 8
v_add_u32 v36, s61, v36
s_lshl_b32 s61, s7, 6
v_lshl_add_u32 v37, v3, 4, s61
v_lshlrev_b32 v38, 5, v2
v_lshl_add_u32 v38, v3, 4, v38
s_mul_i32 s61, s7, 2560
v_add_u32 v38, s61, v38
v_subrev_u32 v39, 256, v0
v_lshrrev_b32 v40, 3, v39
v_lshlrev_b32 v40, 11, v40
v_and_b32 v41, 7, v39
v_lshl_add_u32 v40, v41, 4, v40
v_lshlrev_b32 v41, 4, v39
s_mul_i32 s69, s8, {20*2048}
s_lshl_b32 s61, s9, 7
s_add_u32 s69, s69, s61
s_add_u32 s69, s69, {EL}
s_and_b32 s61, s4, 0x67
v_mov_b32 v42, s65
s_mov_b32 s62, {LOG2E:#x}""")
        self.sig_prep(1, 70, "s61")
        self.sig_prep(2, 71)
        self.sig_prep(3, 72)
        e("s_waitcnt vmcnt(0)")
        self.stamp(5)
        lrq = self.newlabel("w_rq")
        lpe = self.newlabel("w_pe")
        e(f"""s_cmp_lg_u32 s7, 0
s_cbranch_scc1 {lrq}
s_mov_b32 exec_hi, 0
buffer_store_dwordx4 v[120:123], v5, s[40:43], s73 offen sc1
s_mov_b64 exec, -1""")
        self.label(lrq)
        e(f"""s_sub_u32 s61, s7, 4
s_lshl_b32 s61, s61, 4
s_add_u32 s61, s61, s9
s_cmp_ge_u32 s61, 20
s_cbranch_scc1 {lpe}
s_mul_i32 s63, s8, 20
s_add_u32 s63, s63, s61
s_lshl_b32 s63, s63, 11
s_add_u32 s63, s63, {EL}
v_lshlrev_b32 v44, 5, v1
buffer_load_dword v45, v44, s[40:43], s63 offen sc1""")
        self.label(lpe)
        self.sig_wait(71, 44, 11, self.opt("t_h3", 128))
        self.stamp(6)
        loads = [(f"buffer_load_dwordx4 v[{48+4*k}:{51+4*k}], v10, s[40:43], s68 offen offset:{128*k} sc1", 48 + 4 * k, 4) for k in range(4)]
        loads += [(f"buffer_load_dwordx4 v[{120+4*k}:{123+4*k}], v9, s[40:43], s{12+k} offen sc1", 120 + 4 * k, 4) for k in range(4)]
        self.poll(loads, 'tag', 44)
        self.stamp(7)
        for k in range(4):
            e(f"v_and_b32 v{48+4*k}, s64, v{48+4*k}")
        e(f"""v_max3_f32 v44, v48, v52, v56
v_max_f32 v44, v44, v60
s_nop 1
v_max_f32_dpp v44, v44, v44 row_ror:8 row_mask:0xf bank_mask:0xf
s_nop 0
v_mov_b32 v45, v44
s_nop 1
v_permlane16_swap_b32 v44, v45
s_nop 0
v_max_f32 v44, v44, v45
v_mov_b32 v45, v44
s_nop 1
v_permlane32_swap_b32 v44, v45
s_nop 0
v_max_f32 v44, v44, v45
v_mul_f32 v44, s62, v44""")
        for k in range(4):
            e(f"v_fma_f32 v{48+4*k}, v{48+4*k}, s62, -v44")
        for k in range(4):
            e(f"v_exp_f32 v{48+4*k}, v{48+4*k}")
        e("s_nop 0\nv_mul_f32 v46, v48, v49")
        for k in range(1, 4):
            e(f"v_fmac_f32 v46, v{48+4*k}, v{49+4*k}")
        for r in (0, 2):
            e(f"v_pk_mul_f32 v[{120+r}:{121+r}], v[{120+r}:{121+r}], v[48:49] op_sel_hi:[1,0]")
        e("v_add_f32_dpp v46, v46, v46 row_ror:8 row_mask:0xf bank_mask:0xf")
        for k in range(1, 4):
            for r in (0, 2):
                e(f"v_pk_fma_f32 v[{120+r}:{121+r}], v[{120+4*k+r}:{121+4*k+r}], v[{48+4*k}:{49+4*k}], v[{120+r}:{121+r}] op_sel_hi:[1,0,1]")
            if k == 1:
                e("v_mov_b32 v45, v46")
            if k == 2:
                e("v_permlane16_swap_b32 v46, v45")
        e(f"""v_add_f32 v46, v46, v45
v_permlane32_swap_b32 v120, v121
v_mov_b32 v45, v46
v_permlane32_swap_b32 v122, v123
v_add_f32 v120, v120, v121
v_permlane32_swap_b32 v46, v45
v_add_f32 v122, v122, v123
v_add_f32 v46, v46, v45
s_nop 0
v_permlane16_swap_b32 v120, v122
v_rcp_f32 v46, v46
v_add_f32 v120, v120, v122
s_nop 1
v_add_f32_dpp v120, v120, v120 row_ror:8 row_mask:0xf bank_mask:0xf
s_nop 0
v_mul_f32 v120, v120, v46
v_cvt_pk_bf16_f32 v120, v120, v120
ds_write_b32 v8, v120 offset:{CLX}
s_waitcnt lgkmcnt(0)
ds_read_b128 v[120:123], v7 offset:{CLX}
s_waitcnt lgkmcnt(0)""")
        for t in range(4):
            for r in range(4):
                e(f"v_and_b32 v{96+4*t+r}, v{120+t}, v{72+r}")
            if t > 0:
                c = "0" if t == 1 else "v[116:119]"
                e(f"v_mfma_f32_16x16x32_bf16 v[116:119], v[{96+4*(t-1)}:{99+4*(t-1)}], v[{16+4*(t-1)}:{19+4*(t-1)}], {c}")
        e("s_nop 0\nv_mfma_f32_16x16x32_bf16 v[116:119], v[108:111], v[28:31], v[116:119]\ns_nop 7")
        for r in range(4):
            e(f"v_mov_b32 v{124+r}, v{116+r}")
        for r in range(4):
            e(f"v_permlane32_swap_b32 v{116+r}, v{124+r}")
        for r in range(4):
            e(f"v_add_f32_dpp v{116+r}, v{124+r}, v{116+r} row_ror:8 row_mask:0xf bank_mask:0xf")
        e(f"""s_mov_b32 exec_lo, 0x00ff00ff
s_mov_b32 exec_hi, 0
ds_write_b128 v36, v[116:119] offset:{RED}
s_mov_b64 exec, -1
s_waitcnt lgkmcnt(0)
s_barrier""")
        lhi = self.newlabel("w_hi")
        e(f"s_cmp_ge_u32 s7, 4\ns_cbranch_scc1 {lhi}")
        for p in range(8):
            e(f"ds_read_b128 v[{120+4*p}:{123+4*p}], v37 offset:{RED + 256*p}")
        e("s_waitcnt lgkmcnt(0)")
        self.tree_sum(120, 8)
        for t in range(4):
            e(f"v_cvt_pk_bf16_f32 v{124+t}, v{120+t}, v{120+t}")
        for t in range(4):
            for r in range(4):
                e(f"v_and_b32 v{96+4*t+r}, v{124+t}, v{68+r}")
            e("s_nop 1")
            for b in range(5):
                r = 160 + (t * 5 + b) * 4
                c = "0" if t == 0 else f"v[{136+4*b}:{139+4*b}]"
                e(f"v_mfma_f32_16x16x32_bf16 v[{136+4*b}:{139+4*b}], v[{96+4*t}:{99+4*t}], v[{r}:{r+3}], {c}")
        e("s_mov_b32 exec_hi, 0\ns_nop 3")
        for b in range(5):
            if b == 4:
                e("s_nop 3")
            e(f"ds_write_b128 v38, v[{136+4*b}:{139+4*b}] offset:{RED2 + 512*b}")
        e("s_mov_b64 exec, -1\ns_waitcnt lgkmcnt(0)\ns_barrier")
        self.stamp(8)
        self.dbgtime(8, 5)
        e("""s_cmp_ge_u32 s4, 40
s_cbranch_scc1 L_fin
s_cmp_lg_u32 s7, 0
s_cbranch_scc1 L_fin""")
        self.colidx(8, 9)
        self.srd(44, 16, 1280)
        self.srd(52, 34, 1280)
        e(f"""s_lshl_b32 s12, s4, 5
v_lshlrev_b32 v9, 1, v8
buffer_load_ushort v50, v9, s[44:47], s12 offen
s_mul_i32 s12, s4, 7168
s_add_u32 s12, s12, {FB}
s_add_u32 s13, s12, 4096
v_cmp_gt_u32 vcc, 48, v1
v_add_u32 v10, 1024, v5
s_nop 0
v_cndmask_b32 v10, v5, v10, vcc
v_bfe_u32 v51, v1, 2, 3
v_mul_u32_u24 v51, 2560, v51
v_and_b32 v52, 3, v1
v_lshl_add_u32 v51, v52, 4, v51
s_lshl_b32 s14, s4, 6
s_add_u32 s14, s14, {XB}""")
        self.sig_prep(4, 70)
        self.sig_wait(72, 16, 11, self.opt("t_h5", 42) + 25)
        self.poll([("buffer_load_dwordx4 v[44:47], v51, s[40:43], s14 offen sc1", 44, 4)], 'tag', 53)
        e("v_cmp_gt_u32 vcc, 32, v1\ns_nop 1")
        for r in range(4):
            e(f"v_cndmask_b32 v{44+r}, 0, v{44+r}, vcc")
        self.reduce16(44, 1)
        e(f"""v_cvt_pk_bf16_f32 v44, v44, v44
v_and_b32 v44, 0xffff0000, v44
v_lshlrev_b32 v50, 16, v50
v_add_f32 v44, v44, v50
v_cvt_pk_bf16_f32 v44, v44, v44
v_and_b32 v44, 0xffff0000, v44
s_lshl_b32 s15, s4, 5
s_mov_b32 s62, 0x000f000f
s_mov_b32 s63, 0x000f000f
v_cmp_gt_u32 s[68:69], 48, v1""")
        self.sig_wait(70, 16, 11, self.opt("t_h6", 45))
        loads = [(f"buffer_load_dwordx4 v[{16+4*k}:{19+4*k}], v5, s[40:43], s{12 + k//4} offen offset:{1024*(k%4)} sc1", 16 + 4 * k, 4) for k in range(6)]
        loads += [("buffer_load_dwordx4 v[40:43], v10, s[40:43], s13 offen offset:1024 sc1", 40, 4)]
        self.poll(loads, 'tag', 53)
        self.stamp(9)
        for r in range(4):
            e(f"v_cndmask_b32 v{40+r}, 0, v{40+r}, s[68:69]")
        self.reduce16(16, 7)
        e(f"""s_nop 0
v_cvt_pk_bf16_f32 v16, v16, v16
v_and_b32 v16, 0xffff0000, v16
v_add_f32 v16, v16, v44
v_cvt_pk_bf16_f32 v16, v16, v16
s_mov_b64 exec, s[62:63]
buffer_store_short v16, v9, s[52:55], s15 offen
s_mov_b64 exec, -1""")
        self.stamp(10)
        if self.opt("pad", 0):
            lp = self.newlabel("pad")
            e("s_load_dword s12, s[36:37], 4 glc\ns_waitcnt lgkmcnt(0)")
            self.label(lp)
            e(f"""s_memrealtime s[10:11]
s_waitcnt lgkmcnt(0)
s_sub_u32 s10, s10, s12
s_cmp_lt_u32 s10, {self.opt("pad", 0)}
s_cbranch_scc1 {lp}""")
        self.dbgtime(2, 0)
        self.dbgtime(3, 39)
        e("s_branch L_fin")
        self.label(lhi)
        e(f"""s_sub_u32 s10, s7, 4
s_lshl_b32 s10, s10, 4
s_add_u32 s10, s10, s9
s_mul_i32 s12, s8, 20
s_add_u32 s12, s12, s10
s_lshl_b32 s12, s12, 11
s_add_u32 s12, s12, {EL}
s_mul_i32 s13, s8, 2560
s_lshl_b32 s14, s10, 7
s_add_u32 s13, s13, s14
s_add_u32 s13, s13, {XB}
v_cmp_gt_u32 vcc, 160, v39
s_and_saveexec_b64 s[62:63], vcc
s_barrier
s_cbranch_execz L_fin""")
        for wv in range(4):
            e(f"ds_read_b128 v[{120+4*wv}:{123+4*wv}], v41 offset:{RED2 + 2560*wv}")
        e("s_waitcnt lgkmcnt(0)")
        self.tree_sum(120, 4)
        self.tag4(120)
        e("buffer_store_dwordx4 v[120:123], v40, s[40:43], s69 offen")
        self.stamp(8)

        def restore_el():
            e("buffer_store_dwordx4 v[120:123], v40, s[40:43], s69 offen sc1")
        lnr = self.newlabel("w_nored")
        e(f"s_cmp_ge_u32 s10, 20\ns_cbranch_scc1 {lnr}")
        self.poll([(f"buffer_load_dwordx4 v[{124+4*k}:{127+4*k}], v5, s[40:43], s12 offen offset:{1024*k} sc1", 124 + 4 * k, 4) for k in range(2)], 'tag', 44, restore=restore_el)
        self.stamp(9)
        lns = self.newlabel("w_nosig")
        e(f"s_cmp_lg_u32 s7, 4\ns_cbranch_scc1 {lns}")
        self.sig_send(72, 42, 11)
        self.label(lns)
        self.tree_sum(124, 2)
        e("s_nop 0")
        for r in range(4):
            e(f"v_add_f32_dpp v{124+r}, v{124+r}, v{124+r} row_ror:8 row_mask:0xf bank_mask:0xf")
        for r in range(4):
            e(f"v_mov_b32 v{128+r}, v{124+r}")
        for r in range(4):
            e(f"v_permlane16_swap_b32 v{124+r}, v{128+r}")
        self.tree_sum(124, 2)
        for r in range(4):
            e(f"v_mov_b32 v{128+r}, v{124+r}")
        for r in range(4):
            e(f"v_permlane32_swap_b32 v{124+r}, v{128+r}")
        self.tree_sum(124, 2)
        self.tag4(124)
        e("""s_mov_b64 exec, 0xff
buffer_store_dwordx4 v[124:127], v5, s[40:43], s13 offen sc1
s_mov_b64 exec, -1""")
        self.stamp(10)
        self.label(lnr)
        e(f"s_sleep {self.opt('sl_el', 64)}")
        restore_el()
        e("s_branch L_fin")

    def colidx(self, vd, vt):
        self.e(f"""v_and_b32 v{vd}, 1, v3
v_lshlrev_b32 v{vd}, 1, v{vd}
v_lshrrev_b32 v{vt}, 1, v3
v_or_b32 v{vd}, v{vd}, v{vt}
v_and_b32 v{vt}, 3, v1
v_lshl_add_u32 v{vd}, v{vt}, 2, v{vd}""")

    def reduce16(self, v0, n):
        e = self.e
        self.tree_sum(v0, n)
        a = v0
        e(f"""s_nop 1
v_permlane32_swap_b32 v{a}, v{a+1}
v_permlane32_swap_b32 v{a+2}, v{a+3}
s_nop 0
v_add_f32 v{a}, v{a}, v{a+1}
v_add_f32 v{a+2}, v{a+2}, v{a+3}
s_nop 1
v_permlane16_swap_b32 v{a}, v{a+2}
s_nop 0
v_add_f32 v{a}, v{a}, v{a+2}
s_nop 1
v_add_f32_dpp v{a}, v{a}, v{a} row_ror:8 row_mask:0xf bank_mask:0xf
s_nop 1
v_add_f32_dpp v{a}, v{a}, v{a} row_ror:4 row_mask:0xf bank_mask:0xf""")

    def acc(self, k):
        return 168 + 4 * k if k < 11 else 64 + 4 * (k - 11)

    def roleKV(self, nt):
        e = self.e
        RT, BT, QL, XCH, PL, SL = 0, 67584, 4096, 49152, 4096, 64
        W1L, HN, HF = 24576, 45056, 50176

        def ids():
            e(f"""s_bfe_u32 s10, s9, 0x20002
s_lshl_b32 s5, s8, 2
s_add_u32 s5, s5, s10
s_and_b32 s6, s9, 3""")
            self.srd(44, 18, 8388608)
            e(f"""s_lshl_b32 s10, s5, 3
s_lshl_b32 s11, s6, 1
s_add_u32 s10, s10, s11
s_mul_i32 s68, s10, {2*PMSG}
s_add_u32 s68, s68, {PB}
s_lshl_b32 s69, s5, 7
s_add_u32 s69, s69, {RDY}""")

        def rows(done):
            e(f"""s_sub_u32 s15, s7, 1
s_lshl_b32 s12, s5, 8
s_lshl_b32 s13, s6, 6
s_add_u32 s12, s12, s13
s_add_u32 s12, s12, s15
s_lshl_b32 s12, s12, 10
s_mul_i32 s14, s15, 1040
s_add_u32 s14, s14, {RT}""")
            for k in range(11):
                if k == 10:
                    e(f"s_cmp_ge_u32 s15, 4\ns_cbranch_scc1 {done}")
                e(f"""s_mov_b32 m0, s14
s_add_u32 s14, s14, {6*1040}
buffer_load_dwordx4 v5, s[44:47], s12 offen {nt} lds
s_add_u32 s12, s12, {6*1024}""")
        lj = "L_kv_join"
        self.label("L_kv_w0")
        ids()
        e(f"s_branch {lj}")
        self.label("L_kv_lo")
        ids()
        if self.opt("t_rows", 0):
            self.label("L_kv_rows")
            e(f"ds_read_b32 v90, v227 offset:4\ns_waitcnt lgkmcnt(0)\nv_readfirstlane_b32 s29, v90")
            self.until(self.opt("t_rows", 0))
        rows(lj)
        e(f"s_branch {lj}")
        self.label("L_kv_hi")
        ids()
        l7 = self.newlabel("kv_w7")
        lrd = self.newlabel("kv_rowsd")
        e(f"s_cmp_eq_u32 s7, 7\ns_cbranch_scc1 {l7}")
        if self.opt("t_rows", 0):
            e("s_barrier\ns_branch L_kv_rows")
        else:
            if self.opt("sl_ckv", 14):
                e(f"s_sleep {self.opt('sl_ckv', 14)}")
            rows(lrd)
            self.label(lrd)
            e(f"s_barrier\ns_branch {lj}")
        self.label(l7)
        e("""v_mov_b32 v20, -1
v_mov_b32 v21, -1
v_mov_b32 v22, -1
v_mov_b32 v23, -1
buffer_store_dwordx4 v[20:23], v5, s[40:43], s68 offen sc1
buffer_store_dwordx4 v[20:23], v5, s[40:43], s68 offen offset:1024 sc1
buffer_store_dwordx4 v[20:23], v5, s[40:43], s68 offen offset:2048 sc1
buffer_store_dwordx4 v[20:23], v5, s[40:43], s68 offen offset:3072 sc1
buffer_store_dwordx4 v[20:23], v5, s[40:43], s68 offen offset:3584 sc1""")
        e(f"""ds_write_b32 v227, v11 offset:{FLG}
ds_write_b32 v227, v11 offset:{FLG+4}
s_waitcnt lgkmcnt(0)
s_barrier
ds_read_b32 v60, v227 offset:{NON}
s_lshl_b32 s12, s6, 4
s_add_u32 s12, s12, s69
s_waitcnt vmcnt(0) lgkmcnt(0)
s_getreg_b32 s13, hwreg(HW_REG_XCC_ID)
v_mov_b32 v61, s13
v_mov_b32 v62, v60
v_mov_b32 v63, v60
s_mov_b64 exec, 1
buffer_store_dwordx4 v[60:63], v11, s[40:43], s12 offen sc1
s_mov_b64 exec, -1
v_readfirstlane_b32 s65, v60
s_mov_b32 s60, 0""")
        lr = self.newlabel("kv_rdy")
        lrdn = self.newlabel("kv_rdyd")
        self.label(lr)
        e(f"""s_load_dwordx16 s[76:91], s[38:39], s69 glc
s_add_u32 s60, s60, 1
s_cmp_ge_u32 s60, {SPIN_LIMIT}
s_cbranch_scc1 {lrdn}
s_waitcnt lgkmcnt(0)
s_xor_b32 s76, s76, s65
s_xor_b32 s80, s80, s65
s_xor_b32 s84, s84, s65
s_xor_b32 s88, s88, s65
s_or_b32 s76, s76, s80
s_or_b32 s84, s84, s88
s_or_b32 s76, s76, s84
s_cbranch_scc1 {lr}""")
        self.label(lrdn)
        e(f"""s_waitcnt lgkmcnt(0)
s_xor_b32 s77, s77, s13
s_xor_b32 s81, s81, s13
s_xor_b32 s85, s85, s13
s_xor_b32 s89, s89, s13
s_or_b32 s77, s77, s81
s_or_b32 s85, s85, s89
s_or_b32 s77, s77, s85
v_mov_b32 v8, s77
ds_write_b32 v227, v8 offset:8
s_mul_i32 s12, s5, {16*PMSG}
s_add_u32 s12, s12, {PB}
v_mul_u32_u24 v8, 96, v1
buffer_load_dword v250, v8, s[40:43], s12 offen sc1
s_add_u32 s12, s12, 6144
buffer_load_dword v251, v8, s[40:43], s12 offen sc1
s_add_u32 s12, s12, 6144
buffer_load_dword v252, v8, s[40:43], s12 offen sc1
s_waitcnt lgkmcnt(0)""")
        self.label(lj)
        e(f"""s_lshr_b32 s10, s7, 2
s_lshl_b32 s10, s10, 7
s_bfe_u32 s11, s7, 0x10001
s_mul_i32 s11, s11, {32*1040}
s_add_u32 s10, s10, s11
s_add_u32 s10, s10, {RT}
v_mul_u32_u24 v231, 1040, v2
v_lshl_add_u32 v231, v3, 8, v231
v_add_u32 v231, s10, v231""")
        e(f"""s_lshl_b32 s48, s7, 10
s_add_u32 s49, s48, {QA}
s_add_u32 s48, s48, {QL}
s_lshr_b32 s10, s7, 2
s_mul_i32 s10, s10, {64*352}
s_and_b32 s11, s7, 1
s_mul_i32 s12, s11, {16*352}
s_add_u32 s10, s10, s12
v_mov_b32 v10, v5
v_lshrrev_b32 v6, 1, v3
v_lshl_add_u32 v6, v6, 5, v2
v_mul_u32_u24 v6, 352, v6
v_and_b32 v8, 1, v3
v_lshl_add_u32 v6, v8, 4, v6
v_add_u32 v6, s10, v6
s_and_b32 s10, s7, 3
s_lshl_b32 s10, s10, 11
v_add_u32 v9, s10, v5
s_lshl_b32 s10, s7, 11
v_add_u32 v7, s10, v5
s_and_b32 s10, s7, 3
s_mul_i32 s10, s10, {PMSG}
s_add_u32 s50, s68, s10
v_lshlrev_b32 v212, 3, v2
s_mul_i32 s51, s5, {16*PMSG}
s_mul_i32 s10, s7, {2*PMSG}
s_add_u32 s51, s51, s10
s_add_u32 s51, s51, {PB}
v_and_b32 v213, 1, v3
v_mul_u32_u24 v213, {PMSG}, v213
v_add_u32 v213, v213, v212
v_and_b32 v214, 31, v1
v_lshlrev_b32 v214, 4, v214
s_lshr_b32 s10, s7, 1
s_lshl_b32 s10, s10, 9
s_and_b32 s12, s7, 1
s_lshl_b32 s12, s12, 3
s_add_u32 s10, s10, s12
v_add_u32 v214, s10, v214
s_lshl_b32 s10, s11, 10
v_add_u32 v215, s10, v10
s_lshl_b32 s10, s11, 4
v_add_u32 v216, s10, v2
v_lshlrev_b32 v217, 4, v216
v_lshlrev_b32 v218, 16, v216
v_lshl_add_u32 v218, v3, 4, v218
s_lshl_b32 s52, s6, 5
s_add_u32 s52, s52, s5
s_lshl_b32 s52, s52, 9
s_lshr_b32 s10, s7, 1
s_lshl_b32 s10, s10, 7
s_add_u32 s52, s52, s10
s_add_u32 s52, s52, {OB}
v_lshlrev_b32 v219, 9, v216
s_lshl_b32 s53, s5, 4
s_add_u32 s53, s53, {OS}
s_mov_b32 s54, {SCALE:#x}
s_mov_b32 s55, {LOG2E:#x}
v_mov_b32 v221, 1
v_lshlrev_b32 v8, 1, v3
v_xor_b32 v8, v8, v2
v_lshlrev_b32 v222, 10, v3
v_lshl_add_u32 v222, v8, 4, v222
v_xor_b32 v226, 0x80, v222
s_lshl_b32 s74, s5, 8
s_lshl_b32 s13, s7, 5
s_add_u32 s74, s74, s13
s_lshl_b32 s74, s74, 10
s_lshl_b32 s14, s6, 8
s_add_u32 s74, s74, s14
s_lshl_b32 s75, s7, 13
s_add_u32 s75, s75, {BT}
v_lshrrev_b32 v223, 2, v2
v_lshl_add_u32 v223, v3, 2, v223
v_and_b32 v229, 7, v223
s_lshr_b32 s12, s7, 1
s_lshl_b32 s12, s12, 1
v_xor_b32 v229, s12, v229
v_lshlrev_b32 v223, 8, v223
v_lshl_add_u32 v223, v229, 5, v223
v_and_b32 v8, 3, v2
v_lshl_add_u32 v223, v8, 3, v223
v_add_u32 v223, {BT}, v223
v_xor_b32 v229, 32, v223
v_add_u32 v230, 12, v5
v_add_u32 v230, s48, v230""")
        self.sig_prep(0, 70)
        self.sig_prep(1, 71)
        self.sig_prep(2, 72)
        nt2 = self.opt("nt_block", nt)

        def blk_dma():
            for k in range(8):
                e(f"""s_mov_b32 m0, s75
s_add_u32 s75, s75, 1024
buffer_load_dwordx4 v{222 if k % 2 == 0 else 226}, s[44:47], s74 offen {nt2} lds
s_add_u32 s74, s74, 4096""")

        def tr_reads():
            for p in range(8):
                for ctl in range(2):
                    for hh in range(2):
                        r = 104 + (p * 2 + ctl) * 4 + 2 * hh
                        e(f"ds_read_b64_tr_b16 v[{r}:{r+1}], v{223 if ctl == 0 else 229} offset:{8192*p + 4096*hh}")
                if p % 3 == 2:
                    e("s_waitcnt lgkmcnt(3)")
        self.tr_reads = tr_reads
        early = 1
        self.get_nonce_lds(240)
        e("v_mov_b32 v220, s65\ns_mov_b32 s73x, 0".replace("s73x", "s47x").replace("s47x", "s3"))
        def rq():
            lrq = self.newlabel("kv_rq")
            e(f"""s_cmp_lg_u32 s7, 0
s_cbranch_scc1 {lrq}
s_mov_b32 exec_hi, 0
buffer_store_dwordx4 v[232:235], v5, s[40:43], s73 offen sc1
s_mov_b64 exec, -1""")
            self.label(lrq)
        def sweep():
            e("s_mov_b32 s10, s48\ns_mov_b32 s11, s49")
            for k in range(6):
                if k == 5:
                    l5 = self.newlabel("kv_sw5")
                    e(f"s_cmp_ge_u32 s7, 4\ns_cbranch_scc1 {l5}")
                e(f"""s_mov_b32 m0, s10
s_add_u32 s10, s10, 8192
buffer_load_dwordx4 v5, s[40:43], s11 offen sc1 lds
s_add_u32 s11, s11, 8192""")
                if k == 5:
                    self.label(l5)
        TH2 = self.opt("t_h2", 70)
        e("v_mov_b32 v232, v120\nv_mov_b32 v233, v121\nv_mov_b32 v234, v122\nv_mov_b32 v235, v123")
        if self.opt("sl_blk", 0):
            e(f"s_sleep {self.opt('sl_blk', 0)}")
        lb7 = self.newlabel("kv_b7")
        lb0 = self.newlabel("kv_b0")
        e(f"s_cmp_eq_u32 s7, 7\ns_cbranch_scc1 {lb7}")
        blk_dma()
        e(f"s_cmp_lg_u32 s7, 0\ns_cbranch_scc1 {lb0}\ns_add_u32 s74, s74, {192*1024}\ns_add_u32 s75, s75, {48*1024}")
        blk_dma()
        e(f"s_branch {lb7}")
        self.label(lb0)
        e("s_waitcnt vmcnt(8)")
        self.label(lb7)
        e("s_barrier")
        self.stamp(3)
        for u in range(8):
            e(f"ds_read_b128 v[{16+4*u}:{19+4*u}], v231 offset:{16*u}")
        for u in range(8):
            if u == 7:
                e("s_waitcnt lgkmcnt(8)")
            e(f"ds_read_b128 v[{60+4*u}:{63+4*u}], v231 offset:{16*1040 + 16*u}")
        e("s_load_dwordx2 s[28:29], s[38:39], s70 glc\nds_read_b32 v237, v227 offset:8\ns_waitcnt vmcnt(0) lgkmcnt(0)\ns_barrier")
        lns = self.newlabel("kv_nosw")
        e(f"""s_memrealtime s[0:1]
s_mov_b32 s61, 0
s_waitcnt lgkmcnt(0)
s_cmp_lg_u32 s28, s65
s_cbranch_scc1 {lns}
s_sub_u32 s0, s0, s29
s_cmp_lt_u32 s0, {TH2}
s_cbranch_scc1 {lns}
s_mov_b32 s61, 1""")
        self.stamp(11)
        sweep()
        self.label(lns)
        tr_reads()
        for a in range(2):
            for z in range(3):
                for i in range(3):
                    sidx = 3 * z + i
                    d = 16 + 44 * a + 4 * (8 + z) + i
                    if sidx < 8:
                        e(f"v_mov_b32 v{d}, v{16+44*a+4*sidx+3}")
                    else:
                        e(f"v_mov_b32 v{d}, 0")
                e(f"v_mov_b32 v{16+44*a+4*(8+z)+3}, 0")
        lsd = self.newlabel("kv_swd")
        lhv = self.newlabel("kv_have")
        e(f"s_cmp_eq_u32 s61, 1\ns_cbranch_scc1 {lsd}\ns_cmp_eq_u32 s28, s65\ns_cbranch_scc1 {lhv}")
        self.sig_wait(70, 240, 11, 0, restore=rq)
        self.label(lhv)
        self.until(TH2)
        self.stamp(11)
        sweep()
        self.label(lsd)
        e("s_waitcnt lgkmcnt(0)")
        e("v_readfirstlane_b32 s66, v237\ns_mov_b32 s60, 0\ns_mov_b32 s61, 0x1f")
        l45 = self.newlabel("kv_m5")
        e(f"s_cmp_ge_u32 s7, 4\ns_cbranch_scc1 {l45}\ns_mov_b32 s61, 0x3f")
        self.label(l45)
        lchk = self.newlabel("kv_chk")
        lok = self.newlabel("kv_swok")
        self.label(lchk)
        e("s_waitcnt vmcnt(0)")
        for k in range(6):
            e(f"ds_read_b32 v{240+k}, v230 offset:{8192*k}")
        e("s_waitcnt lgkmcnt(0)")
        for k in range(6):
            e(f"v_cmp_ne_u32 s[{10+2*(k%3)}:{11+2*(k%3)}], s67, v{240+k}")
            if k % 3 == 2:
                for kk in range(k - 2, k + 1):
                    e(f"""s_cmp_eq_u64 s[{10+2*(kk%3)}:{11+2*(kk%3)}], 0
s_cselect_b32 s62, {(~(1 << kk)) & 0x3f:#x}, 0x3f
s_and_b32 s61, s61, s62""")
        e(f"s_cbranch_scc0 {lok}")
        for k in range(6):
            sk = self.newlabel("swk")
            e(f"""s_bitcmp1_b32 s61, {k}
s_cbranch_scc0 {sk}
s_add_u32 s10, s48, {8192*k}
s_mov_b32 m0, s10
s_add_u32 s11, s49, {8192*k}
buffer_load_dwordx4 v5, s[40:43], s11 offen sc1 lds""")
            self.label(sk)
        lnr = self.newlabel("kv_nrq")
        e(f"s_add_u32 s60, s60, 1\ns_cmp_lg_u32 s60, {RESTORE_IT}\ns_cbranch_scc1 {lnr}")
        rq()
        self.label(lnr)
        e(f"s_cmp_lt_u32 s60, {SPIN_LIMIT}\ns_cbranch_scc1 {lchk}\ns_waitcnt vmcnt(0)")
        self.label(lok)
        for k in range(5):
            e(f"ds_write_b32 v230, v11 offset:{8192*k}")
        l5z = self.newlabel("kv_z5")
        e(f"s_cmp_ge_u32 s7, 4\ns_cbranch_scc1 {l5z}\nds_write_b32 v230, v11 offset:{8192*5}")
        self.label(l5z)
        rq()
        e("s_waitcnt lgkmcnt(0)\ns_barrier")
        self.stamp(4)
        for u in range(11):
            e(f"ds_read_b128 v[{168+4*u}:{171+4*u}], v6 offset:{QL + 32*u}")
        for u in range(11):
            e(f"s_waitcnt lgkmcnt({10 - u})")
            r = 168 + 4 * u
            for a in range(2):
                c = "0" if u == 0 else f"v[{240+4*a}:{243+4*a}]"
                e(f"v_mfma_f32_16x16x32_bf16 v[{240+4*a}:{243+4*a}], v[{16+44*a+4*u}:{19+44*a+4*u}], v[{r}:{r+3}], {c}")
        lnx = self.newlabel("kv_nox")
        e(f"""s_cmp_lt_u32 s7, 4
s_cbranch_scc1 {lnx}
s_nop 5
ds_write_b128 v9, v[240:243] offset:{XCH}
ds_write_b128 v9, v[244:247] offset:{XCH + 1024}
s_waitcnt lgkmcnt(0)""")
        self.label(lnx)
        e(f"""s_barrier
ds_read_b128 v[168:171], v9 offset:{XCH}
ds_read_b128 v[172:175], v9 offset:{XCH + 1024}""")
        self.stamp(5)
        lnsm = self.newlabel("kv_nosm")
        e(f"s_cmp_ge_u32 s7, 4\ns_cbranch_scc1 {lnsm}\ns_waitcnt lgkmcnt(0)")
        for k in range(4):
            e(f"v_pk_add_f32 v[{168+2*k}:{169+2*k}], v[{168+2*k}:{169+2*k}], v[{240+2*k}:{241+2*k}]")
        for k in range(4):
            e(f"v_cvt_pk_bf16_f32 v{176+k}, v{168+2*k}, v{169+2*k}")
        for k in range(4):
            e(f"v_lshlrev_b32 v{168+2*k}, 16, v{176+k}\nv_and_b32 v{169+2*k}, 0xffff0000, v{176+k}")
        for k in range(8):
            e(f"v_mul_f32 v{168+k}, s54, v{168+k}")
        for k in range(4):
            e(f"v_cvt_pk_bf16_f32 v{176+k}, v{168+2*k}, v{169+2*k}")
        for k in range(4):
            e(f"v_lshlrev_b32 v{168+2*k}, 16, v{176+k}\nv_and_b32 v{169+2*k}, 0xffff0000, v{176+k}")
        e("""v_max3_f32 v248, v168, v169, v170
v_max3_f32 v180, v171, v172, v173
v_max3_f32 v248, v248, v174, v175
v_max_f32 v248, v248, v180
v_mov_b32 v180, v248
s_nop 1
v_permlane16_swap_b32 v248, v180
s_nop 0
v_max_f32 v248, v248, v180
v_mov_b32 v180, v248
s_nop 1
v_permlane32_swap_b32 v248, v180
s_nop 0
v_max_f32 v248, v248, v180
v_mul_f32 v180, s55, v248""")
        for k in range(8):
            e(f"v_fma_f32 v{168+k}, v{168+k}, s55, -v180")
        for k in range(8):
            e(f"v_exp_f32 v{168+k}, v{168+k}")
        e("s_nop 0")
        for k in range(4):
            e(f"v_cvt_pk_bf16_f32 v{252+k}, v{168+2*k}, v{169+2*k}")
        e("""buffer_store_dwordx4 v[252:255], v10, s[40:43], s50 offen
v_pk_add_f32 v[168:169], v[168:169], v[170:171]
v_pk_add_f32 v[172:173], v[172:173], v[174:175]
v_pk_add_f32 v[168:169], v[168:169], v[172:173]
v_add_f32 v249, v168, v169
v_mov_b32 v180, v249
s_nop 1
v_permlane16_swap_b32 v249, v180
s_nop 0
v_add_f32 v249, v249, v180
v_mov_b32 v180, v249
s_nop 1
v_permlane32_swap_b32 v249, v180
s_nop 0
v_add_f32 v249, v249, v180
s_mov_b64 exec, 0xffff
buffer_store_dwordx2 v[248:249], v212, s[40:43], s50 offen offset:1024
s_mov_b64 exec, -1""")
        self.stamp(6)
        if not early:
            lsj = self.newlabel("kv_sj")
            e(f"s_waitcnt vmcnt(2)\ns_branch {lsj}")
            self.label(lnsm)
            e("s_waitcnt vmcnt(0)")
            self.label(lsj)
            e("s_barrier")
            tr_reads()
        else:
            self.label(lnsm)

        def restore_p():
            l = self.newlabel("rp")
            e(f"""s_cmp_ge_u32 s7, 4
s_cbranch_scc1 {l}
buffer_store_dwordx4 v[252:255], v10, s[40:43], s50 offen sc1
s_mov_b64 exec, 0xffff
buffer_store_dwordx2 v[248:249], v212, s[40:43], s50 offen offset:1024 sc1
s_mov_b64 exec, -1""")
            self.label(l)
        lsame = self.newlabel("kv_same")
        e(f"s_cmp_eq_u32 s66, 0\ns_cbranch_scc1 {lsame}")
        restore_p()
        self.label(lsame)
        self.poll([("buffer_load_dwordx4 v[168:171], v5, s[40:43], s51 offen sc1", 168, 4),
                   (f"buffer_load_dwordx4 v[172:175], v5, s[40:43], s51 offen offset:{PMSG} sc1", 172, 4),
                   ("buffer_load_dwordx2 v[176:177], v213, s[40:43], s51 offen offset:1024 sc1", 176, 2)], 'sent', 224)
        e(f"""ds_write_b128 v7, v[168:171] offset:{PL}
ds_write_b128 v7, v[172:175] offset:{PL + 1024}
ds_write_b64 v214, v[176:177] offset:{SL}
s_waitcnt lgkmcnt(0)
s_barrier""")
        self.stamp(7)
        if self.opt("sig2_early", 1):
            l0e = self.newlabel("kv_sig")
            e(f"s_cmp_lg_u32 s7, 7\ns_cbranch_scc1 {l0e}")
            self.sig_send(72, 220, 11)
            self.label(l0e)
        for k in range(4):
            e(f"ds_read_b128 v[{48+4*k}:{51+4*k}], v217 offset:{SL + 512*k}")
        for p in range(8):
            e(f"ds_read_b128 v[{16+4*p}:{19+4*p}], v215 offset:{PL + 2048*p}")
        stats = []
        stats.append("v_max3_f32 v238, v48, v50, v52")
        stats.append("v_max3_f32 v239, v54, v56, v58")
        stats.append("v_max3_f32 v238, v238, v60, v62")
        stats.append("v_max_f32 v238, v238, v239")
        stats.append("v_mul_f32 v239, s55, v238")
        for p in range(8):
            stats.append(f"v_fma_f32 v{48+2*p}, v{48+2*p}, s55, -v239")
        for p in range(8):
            stats.append(f"v_exp_f32 v{48+2*p}, v{48+2*p}")
        stats.append("v_and_or_b32 v240, v238, s64, v12")
        stats.append("v_mul_f32 v239, v48, v49")
        for p in range(1, 8):
            stats.append(f"v_fmac_f32 v239, v{48+2*p}, v{49+2*p}")
        si = 0
        for p in range(8):
            e(f"s_waitcnt lgkmcnt({7 - p})")
            for ctl in range(2):
                ar = 104 + (p * 2 + ctl) * 4
                ac = self.acc(p * 2 + ctl)
                e(f"v_mfma_f32_16x16x32_bf16 v[{ac}:{ac+3}], v[{ar}:{ar+3}], v[{16+4*p}:{19+4*p}], 0")
                for _ in range(2):
                    if si < len(stats):
                        e(stats[si]); si += 1
        while si < len(stats):
            e(stats[si]); si += 1
        lno = self.newlabel("kv_noos")
        e(f"""s_cmp_lg_u32 s6, 0
s_cbranch_scc1 {lno}
s_cmp_ge_u32 s7, 2
s_cbranch_scc1 {lno}
v_and_or_b32 v241, v239, s64, v13
v_mov_b32 v242, v14
v_mov_b32 v243, v15
s_mov_b64 exec, 0xffff
buffer_store_dwordx4 v[240:243], v219, s[40:43], s53 offen sc1
s_mov_b64 exec, -1""")
        self.label(lno)
        for r in range(0, 8, 2):
            e(f"v_pk_mul_f32 v[{168+r}:{169+r}], v[{168+r}:{169+r}], v[48:49] op_sel_hi:[1,0]")
        for p in range(1, 8):
            for ctl in range(2):
                for r in (0, 2):
                    a = self.acc(2 * p + ctl) + r
                    o = 168 + 4 * ctl + r
                    e(f"v_pk_fma_f32 v[{o}:{o+1}], v[{a}:{a+1}], v[{48+2*p}:{49+2*p}], v[{o}:{o+1}] op_sel_hi:[1,0,1]")
        self.tag4(168)
        e("buffer_store_dwordx4 v[168:171], v218, s[40:43], s52 offen sc1")
        self.tag4(172)
        e("buffer_store_dwordx4 v[172:175], v218, s[40:43], s52 offen offset:64 sc1")
        self.stamp(8)
        e("s_barrier")
        self.dbgtime(6, 128)
        self.dbgtime(7, 201)
        if not self.opt("sig2_early", 1):
            l0 = self.newlabel("kv_sig")
            e(f"s_cmp_lg_u32 s7, 0\ns_cbranch_scc1 {l0}")
            self.sig_send(72, 220, 11)
            self.label(l0)
        lnf = self.newlabel("kv_nofg")
        llo = self.newlabel("kv_fglo")
        e(f"""v_mov_b32 v236, v220
s_bfe_u32 s10, s9, 0x20002
s_lshl_b32 s10, s10, 3
s_add_u32 s10, s10, s8
s_cmp_ge_u32 s10, 27
s_cbranch_scc1 {lnf}
s_lshl_b32 s10, s10, 2
s_add_u32 s10, s10, s6""")
        if self.opt("sl_fg", 40):
            e(f"s_sleep {self.opt('sl_fg', 40)}")
        e(f"s_cmp_lt_u32 s7, 4\ns_cbranch_scc1 {llo}")
        self.srd(44, 30, 2211840)
        e(f"""v_lshrrev_b32 v6, 1, v1
v_mul_u32_u24 v6, 3456, v6
v_and_b32 v7, 1, v1
v_lshl_add_u32 v6, v7, 4, v6
s_sub_u32 s11, s7, 4
s_mul_i32 s11, s11, 160
s_mul_i32 s12, s11, 3456
s_lshl_b32 s13, s10, 5
s_add_u32 s12, s12, s13
s_lshl_b32 s13, s11, 5
s_add_u32 s13, s13, {W1L}""")
        for k in range(5):
            e(f"""s_mov_b32 m0, s13
s_add_u32 s13, s13, 1024
buffer_load_dwordx4 v6, s[44:47], s12 offen {nt} lds
s_add_u32 s12, s12, {32*3456}""")
        e("s_waitcnt vmcnt(0)")
        if self.opt("dbg2", 0): self.stamp(2)
        e("s_barrier\ns_branch L_fin")
        self.label(lnf)
        if self.opt("clean_p", 0):
            restore_p()
        e("s_branch L_fin")
        self.label(llo)
        self.srd(44, 16, 1280)
        e(f"""v_lshlrev_b32 v8, 3, v1
s_mul_i32 s11, s7, 320
buffer_load_dwordx2 v[48:49], v8, s[44:47], s11 offen
v_mul_u32_u24 v7, 5120, v3
v_lshl_add_u32 v7, v2, 4, v7
s_mul_i32 s12, s10, 20480
s_lshl_b32 s13, s7, 8
s_add_u32 s12, s12, s13
v_add_u32 v7, s12, v7""")
        for t in range(4):
            e(f"global_load_dwordx4 v[{16+4*t}:{19+4*t}], v7, s[32:33] offset:{1280*t} {nt}")
        lb4 = self.newlabel("kv_b4")
        e(f"s_cmp_lg_u32 s7, 0\ns_cbranch_scc1 {lb4}\nv_add_u32 v7, 1024, v7")
        for t in range(4):
            e(f"global_load_dwordx4 v[{32+4*t}:{35+4*t}], v7, s[32:33] offset:{1280*t} {nt}")
        self.label(lb4)
        if self.opt("clean_p", 0):
            restore_p()
        self.masks(52, 2, 60, False)
        e(f"""v_lshrrev_b32 v8, 2, v2
v_lshl_add_u32 v8, v3, 3, v8
v_lshlrev_b32 v8, 5, v8
v_and_b32 v9, 3, v2
v_lshl_add_u32 v8, v9, 3, v8
s_waitcnt vmcnt(0)""")
        if self.opt("dbg2", 0): self.stamp(2)
        e("s_barrier")
        if self.opt("dbg2", 0): self.stamp(3)
        for t in range(20):
            for hh in range(2):
                e(f"ds_read_b64_tr_b16 v[{80+4*t+2*hh}:{81+4*t+2*hh}], v8 offset:{W1L + 1024*t + 128*hh}")
            if t % 4 == 3:
                e("s_waitcnt lgkmcnt(0)")
        e(f"""s_mul_i32 s12, s7, 640
s_add_u32 s12, s12, {XB}
s_add_u32 s13, s12, 5120
s_add_u32 s14, s12, 10240
s_add_u32 s15, s12, 15360
v_lshlrev_b32 v56, 16, v48
v_and_b32 v57, 0xffff0000, v48
v_lshlrev_b32 v58, 16, v49
v_and_b32 v59, 0xffff0000, v49
v_lshlrev_b32 v8, 3, v1
s_mul_i32 s11, s7, 320
v_add_u32 v9, s11, v8
s_mul_i32 s11, s7, 1280
v_add_u32 v10, s11, v8
v_add_u32 v228, s11, v4
v_lshl_add_u32 v229, v3, 4, s11
v_lshrrev_b32 v230, 1, v2
v_mul_u32_u24 v230, 7168, v230
v_and_b32 v231, 1, v2
v_lshl_add_u32 v230, v231, 5, v230
v_lshl_add_u32 v230, v3, 4, v230
s_mul_i32 s52, s7, {8*7168}
s_lshl_b32 s53, s10, 6
s_add_u32 s52, s52, s53
s_add_u32 s52, s52, {FB}
s_add_u32 s53, s52, {32*7168}""")
        self.sig_prep(3, 70)
        self.sig_prep(4, 71)
        if not self.opt('dbg1', 0): self.stamp(9)
        self.sig_wait(70, 60, 11, self.opt("t_h5", 42))
        e("s_mov_b32 exec_hi, 0xff")
        self.poll([(f"buffer_load_dwordx4 v[{160+4*x}:{163+4*x}], v5, s[40:43], s{12 + x//2} offen offset:{2560*(x%2)} sc1", 160 + 4 * x, 4) for x in range(8)], 'tag', 60)
        self.tree_sum(160, 8)
        e(f"""v_cvt_pk_bf16_f32 v60, v160, v161
v_cvt_pk_bf16_f32 v61, v162, v163
v_lshlrev_b32 v160, 16, v60
v_and_b32 v161, 0xffff0000, v60
v_lshlrev_b32 v162, 16, v61
v_and_b32 v163, 0xffff0000, v61
v_pk_add_f32 v[160:161], v[160:161], v[56:57]
v_pk_add_f32 v[162:163], v[162:163], v[58:59]
v_cvt_pk_bf16_f32 v60, v160, v161
v_cvt_pk_bf16_f32 v61, v162, v163
ds_write_b64 v9, v[60:61] offset:{HF}
s_mov_b64 exec, -1
s_waitcnt lgkmcnt(0)
s_barrier
ds_read_b64 v[70:71], v8 offset:{HF}
ds_read_b64 v[72:73], v8 offset:{HF + 512}
ds_read_b32 v74, v4 offset:{HF + 1024}
s_waitcnt lgkmcnt(0)""")
        if not self.opt('dbg1', 0): self.stamp(10)
        for k in range(5):
            e(f"v_lshlrev_b32 v{60+2*k}, 16, v{70+k}\nv_and_b32 v{61+2*k}, 0xffff0000, v{70+k}")
        self.layernorm(60, 70, 62, 63)
        e(f"""v_cvt_pk_bf16_f32 v70, v60, v61
v_cvt_pk_bf16_f32 v71, v62, v63
v_cvt_pk_bf16_f32 v72, v64, v65
v_cvt_pk_bf16_f32 v73, v66, v67
v_cvt_pk_bf16_f32 v74, v68, v69
ds_write_b64 v10, v[70:71] offset:{HN}
ds_write_b64 v10, v[72:73] offset:{HN + 512}
ds_write_b32 v228, v74 offset:{HN + 1024}
s_waitcnt lgkmcnt(0)""")
        for t in range(14):
            e(f"ds_read_b128 v[{160+4*t}:{163+4*t}], v229 offset:{HN + 64*t}")
        for t in range(20):
            issued = min(t + 14, 20)
            e(f"s_waitcnt lgkmcnt({issued - t - 1})")
            c = "0" if t == 0 else "v[56:59]"
            e(f"v_mfma_f32_16x16x32_bf16 v[56:59], v[{80+4*t}:{83+4*t}], v[{self.fb(t)}:{self.fb(t)+3}], {c}")
            if t + 14 < 20:
                e(f"ds_read_b128 v[{self.fb(t+14)}:{self.fb(t+14)+3}], v229 offset:{HN + 64*(t+14)}")
        ls4 = self.newlabel("kv_s4")
        e(f"s_cmp_lg_u32 s7, 1\ns_cbranch_scc1 {ls4}")
        self.sig_send(71, 236, 11)
        self.label(ls4)
        e("s_nop 4")
        for r in range(4):
            e(f"v_max_f32 v{56+r}, 0, v{56+r}")
        for t in range(4):
            e(f"v_cvt_pk_bf16_f32 v{240+t}, v{56+t}, v{56+t}")
        for t in range(4):
            for r in range(4):
                e(f"v_and_b32 v{80+4*t+r}, v{240+t}, v{52+r}")
        for t in range(4):
            c = "0" if t == 0 else "v[64:67]"
            e(f"v_mfma_f32_16x16x32_bf16 v[64:67], v[{80+4*t}:{83+4*t}], v[{16+4*t}:{19+4*t}], {c}")
        lb5 = self.newlabel("kv_b5")
        e(f"s_cmp_lg_u32 s7, 0\ns_cbranch_scc1 {lb5}")
        for t in range(4):
            c = "0" if t == 0 else "v[68:71]"
            e(f"v_mfma_f32_16x16x32_bf16 v[68:71], v[{80+4*t}:{83+4*t}], v[{32+4*t}:{35+4*t}], {c}")
        e("s_nop 3")
        self.tag4(64)
        e("""s_mov_b32 exec_hi, 0
buffer_store_dwordx4 v[64:67], v230, s[40:43], s52 offen sc1""")
        self.tag4(68)
        e("buffer_store_dwordx4 v[68:71], v230, s[40:43], s53 offen sc1")
        e("s_mov_b64 exec, -1")
        if not self.opt('dbg1', 0): self.stamp(1)
        e("s_branch L_fin")
        self.label(lb5)
        e("s_nop 5")
        self.tag4(64)
        e("""s_mov_b32 exec_hi, 0
buffer_store_dwordx4 v[64:67], v230, s[40:43], s52 offen sc1
s_mov_b64 exec, -1""")

    def fb(self, t):
        if t < 14:
            return 160 + 4 * t
        return [60, 64, 68, 72, 76, 244][t - 14]


if __name__ == "__main__":
    import argparse
    ap = argparse.ArgumentParser()
    ap.add_argument("out")
    ap.add_argument("--stamps", action="store_true")
    ap.add_argument("--opt", action="append", default=[])
    a = ap.parse_args()
    opts = {}
    for o in a.opt:
        k, v = o.split("=")
        opts[k] = int(v) if v.lstrip("-").isdigit() else v
    g = Gen(stamps=a.stamps, opts=opts)
    open(a.out, "w").write(g.build())
```

```python
import sys

KN = "sequential_preLN__compressed_kv_cla__dense_activation_relu__decode_kernel"

Q1 = 0x000000
QA = 0x020000
PB = 0x030000
PMSG = 1152
OB = 0x0C0000
OS = 0x2C0000
EL = 0x2C4000
XB = 0x314000
FB = 0x319000
SIG = 0x360000
RDY = 0x374000
assert PB + 512 * PMSG <= OB
STAMP = 0x400000
WS_RECORDS = 0x400000 + 256 * 128

SPIN_LIMIT = 100000
RESTORE_IT = 10
LOG2E = 0x3fb8aa3b
SCALE = 0x3db504f3
LDS_BYTES = 146432
NB = 133120
NON, FLG = 0, 16

HEADER = """; ---------------------------------------------------------------------------------------------
; Hand-offs through d_ws are self-validating: every 16-byte granule carries a per-launch tag (published through
; ---------------------------------------------------------------------------------------------"""


class Gen:
    def __init__(self, stamps=False, opts=None):
        self.o = []
        self.nl = 0
        self.stamps = stamps
        self.opts = opts or {}

    def opt(self, k, d):
        return self.opts.get(k, d)

    def e(self, s):
        for line in s.strip("\n").split("\n"):
            self.o.append("  " + line.strip())

    def label(self, name):
        self.o.append(name + ":")

    def newlabel(self, base):
        self.nl += 1
        return f"L_{base}_{self.nl}"

    def srd(self, d, ptr, nbytes):
        self.e(f"""s_mov_b32 s{d}, s{ptr}
s_and_b32 s{d+1}, s{ptr+1}, 0xffff
s_mov_b32 s{d+2}, {nbytes}
s_mov_b32 s{d+3}, 0x00020000""")

    def stamp(self, idx):
        if self.stamps:
            self.e(f"s_memrealtime s[{76+2*idx}:{77+2*idx}]")

    def stamp_dump(self):
        if not self.stamps:
            return
        self.e("""s_and_b32 s60, s7, 3
s_cmp_lg_u32 s60, 0
s_cbranch_scc1 L_end
s_waitcnt lgkmcnt(0)
s_mov_b64 exec, 1
v_mov_b32 v251, 0""")
        self.e(f"s_lshl_b32 s60, s2, 7\ns_lshl_b32 s61, s7, 4\ns_add_u32 s60, s60, s61\ns_add_u32 s60, s60, {STAMP}")
        for i in range(12):
            self.e(f"v_mov_b32 v250, s{76+2*i}\nbuffer_store_dword v250, v251, s[40:43], s60 offen offset:{4*i}")

    def dbgtime(self, word, wg):
        if not self.opt("dbgt", 0):
            return
        l = self.newlabel("dt")
        self.e(f"""s_cmp_lg_u32 s2, {wg}
s_cbranch_scc1 {l}
s_memrealtime s[10:11]
s_load_dword s12, s[36:37], 4 glc
s_waitcnt lgkmcnt(0)
s_sub_u32 s10, s10, s12
v_mov_b32 v250, s10
v_mov_b32 v251, {4*word}
global_store_dword v251, v250, s[36:37]""")
        self.label(l)

    def wave_sum(self, v, sd):
        ins = "v_add_f32_dpp"
        for sh in (1, 2, 4, 8):
            self.e(f"s_nop 1\n{ins} v{v}, v{v}, v{v} row_shr:{sh} row_mask:0xf bank_mask:0xf bound_ctrl:0")
        self.e(f"s_nop 1\n{ins} v{v}, v{v}, v{v} row_bcast:15 row_mask:0xa bank_mask:0xf")
        self.e(f"s_nop 1\n{ins} v{v}, v{v}, v{v} row_bcast:31 row_mask:0xc bank_mask:0xf")
        self.e(f"s_nop 0\nv_readlane_b32 s{sd}, v{v}, 63")

    def wait_nonce(self, vt):
        d = self.newlabel("nnd")
        for k in range(4):
            self.e(f"""s_load_dwordx2 s[28:29], s[36:37], {64*k}
s_waitcnt lgkmcnt(0)
s_mov_b32 s65, s28
s_cmp_lg_u32 s65, 0
s_cbranch_scc1 {d}
s_sleep 4""")
        l = self.newlabel("nn")
        self.e("s_mov_b32 s60, 0")
        self.label(l)
        self.e(f"""buffer_load_dword v{vt}, v11, s[56:59], 0 offen sc1
s_add_u32 s60, s60, 1
s_waitcnt vmcnt(0)
v_readfirstlane_b32 s65, v{vt}
s_cmp_ge_u32 s60, {SPIN_LIMIT}
s_cbranch_scc1 {d}
s_cmp_eq_u32 s65, 0
s_cbranch_scc1 {l}""")
        self.label(d)

    def set_tags(self):
        self.e("""s_mov_b32 s64, 0xffffff00
s_and_b32 s61, s65, 0xff
v_mov_b32 v12, s61
s_bfe_u32 s61, s65, 0x80008
v_mov_b32 v13, s61
s_bfe_u32 s61, s65, 0x80010
v_mov_b32 v14, s61
s_lshr_b32 s61, s65, 24
v_mov_b32 v15, s61
s_and_b32 s67, s65, 0xbfffbfff""")

    def tag4(self, v):
        for r in range(4):
            self.e(f"v_and_or_b32 v{v+r}, v{v+r}, s64, v{12+r}")

    def sig_prep(self, k, sd, sid="s4"):
        self.e(f"s_lshl_b32 s{sd}, {sid}, 7\ns_add_u32 s{sd}, s{sd}, {SIG + k * 16384}")

    def sig_send(self, sd, vtag, vzero):
        self.e(f"""s_memrealtime s[0:1]
s_waitcnt lgkmcnt(0)
v_mov_b32 v{vtag+1}, s0
buffer_store_dwordx2 v[{vtag}:{vtag+1}], v{vzero}, s[40:43], s{sd} offen sc1""")

    def until(self, delta):
        l = self.newlabel("un")
        self.label(l)
        self.e(f"""s_memrealtime s[0:1]
s_waitcnt lgkmcnt(0)
s_sub_u32 s0, s0, s29
s_cmp_lt_u32 s0, {delta}
s_cbranch_scc1 {l}""")

    def sig_wait(self, sd, vt, vzero, delta=0, restore=None):
        l = self.newlabel("sg")
        d = self.newlabel("sgd")
        self.e("s_mov_b32 s60, 0")
        self.label(l)
        self.e(f"""s_load_dwordx2 s[28:29], s[38:39], s{sd} glc
s_add_u32 s60, s60, 1""")
        if restore:
            nr = self.newlabel("snr")
            self.e(f"s_cmp_lg_u32 s60, {RESTORE_IT}\ns_cbranch_scc1 {nr}")
            restore()
            self.label(nr)
        self.e(f"""s_cmp_ge_u32 s60, {SPIN_LIMIT}
s_cbranch_scc1 {d}
s_waitcnt lgkmcnt(0)
s_cmp_lg_u32 s28, s65
s_cbranch_scc1 {l}""")
        if delta:
            self.until(delta)
        self.label(d)
        self.e("s_waitcnt lgkmcnt(0)")

    def check(self, regs, kind, vacc, first=True):
        e = self.e
        if kind == 'tag':
            for i, r in enumerate(regs):
                t = 12 + (i % 4)
                if first and i == 0:
                    e(f"v_xor_b32 v{vacc}, v{r}, v{t}")
                else:
                    e(f"v_bitop3_b32 v{vacc}, v{vacc}, v{r}, v{t} bitop3:0xf6")
        else:
            i = 0
            while i < len(regs):
                if first and i == 0:
                    if len(regs) >= 3:
                        e(f"v_max3_u32 v{vacc}, v{regs[0]}, v{regs[1]}, v{regs[2]}"); i = 3
                    elif len(regs) == 2:
                        e(f"v_max_u32 v{vacc}, v{regs[0]}, v{regs[1]}"); i = 2
                    else:
                        e(f"v_mov_b32 v{vacc}, v{regs[0]}"); i = 1
                elif len(regs) - i >= 2:
                    e(f"v_max3_u32 v{vacc}, v{vacc}, v{regs[i]}, v{regs[i+1]}"); i += 2
                else:
                    e(f"v_max_u32 v{vacc}, v{vacc}, v{regs[i]}"); i += 1

    def verdict(self, kind, vacc):
        if kind == 'tag':
            self.e(f"v_and_b32 v{vacc}, 0xff, v{vacc}\nv_cmp_ne_u32 vcc, 0, v{vacc}\ns_cmp_lg_u64 vcc, 0")
        else:
            self.e(f"v_cmp_eq_u32 vcc, -1, v{vacc}\ns_cmp_lg_u64 vcc, 0")

    def poll(self, loads, kind, vacc, restore=None):
        e = self.e
        l = self.newlabel("pl")
        d = self.newlabel("pld")
        e("s_mov_b32 s60, 0")
        self.label(l)
        for ins in loads:
            e(ins[0])
        e("s_add_u32 s60, s60, 1")
        if restore:
            nr = self.newlabel("pnr")
            e(f"s_cmp_lg_u32 s60, {self.opt('rit', RESTORE_IT)}\ns_cbranch_scc1 {nr}")
            restore()
            self.label(nr)
        e(f"s_cmp_ge_u32 s60, {SPIN_LIMIT}\ns_cbranch_scc1 {d}\ns_waitcnt vmcnt(0)")
        for k, ins in enumerate(loads):
            self.check(list(range(ins[1], ins[1] + ins[2])), kind, vacc, first=(k == 0))
        self.verdict(kind, vacc)
        e(f"s_cbranch_scc1 {l}")
        self.label(d)
        e("s_waitcnt vmcnt(0)")

    def chk_ops(self, regs, vacc):
        ops = []
        for i, r in enumerate(regs):
            t = 12 + (i % 4)
            ops.append(f"v_xor_b32 v{vacc}, v{r}, v{t}" if i == 0 else f"v_bitop3_b32 v{vacc}, v{vacc}, v{r}, v{t} bitop3:0xf6")
        return ops

    def fill(self, text, ops):
        for line in text.strip("\n").split("\n"):
            line = line.strip()
            if line.startswith("s_nop "):
                n = int(line.split()[1]) + 1
                k = 0
                while k < n and ops:
                    self.e(ops.pop(0)); k += 1
                if k < n:
                    self.e(f"s_nop {n-k-1}")
            elif line.startswith("SLOT"):
                n = int(line.split()[1])
                for _ in range(n):
                    if ops:
                        self.e(ops.pop(0))
            else:
                self.e(line)

    def masks(self, m0, vi, vt, lo_rows):
        self.e(f"""v_and_b32 v{vt}, 1, v{vi}
v_cmp_eq_u32 vcc, 1, v{vt}
v_mov_b32 v{vt}, 0x0000ffff
v_mov_b32 v{vt+1}, 0xffff0000
v_cndmask_b32 v{vt}, v{vt}, v{vt+1}, vcc""")
        if lo_rows:
            self.e(f"v_bfe_u32 v{vt+1}, v{vi}, 1, 2")
        else:
            self.e(f"v_lshrrev_b32 v{vt+1}, 1, v{vi}")
        for r in range(4):
            self.e(f"""v_cmp_eq_u32 vcc, {r}, v{vt+1}
s_nop 1
v_cndmask_b32 v{m0+r}, 0, v{vt}, vcc""")

    def layernorm(self, vx, vt, sA, sB):
        e = self.e
        inv = 0x3acccccd
        e(f"s_nop 0\nv_readfirstlane_b32 s{sA}, v{vx}\ns_nop 1\nv_mov_b32 v{vt+4}, s{sA}")
        for k in range(0, 10, 2):
            e(f"v_pk_add_f32 v[250:251], v[{vx+k}:{vx+k+1}], v[{vt+4}:{vt+5}] op_sel_hi:[1,0] neg_lo:[0,1] neg_hi:[0,1]")
            if k == 0:
                e(f"v_pk_mul_f32 v[{vt+2}:{vt+3}], v[250:251], v[250:251]\nv_mov_b32 v{vt}, v250\nv_mov_b32 v{vt+1}, v251")
            else:
                e(f"v_pk_fma_f32 v[{vt+2}:{vt+3}], v[250:251], v[250:251], v[{vt+2}:{vt+3}]\nv_pk_add_f32 v[{vt}:{vt+1}], v[{vt}:{vt+1}], v[250:251]")
        e(f"v_add_f32 v{vt+2}, v{vt+2}, v{vt+3}\nv_add_f32 v{vt}, v{vt}, v{vt+1}\nv_mov_b32 v{vt+5}, {inv:#x}")
        steps = [f"row_shr:{sh} row_mask:0xf bank_mask:0xf bound_ctrl:0" for sh in (1, 2, 4, 8)] + ["row_bcast:15 row_mask:0xa bank_mask:0xf", "row_bcast:31 row_mask:0xc bank_mask:0xf"]
        for st in steps:
            e(f"v_add_f32_dpp v{vt+2}, v{vt+2}, v{vt+2} {st}\nv_add_f32_dpp v{vt}, v{vt}, v{vt} {st}\ns_nop 0")
        e(f"""v_readlane_b32 s{sB}, v{vt+2}, 63
v_readlane_b32 s{sA}, v{vt}, 63
s_nop 0
v_mul_f32 v{vt+2}, s{sB}, v{vt+5}
v_mul_f32 v{vt}, s{sA}, v{vt+5}
v_fma_f32 v{vt+2}, -v{vt}, v{vt}, v{vt+2}
v_add_f32 v{vt+4}, v{vt+4}, v{vt}
v_max_f32 v{vt+2}, 0, v{vt+2}
v_cvt_pk_bf16_f32 v{vt+3}, v{vt+4}, v{vt+2}
v_lshlrev_b32 v{vt+4}, 16, v{vt+3}
v_and_b32 v{vt+2}, 0xffff0000, v{vt+3}
v_add_f32 v{vt+2}, 0x3727c5ac, v{vt+2}
v_cvt_pk_bf16_f32 v{vt+2}, v{vt+2}, v{vt+2}
v_and_b32 v{vt+2}, 0xffff0000, v{vt+2}
v_sqrt_f32 v{vt+2}, v{vt+2}""")
        for k in range(0, 10, 2):
            e(f"v_pk_add_f32 v[{vx+k}:{vx+k+1}], v[{vx+k}:{vx+k+1}], v[{vt+4}:{vt+5}] op_sel_hi:[1,0] neg_lo:[0,1] neg_hi:[0,1]")
        e(f"""v_cvt_pk_bf16_f32 v{vt+2}, v{vt+2}, v{vt+2}
v_and_b32 v{vt+2}, 0xffff0000, v{vt+2}
v_rcp_f32 v{vt+2}, v{vt+2}""")
        for k in range(0, 10, 2):
            a, b = vx + k, vx + k + 1
            e(f"""v_cvt_pk_bf16_f32 v{vt}, v{a}, v{b}
v_lshlrev_b32 v{a}, 16, v{vt}
v_and_b32 v{b}, 0xffff0000, v{vt}
v_pk_mul_f32 v[{a}:{b}], v[{a}:{b}], v[{vt+2}:{vt+3}] op_sel_hi:[1,0]""")

    def tree_sum(self, v0, n, width=4, stride=None):
        stride = stride or width
        step = 1
        while step < n:
            for k in range(0, n - step, 2 * step):
                for r in range(0, width, 2):
                    a = v0 + stride * k + r
                    b = v0 + stride * (k + step) + r
                    self.e(f"v_pk_add_f32 v[{a}:{a+1}], v[{a}:{a+1}], v[{b}:{b+1}]")
            step *= 2

    def build(self):
        nt = self.opt("nt", "none")
        nt = "" if nt == "none" else nt
        e = self.e
        self.o.append(f"; @launch grid=(256,1,1) block=(512,1,1) lds={LDS_BYTES}")
        self.o.append(HEADER)
        self.o.append('.amdgcn_target "amdgcn-amd-amdhsa--gfx950"')
        self.o.append(".text")
        self.o.append(f".globl {KN}")
        self.o.append(".p2align 8")
        self.o.append(f".type {KN},@function")
        self.label(KN)
        e("""s_load_dwordx16 s[16:31], s[0:1], 0
s_load_dwordx8 s[32:39], s[0:1], 64
s_memrealtime s[62:63]
s_cmp_ge_u32 s2, 256
s_cbranch_scc1 L_end
s_cmp_ge_u32 s2, 16
s_cbranch_scc1 L_nocp
s_getpc_b64 s[60:61]
v_lshlrev_b32 v6, 6, v0
v_min_u32 v6, (L_codeend-L_nocp-64), v6
global_load_dword v255, v6, s[60:61]
L_nocp:
s_and_b32 s8, s2, 7
s_lshr_b32 s9, s2, 3
s_and_b32 s4, s2, 127
v_lshrrev_b32 v1, 6, v0
v_and_b32 v2, 15, v0
v_readfirstlane_b32 s7, v1
v_and_b32 v1, 63, v0
v_bfe_u32 v3, v0, 4, 2
v_lshlrev_b32 v4, 2, v1
v_lshlrev_b32 v5, 4, v1
s_and_b32 s10, s9, 3
s_lshl_b32 s5, s8, 2
s_add_u32 s5, s5, s10
s_lshr_b32 s6, s9, 2
v_mov_b32 v11, 0""")
        if self.stamps:
            for i in range(76, 100):
                e(f"s_mov_b32 s{i}, 0")
        self.stamp(0)
        e("""s_or_b32 s10, s2, s7
s_cmp_lg_u32 s10, 0
s_cbranch_scc1 L_nomaster
s_waitcnt lgkmcnt(0)
s_mov_b32 s63, s62
s_mul_i32 s62, s62, 0x9e3779b1
s_or_b32 s62, s62, 1
v_mov_b32 v16, s62
v_mov_b32 v17, s63
v_lshlrev_b32 v18, 6, v1
s_mov_b64 exec, 15
global_store_dwordx2 v18, v[16:17], s[36:37] sc1
s_mov_b64 exec, -1
L_nomaster:
s_cmp_ge_u32 s7, 4
s_cbranch_scc1 L_hi""")
        self.commonA(nt)
        self.roleW(nt)
        self.roleKV(nt)
        self.label("L_fin")
        self.stamp_dump()
        self.label("L_end")
        e("s_endpgm")
        self.label("L_codeend")
        self.o.append(f""".section .rodata,"a"
.p2align 6
.amdhsa_kernel {KN}
  .amdhsa_next_free_vgpr 256
  .amdhsa_next_free_sgpr 100
  .amdhsa_accum_offset 256
  .amdhsa_group_segment_fixed_size 0
  .amdhsa_kernarg_size 96
  .amdhsa_user_sgpr_count 2
  .amdhsa_user_sgpr_kernarg_segment_ptr 1
  .amdhsa_system_sgpr_workgroup_id_x 1
.end_amdhsa_kernel""")
        return "\n".join(self.o) + "\n"

    def commonA(self, nt):
        e = self.e
        AB = 133248
        XT, QRED = AB, AB + 10240
        e("""s_mul_i32 s10, s6, 80
s_mul_i32 s11, s7, 20
s_add_u32 s10, s10, s11
s_lshl_b32 s11, s10, 13
s_lshl_b32 s12, s5, 8
s_add_u32 s11, s11, s12
v_lshlrev_b32 v6, 13, v3
v_lshl_add_u32 v6, v2, 4, v6
v_add_u32 v6, s11, v6
s_waitcnt lgkmcnt(0)""")
        for k in range(5):
            e(f"global_load_dword v{76+k}, v4, s[16:17] offset:{256*k}")
        for t in range(5):
            e(f"global_load_dwordx4 v[{16+4*t}:{19+4*t}], v6, s[20:21] {nt}")
            if t < 4:
                e("v_add_u32 v6, 0x8000, v6")
        self.stamp(11)
        self.srd(40, 38, WS_RECORDS)
        self.srd(56, 36, 256)
        self.masks(68, 2, 92, False)
        e(f"""s_mul_i32 s14, s7, 2560
s_add_u32 s14, s14, {XT}
v_lshlrev_b32 v8, 3, v1
v_add_u32 v8, s14, v8
s_lshl_b32 s15, s10, 2
s_add_u32 s15, s15, s14
v_lshl_add_u32 v9, v3, 2, s15
v_lshlrev_b32 v10, 5, v2
v_lshl_add_u32 v10, v3, 4, v10
s_lshl_b32 s14, s7, 9
s_add_u32 s14, s14, {QRED}
v_add_u32 v10, s14, v10
v_mov_b32 v227, {NB}
v_add_u32 v7, {QRED}, v5
s_lshl_b32 s68, s5, 12
s_add_u32 s68, s68, {Q1}
s_lshl_b32 s69, s6, 9
s_add_u32 s69, s69, s68
s_waitcnt vmcnt(5)""")
        for k in range(5):
            e(f"v_lshlrev_b32 v{82+2*k}, 16, v{76+k}\nv_and_b32 v{83+2*k}, 0xffff0000, v{76+k}")
        self.layernorm(82, 92, 62, 63)
        for k in range(5):
            e(f"""v_cvt_pk_bf16_f32 v{92+2*(k%2)}, v{82+2*k}, v{82+2*k}
v_cvt_pk_bf16_f32 v{93+2*(k%2)}, v{83+2*k}, v{83+2*k}
ds_write_b64 v8, v[{92+2*(k%2)}:{93+2*(k%2)}] offset:{512*k}""")
        e("s_waitcnt lgkmcnt(0)")
        for t in range(5):
            e(f"ds_read_b32 v{82+t}, v9 offset:{16*t}")
        e("s_waitcnt lgkmcnt(0)")
        for t in range(5):
            for r in range(4):
                e(f"v_and_b32 v{96+4*t+r}, v{82+t}, v{68+r}")
        ln = self.newlabel("a_nn")
        e(f"s_cmp_lg_u32 s7, 0\ns_cbranch_scc1 {ln}")
        self.wait_nonce(90)
        e(f"v_mov_b32 v90, s65\nv_mov_b32 v91, s29\nds_write_b64 v227, v[90:91] offset:{NON}")
        self.label(ln)
        for t in range(5):
            c = "0" if t == 0 else "v[116:119]"
            e(f"s_waitcnt vmcnt({4-t})")
            e(f"v_mfma_f32_16x16x32_bf16 v[116:119], v[{96+4*t}:{99+4*t}], v[{16+4*t}:{19+4*t}], {c}")
        self.stamp(1)
        e("s_nop 2")
        e(f"""s_nop 4
s_mov_b32 exec_hi, 0
ds_write_b128 v10, v[116:119]
s_mov_b64 exec, -1
s_waitcnt lgkmcnt(0)
s_barrier""")
        self.stamp(2)
        e("s_cmp_lg_u32 s7, 0\ns_cbranch_scc1 L_lo123")
        for wv in range(4):
            e(f"ds_read_b128 v[{120+4*wv}:{123+4*wv}], v7 offset:{512*wv}")
        self.set_tags()
        e("s_waitcnt lgkmcnt(0)")
        self.tree_sum(120, 4)
        self.tag4(120)
        e("""s_mov_b32 exec_hi, 0
buffer_store_dwordx4 v[120:123], v5, s[40:43], s69 offen
s_mov_b64 exec, -1
s_mov_b32 s73, s69
s_cmp_ge_u32 s9, 16
s_cbranch_scc1 L_kv_w0""")

    def get_nonce_lds(self, vt):
        self.e(f"""ds_read_b32 v{vt}, v227 offset:{NON}
s_waitcnt lgkmcnt(0)
v_readfirstlane_b32 s65, v{vt}""")
        self.set_tags()

    def roleW(self, nt):
        e = self.e
        QBF, QAL, CLX, RED, RED2 = 24576, 24832, 25600, 26624, 28672
        e("""v_and_b32 v8, 31, v1
v_lshlrev_b32 v8, 3, v8
v_lshrrev_b32 v9, 5, v1
v_lshl_add_u32 v8, v9, 2, v8""")

        def restore_q1():
            e("""s_mov_b32 exec_hi, 0
buffer_store_dwordx4 v[120:123], v5, s[40:43], s73 offen sc1
s_mov_b64 exec, -1""")
        self.restore_q1 = restore_q1
        if self.opt("sl_h1", 0):
            e(f"s_sleep {self.opt('sl_h1', 0)}")
        self.poll([(f"buffer_load_dwordx4 v[{124+4*k}:{127+4*k}], v5, s[40:43], s68 offen offset:{1024*k} sc1", 124 + 4 * k, 4) for k in range(4)], 'tag', 90, restore=restore_q1)
        self.stamp(3)
        self.tree_sum(124, 4)
        e(f"""s_nop 0
v_permlane32_swap_b32 v124, v126
v_permlane32_swap_b32 v125, v127
s_nop 0
v_pk_add_f32 v[124:125], v[124:125], v[126:127]
v_cvt_pk_bf16_f32 v124, v124, v125
ds_write_b32 v8, v124 offset:{QBF}
ds_write_b32 v11, v11 offset:{QAL + 268}
ds_write_b32 v11, v11 offset:{QAL + 284}
s_waitcnt lgkmcnt(0)
s_barrier""")
        e(f"""v_lshrrev_b32 v8, 1, v1
v_and_b32 v9, 1, v1
v_cmp_gt_u32 vcc, 8, v8
v_lshlrev_b32 v128, 4, v8
v_mul_u32_u24 v129, 48, v8
v_add_u32 v129, {-384+12 & 0xffffffff:#x}, v129
v_cndmask_b32 v128, v129, v128, vcc
v_lshl_add_u32 v128, v9, 7, v128
v_mov_b32 v129, 16
v_cndmask_b32 v130, v129, 4, vcc
v_add_u32 v129, v128, v130
v_add_u32 v130, v129, v130
v_mov_b32 v8, v5
s_lshl_b32 s10, s6, 5
s_add_u32 s10, s10, s5
s_mul_i32 s10, s10, 352
s_add_u32 s10, s10, {QA}
v_mov_b32 v127, s67
v_mov_b32 v90, s65""")
        self.sig_prep(0, 70)
        if self.opt("sig0_early", 1):
            self.sig_send(70, 90, 11)
        e(f"""s_mov_b32 exec_lo, 0x3fffff
s_mov_b32 exec_hi, 0
s_barrier
ds_read_b32 v124, v128 offset:{QAL}
ds_read_b32 v125, v129 offset:{QAL}
ds_read_b32 v126, v130 offset:{QAL}
s_waitcnt lgkmcnt(0)
buffer_store_dwordx4 v[124:127], v8, s[40:43], s10 offen sc1
s_mov_b64 exec, -1""")
        if not self.opt("sig0_early", 1):
            self.sig_send(70, 90, 11)
        self.stamp(4)
        self.dbgtime(4, 0)
        self.dbgtime(5, 77)
        e("s_branch L_w_join")
        self.label("L_lo123")
        e("s_cmp_ge_u32 s9, 16\ns_cbranch_scc1 L_kv_lo")
        self.get_nonce_lds(90)
        e("s_barrier\ns_barrier\ns_branch L_w_join")
        self.label("L_hi")
        e(f"""s_lshr_b32 s13, s6, 1
s_lshl_b32 s13, s13, 6
s_and_b32 s14, s6, 1
s_lshl_b32 s14, s14, 8
s_add_u32 s13, s13, s14
s_bfe_u32 s14, s7, 0x10001
s_lshl_b32 s14, s14, 7
s_add_u32 s13, s13, s14
s_and_b32 s14, s7, 1
s_lshl_b32 s14, s14, 5
s_add_u32 s13, s13, s14
s_lshl_b32 s13, s13, 13
s_lshl_b32 s12, s5, 8
s_add_u32 s13, s13, s12
v_xor_b32 v7, v2, v3
v_lshlrev_b32 v7, 4, v7
v_lshl_add_u32 v7, v3, 13, v7
v_mov_b32 v227, {NB}
s_waitcnt lgkmcnt(0)""")
        self.srd(56, 36, 256)
        self.srd(40, 38, WS_RECORDS)
        e("s_cmp_ge_u32 s9, 16\ns_cbranch_scc1 L_kv_hi")
        lpw = self.newlabel("w_pw")
        e(f"""s_cmp_lg_u32 s7, 4
s_cbranch_scc1 {lpw}
s_lshl_b32 s68, s5, 12
s_add_u32 s68, s68, {Q1}
v_lshlrev_b32 v8, 6, v1
buffer_load_dword v91, v8, s[40:43], s68 offen sc1""")
        self.label(lpw)
        ntk = self.opt("nt_wuk", nt)
        if ntk == "none":
            ntk = ""
        if self.opt("sl_wuk", 1):
            e(f"s_sleep {self.opt('sl_wuk', 1)}")
        WKL = 32768
        self.srd(52, 22, 4194304)
        e(f"""s_sub_u32 s14, s7, 4
s_lshl_b32 s14, s14, 13
s_add_u32 s14, s14, {WKL}
v_lshlrev_b32 v6, 8, v2
v_add_u32 v6, s14, v6""")
        for k in range(8):
            e(f"""s_mov_b32 m0, s14
v_xor_b32 v8, {64*(k&3)}, v7
buffer_load_dwordx4 v8, s[52:55], s13 offen {ntk} lds
s_add_u32 s14, s14, 1024
s_add_u32 s13, s13, 32768""")
        self.stamp(2)
        for t in range(4):
            e(f"""v_or_b32 v8, {4*t}, v3
v_xor_b32 v8, v8, v2
v_lshl_add_u32 v{100+t}, v8, 4, v6""")
        e(f"""v_lshlrev_b32 v9, 4, v3
s_sub_u32 s14, s7, 4
s_lshl_b32 s14, s14, 6
v_lshl_add_u32 v8, v3, 3, s14
s_barrier""")
        self.get_nonce_lds(90)
        e("s_waitcnt vmcnt(0)")
        self.stamp(1)
        for t in range(4):
            e(f"ds_read_b128 v[{36+4*t}:{39+4*t}], v{100+t}\nds_read_b128 v[{52+4*t}:{55+4*t}], v{100+t} offset:4096")
        e("s_waitcnt lgkmcnt(0)\ns_barrier")
        for t in range(4):
            e(f"ds_read_b128 v[{120+4*t}:{123+4*t}], v9 offset:{QBF + 64*t}")
        for t in range(4):
            c0 = "0" if t == 0 else "v[116:119]"
            c1 = "0" if t == 0 else "v[136:139]"
            e(f"s_waitcnt lgkmcnt({3-t})")
            e(f"v_mfma_f32_16x16x32_bf16 v[116:119], v[{36+4*t}:{39+4*t}], v[{120+4*t}:{123+4*t}], {c0}")
            e(f"v_mfma_f32_16x16x32_bf16 v[136:139], v[{52+4*t}:{55+4*t}], v[{120+4*t}:{123+4*t}], {c1}")
        e(f"""s_nop 6
v_cvt_pk_bf16_f32 v140, v116, v117
v_cvt_pk_bf16_f32 v141, v118, v119
v_cvt_pk_bf16_f32 v142, v136, v137
v_cvt_pk_bf16_f32 v143, v138, v139
ds_write_b64 v8, v[140:141] offset:{QAL}
ds_write_b64 v8, v[142:143] offset:{QAL + 32}
s_waitcnt lgkmcnt(0)
s_barrier""")
        self.label("L_w_join")
        self.masks(72, 2, 92, True)
        if self.opt("sl_de", 0):
            e(f"s_sleep {self.opt('sl_de', 0)}")
        nto = self.opt("nt_wo", nt)
        e("""s_lshr_b32 s10, s6, 1
s_and_b32 s11, s6, 1
v_lshrrev_b32 v6, 3, v2
v_lshl_add_u32 v6, v6, 2, v3
v_lshlrev_b32 v7, 4, v6
v_lshlrev_b32 v6, 13, v6
v_and_b32 v8, 7, v2
v_lshl_add_u32 v6, v8, 4, v6
s_lshl_b32 s12, s10, 8
s_lshl_b32 s13, s7, 5
s_add_u32 s12, s12, s13
s_lshl_b32 s12, s12, 13
s_lshl_b32 s13, s5, 8
s_add_u32 s12, s12, s13
s_lshl_b32 s13, s11, 7
s_add_u32 s12, s12, s13
v_add_u32 v6, s12, v6""")
        for t in range(4):
            e(f"global_load_dwordx4 v[{16+4*t}:{19+4*t}], v6, s[24:25] {nt}")
            if t < 3:
                e("v_add_u32 v6, 0x10000, v6")
        lwo = self.newlabel("w_nowo")
        e(f"""s_cmp_ge_u32 s7, 4
s_cbranch_scc1 {lwo}
v_mul_u32_u24 v6, 5120, v3
v_lshl_add_u32 v6, v2, 4, v6
s_lshl_b32 s12, s5, 7
s_lshl_b32 s13, s11, 6
s_add_u32 s12, s12, s13
s_lshl_b32 s13, s7, 4
s_add_u32 s12, s12, s13
s_mul_i32 s12, s12, 1280
v_add_u32 v6, s12, v6""")
        for t in range(4):
            for b in range(5):
                r = 160 + (t * 5 + b) * 4
                e(f"global_load_dwordx4 v[{r}:{r+3}], v6, s[26:27] offset:{1280*(t%2) + 256*b} {nto}")
            if t == 1:
                e("v_add_u32 v6, 2560, v6")
        lfp = self.newlabel("w_fgp")
        e(f"s_branch {lfp}")
        self.label(lwo)
        if self.opt("pf_fg", 0):
            pol = self.opt("pf_pol", "none").replace("none", "")
            e(f"""s_lshr_b32 s12, s9, 2
s_lshl_b32 s12, s12, 3
s_add_u32 s12, s12, s8
s_cmp_ge_u32 s12, 27
s_cbranch_scc1 {lfp}
s_and_b32 s13, s9, 3
s_sub_u32 s14, s7, 4
s_mul_i32 s14, s14, 40
v_add_u32 v6, s14, v1
s_lshl_b32 s15, s12, 2
s_add_u32 s15, s15, s13
s_mul_i32 s15, s15, 20480
v_lshlrev_b32 v8, 7, v6
v_add_u32 v8, s15, v8
s_mul_i32 s13, s13, 160
v_add_u32 v6, s13, v6
v_mul_u32_u24 v6, 3456, v6
s_lshl_b32 s12, s12, 7
v_add_u32 v6, s12, v6
s_mov_b32 exec_hi, 0xff
global_load_dword v160, v8, s[32:33] {pol}
global_load_dword v161, v6, s[30:31] {pol}
s_mov_b64 exec, -1""")
        self.label(lfp)
        e(f"""v_and_b32 v8, 1, v3
v_lshlrev_b32 v8, 1, v8
v_lshrrev_b32 v9, 1, v3
v_or_b32 v8, v8, v9
v_and_b32 v9, 1, v1
v_lshl_add_u32 v8, v9, 2, v8
v_bfe_u32 v9, v1, 1, 2
v_lshl_add_u32 v8, v8, 2, v9
v_lshlrev_b32 v8, 2, v8
s_lshl_b32 s12, s7, 7
v_add_u32 v8, s12, v8
v_add_u32 v7, s12, v7
v_lshrrev_b32 v9, 3, v1
v_lshlrev_b32 v10, 4, v9
v_lshlrev_b32 v9, 9, v9
v_and_b32 v6, 7, v1
v_lshl_add_u32 v9, v6, 4, v9
s_lshl_b32 s12, s5, 2
s_lshl_b32 s13, s10, 1
s_add_u32 s12, s12, s13
s_lshr_b32 s13, s7, 2
s_add_u32 s12, s12, s13
s_lshl_b32 s12, s12, 14
s_and_b32 s13, s7, 3
s_lshl_b32 s13, s13, 7
s_add_u32 s12, s12, s13
s_add_u32 s12, s12, {OB}
s_add_u32 s13, s12, 4096
s_add_u32 s14, s12, 8192
s_add_u32 s15, s12, 12288
s_lshl_b32 s68, s5, 9
s_add_u32 s68, s68, {OS}
v_and_b32 v36, 7, v2
v_lshlrev_b32 v36, 5, v36
v_lshl_add_u32 v36, v3, 4, v36
s_lshl_b32 s61, s7, 8
v_add_u32 v36, s61, v36
s_lshl_b32 s61, s7, 6
v_lshl_add_u32 v37, v3, 4, s61
v_lshlrev_b32 v38, 5, v2
v_lshl_add_u32 v38, v3, 4, v38
s_mul_i32 s61, s7, 2560
v_add_u32 v38, s61, v38
v_subrev_u32 v39, 256, v0
v_lshrrev_b32 v40, 3, v39
v_lshlrev_b32 v40, 11, v40
v_and_b32 v41, 7, v39
v_lshl_add_u32 v40, v41, 4, v40
v_lshlrev_b32 v41, 4, v39
s_mul_i32 s69, s8, {20*2048}
s_lshl_b32 s61, s9, 7
s_add_u32 s69, s69, s61
s_add_u32 s69, s69, {EL}
s_and_b32 s61, s4, 0x67
v_mov_b32 v42, s65
s_mov_b32 s62, {LOG2E:#x}""")
        self.sig_prep(1, 70, "s61")
        self.sig_prep(2, 71)
        self.sig_prep(3, 72)
        e("s_waitcnt vmcnt(0)")
        self.stamp(5)
        lrq = self.newlabel("w_rq")
        lpe = self.newlabel("w_pe")
        e(f"""s_cmp_lg_u32 s7, 0
s_cbranch_scc1 {lrq}
s_mov_b32 exec_hi, 0
buffer_store_dwordx4 v[120:123], v5, s[40:43], s73 offen sc1
s_mov_b64 exec, -1""")
        self.label(lrq)
        e(f"""s_sub_u32 s61, s7, 4
s_lshl_b32 s61, s61, 4
s_add_u32 s61, s61, s9
s_cmp_ge_u32 s61, 20
s_cbranch_scc1 {lpe}
s_mul_i32 s63, s8, 20
s_add_u32 s63, s63, s61
s_lshl_b32 s63, s63, 11
s_add_u32 s63, s63, {EL}
v_lshlrev_b32 v44, 5, v1
buffer_load_dword v45, v44, s[40:43], s63 offen sc1""")
        self.label(lpe)
        self.sig_wait(71, 44, 11, self.opt("t_h3", 135))
        self.stamp(6)
        loads = [(f"buffer_load_dwordx4 v[{48+4*k}:{51+4*k}], v10, s[40:43], s68 offen offset:{128*k} sc1", 48 + 4 * k, 4) for k in range(4)]
        loads += [(f"buffer_load_dwordx4 v[{120+4*k}:{123+4*k}], v9, s[40:43], s{12+k} offen sc1", 120 + 4 * k, 4) for k in range(4)]
        lh3 = self.newlabel("w_h3")
        e("s_mov_b32 s60, 0")
        self.label(lh3)
        for ins in loads:
            e(ins[0])
        e("s_add_u32 s60, s60, 1\ns_waitcnt vmcnt(4)")
        ops = self.chk_ops(list(range(48, 64)) + list(range(120, 136)), 47)
        ops1, ops2 = ops[:16], ops[16:]
        t = ""
        for k in range(4):
            t += f"v_and_b32 v{140+2*k}, s64, v{48+4*k}\n"
        t += """v_max3_f32 v44, v140, v142, v144
v_max_f32 v44, v44, v146
s_nop 1
v_max_f32_dpp v44, v44, v44 row_ror:8 row_mask:0xf bank_mask:0xf
s_nop 0
v_mov_b32 v45, v44
s_nop 1
v_permlane16_swap_b32 v44, v45
s_nop 0
v_max_f32 v44, v44, v45
v_mov_b32 v45, v44
s_nop 1
v_permlane32_swap_b32 v44, v45
s_nop 0
v_max_f32 v44, v44, v45
v_mul_f32 v44, s62, v44
"""
        for k in range(4):
            t += f"v_fma_f32 v{140+2*k}, v{140+2*k}, s62, -v44\n"
        for k in range(4):
            t += f"v_exp_f32 v{140+2*k}, v{140+2*k}\n"
        t += "s_nop 0\nv_mul_f32 v46, v140, v49\n"
        for k in range(1, 4):
            t += f"v_fmac_f32 v46, v{140+2*k}, v{49+4*k}\n"
        t += """s_nop 1
v_add_f32_dpp v46, v46, v46 row_ror:8 row_mask:0xf bank_mask:0xf
s_nop 0
v_mov_b32 v45, v46
s_nop 1
v_permlane16_swap_b32 v46, v45
s_nop 0
v_add_f32 v46, v46, v45
v_mov_b32 v45, v46
SLOT 16
s_waitcnt vmcnt(0)
"""
        self.fill(t, ops1)
        self.stamp(7)
        t = ""
        for r in (0, 2):
            t += f"v_pk_mul_f32 v[{148+r}:{149+r}], v[{120+r}:{121+r}], v[140:141] op_sel_hi:[1,0]\n"
        t += "v_permlane32_swap_b32 v46, v45\n"
        for k in range(1, 4):
            for r in (0, 2):
                t += f"v_pk_fma_f32 v[{148+r}:{149+r}], v[{120+4*k+r}:{121+4*k+r}], v[{140+2*k}:{141+2*k}], v[{148+r}:{149+r}] op_sel_hi:[1,0,1]\n"
            if k == 1:
                t += "v_add_f32 v46, v46, v45\n"
            if k == 2:
                t += "v_rcp_f32 v46, v46\n"
        t += f"""s_nop 0
v_permlane32_swap_b32 v148, v149
v_permlane32_swap_b32 v150, v151
s_nop 0
v_add_f32 v148, v148, v149
v_add_f32 v150, v150, v151
s_nop 1
v_permlane16_swap_b32 v148, v150
s_nop 0
v_add_f32 v148, v148, v150
s_nop 1
v_add_f32_dpp v148, v148, v148 row_ror:8 row_mask:0xf bank_mask:0xf
s_nop 0
v_mul_f32 v148, v148, v46
v_cvt_pk_bf16_f32 v148, v148, v148
ds_write_b32 v8, v148 offset:{CLX}
SLOT 16
v_and_b32 v47, 0xff, v47
s_waitcnt lgkmcnt(0)
ds_read_b128 v[152:155], v7 offset:{CLX}
v_cmp_ne_u32 vcc, 0, v47
s_cmp_lt_u32 s60, {SPIN_LIMIT}
s_cselect_b64 vcc, vcc, 0
s_cmp_lg_u64 vcc, 0
s_waitcnt lgkmcnt(0)
s_cbranch_scc1 {lh3}
"""
        self.fill(t, ops2)
        for t in range(4):
            for r in range(4):
                e(f"v_and_b32 v{96+4*t+r}, v{152+t}, v{72+r}")
            if t > 0:
                c = "0" if t == 1 else "v[116:119]"
                e(f"v_mfma_f32_16x16x32_bf16 v[116:119], v[{96+4*(t-1)}:{99+4*(t-1)}], v[{16+4*(t-1)}:{19+4*(t-1)}], {c}")
        e("s_nop 0\nv_mfma_f32_16x16x32_bf16 v[116:119], v[108:111], v[28:31], v[116:119]\ns_nop 7")
        for r in range(4):
            e(f"v_mov_b32 v{124+r}, v{116+r}")
        for r in range(4):
            e(f"v_permlane32_swap_b32 v{116+r}, v{124+r}")
        for r in range(4):
            e(f"v_add_f32_dpp v{116+r}, v{124+r}, v{116+r} row_ror:8 row_mask:0xf bank_mask:0xf")
        e(f"""s_mov_b32 exec_lo, 0x00ff00ff
s_mov_b32 exec_hi, 0
ds_write_b128 v36, v[116:119] offset:{RED}
s_mov_b64 exec, -1
s_waitcnt lgkmcnt(0)
s_barrier""")
        lhi = self.newlabel("w_hi")
        e(f"s_cmp_ge_u32 s7, 4\ns_cbranch_scc1 {lhi}")
        for p in range(8):
            e(f"ds_read_b128 v[{120+4*p}:{123+4*p}], v37 offset:{RED + 256*p}")
        e("s_waitcnt lgkmcnt(0)")
        self.tree_sum(120, 8)
        for t in range(4):
            e(f"v_cvt_pk_bf16_f32 v{124+t}, v{120+t}, v{120+t}")
        for t in range(4):
            for r in range(4):
                e(f"v_and_b32 v{96+4*t+r}, v{124+t}, v{68+r}")
            e("s_nop 1")
            for b in range(5):
                r = 160 + (t * 5 + b) * 4
                c = "0" if t == 0 else f"v[{136+4*b}:{139+4*b}]"
                e(f"v_mfma_f32_16x16x32_bf16 v[{136+4*b}:{139+4*b}], v[{96+4*t}:{99+4*t}], v[{r}:{r+3}], {c}")
        e("s_mov_b32 exec_hi, 0\ns_nop 3")
        for b in range(5):
            if b == 4:
                e("s_nop 3")
            e(f"ds_write_b128 v38, v[{136+4*b}:{139+4*b}] offset:{RED2 + 512*b}")
        e("s_mov_b64 exec, -1\ns_waitcnt lgkmcnt(0)\ns_barrier")
        self.stamp(8)
        self.dbgtime(8, 5)
        e("""s_cmp_ge_u32 s4, 40
s_cbranch_scc1 L_fin
s_cmp_lg_u32 s7, 0
s_cbranch_scc1 L_fin""")
        self.colidx(8, 9)
        self.srd(44, 16, 1280)
        self.srd(52, 34, 1280)
        e(f"""s_lshl_b32 s12, s4, 5
v_lshlrev_b32 v9, 1, v8
buffer_load_ushort v50, v9, s[44:47], s12 offen
s_mul_i32 s12, s4, 7168
s_add_u32 s12, s12, {FB}
s_add_u32 s13, s12, 4096
v_cmp_gt_u32 vcc, 48, v1
v_add_u32 v10, 1024, v5
s_nop 0
v_cndmask_b32 v10, v5, v10, vcc
v_bfe_u32 v51, v1, 2, 3
v_mul_u32_u24 v51, 2560, v51
v_and_b32 v52, 3, v1
v_lshl_add_u32 v51, v52, 4, v51
s_lshl_b32 s14, s4, 6
s_add_u32 s14, s14, {XB}""")
        self.sig_prep(4, 70)
        self.sig_wait(72, 16, 11, self.opt("t_h5", 42) + 25)
        self.poll([("buffer_load_dwordx4 v[44:47], v51, s[40:43], s14 offen sc1", 44, 4)], 'tag', 53)
        e("v_cmp_gt_u32 vcc, 32, v1\ns_nop 1")
        for r in range(4):
            e(f"v_cndmask_b32 v{44+r}, 0, v{44+r}, vcc")
        self.reduce16(44, 1)
        e(f"""v_cvt_pk_bf16_f32 v44, v44, v44
v_and_b32 v44, 0xffff0000, v44
v_lshlrev_b32 v50, 16, v50
v_add_f32 v44, v44, v50
v_cvt_pk_bf16_f32 v44, v44, v44
v_and_b32 v44, 0xffff0000, v44
s_lshl_b32 s15, s4, 5
s_mov_b32 s62, 0x000f000f
s_mov_b32 s63, 0x000f000f
v_cmp_gt_u32 s[68:69], 48, v1""")
        self.sig_wait(70, 16, 11, self.opt("t_h6", 45))
        loads = [(f"buffer_load_dwordx4 v[{16+4*k}:{19+4*k}], v5, s[40:43], s{12 + k//4} offen offset:{1024*(k%4)} sc1", 16 + 4 * k, 4) for k in range(6)]
        loads += [("buffer_load_dwordx4 v[40:43], v10, s[40:43], s13 offen offset:1024 sc1", 40, 4)]
        self.poll(loads, 'tag', 53)
        self.stamp(9)
        for r in range(4):
            e(f"v_cndmask_b32 v{40+r}, 0, v{40+r}, s[68:69]")
        self.reduce16(16, 7)
        e(f"""s_nop 0
v_cvt_pk_bf16_f32 v16, v16, v16
v_and_b32 v16, 0xffff0000, v16
v_add_f32 v16, v16, v44
v_cvt_pk_bf16_f32 v16, v16, v16
s_mov_b64 exec, s[62:63]
buffer_store_short v16, v9, s[52:55], s15 offen
s_mov_b64 exec, -1""")
        self.stamp(10)
        if self.opt("pad", 0):
            lp = self.newlabel("pad")
            e("s_load_dword s12, s[36:37], 4 glc\ns_waitcnt lgkmcnt(0)")
            self.label(lp)
            e(f"""s_memrealtime s[10:11]
s_waitcnt lgkmcnt(0)
s_sub_u32 s10, s10, s12
s_cmp_lt_u32 s10, {self.opt("pad", 0)}
s_cbranch_scc1 {lp}""")
        self.dbgtime(2, 0)
        self.dbgtime(3, 39)
        e("s_branch L_fin")
        self.label(lhi)
        e(f"""s_sub_u32 s10, s7, 4
s_lshl_b32 s10, s10, 4
s_add_u32 s10, s10, s9
s_mul_i32 s12, s8, 20
s_add_u32 s12, s12, s10
s_lshl_b32 s12, s12, 11
s_add_u32 s12, s12, {EL}
s_mul_i32 s13, s8, 2560
s_lshl_b32 s14, s10, 7
s_add_u32 s13, s13, s14
s_add_u32 s13, s13, {XB}
v_cmp_gt_u32 vcc, 160, v39
s_and_saveexec_b64 s[62:63], vcc
s_barrier
s_cbranch_execz L_fin""")
        for wv in range(4):
            e(f"ds_read_b128 v[{120+4*wv}:{123+4*wv}], v41 offset:{RED2 + 2560*wv}")
        e("s_waitcnt lgkmcnt(0)")
        self.tree_sum(120, 4)
        self.tag4(120)
        e("buffer_store_dwordx4 v[120:123], v40, s[40:43], s69 offen")
        self.stamp(8)

        def restore_el():
            e("buffer_store_dwordx4 v[120:123], v40, s[40:43], s69 offen sc1")
        lnr = self.newlabel("w_nored")
        e(f"s_cmp_ge_u32 s10, 20\ns_cbranch_scc1 {lnr}")
        self.poll([(f"buffer_load_dwordx4 v[{124+4*k}:{127+4*k}], v5, s[40:43], s12 offen offset:{1024*k} sc1", 124 + 4 * k, 4) for k in range(2)], 'tag', 44, restore=restore_el)
        self.stamp(9)
        lns = self.newlabel("w_nosig")
        e(f"s_cmp_lg_u32 s7, 4\ns_cbranch_scc1 {lns}")
        self.sig_send(72, 42, 11)
        self.label(lns)
        self.tree_sum(124, 2)
        e("s_nop 0")
        for r in range(4):
            e(f"v_add_f32_dpp v{124+r}, v{124+r}, v{124+r} row_ror:8 row_mask:0xf bank_mask:0xf")
        for r in range(4):
            e(f"v_mov_b32 v{128+r}, v{124+r}")
        for r in range(4):
            e(f"v_permlane16_swap_b32 v{124+r}, v{128+r}")
        self.tree_sum(124, 2)
        for r in range(4):
            e(f"v_mov_b32 v{128+r}, v{124+r}")
        for r in range(4):
            e(f"v_permlane32_swap_b32 v{124+r}, v{128+r}")
        self.tree_sum(124, 2)
        self.tag4(124)
        e("""s_mov_b64 exec, 0xff
buffer_store_dwordx4 v[124:127], v5, s[40:43], s13 offen sc1
s_mov_b64 exec, -1""")
        self.stamp(10)
        self.label(lnr)
        e(f"s_sleep {self.opt('sl_el', 64)}")
        restore_el()
        e("s_branch L_fin")

    def colidx(self, vd, vt):
        self.e(f"""v_and_b32 v{vd}, 1, v3
v_lshlrev_b32 v{vd}, 1, v{vd}
v_lshrrev_b32 v{vt}, 1, v3
v_or_b32 v{vd}, v{vd}, v{vt}
v_and_b32 v{vt}, 3, v1
v_lshl_add_u32 v{vd}, v{vt}, 2, v{vd}""")

    def reduce16(self, v0, n):
        e = self.e
        self.tree_sum(v0, n)
        a = v0
        e(f"""s_nop 1
v_permlane32_swap_b32 v{a}, v{a+1}
v_permlane32_swap_b32 v{a+2}, v{a+3}
s_nop 0
v_add_f32 v{a}, v{a}, v{a+1}
v_add_f32 v{a+2}, v{a+2}, v{a+3}
s_nop 1
v_permlane16_swap_b32 v{a}, v{a+2}
s_nop 0
v_add_f32 v{a}, v{a}, v{a+2}
s_nop 1
v_add_f32_dpp v{a}, v{a}, v{a} row_ror:8 row_mask:0xf bank_mask:0xf
s_nop 1
v_add_f32_dpp v{a}, v{a}, v{a} row_ror:4 row_mask:0xf bank_mask:0xf""")

    def acc(self, k):
        return 168 + 4 * k if k < 11 else 64 + 4 * (k - 11)

    def roleKV(self, nt):
        e = self.e
        RT, BT, QL, XCH, PL, SL = 0, 67584, 4096, 49152, 4096, 64
        W1L, HN, HF = 24576, 45056, 50176

        def ids():
            e(f"""s_bfe_u32 s10, s9, 0x20002
s_lshl_b32 s5, s8, 2
s_add_u32 s5, s5, s10
s_and_b32 s6, s9, 3""")
            self.srd(44, 18, 8388608)
            e(f"""s_lshl_b32 s10, s5, 3
s_lshl_b32 s11, s6, 1
s_add_u32 s10, s10, s11
s_mul_i32 s68, s10, {2*PMSG}
s_add_u32 s68, s68, {PB}
s_lshl_b32 s69, s5, 7
s_add_u32 s69, s69, {RDY}""")

        def rows(done):
            e(f"""s_sub_u32 s15, s7, 1
s_lshl_b32 s12, s5, 8
s_lshl_b32 s13, s6, 6
s_add_u32 s12, s12, s13
s_add_u32 s12, s12, s15
s_lshl_b32 s12, s12, 10
s_mul_i32 s14, s15, 1040
s_add_u32 s14, s14, {RT}""")
            for k in range(11):
                if k == 10:
                    e(f"s_cmp_ge_u32 s15, 4\ns_cbranch_scc1 {done}")
                e(f"""s_mov_b32 m0, s14
s_add_u32 s14, s14, {6*1040}
buffer_load_dwordx4 v5, s[44:47], s12 offen {nt} lds
s_add_u32 s12, s12, {6*1024}""")
        lj = "L_kv_join"
        self.label("L_kv_w0")
        ids()
        e(f"s_branch {lj}")
        self.label("L_kv_lo")
        ids()
        if self.opt("t_rows", 0):
            self.label("L_kv_rows")
            e(f"ds_read_b32 v90, v227 offset:4\ns_waitcnt lgkmcnt(0)\nv_readfirstlane_b32 s29, v90")
            self.until(self.opt("t_rows", 0))
        rows(lj)
        e(f"s_branch {lj}")
        self.label("L_kv_hi")
        ids()
        l7 = self.newlabel("kv_w7")
        lrd = self.newlabel("kv_rowsd")
        e(f"s_cmp_eq_u32 s7, 7\ns_cbranch_scc1 {l7}")
        if self.opt("t_rows", 0):
            e("s_barrier\ns_branch L_kv_rows")
        else:
            if self.opt("sl_ckv", 14):
                e(f"s_sleep {self.opt('sl_ckv', 14)}")
            rows(lrd)
            self.label(lrd)
            e(f"s_barrier\ns_branch {lj}")
        self.label(l7)
        e("""v_mov_b32 v20, -1
v_mov_b32 v21, -1
v_mov_b32 v22, -1
v_mov_b32 v23, -1
buffer_store_dwordx4 v[20:23], v5, s[40:43], s68 offen sc1
buffer_store_dwordx4 v[20:23], v5, s[40:43], s68 offen offset:1024 sc1
buffer_store_dwordx4 v[20:23], v5, s[40:43], s68 offen offset:2048 sc1
buffer_store_dwordx4 v[20:23], v5, s[40:43], s68 offen offset:3072 sc1
buffer_store_dwordx4 v[20:23], v5, s[40:43], s68 offen offset:3584 sc1""")
        e(f"""ds_write_b32 v227, v11 offset:{FLG}
ds_write_b32 v227, v11 offset:{FLG+4}
s_waitcnt lgkmcnt(0)
s_barrier
ds_read_b32 v60, v227 offset:{NON}
s_lshl_b32 s12, s6, 4
s_add_u32 s12, s12, s69
s_waitcnt vmcnt(0) lgkmcnt(0)
s_getreg_b32 s13, hwreg(HW_REG_XCC_ID)
v_mov_b32 v61, s13
v_mov_b32 v62, v60
v_mov_b32 v63, v60
s_mov_b64 exec, 1
buffer_store_dwordx4 v[60:63], v11, s[40:43], s12 offen sc1
s_mov_b64 exec, -1
v_readfirstlane_b32 s65, v60
s_mov_b32 s60, 0""")
        lr = self.newlabel("kv_rdy")
        lrdn = self.newlabel("kv_rdyd")
        self.label(lr)
        e(f"""s_load_dwordx16 s[76:91], s[38:39], s69 glc
s_add_u32 s60, s60, 1
s_cmp_ge_u32 s60, {SPIN_LIMIT}
s_cbranch_scc1 {lrdn}
s_waitcnt lgkmcnt(0)
s_xor_b32 s76, s76, s65
s_xor_b32 s80, s80, s65
s_xor_b32 s84, s84, s65
s_xor_b32 s88, s88, s65
s_or_b32 s76, s76, s80
s_or_b32 s84, s84, s88
s_or_b32 s76, s76, s84
s_cbranch_scc1 {lr}""")
        self.label(lrdn)
        e(f"""s_waitcnt lgkmcnt(0)
s_xor_b32 s77, s77, s13
s_xor_b32 s81, s81, s13
s_xor_b32 s85, s85, s13
s_xor_b32 s89, s89, s13
s_or_b32 s77, s77, s81
s_or_b32 s85, s85, s89
s_or_b32 s77, s77, s85
v_mov_b32 v8, s77
ds_write_b32 v227, v8 offset:8
s_mul_i32 s12, s5, {16*PMSG}
s_add_u32 s12, s12, {PB}
v_mul_u32_u24 v8, 96, v1
buffer_load_dword v250, v8, s[40:43], s12 offen sc1
s_add_u32 s12, s12, 6144
buffer_load_dword v251, v8, s[40:43], s12 offen sc1
s_add_u32 s12, s12, 6144
buffer_load_dword v252, v8, s[40:43], s12 offen sc1
s_waitcnt lgkmcnt(0)""")
        self.label(lj)
        e(f"""s_lshr_b32 s10, s7, 2
s_lshl_b32 s10, s10, 7
s_bfe_u32 s11, s7, 0x10001
s_mul_i32 s11, s11, {32*1040}
s_add_u32 s10, s10, s11
s_add_u32 s10, s10, {RT}
v_mul_u32_u24 v231, 1040, v2
v_lshl_add_u32 v231, v3, 8, v231
v_add_u32 v231, s10, v231""")
        e(f"""s_lshl_b32 s48, s7, 10
s_add_u32 s49, s48, {QA}
s_add_u32 s48, s48, {QL}
s_lshr_b32 s10, s7, 2
s_mul_i32 s10, s10, {64*352}
s_and_b32 s11, s7, 1
s_mul_i32 s12, s11, {16*352}
s_add_u32 s10, s10, s12
v_mov_b32 v10, v5
v_lshrrev_b32 v6, 1, v3
v_lshl_add_u32 v6, v6, 5, v2
v_mul_u32_u24 v6, 352, v6
v_and_b32 v8, 1, v3
v_lshl_add_u32 v6, v8, 4, v6
v_add_u32 v6, s10, v6
s_and_b32 s10, s7, 3
s_lshl_b32 s10, s10, 11
v_add_u32 v9, s10, v5
s_lshl_b32 s10, s7, 11
v_add_u32 v7, s10, v5
s_and_b32 s10, s7, 3
s_mul_i32 s10, s10, {PMSG}
s_add_u32 s50, s68, s10
v_lshlrev_b32 v212, 3, v2
s_mul_i32 s51, s5, {16*PMSG}
s_mul_i32 s10, s7, {2*PMSG}
s_add_u32 s51, s51, s10
s_add_u32 s51, s51, {PB}
v_and_b32 v213, 1, v3
v_mul_u32_u24 v213, {PMSG}, v213
v_add_u32 v213, v213, v212
v_and_b32 v214, 31, v1
v_lshlrev_b32 v214, 4, v214
s_lshr_b32 s10, s7, 1
s_lshl_b32 s10, s10, 9
s_and_b32 s12, s7, 1
s_lshl_b32 s12, s12, 3
s_add_u32 s10, s10, s12
v_add_u32 v214, s10, v214
s_lshl_b32 s10, s11, 10
v_add_u32 v215, s10, v10
s_lshl_b32 s10, s11, 4
v_add_u32 v216, s10, v2
v_lshlrev_b32 v217, 4, v216
v_lshlrev_b32 v218, 16, v216
v_lshl_add_u32 v218, v3, 4, v218
s_lshl_b32 s52, s6, 5
s_add_u32 s52, s52, s5
s_lshl_b32 s52, s52, 9
s_lshr_b32 s10, s7, 1
s_lshl_b32 s10, s10, 7
s_add_u32 s52, s52, s10
s_add_u32 s52, s52, {OB}
v_lshlrev_b32 v219, 9, v216
s_lshl_b32 s53, s5, 4
s_add_u32 s53, s53, {OS}
s_mov_b32 s54, {SCALE:#x}
s_mov_b32 s55, {LOG2E:#x}
v_mov_b32 v221, 1
v_lshlrev_b32 v8, 1, v3
v_xor_b32 v8, v8, v2
v_lshlrev_b32 v222, 10, v3
v_lshl_add_u32 v222, v8, 4, v222
v_xor_b32 v226, 0x80, v222
s_lshl_b32 s74, s5, 8
s_lshl_b32 s13, s7, 5
s_add_u32 s74, s74, s13
s_lshl_b32 s74, s74, 10
s_lshl_b32 s14, s6, 8
s_add_u32 s74, s74, s14
s_lshl_b32 s75, s7, 13
s_add_u32 s75, s75, {BT}
v_lshrrev_b32 v223, 2, v2
v_lshl_add_u32 v223, v3, 2, v223
v_and_b32 v229, 7, v223
s_lshr_b32 s12, s7, 1
s_lshl_b32 s12, s12, 1
v_xor_b32 v229, s12, v229
v_lshlrev_b32 v223, 8, v223
v_lshl_add_u32 v223, v229, 5, v223
v_and_b32 v8, 3, v2
v_lshl_add_u32 v223, v8, 3, v223
v_add_u32 v223, {BT}, v223
v_xor_b32 v229, 32, v223
v_add_u32 v230, 12, v5
v_add_u32 v230, s48, v230""")
        self.sig_prep(0, 70)
        self.sig_prep(1, 71)
        self.sig_prep(2, 72)
        nt2 = self.opt("nt_block", nt)

        def blk_dma():
            for k in range(8):
                e(f"""s_mov_b32 m0, s75
s_add_u32 s75, s75, 1024
buffer_load_dwordx4 v{222 if k % 2 == 0 else 226}, s[44:47], s74 offen {nt2} lds
s_add_u32 s74, s74, 4096""")

        def tr_reads():
            for p in range(8):
                for ctl in range(2):
                    for hh in range(2):
                        r = 104 + (p * 2 + ctl) * 4 + 2 * hh
                        e(f"ds_read_b64_tr_b16 v[{r}:{r+1}], v{223 if ctl == 0 else 229} offset:{8192*p + 4096*hh}")
                if p % 3 == 2:
                    e("s_waitcnt lgkmcnt(3)")
        self.tr_reads = tr_reads
        early = 1
        self.get_nonce_lds(240)
        e("v_mov_b32 v220, s65\ns_mov_b32 s73x, 0".replace("s73x", "s47x").replace("s47x", "s3"))
        def rq():
            lrq = self.newlabel("kv_rq")
            e(f"""s_cmp_lg_u32 s7, 0
s_cbranch_scc1 {lrq}
s_mov_b32 exec_hi, 0
buffer_store_dwordx4 v[232:235], v5, s[40:43], s73 offen sc1
s_mov_b64 exec, -1""")
            self.label(lrq)
        def sweep():
            e("s_mov_b32 s10, s48\ns_mov_b32 s11, s49")
            for k in range(6):
                if k == 5:
                    l5 = self.newlabel("kv_sw5")
                    e(f"s_cmp_ge_u32 s7, 4\ns_cbranch_scc1 {l5}")
                e(f"""s_mov_b32 m0, s10
s_add_u32 s10, s10, 8192
buffer_load_dwordx4 v5, s[40:43], s11 offen sc1 lds
s_add_u32 s11, s11, 8192""")
                if k == 5:
                    self.label(l5)
        TH2 = self.opt("t_h2", 90)
        e("v_mov_b32 v232, v120\nv_mov_b32 v233, v121\nv_mov_b32 v234, v122\nv_mov_b32 v235, v123")
        if self.opt("sl_blk", 0):
            e(f"s_sleep {self.opt('sl_blk', 0)}")
        lb7 = self.newlabel("kv_b7")
        lb0 = self.newlabel("kv_b0")
        e(f"s_cmp_eq_u32 s7, 7\ns_cbranch_scc1 {lb7}")
        blk_dma()
        e(f"s_cmp_lg_u32 s7, 0\ns_cbranch_scc1 {lb0}\ns_add_u32 s74, s74, {192*1024}\ns_add_u32 s75, s75, {48*1024}")
        blk_dma()
        e(f"s_branch {lb7}")
        self.label(lb0)
        e("s_waitcnt vmcnt(8)")
        self.label(lb7)
        e("s_barrier")
        self.stamp(3)
        for u in range(8):
            e(f"ds_read_b128 v[{16+4*u}:{19+4*u}], v231 offset:{16*u}")
        for u in range(8):
            if u == 7:
                e("s_waitcnt lgkmcnt(8)")
            e(f"ds_read_b128 v[{60+4*u}:{63+4*u}], v231 offset:{16*1040 + 16*u}")
        e("s_load_dwordx2 s[28:29], s[38:39], s70 glc\nds_read_b32 v237, v227 offset:8\ns_waitcnt vmcnt(0) lgkmcnt(0)\ns_barrier")
        lns = self.newlabel("kv_nosw")
        e(f"""s_memrealtime s[0:1]
s_mov_b32 s61, 0
s_waitcnt lgkmcnt(0)
s_cmp_lg_u32 s28, s65
s_cbranch_scc1 {lns}
s_sub_u32 s0, s0, s29
s_cmp_lt_u32 s0, {TH2}
s_cbranch_scc1 {lns}
s_mov_b32 s61, 1""")
        self.stamp(11)
        sweep()
        self.label(lns)
        tr_reads()
        for a in range(2):
            for z in range(3):
                for i in range(3):
                    sidx = 3 * z + i
                    d = 16 + 44 * a + 4 * (8 + z) + i
                    if sidx < 8:
                        e(f"v_mov_b32 v{d}, v{16+44*a+4*sidx+3}")
                    else:
                        e(f"v_mov_b32 v{d}, 0")
                e(f"v_mov_b32 v{16+44*a+4*(8+z)+3}, 0")
        lsd = self.newlabel("kv_swd")
        lhv = self.newlabel("kv_have")
        e(f"s_cmp_eq_u32 s61, 1\ns_cbranch_scc1 {lsd}\ns_cmp_eq_u32 s28, s65\ns_cbranch_scc1 {lhv}")
        self.sig_wait(70, 240, 11, 0, restore=rq)
        self.label(lhv)
        self.until(TH2)
        self.stamp(11)
        sweep()
        self.label(lsd)
        e("s_waitcnt lgkmcnt(0)")
        if self.opt("valfirst", 0):
            e("v_readfirstlane_b32 s66, v237\ns_mov_b32 s60, 0\ns_mov_b32 s61, 0x1f")
            l45 = self.newlabel("kv_m5")
            e(f"s_cmp_ge_u32 s7, 4\ns_cbranch_scc1 {l45}\ns_mov_b32 s61, 0x3f")
            self.label(l45)
            lchk = self.newlabel("kv_chk")
            lok = self.newlabel("kv_swok")
            self.label(lchk)
            e("s_waitcnt vmcnt(0)")
            for k in range(6):
                e(f"ds_read_b32 v{240+k}, v230 offset:{8192*k}")
            e("s_waitcnt lgkmcnt(0)")
            for k in range(6):
                e(f"v_cmp_ne_u32 s[{10+2*(k%3)}:{11+2*(k%3)}], s67, v{240+k}")
                if k % 3 == 2:
                    for kk in range(k - 2, k + 1):
                        e(f"""s_cmp_eq_u64 s[{10+2*(kk%3)}:{11+2*(kk%3)}], 0
s_cselect_b32 s62, {(~(1 << kk)) & 0x3f:#x}, 0x3f
s_and_b32 s61, s61, s62""")
            e(f"s_cbranch_scc0 {lok}")
            for k in range(6):
                sk = self.newlabel("swk")
                e(f"""s_bitcmp1_b32 s61, {k}
s_cbranch_scc0 {sk}
s_add_u32 s10, s48, {8192*k}
s_mov_b32 m0, s10
s_add_u32 s11, s49, {8192*k}
buffer_load_dwordx4 v5, s[40:43], s11 offen sc1 lds""")
                self.label(sk)
            lnr = self.newlabel("kv_nrq")
            e(f"s_add_u32 s60, s60, 1\ns_cmp_lg_u32 s60, {RESTORE_IT}\ns_cbranch_scc1 {lnr}")
            rq()
            self.label(lnr)
            e(f"s_cmp_lt_u32 s60, {SPIN_LIMIT}\ns_cbranch_scc1 {lchk}\ns_waitcnt vmcnt(0)")
            self.label(lok)
            for k in range(5):
                e(f"ds_write_b32 v230, v11 offset:{8192*k}")
            l5z = self.newlabel("kv_z5")
            e(f"s_cmp_ge_u32 s7, 4\ns_cbranch_scc1 {l5z}\nds_write_b32 v230, v11 offset:{8192*5}")
            self.label(l5z)
            rq()
            e("s_waitcnt lgkmcnt(0)\ns_barrier")
            self.stamp(4)
            for u in range(11):
                e(f"ds_read_b128 v[{168+4*u}:{171+4*u}], v6 offset:{QL + 32*u}")
            for u in range(11):
                e(f"s_waitcnt lgkmcnt({10 - u})")
                r = 168 + 4 * u
                for a in range(2):
                    c = "0" if u == 0 else f"v[{240+4*a}:{243+4*a}]"
                    e(f"v_mfma_f32_16x16x32_bf16 v[{240+4*a}:{243+4*a}], v[{16+44*a+4*u}:{19+44*a+4*u}], v[{r}:{r+3}], {c}")
            lnx = self.newlabel("kv_nox")
            e(f"""s_cmp_lt_u32 s7, 4
s_cbranch_scc1 {lnx}
s_nop 5
ds_write_b128 v9, v[240:243] offset:{XCH}
ds_write_b128 v9, v[244:247] offset:{XCH + 1024}
s_waitcnt lgkmcnt(0)""")
            self.label(lnx)
            e(f"""s_barrier
ds_read_b128 v[168:171], v9 offset:{XCH}
ds_read_b128 v[172:175], v9 offset:{XCH + 1024}""")

        else:
            e("v_readfirstlane_b32 s66, v237\ns_mov_b32 s60, 0\ns_mov_b32 s3, 0")
            lsw = self.newlabel("kv_sweep")
            lfirst = self.newlabel("kv_first")
            e(f"s_branch {lfirst}")
            self.label(lsw)
            sweep()
            self.label(lfirst)
            e("s_waitcnt vmcnt(0)\ns_barrier")
            for u in range(11):
                e(f"ds_read_b128 v[{168+4*u}:{171+4*u}], v6 offset:{QL + 32*u}")
            self.stamp(4)

            def chk(u):
                r = 168 + 4 * u + 3
                e(f"s_waitcnt lgkmcnt({10 - u})")
                if u == 0:
                    e(f"v_xor_b32 v224, s67, v{r}")
                else:
                    e(f"v_bitop3_b32 v224, v224, v{r}, s67 bitop3:0xf6")
                e(f"v_mov_b32 v{r}, 0")
            chk(0)
            for u in range(11):
                if u + 1 < 11:
                    chk(u + 1)
                else:
                    e("v_cmp_ne_u32 vcc, 0, v224\nv_add_u32 v225, s3, v227")
                r = 168 + 4 * u
                for a in range(2):
                    c = "0" if u == 0 else f"v[{240+4*a}:{243+4*a}]"
                    e(f"v_mfma_f32_16x16x32_bf16 v[{240+4*a}:{243+4*a}], v[{16+44*a+4*u}:{19+44*a+4*u}], v[{r}:{r+3}], {c}")
            lok = self.newlabel("kv_ok")
            e(f"""s_cmp_eq_u64 vcc, 0
s_cbranch_scc1 {lok}
ds_write_b32 v225, v221 offset:{FLG}""")
            self.label(lok)
            lnx = self.newlabel("kv_nox")
            e(f"""s_cmp_lt_u32 s7, 4
s_cbranch_scc1 {lnx}
s_nop 3
ds_write_b128 v9, v[240:243] offset:{XCH}
ds_write_b128 v9, v[244:247] offset:{XCH + 1024}""")
            self.label(lnx)
            e(f"""s_waitcnt lgkmcnt(0)
s_barrier
ds_read_b32 v224, v225 offset:{FLG}
ds_read_b128 v[168:171], v9 offset:{XCH}
ds_read_b128 v[172:175], v9 offset:{XCH + 1024}""")
            lgo = self.newlabel("kv_go")
            e(f"""s_waitcnt lgkmcnt(2)
v_readfirstlane_b32 s10, v224
s_nop 0
s_cmp_eq_u32 s10, 0
s_cbranch_scc1 {lgo}
s_waitcnt lgkmcnt(0)
s_xor_b32 s3, s3, 4
v_add_u32 v225, s3, v227
ds_write_b32 v225, v11 offset:{FLG}
s_add_u32 s60, s60, 1
s_waitcnt lgkmcnt(0)
s_barrier""")
            rq()
            e(f"""s_cmp_lt_u32 s60, {SPIN_LIMIT}
s_cbranch_scc1 {lsw}""")
            self.label(lgo)
        self.stamp(5)
        lnsm = self.newlabel("kv_nosm")
        e(f"s_cmp_ge_u32 s7, 4\ns_cbranch_scc1 {lnsm}\ns_waitcnt lgkmcnt(0)")
        for k in range(4):
            e(f"v_pk_add_f32 v[{168+2*k}:{169+2*k}], v[{168+2*k}:{169+2*k}], v[{240+2*k}:{241+2*k}]")
        for k in range(4):
            e(f"v_cvt_pk_bf16_f32 v{176+k}, v{168+2*k}, v{169+2*k}")
        for k in range(4):
            e(f"v_lshlrev_b32 v{168+2*k}, 16, v{176+k}\nv_and_b32 v{169+2*k}, 0xffff0000, v{176+k}")
        for k in range(8):
            e(f"v_mul_f32 v{168+k}, s54, v{168+k}")
        for k in range(4):
            e(f"v_cvt_pk_bf16_f32 v{176+k}, v{168+2*k}, v{169+2*k}")
        for k in range(4):
            e(f"v_lshlrev_b32 v{168+2*k}, 16, v{176+k}\nv_and_b32 v{169+2*k}, 0xffff0000, v{176+k}")
        e("""v_max3_f32 v248, v168, v169, v170
v_max3_f32 v180, v171, v172, v173
v_max3_f32 v248, v248, v174, v175
v_max_f32 v248, v248, v180
v_mov_b32 v180, v248
s_nop 1
v_permlane16_swap_b32 v248, v180
s_nop 0
v_max_f32 v248, v248, v180
v_mov_b32 v180, v248
s_nop 1
v_permlane32_swap_b32 v248, v180
s_nop 0
v_max_f32 v248, v248, v180
v_mul_f32 v180, s55, v248""")
        for k in range(8):
            e(f"v_fma_f32 v{168+k}, v{168+k}, s55, -v180")
        for k in range(8):
            e(f"v_exp_f32 v{168+k}, v{168+k}")
        e("s_nop 0")
        for k in range(4):
            e(f"v_cvt_pk_bf16_f32 v{252+k}, v{168+2*k}, v{169+2*k}")
        e("""buffer_store_dwordx4 v[252:255], v10, s[40:43], s50 offen
v_pk_add_f32 v[168:169], v[168:169], v[170:171]
v_pk_add_f32 v[172:173], v[172:173], v[174:175]
v_pk_add_f32 v[168:169], v[168:169], v[172:173]
v_add_f32 v249, v168, v169
v_mov_b32 v180, v249
s_nop 1
v_permlane16_swap_b32 v249, v180
s_nop 0
v_add_f32 v249, v249, v180
v_mov_b32 v180, v249
s_nop 1
v_permlane32_swap_b32 v249, v180
s_nop 0
v_add_f32 v249, v249, v180
s_mov_b64 exec, 0xffff
buffer_store_dwordx2 v[248:249], v212, s[40:43], s50 offen offset:1024
s_mov_b64 exec, -1""")
        self.stamp(6)
        if not early:
            lsj = self.newlabel("kv_sj")
            e(f"s_waitcnt vmcnt(2)\ns_branch {lsj}")
            self.label(lnsm)
            e("s_waitcnt vmcnt(0)")
            self.label(lsj)
            e("s_barrier")
            tr_reads()
        else:
            self.label(lnsm)

        def restore_p():
            l = self.newlabel("rp")
            e(f"""s_cmp_ge_u32 s7, 4
s_cbranch_scc1 {l}
buffer_store_dwordx4 v[252:255], v10, s[40:43], s50 offen sc1
s_mov_b64 exec, 0xffff
buffer_store_dwordx2 v[248:249], v212, s[40:43], s50 offen offset:1024 sc1
s_mov_b64 exec, -1""")
            self.label(l)
        lsame = self.newlabel("kv_same")
        e(f"s_cmp_eq_u32 s66, 0\ns_cbranch_scc1 {lsame}")
        restore_p()
        self.label(lsame)
        self.poll([("buffer_load_dwordx4 v[168:171], v5, s[40:43], s51 offen sc1", 168, 4),
                   (f"buffer_load_dwordx4 v[172:175], v5, s[40:43], s51 offen offset:{PMSG} sc1", 172, 4),
                   ("buffer_load_dwordx2 v[176:177], v213, s[40:43], s51 offen offset:1024 sc1", 176, 2)], 'sent', 224)
        e(f"""ds_write_b128 v7, v[168:171] offset:{PL}
ds_write_b128 v7, v[172:175] offset:{PL + 1024}
ds_write_b64 v214, v[176:177] offset:{SL}
s_waitcnt lgkmcnt(0)
s_barrier""")
        self.stamp(7)
        if self.opt("sig2_early", 1):
            l0e = self.newlabel("kv_sig")
            e(f"s_cmp_lg_u32 s7, 7\ns_cbranch_scc1 {l0e}")
            self.sig_send(72, 220, 11)
            self.label(l0e)
        for k in range(4):
            e(f"ds_read_b128 v[{48+4*k}:{51+4*k}], v217 offset:{SL + 512*k}")
        for p in range(8):
            e(f"ds_read_b128 v[{16+4*p}:{19+4*p}], v215 offset:{PL + 2048*p}")
        stats = []
        stats.append("v_max3_f32 v238, v48, v50, v52")
        stats.append("v_max3_f32 v239, v54, v56, v58")
        stats.append("v_max3_f32 v238, v238, v60, v62")
        stats.append("v_max_f32 v238, v238, v239")
        stats.append("v_mul_f32 v239, s55, v238")
        for p in range(8):
            stats.append(f"v_fma_f32 v{48+2*p}, v{48+2*p}, s55, -v239")
        for p in range(8):
            stats.append(f"v_exp_f32 v{48+2*p}, v{48+2*p}")
        stats.append("v_and_or_b32 v240, v238, s64, v12")
        stats.append("v_mul_f32 v239, v48, v49")
        for p in range(1, 8):
            stats.append(f"v_fmac_f32 v239, v{48+2*p}, v{49+2*p}")
        si = 0
        for p in range(8):
            e(f"s_waitcnt lgkmcnt({7 - p})")
            for ctl in range(2):
                ar = 104 + (p * 2 + ctl) * 4
                ac = self.acc(p * 2 + ctl)
                e(f"v_mfma_f32_16x16x32_bf16 v[{ac}:{ac+3}], v[{ar}:{ar+3}], v[{16+4*p}:{19+4*p}], 0")
                for _ in range(2):
                    if si < len(stats):
                        e(stats[si]); si += 1
        while si < len(stats):
            e(stats[si]); si += 1
        lno = self.newlabel("kv_noos")
        e(f"""s_cmp_lg_u32 s6, 0
s_cbranch_scc1 {lno}
s_cmp_ge_u32 s7, 2
s_cbranch_scc1 {lno}
v_and_or_b32 v241, v239, s64, v13
v_mov_b32 v242, v14
v_mov_b32 v243, v15
s_mov_b64 exec, 0xffff
buffer_store_dwordx4 v[240:243], v219, s[40:43], s53 offen sc1
s_mov_b64 exec, -1""")
        self.label(lno)
        for r in range(0, 8, 2):
            e(f"v_pk_mul_f32 v[{168+r}:{169+r}], v[{168+r}:{169+r}], v[48:49] op_sel_hi:[1,0]")
        for p in range(1, 8):
            for ctl in range(2):
                for r in (0, 2):
                    a = self.acc(2 * p + ctl) + r
                    o = 168 + 4 * ctl + r
                    e(f"v_pk_fma_f32 v[{o}:{o+1}], v[{a}:{a+1}], v[{48+2*p}:{49+2*p}], v[{o}:{o+1}] op_sel_hi:[1,0,1]")
        self.tag4(168)
        e("buffer_store_dwordx4 v[168:171], v218, s[40:43], s52 offen sc1")
        self.tag4(172)
        e("buffer_store_dwordx4 v[172:175], v218, s[40:43], s52 offen offset:64 sc1")
        self.stamp(8)
        e("s_barrier")
        self.dbgtime(6, 128)
        self.dbgtime(7, 201)
        if not self.opt("sig2_early", 1):
            l0 = self.newlabel("kv_sig")
            e(f"s_cmp_lg_u32 s7, 0\ns_cbranch_scc1 {l0}")
            self.sig_send(72, 220, 11)
            self.label(l0)
        lnf = self.newlabel("kv_nofg")
        llo = self.newlabel("kv_fglo")
        e(f"""v_mov_b32 v236, v220
s_bfe_u32 s10, s9, 0x20002
s_lshl_b32 s10, s10, 3
s_add_u32 s10, s10, s8
s_cmp_ge_u32 s10, 27
s_cbranch_scc1 {lnf}
s_lshl_b32 s10, s10, 2
s_add_u32 s10, s10, s6""")
        if self.opt("sl_fg", 40):
            e(f"s_sleep {self.opt('sl_fg', 40)}")
        e(f"s_cmp_lt_u32 s7, 4\ns_cbranch_scc1 {llo}")
        self.srd(44, 30, 2211840)
        e(f"""v_lshrrev_b32 v6, 1, v1
v_mul_u32_u24 v6, 3456, v6
v_and_b32 v7, 1, v1
v_lshl_add_u32 v6, v7, 4, v6
s_sub_u32 s11, s7, 4
s_mul_i32 s11, s11, 160
s_mul_i32 s12, s11, 3456
s_lshl_b32 s13, s10, 5
s_add_u32 s12, s12, s13
s_lshl_b32 s13, s11, 5
s_add_u32 s13, s13, {W1L}""")
        for k in range(5):
            e(f"""s_mov_b32 m0, s13
s_add_u32 s13, s13, 1024
buffer_load_dwordx4 v6, s[44:47], s12 offen {nt} lds
s_add_u32 s12, s12, {32*3456}""")
        e("s_waitcnt vmcnt(0)")
        if self.opt("dbg2", 0): self.stamp(2)
        e("s_barrier\ns_branch L_fin")
        self.label(lnf)
        if self.opt("clean_p", 0):
            restore_p()
        e("s_branch L_fin")
        self.label(llo)
        self.srd(44, 16, 1280)
        e(f"""v_lshlrev_b32 v8, 3, v1
s_mul_i32 s11, s7, 320
buffer_load_dwordx2 v[48:49], v8, s[44:47], s11 offen
v_mul_u32_u24 v7, 5120, v3
v_lshl_add_u32 v7, v2, 4, v7
s_mul_i32 s12, s10, 20480
s_lshl_b32 s13, s7, 8
s_add_u32 s12, s12, s13
v_add_u32 v7, s12, v7""")
        for t in range(4):
            e(f"global_load_dwordx4 v[{16+4*t}:{19+4*t}], v7, s[32:33] offset:{1280*t} {nt}")
        lb4 = self.newlabel("kv_b4")
        e(f"s_cmp_lg_u32 s7, 0\ns_cbranch_scc1 {lb4}\nv_add_u32 v7, 1024, v7")
        for t in range(4):
            e(f"global_load_dwordx4 v[{32+4*t}:{35+4*t}], v7, s[32:33] offset:{1280*t} {nt}")
        self.label(lb4)
        if self.opt("clean_p", 0):
            restore_p()
        self.masks(52, 2, 60, False)
        e(f"""v_lshrrev_b32 v8, 2, v2
v_lshl_add_u32 v8, v3, 3, v8
v_lshlrev_b32 v8, 5, v8
v_and_b32 v9, 3, v2
v_lshl_add_u32 v8, v9, 3, v8
s_waitcnt vmcnt(0)""")
        if self.opt("dbg2", 0): self.stamp(2)
        e("s_barrier")
        if self.opt("dbg2", 0): self.stamp(3)
        for t in range(20):
            for hh in range(2):
                e(f"ds_read_b64_tr_b16 v[{80+4*t+2*hh}:{81+4*t+2*hh}], v8 offset:{W1L + 1024*t + 128*hh}")
            if t % 4 == 3:
                e("s_waitcnt lgkmcnt(0)")
        e(f"""s_mul_i32 s12, s7, 640
s_add_u32 s12, s12, {XB}
s_add_u32 s13, s12, 5120
s_add_u32 s14, s12, 10240
s_add_u32 s15, s12, 15360
v_lshlrev_b32 v56, 16, v48
v_and_b32 v57, 0xffff0000, v48
v_lshlrev_b32 v58, 16, v49
v_and_b32 v59, 0xffff0000, v49
v_lshlrev_b32 v8, 3, v1
s_mul_i32 s11, s7, 320
v_add_u32 v9, s11, v8
s_mul_i32 s11, s7, 1280
v_add_u32 v10, s11, v8
v_add_u32 v228, s11, v4
v_lshl_add_u32 v229, v3, 4, s11
v_lshrrev_b32 v230, 1, v2
v_mul_u32_u24 v230, 7168, v230
v_and_b32 v231, 1, v2
v_lshl_add_u32 v230, v231, 5, v230
v_lshl_add_u32 v230, v3, 4, v230
s_mul_i32 s52, s7, {8*7168}
s_lshl_b32 s53, s10, 6
s_add_u32 s52, s52, s53
s_add_u32 s52, s52, {FB}
s_add_u32 s53, s52, {32*7168}""")
        self.sig_prep(3, 70)
        self.sig_prep(4, 71)
        if not self.opt('dbg1', 0): self.stamp(9)
        self.sig_wait(70, 60, 11, self.opt("t_h5", 42))
        e("s_mov_b32 exec_hi, 0xff")
        self.poll([(f"buffer_load_dwordx4 v[{160+4*x}:{163+4*x}], v5, s[40:43], s{12 + x//2} offen offset:{2560*(x%2)} sc1", 160 + 4 * x, 4) for x in range(8)], 'tag', 60)
        self.tree_sum(160, 8)
        e(f"""v_cvt_pk_bf16_f32 v60, v160, v161
v_cvt_pk_bf16_f32 v61, v162, v163
v_lshlrev_b32 v160, 16, v60
v_and_b32 v161, 0xffff0000, v60
v_lshlrev_b32 v162, 16, v61
v_and_b32 v163, 0xffff0000, v61
v_pk_add_f32 v[160:161], v[160:161], v[56:57]
v_pk_add_f32 v[162:163], v[162:163], v[58:59]
v_cvt_pk_bf16_f32 v60, v160, v161
v_cvt_pk_bf16_f32 v61, v162, v163
ds_write_b64 v9, v[60:61] offset:{HF}
s_mov_b64 exec, -1
s_waitcnt lgkmcnt(0)
s_barrier
ds_read_b64 v[70:71], v8 offset:{HF}
ds_read_b64 v[72:73], v8 offset:{HF + 512}
ds_read_b32 v74, v4 offset:{HF + 1024}
s_waitcnt lgkmcnt(0)""")
        if not self.opt('dbg1', 0): self.stamp(10)
        for k in range(5):
            e(f"v_lshlrev_b32 v{60+2*k}, 16, v{70+k}\nv_and_b32 v{61+2*k}, 0xffff0000, v{70+k}")
        self.layernorm(60, 70, 62, 63)
        e(f"""v_cvt_pk_bf16_f32 v70, v60, v61
v_cvt_pk_bf16_f32 v71, v62, v63
v_cvt_pk_bf16_f32 v72, v64, v65
v_cvt_pk_bf16_f32 v73, v66, v67
v_cvt_pk_bf16_f32 v74, v68, v69
ds_write_b64 v10, v[70:71] offset:{HN}
ds_write_b64 v10, v[72:73] offset:{HN + 512}
ds_write_b32 v228, v74 offset:{HN + 1024}
s_waitcnt lgkmcnt(0)""")
        for t in range(14):
            e(f"ds_read_b128 v[{160+4*t}:{163+4*t}], v229 offset:{HN + 64*t}")
        for t in range(20):
            issued = min(t + 14, 20)
            e(f"s_waitcnt lgkmcnt({issued - t - 1})")
            c = "0" if t == 0 else "v[56:59]"
            e(f"v_mfma_f32_16x16x32_bf16 v[56:59], v[{80+4*t}:{83+4*t}], v[{self.fb(t)}:{self.fb(t)+3}], {c}")
            if t + 14 < 20:
                e(f"ds_read_b128 v[{self.fb(t+14)}:{self.fb(t+14)+3}], v229 offset:{HN + 64*(t+14)}")
        ls4 = self.newlabel("kv_s4")
        e(f"s_cmp_lg_u32 s7, 1\ns_cbranch_scc1 {ls4}")
        self.sig_send(71, 236, 11)
        self.label(ls4)
        e("s_nop 4")
        for r in range(4):
            e(f"v_max_f32 v{56+r}, 0, v{56+r}")
        for t in range(4):
            e(f"v_cvt_pk_bf16_f32 v{240+t}, v{56+t}, v{56+t}")
        for t in range(4):
            for r in range(4):
                e(f"v_and_b32 v{80+4*t+r}, v{240+t}, v{52+r}")
        for t in range(4):
            c = "0" if t == 0 else "v[64:67]"
            e(f"v_mfma_f32_16x16x32_bf16 v[64:67], v[{80+4*t}:{83+4*t}], v[{16+4*t}:{19+4*t}], {c}")
        lb5 = self.newlabel("kv_b5")
        e(f"s_cmp_lg_u32 s7, 0\ns_cbranch_scc1 {lb5}")
        for t in range(4):
            c = "0" if t == 0 else "v[68:71]"
            e(f"v_mfma_f32_16x16x32_bf16 v[68:71], v[{80+4*t}:{83+4*t}], v[{32+4*t}:{35+4*t}], {c}")
        e("s_nop 3")
        self.tag4(64)
        e("""s_mov_b32 exec_hi, 0
buffer_store_dwordx4 v[64:67], v230, s[40:43], s52 offen sc1""")
        self.tag4(68)
        e("buffer_store_dwordx4 v[68:71], v230, s[40:43], s53 offen sc1")
        e("s_mov_b64 exec, -1")
        if not self.opt('dbg1', 0): self.stamp(1)
        e("s_branch L_fin")
        self.label(lb5)
        e("s_nop 5")
        self.tag4(64)
        e("""s_mov_b32 exec_hi, 0
buffer_store_dwordx4 v[64:67], v230, s[40:43], s52 offen sc1
s_mov_b64 exec, -1""")

    def fb(self, t):
        if t < 14:
            return 160 + 4 * t
        return [60, 64, 68, 72, 76, 244][t - 14]


if __name__ == "__main__":
    import argparse
    ap = argparse.ArgumentParser()
    ap.add_argument("out")
    ap.add_argument("--stamps", action="store_true")
    ap.add_argument("--opt", action="append", default=[])
    a = ap.parse_args()
    opts = {}
    for o in a.opt:
        k, v = o.split("=")
        opts[k] = int(v) if v.lstrip("-").isdigit() else v
    g = Gen(stamps=a.stamps, opts=opts)
    open(a.out, "w").write(g.build())
```

```python
import sys

KN = "sequential_preLN__compressed_kv_cla__dense_activation_relu__decode_kernel"

Q1 = 0x000000
QA = 0x020000
PB = 0x030000
PMSG = 1152
OB = 0x0C0000
OS = 0x2C0000
EL = 0x2C4000
XB = 0x314000
FB = 0x319000
SIG = 0x360000
RDY = 0x374000
assert PB + 512 * PMSG <= OB
STAMP = 0x400000
WS_RECORDS = 0x400000 + 256 * 128

SPIN_LIMIT = 100000
RESTORE_IT = 10
LOG2E = 0x3fb8aa3b
SCALE = 0x3db504f3
LDS_BYTES = 146432
NB = 133120
NON, FLG = 0, 16

HEADER = """; ---------------------------------------------------------------------------------------------
; Hand-offs through d_ws are self-validating: every 16-byte granule carries a per-launch tag (published through
; ---------------------------------------------------------------------------------------------"""


class Gen:
    def __init__(self, stamps=False, opts=None):
        self.o = []
        self.nl = 0
        self.stamps = stamps
        self.opts = opts or {}

    def opt(self, k, d):
        return self.opts.get(k, d)

    def e(self, s):
        for line in s.strip("\n").split("\n"):
            self.o.append("  " + line.strip())

    def label(self, name):
        self.o.append(name + ":")

    def newlabel(self, base):
        self.nl += 1
        return f"L_{base}_{self.nl}"

    def srd(self, d, ptr, nbytes):
        self.e(f"""s_mov_b32 s{d}, s{ptr}
s_and_b32 s{d+1}, s{ptr+1}, 0xffff
s_mov_b32 s{d+2}, {nbytes}
s_mov_b32 s{d+3}, 0x00020000""")

    def stamp(self, idx):
        if self.stamps:
            self.e(f"s_memrealtime s[{76+2*idx}:{77+2*idx}]")

    def stamp_dump(self):
        if not self.stamps:
            return
        self.e("""s_and_b32 s60, s7, 3
s_cmp_lg_u32 s60, 0
s_cbranch_scc1 L_end
s_waitcnt lgkmcnt(0)
s_mov_b64 exec, 1
v_mov_b32 v251, 0""")
        self.e(f"s_lshl_b32 s60, s2, 7\ns_lshl_b32 s61, s7, 4\ns_add_u32 s60, s60, s61\ns_add_u32 s60, s60, {STAMP}")
        for i in range(12):
            self.e(f"v_mov_b32 v250, s{76+2*i}\nbuffer_store_dword v250, v251, s[40:43], s60 offen offset:{4*i}")

    def dbgtime(self, word, wg):
        if not self.opt("dbgt", 0):
            return
        l = self.newlabel("dt")
        self.e(f"""s_cmp_lg_u32 s2, {wg}
s_cbranch_scc1 {l}
s_memrealtime s[10:11]
s_load_dword s12, s[36:37], 4 glc
s_waitcnt lgkmcnt(0)
s_sub_u32 s10, s10, s12
v_mov_b32 v250, s10
v_mov_b32 v251, {4*word}
global_store_dword v251, v250, s[36:37]""")
        self.label(l)

    def wave_sum(self, v, sd):
        ins = "v_add_f32_dpp"
        for sh in (1, 2, 4, 8):
            self.e(f"s_nop 1\n{ins} v{v}, v{v}, v{v} row_shr:{sh} row_mask:0xf bank_mask:0xf bound_ctrl:0")
        self.e(f"s_nop 1\n{ins} v{v}, v{v}, v{v} row_bcast:15 row_mask:0xa bank_mask:0xf")
        self.e(f"s_nop 1\n{ins} v{v}, v{v}, v{v} row_bcast:31 row_mask:0xc bank_mask:0xf")
        self.e(f"s_nop 0\nv_readlane_b32 s{sd}, v{v}, 63")

    def wait_nonce(self, vt):
        d = self.newlabel("nnd")
        for k in range(4):
            self.e(f"""s_load_dwordx2 s[28:29], s[36:37], {64*k}
s_waitcnt lgkmcnt(0)
s_mov_b32 s65, s28
s_cmp_lg_u32 s65, 0
s_cbranch_scc1 {d}
s_sleep 4""")
        l = self.newlabel("nn")
        self.e("s_mov_b32 s60, 0")
        self.label(l)
        self.e(f"""buffer_load_dword v{vt}, v11, s[56:59], 0 offen sc1
s_add_u32 s60, s60, 1
s_waitcnt vmcnt(0)
v_readfirstlane_b32 s65, v{vt}
s_cmp_ge_u32 s60, {SPIN_LIMIT}
s_cbranch_scc1 {d}
s_cmp_eq_u32 s65, 0
s_cbranch_scc1 {l}""")
        self.label(d)

    def set_tags(self):
        self.e("""s_mov_b32 s64, 0xffffff00
s_and_b32 s61, s65, 0xff
v_mov_b32 v12, s61
s_bfe_u32 s61, s65, 0x80008
v_mov_b32 v13, s61
s_bfe_u32 s61, s65, 0x80010
v_mov_b32 v14, s61
s_lshr_b32 s61, s65, 24
v_mov_b32 v15, s61
s_and_b32 s67, s65, 0xbfffbfff""")

    def tag4(self, v):
        for r in range(4):
            self.e(f"v_and_or_b32 v{v+r}, v{v+r}, s64, v{12+r}")

    def sig_prep(self, k, sd, sid="s4"):
        self.e(f"s_lshl_b32 s{sd}, {sid}, 7\ns_add_u32 s{sd}, s{sd}, {SIG + k * 16384}")

    def sig_send(self, sd, vtag, vzero):
        self.e(f"""s_memrealtime s[0:1]
s_waitcnt lgkmcnt(0)
v_mov_b32 v{vtag+1}, s0
buffer_store_dwordx2 v[{vtag}:{vtag+1}], v{vzero}, s[40:43], s{sd} offen sc1""")

    def until(self, delta):
        l = self.newlabel("un")
        self.label(l)
        self.e(f"""s_memrealtime s[0:1]
s_waitcnt lgkmcnt(0)
s_sub_u32 s0, s0, s29
s_cmp_lt_u32 s0, {delta}
s_cbranch_scc1 {l}""")

    def sig_wait(self, sd, vt, vzero, delta=0, restore=None):
        l = self.newlabel("sg")
        d = self.newlabel("sgd")
        self.e("s_mov_b32 s60, 0")
        self.label(l)
        self.e(f"""s_load_dwordx2 s[28:29], s[38:39], s{sd} glc
s_add_u32 s60, s60, 1""")
        if restore:
            nr = self.newlabel("snr")
            self.e(f"s_cmp_lg_u32 s60, {RESTORE_IT}\ns_cbranch_scc1 {nr}")
            restore()
            self.label(nr)
        self.e(f"""s_cmp_ge_u32 s60, {SPIN_LIMIT}
s_cbranch_scc1 {d}
s_waitcnt lgkmcnt(0)
s_cmp_lg_u32 s28, s65
s_cbranch_scc1 {l}""")
        if delta:
            self.until(delta)
        self.label(d)
        self.e("s_waitcnt lgkmcnt(0)")

    def check(self, regs, kind, vacc, first=True):
        e = self.e
        if kind == 'tag':
            for i, r in enumerate(regs):
                t = 12 + (i % 4)
                if first and i == 0:
                    e(f"v_xor_b32 v{vacc}, v{r}, v{t}")
                else:
                    e(f"v_bitop3_b32 v{vacc}, v{vacc}, v{r}, v{t} bitop3:0xf6")
        else:
            i = 0
            while i < len(regs):
                if first and i == 0:
                    if len(regs) >= 3:
                        e(f"v_max3_u32 v{vacc}, v{regs[0]}, v{regs[1]}, v{regs[2]}"); i = 3
                    elif len(regs) == 2:
                        e(f"v_max_u32 v{vacc}, v{regs[0]}, v{regs[1]}"); i = 2
                    else:
                        e(f"v_mov_b32 v{vacc}, v{regs[0]}"); i = 1
                elif len(regs) - i >= 2:
                    e(f"v_max3_u32 v{vacc}, v{vacc}, v{regs[i]}, v{regs[i+1]}"); i += 2
                else:
                    e(f"v_max_u32 v{vacc}, v{vacc}, v{regs[i]}"); i += 1

    def verdict(self, kind, vacc):
        if kind == 'tag':
            self.e(f"v_and_b32 v{vacc}, 0xff, v{vacc}\nv_cmp_ne_u32 vcc, 0, v{vacc}\ns_cmp_lg_u64 vcc, 0")
        else:
            self.e(f"v_cmp_eq_u32 vcc, -1, v{vacc}\ns_cmp_lg_u64 vcc, 0")

    def poll(self, loads, kind, vacc, restore=None):
        e = self.e
        l = self.newlabel("pl")
        d = self.newlabel("pld")
        e("s_mov_b32 s60, 0")
        self.label(l)
        for ins in loads:
            e(ins[0])
        e("s_add_u32 s60, s60, 1")
        if restore:
            nr = self.newlabel("pnr")
            e(f"s_cmp_lg_u32 s60, {self.opt('rit', RESTORE_IT)}\ns_cbranch_scc1 {nr}")
            restore()
            self.label(nr)
        e(f"s_cmp_ge_u32 s60, {SPIN_LIMIT}\ns_cbranch_scc1 {d}\ns_waitcnt vmcnt(0)")
        for k, ins in enumerate(loads):
            self.check(list(range(ins[1], ins[1] + ins[2])), kind, vacc, first=(k == 0))
        self.verdict(kind, vacc)
        e(f"s_cbranch_scc1 {l}")
        self.label(d)
        e("s_waitcnt vmcnt(0)")

    def chk_ops(self, regs, vacc):
        ops = []
        for i, r in enumerate(regs):
            t = 12 + (i % 4)
            ops.append(f"v_xor_b32 v{vacc}, v{r}, v{t}" if i == 0 else f"v_bitop3_b32 v{vacc}, v{vacc}, v{r}, v{t} bitop3:0xf6")
        return ops

    def fill(self, text, ops):
        for line in text.strip("\n").split("\n"):
            line = line.strip()
            if line.startswith("s_nop "):
                n = int(line.split()[1]) + 1
                k = 0
                while k < n and ops:
                    self.e(ops.pop(0)); k += 1
                if k < n:
                    self.e(f"s_nop {n-k-1}")
            elif line.startswith("SLOT"):
                n = int(line.split()[1])
                for _ in range(n):
                    if ops:
                        self.e(ops.pop(0))
            else:
                self.e(line)

    def masks(self, m0, vi, vt, lo_rows):
        self.e(f"""v_and_b32 v{vt}, 1, v{vi}
v_cmp_eq_u32 vcc, 1, v{vt}
v_mov_b32 v{vt}, 0x0000ffff
v_mov_b32 v{vt+1}, 0xffff0000
v_cndmask_b32 v{vt}, v{vt}, v{vt+1}, vcc""")
        if lo_rows:
            self.e(f"v_bfe_u32 v{vt+1}, v{vi}, 1, 2")
        else:
            self.e(f"v_lshrrev_b32 v{vt+1}, 1, v{vi}")
        for r in range(4):
            self.e(f"""v_cmp_eq_u32 vcc, {r}, v{vt+1}
s_nop 1
v_cndmask_b32 v{m0+r}, 0, v{vt}, vcc""")

    def layernorm(self, vx, vt, sA, sB):
        e = self.e
        inv = 0x3acccccd
        e(f"s_nop 0\nv_readfirstlane_b32 s{sA}, v{vx}\ns_nop 1\nv_mov_b32 v{vt+4}, s{sA}")
        for k in range(0, 10, 2):
            e(f"v_pk_add_f32 v[250:251], v[{vx+k}:{vx+k+1}], v[{vt+4}:{vt+5}] op_sel_hi:[1,0] neg_lo:[0,1] neg_hi:[0,1]")
            if k == 0:
                e(f"v_pk_mul_f32 v[{vt+2}:{vt+3}], v[250:251], v[250:251]\nv_mov_b32 v{vt}, v250\nv_mov_b32 v{vt+1}, v251")
            else:
                e(f"v_pk_fma_f32 v[{vt+2}:{vt+3}], v[250:251], v[250:251], v[{vt+2}:{vt+3}]\nv_pk_add_f32 v[{vt}:{vt+1}], v[{vt}:{vt+1}], v[250:251]")
        e(f"v_add_f32 v{vt+2}, v{vt+2}, v{vt+3}\nv_add_f32 v{vt}, v{vt}, v{vt+1}\nv_mov_b32 v{vt+5}, {inv:#x}")
        steps = [f"row_shr:{sh} row_mask:0xf bank_mask:0xf bound_ctrl:0" for sh in (1, 2, 4, 8)] + ["row_bcast:15 row_mask:0xa bank_mask:0xf", "row_bcast:31 row_mask:0xc bank_mask:0xf"]
        for st in steps:
            e(f"v_add_f32_dpp v{vt+2}, v{vt+2}, v{vt+2} {st}\nv_add_f32_dpp v{vt}, v{vt}, v{vt} {st}\ns_nop 0")
        e(f"""v_readlane_b32 s{sB}, v{vt+2}, 63
v_readlane_b32 s{sA}, v{vt}, 63
s_nop 0
v_mul_f32 v{vt+2}, s{sB}, v{vt+5}
v_mul_f32 v{vt}, s{sA}, v{vt+5}
v_fma_f32 v{vt+2}, -v{vt}, v{vt}, v{vt+2}
v_add_f32 v{vt+4}, v{vt+4}, v{vt}
v_max_f32 v{vt+2}, 0, v{vt+2}
v_cvt_pk_bf16_f32 v{vt+3}, v{vt+4}, v{vt+2}
v_lshlrev_b32 v{vt+4}, 16, v{vt+3}
v_and_b32 v{vt+2}, 0xffff0000, v{vt+3}
v_add_f32 v{vt+2}, 0x3727c5ac, v{vt+2}
v_cvt_pk_bf16_f32 v{vt+2}, v{vt+2}, v{vt+2}
v_and_b32 v{vt+2}, 0xffff0000, v{vt+2}
v_sqrt_f32 v{vt+2}, v{vt+2}""")
        for k in range(0, 10, 2):
            e(f"v_pk_add_f32 v[{vx+k}:{vx+k+1}], v[{vx+k}:{vx+k+1}], v[{vt+4}:{vt+5}] op_sel_hi:[1,0] neg_lo:[0,1] neg_hi:[0,1]")
        e(f"""v_cvt_pk_bf16_f32 v{vt+2}, v{vt+2}, v{vt+2}
v_and_b32 v{vt+2}, 0xffff0000, v{vt+2}
v_rcp_f32 v{vt+2}, v{vt+2}""")
        for k in range(0, 10, 2):
            a, b = vx + k, vx + k + 1
            e(f"""v_cvt_pk_bf16_f32 v{vt}, v{a}, v{b}
v_lshlrev_b32 v{a}, 16, v{vt}
v_and_b32 v{b}, 0xffff0000, v{vt}
v_pk_mul_f32 v[{a}:{b}], v[{a}:{b}], v[{vt+2}:{vt+3}] op_sel_hi:[1,0]""")

    def tree_sum(self, v0, n, width=4, stride=None):
        stride = stride or width
        step = 1
        while step < n:
            for k in range(0, n - step, 2 * step):
                for r in range(0, width, 2):
                    a = v0 + stride * k + r
                    b = v0 + stride * (k + step) + r
                    self.e(f"v_pk_add_f32 v[{a}:{a+1}], v[{a}:{a+1}], v[{b}:{b+1}]")
            step *= 2

    def build(self):
        nt = self.opt("nt", "none")
        nt = "" if nt == "none" else nt
        e = self.e
        self.o.append(f"; @launch grid=(256,1,1) block=(512,1,1) lds={LDS_BYTES}")
        self.o.append(HEADER)
        self.o.append('.amdgcn_target "amdgcn-amd-amdhsa--gfx950"')
        self.o.append(".text")
        self.o.append(f".globl {KN}")
        self.o.append(".p2align 8")
        self.o.append(f".type {KN},@function")
        self.label(KN)
        e("""s_load_dwordx16 s[16:31], s[0:1], 0
s_load_dwordx8 s[32:39], s[0:1], 64
s_memrealtime s[62:63]
s_cmp_ge_u32 s2, 256
s_cbranch_scc1 L_end
s_cmp_ge_u32 s2, 16
s_cbranch_scc1 L_nocp
s_getpc_b64 s[60:61]
v_lshlrev_b32 v6, 6, v0
v_min_u32 v6, (L_codeend-L_nocp-64), v6
global_load_dword v255, v6, s[60:61]
L_nocp:
s_and_b32 s8, s2, 7
s_lshr_b32 s9, s2, 3
s_and_b32 s4, s2, 127
v_lshrrev_b32 v1, 6, v0
v_and_b32 v2, 15, v0
v_readfirstlane_b32 s7, v1
v_and_b32 v1, 63, v0
v_bfe_u32 v3, v0, 4, 2
v_lshlrev_b32 v4, 2, v1
v_lshlrev_b32 v5, 4, v1
s_and_b32 s10, s9, 3
s_lshl_b32 s5, s8, 2
s_add_u32 s5, s5, s10
s_lshr_b32 s6, s9, 2
v_mov_b32 v11, 0""")
        if self.stamps:
            for i in range(76, 100):
                e(f"s_mov_b32 s{i}, 0")
        self.stamp(0)
        e("""s_or_b32 s10, s2, s7
s_cmp_lg_u32 s10, 0
s_cbranch_scc1 L_nomaster
s_waitcnt lgkmcnt(0)
s_mov_b32 s63, s62
s_mul_i32 s62, s62, 0x9e3779b1
s_or_b32 s62, s62, 1
v_mov_b32 v16, s62
v_mov_b32 v17, s63
v_lshlrev_b32 v18, 6, v1
s_mov_b64 exec, 15
global_store_dwordx2 v18, v[16:17], s[36:37] sc1
s_mov_b64 exec, -1
L_nomaster:
s_cmp_ge_u32 s7, 4
s_cbranch_scc1 L_hi""")
        self.commonA(nt)
        self.roleW(nt)
        self.roleKV(nt)
        self.label("L_fin")
        self.stamp_dump()
        self.label("L_end")
        e("s_endpgm")
        self.label("L_codeend")
        self.o.append(f""".section .rodata,"a"
.p2align 6
.amdhsa_kernel {KN}
  .amdhsa_next_free_vgpr 256
  .amdhsa_next_free_sgpr 100
  .amdhsa_accum_offset 256
  .amdhsa_group_segment_fixed_size 0
  .amdhsa_kernarg_size 96
  .amdhsa_user_sgpr_count 2
  .amdhsa_user_sgpr_kernarg_segment_ptr 1
  .amdhsa_system_sgpr_workgroup_id_x 1
.end_amdhsa_kernel""")
        return "\n".join(self.o) + "\n"

    def commonA(self, nt):
        e = self.e
        AB = 133248
        XT, QRED = AB, AB + 10240
        e("""s_mul_i32 s10, s6, 80
s_mul_i32 s11, s7, 20
s_add_u32 s10, s10, s11
s_lshl_b32 s11, s10, 13
s_lshl_b32 s12, s5, 8
s_add_u32 s11, s11, s12
v_lshlrev_b32 v6, 13, v3
v_lshl_add_u32 v6, v2, 4, v6
v_add_u32 v6, s11, v6
s_waitcnt lgkmcnt(0)""")
        for k in range(5):
            e(f"global_load_dword v{76+k}, v4, s[16:17] offset:{256*k}")
        for t in range(5):
            e(f"global_load_dwordx4 v[{16+4*t}:{19+4*t}], v6, s[20:21] {nt}")
            if t < 4:
                e("v_add_u32 v6, 0x8000, v6")
        self.stamp(11)
        self.srd(40, 38, WS_RECORDS)
        self.srd(56, 36, 256)
        self.masks(68, 2, 92, False)
        e(f"""s_mul_i32 s14, s7, 2560
s_add_u32 s14, s14, {XT}
v_lshlrev_b32 v8, 3, v1
v_add_u32 v8, s14, v8
s_lshl_b32 s15, s10, 2
s_add_u32 s15, s15, s14
v_lshl_add_u32 v9, v3, 2, s15
v_lshlrev_b32 v10, 5, v2
v_lshl_add_u32 v10, v3, 4, v10
s_lshl_b32 s14, s7, 9
s_add_u32 s14, s14, {QRED}
v_add_u32 v10, s14, v10
v_mov_b32 v227, {NB}
v_add_u32 v7, {QRED}, v5
s_lshl_b32 s68, s5, 12
s_add_u32 s68, s68, {Q1}
s_lshl_b32 s69, s6, 9
s_add_u32 s69, s69, s68
s_waitcnt vmcnt(5)""")
        for k in range(5):
            e(f"v_lshlrev_b32 v{82+2*k}, 16, v{76+k}\nv_and_b32 v{83+2*k}, 0xffff0000, v{76+k}")
        self.layernorm(82, 92, 62, 63)
        for k in range(5):
            e(f"""v_cvt_pk_bf16_f32 v{92+2*(k%2)}, v{82+2*k}, v{82+2*k}
v_cvt_pk_bf16_f32 v{93+2*(k%2)}, v{83+2*k}, v{83+2*k}
ds_write_b64 v8, v[{92+2*(k%2)}:{93+2*(k%2)}] offset:{512*k}""")
        e("s_waitcnt lgkmcnt(0)")
        for t in range(5):
            e(f"ds_read_b32 v{82+t}, v9 offset:{16*t}")
        e("s_waitcnt lgkmcnt(0)")
        for t in range(5):
            for r in range(4):
                e(f"v_and_b32 v{96+4*t+r}, v{82+t}, v{68+r}")
        ln = self.newlabel("a_nn")
        e(f"s_cmp_lg_u32 s7, 0\ns_cbranch_scc1 {ln}")
        self.wait_nonce(90)
        e(f"v_mov_b32 v90, s65\nv_mov_b32 v91, s29\nds_write_b64 v227, v[90:91] offset:{NON}")
        self.label(ln)
        for t in range(5):
            c = "0" if t == 0 else "v[116:119]"
            e(f"s_waitcnt vmcnt({4-t})")
            e(f"v_mfma_f32_16x16x32_bf16 v[116:119], v[{96+4*t}:{99+4*t}], v[{16+4*t}:{19+4*t}], {c}")
        self.stamp(1)
        e("s_nop 2")
        e(f"""s_nop 4
s_mov_b32 exec_hi, 0
ds_write_b128 v10, v[116:119]
s_mov_b64 exec, -1
s_waitcnt lgkmcnt(0)
s_barrier""")
        self.stamp(2)
        e("s_cmp_lg_u32 s7, 0\ns_cbranch_scc1 L_lo123")
        for wv in range(4):
            e(f"ds_read_b128 v[{120+4*wv}:{123+4*wv}], v7 offset:{512*wv}")
        self.set_tags()
        e("s_waitcnt lgkmcnt(0)")
        self.tree_sum(120, 4)
        self.tag4(120)
        e("""s_mov_b32 exec_hi, 0
buffer_store_dwordx4 v[120:123], v5, s[40:43], s69 offen
s_mov_b64 exec, -1
s_mov_b32 s73, s69
s_cmp_ge_u32 s9, 16
s_cbranch_scc1 L_kv_w0""")

    def get_nonce_lds(self, vt):
        self.e(f"""ds_read_b32 v{vt}, v227 offset:{NON}
s_waitcnt lgkmcnt(0)
v_readfirstlane_b32 s65, v{vt}""")
        self.set_tags()

    def roleW(self, nt):
        e = self.e
        QBF, QAL, CLX, RED, RED2 = 24576, 24832, 25600, 26624, 28672
        e("""v_and_b32 v8, 31, v1
v_lshlrev_b32 v8, 3, v8
v_lshrrev_b32 v9, 5, v1
v_lshl_add_u32 v8, v9, 2, v8""")

        def restore_q1():
            e("""s_mov_b32 exec_hi, 0
buffer_store_dwordx4 v[120:123], v5, s[40:43], s73 offen sc1
s_mov_b64 exec, -1""")
        self.restore_q1 = restore_q1
        if self.opt("sl_h1", 0):
            e(f"s_sleep {self.opt('sl_h1', 0)}")
        self.poll([(f"buffer_load_dwordx4 v[{124+4*k}:{127+4*k}], v5, s[40:43], s68 offen offset:{1024*k} sc1", 124 + 4 * k, 4) for k in range(4)], 'tag', 90, restore=restore_q1)
        self.stamp(3)
        self.tree_sum(124, 4)
        e(f"""s_nop 0
v_permlane32_swap_b32 v124, v126
v_permlane32_swap_b32 v125, v127
s_nop 0
v_pk_add_f32 v[124:125], v[124:125], v[126:127]
v_cvt_pk_bf16_f32 v124, v124, v125
ds_write_b32 v8, v124 offset:{QBF}
ds_write_b32 v11, v11 offset:{QAL + 268}
ds_write_b32 v11, v11 offset:{QAL + 284}
s_waitcnt lgkmcnt(0)
s_barrier""")
        e(f"""v_lshrrev_b32 v8, 1, v1
v_and_b32 v9, 1, v1
v_cmp_gt_u32 vcc, 8, v8
v_lshlrev_b32 v128, 4, v8
v_mul_u32_u24 v129, 48, v8
v_add_u32 v129, {-384+12 & 0xffffffff:#x}, v129
v_cndmask_b32 v128, v129, v128, vcc
v_lshl_add_u32 v128, v9, 7, v128
v_mov_b32 v129, 16
v_cndmask_b32 v130, v129, 4, vcc
v_add_u32 v129, v128, v130
v_add_u32 v130, v129, v130
v_mov_b32 v8, v5
s_lshl_b32 s10, s6, 5
s_add_u32 s10, s10, s5
s_mul_i32 s10, s10, 352
s_add_u32 s10, s10, {QA}
v_mov_b32 v127, s67
v_mov_b32 v90, s65""")
        self.sig_prep(0, 70)
        if self.opt("sig0_early", 1):
            self.sig_send(70, 90, 11)
        e(f"""s_mov_b32 exec_lo, 0x3fffff
s_mov_b32 exec_hi, 0
s_barrier
ds_read_b32 v124, v128 offset:{QAL}
ds_read_b32 v125, v129 offset:{QAL}
ds_read_b32 v126, v130 offset:{QAL}
s_waitcnt lgkmcnt(0)
buffer_store_dwordx4 v[124:127], v8, s[40:43], s10 offen sc1
s_mov_b64 exec, -1""")
        if not self.opt("sig0_early", 1):
            self.sig_send(70, 90, 11)
        self.stamp(4)
        self.dbgtime(4, 0)
        self.dbgtime(5, 77)
        e("s_branch L_w_join")
        self.label("L_lo123")
        e("s_cmp_ge_u32 s9, 16\ns_cbranch_scc1 L_kv_lo")
        self.get_nonce_lds(90)
        e("s_barrier\ns_barrier\ns_branch L_w_join")
        self.label("L_hi")
        e(f"""s_lshr_b32 s13, s6, 1
s_lshl_b32 s13, s13, 6
s_and_b32 s14, s6, 1
s_lshl_b32 s14, s14, 8
s_add_u32 s13, s13, s14
s_bfe_u32 s14, s7, 0x10001
s_lshl_b32 s14, s14, 7
s_add_u32 s13, s13, s14
s_and_b32 s14, s7, 1
s_lshl_b32 s14, s14, 5
s_add_u32 s13, s13, s14
s_lshl_b32 s13, s13, 13
s_lshl_b32 s12, s5, 8
s_add_u32 s13, s13, s12
v_xor_b32 v7, v2, v3
v_lshlrev_b32 v7, 4, v7
v_lshl_add_u32 v7, v3, 13, v7
v_mov_b32 v227, {NB}
s_waitcnt lgkmcnt(0)""")
        self.srd(56, 36, 256)
        self.srd(40, 38, WS_RECORDS)
        e("s_cmp_ge_u32 s9, 16\ns_cbranch_scc1 L_kv_hi")
        lpw = self.newlabel("w_pw")
        e(f"""s_cmp_lg_u32 s7, 4
s_cbranch_scc1 {lpw}
s_lshl_b32 s68, s5, 12
s_add_u32 s68, s68, {Q1}
v_lshlrev_b32 v8, 6, v1
buffer_load_dword v91, v8, s[40:43], s68 offen sc1""")
        self.label(lpw)
        ntk = self.opt("nt_wuk", nt)
        if ntk == "none":
            ntk = ""
        if self.opt("sl_wuk", 1):
            e(f"s_sleep {self.opt('sl_wuk', 1)}")
        WKL = 32768
        self.srd(52, 22, 4194304)
        e(f"""s_sub_u32 s14, s7, 4
s_lshl_b32 s14, s14, 13
s_add_u32 s14, s14, {WKL}
v_lshlrev_b32 v6, 8, v2
v_add_u32 v6, s14, v6""")
        for k in range(8):
            e(f"""s_mov_b32 m0, s14
v_xor_b32 v8, {64*(k&3)}, v7
buffer_load_dwordx4 v8, s[52:55], s13 offen {ntk} lds
s_add_u32 s14, s14, 1024
s_add_u32 s13, s13, 32768""")
        self.stamp(2)
        for t in range(4):
            e(f"""v_or_b32 v8, {4*t}, v3
v_xor_b32 v8, v8, v2
v_lshl_add_u32 v{100+t}, v8, 4, v6""")
        e(f"""v_lshlrev_b32 v9, 4, v3
s_sub_u32 s14, s7, 4
s_lshl_b32 s14, s14, 6
v_lshl_add_u32 v8, v3, 3, s14
s_barrier""")
        self.get_nonce_lds(90)
        e("s_waitcnt vmcnt(0)")
        self.stamp(1)
        for t in range(4):
            e(f"ds_read_b128 v[{36+4*t}:{39+4*t}], v{100+t}\nds_read_b128 v[{52+4*t}:{55+4*t}], v{100+t} offset:4096")
        e("s_waitcnt lgkmcnt(0)\ns_barrier")
        for t in range(4):
            e(f"ds_read_b128 v[{120+4*t}:{123+4*t}], v9 offset:{QBF + 64*t}")
        for t in range(4):
            c0 = "0" if t == 0 else "v[116:119]"
            c1 = "0" if t == 0 else "v[136:139]"
            e(f"s_waitcnt lgkmcnt({3-t})")
            e(f"v_mfma_f32_16x16x32_bf16 v[116:119], v[{36+4*t}:{39+4*t}], v[{120+4*t}:{123+4*t}], {c0}")
            e(f"v_mfma_f32_16x16x32_bf16 v[136:139], v[{52+4*t}:{55+4*t}], v[{120+4*t}:{123+4*t}], {c1}")
        e(f"""s_nop 6
v_cvt_pk_bf16_f32 v140, v116, v117
v_cvt_pk_bf16_f32 v141, v118, v119
v_cvt_pk_bf16_f32 v142, v136, v137
v_cvt_pk_bf16_f32 v143, v138, v139
ds_write_b64 v8, v[140:141] offset:{QAL}
ds_write_b64 v8, v[142:143] offset:{QAL + 32}
s_waitcnt lgkmcnt(0)
s_barrier""")
        self.label("L_w_join")
        self.masks(72, 2, 92, True)
        if self.opt("sl_de", 0):
            e(f"s_sleep {self.opt('sl_de', 0)}")
        nto = self.opt("nt_wo", nt)
        e("""s_lshr_b32 s10, s6, 1
s_and_b32 s11, s6, 1
v_lshrrev_b32 v6, 3, v2
v_lshl_add_u32 v6, v6, 2, v3
v_lshlrev_b32 v7, 4, v6
v_lshlrev_b32 v6, 13, v6
v_and_b32 v8, 7, v2
v_lshl_add_u32 v6, v8, 4, v6
s_lshl_b32 s12, s10, 8
s_lshl_b32 s13, s7, 5
s_add_u32 s12, s12, s13
s_lshl_b32 s12, s12, 13
s_lshl_b32 s13, s5, 8
s_add_u32 s12, s12, s13
s_lshl_b32 s13, s11, 7
s_add_u32 s12, s12, s13
v_add_u32 v6, s12, v6""")
        for t in range(4):
            e(f"global_load_dwordx4 v[{16+4*t}:{19+4*t}], v6, s[24:25] {nt}")
            if t < 3:
                e("v_add_u32 v6, 0x10000, v6")
        lwo = self.newlabel("w_nowo")
        e(f"""s_cmp_ge_u32 s7, 4
s_cbranch_scc1 {lwo}
v_mul_u32_u24 v6, 5120, v3
v_lshl_add_u32 v6, v2, 4, v6
s_lshl_b32 s12, s5, 7
s_lshl_b32 s13, s11, 6
s_add_u32 s12, s12, s13
s_lshl_b32 s13, s7, 4
s_add_u32 s12, s12, s13
s_mul_i32 s12, s12, 1280
v_add_u32 v6, s12, v6""")
        for t in range(4):
            for b in range(5):
                r = 160 + (t * 5 + b) * 4
                e(f"global_load_dwordx4 v[{r}:{r+3}], v6, s[26:27] offset:{1280*(t%2) + 256*b} {nto}")
            if t == 1:
                e("v_add_u32 v6, 2560, v6")
        lfp = self.newlabel("w_fgp")
        e(f"s_branch {lfp}")
        self.label(lwo)
        if self.opt("pf_fg", 0):
            pol = self.opt("pf_pol", "none").replace("none", "")
            e(f"""s_lshr_b32 s12, s9, 2
s_lshl_b32 s12, s12, 3
s_add_u32 s12, s12, s8
s_cmp_ge_u32 s12, 27
s_cbranch_scc1 {lfp}
s_and_b32 s13, s9, 3
s_sub_u32 s14, s7, 4
s_mul_i32 s14, s14, 40
v_add_u32 v6, s14, v1
s_lshl_b32 s15, s12, 2
s_add_u32 s15, s15, s13
s_mul_i32 s15, s15, 20480
v_lshlrev_b32 v8, 7, v6
v_add_u32 v8, s15, v8
s_mul_i32 s13, s13, 160
v_add_u32 v6, s13, v6
v_mul_u32_u24 v6, 3456, v6
s_lshl_b32 s12, s12, 7
v_add_u32 v6, s12, v6
s_mov_b32 exec_hi, 0xff
global_load_dword v160, v8, s[32:33] {pol}
global_load_dword v161, v6, s[30:31] {pol}
s_mov_b64 exec, -1""")
        self.label(lfp)
        e(f"""v_and_b32 v8, 1, v3
v_lshlrev_b32 v8, 1, v8
v_lshrrev_b32 v9, 1, v3
v_or_b32 v8, v8, v9
v_and_b32 v9, 1, v1
v_lshl_add_u32 v8, v9, 2, v8
v_bfe_u32 v9, v1, 1, 2
v_lshl_add_u32 v8, v8, 2, v9
v_lshlrev_b32 v8, 2, v8
s_lshl_b32 s12, s7, 7
v_add_u32 v8, s12, v8
v_add_u32 v7, s12, v7
v_lshrrev_b32 v9, 3, v1
v_lshlrev_b32 v10, 4, v9
v_lshlrev_b32 v9, 9, v9
v_and_b32 v6, 7, v1
v_lshl_add_u32 v9, v6, 4, v9
s_lshl_b32 s12, s5, 2
s_lshl_b32 s13, s10, 1
s_add_u32 s12, s12, s13
s_lshr_b32 s13, s7, 2
s_add_u32 s12, s12, s13
s_lshl_b32 s12, s12, 14
s_and_b32 s13, s7, 3
s_lshl_b32 s13, s13, 7
s_add_u32 s12, s12, s13
s_add_u32 s12, s12, {OB}
s_add_u32 s13, s12, 4096
s_add_u32 s14, s12, 8192
s_add_u32 s15, s12, 12288
s_lshl_b32 s68, s5, 9
s_add_u32 s68, s68, {OS}
v_and_b32 v36, 7, v2
v_lshlrev_b32 v36, 5, v36
v_lshl_add_u32 v36, v3, 4, v36
s_lshl_b32 s61, s7, 8
v_add_u32 v36, s61, v36
s_lshl_b32 s61, s7, 6
v_lshl_add_u32 v37, v3, 4, s61
v_lshlrev_b32 v38, 5, v2
v_lshl_add_u32 v38, v3, 4, v38
s_mul_i32 s61, s7, 2560
v_add_u32 v38, s61, v38
v_subrev_u32 v39, 256, v0
v_lshrrev_b32 v40, 3, v39
v_lshlrev_b32 v40, 11, v40
v_and_b32 v41, 7, v39
v_lshl_add_u32 v40, v41, 4, v40
v_lshlrev_b32 v41, 4, v39
s_mul_i32 s69, s8, {20*2048}
s_lshl_b32 s61, s9, 7
s_add_u32 s69, s69, s61
s_add_u32 s69, s69, {EL}
s_and_b32 s61, s4, 0x67
v_mov_b32 v42, s65
s_mov_b32 s62, {LOG2E:#x}""")
        self.sig_prep(1, 70, "s61")
        self.sig_prep(2, 71)
        self.sig_prep(3, 72)
        e("s_waitcnt vmcnt(0)")
        self.stamp(5)
        lrq = self.newlabel("w_rq")
        lpe = self.newlabel("w_pe")
        e(f"""s_cmp_lg_u32 s7, 0
s_cbranch_scc1 {lrq}
s_mov_b32 exec_hi, 0
buffer_store_dwordx4 v[120:123], v5, s[40:43], s73 offen sc1
s_mov_b64 exec, -1""")
        self.label(lrq)
        e(f"""s_sub_u32 s61, s7, 4
s_lshl_b32 s61, s61, 4
s_add_u32 s61, s61, s9
s_cmp_ge_u32 s61, 20
s_cbranch_scc1 {lpe}
s_mul_i32 s63, s8, 20
s_add_u32 s63, s63, s61
s_lshl_b32 s63, s63, 11
s_add_u32 s63, s63, {EL}
v_lshlrev_b32 v44, 5, v1
buffer_load_dword v45, v44, s[40:43], s63 offen sc1""")
        self.label(lpe)
        self.sig_wait(71, 44, 11, self.opt("t_h3", 135))
        self.stamp(6)
        loads = [(f"buffer_load_dwordx4 v[{48+4*k}:{51+4*k}], v10, s[40:43], s68 offen offset:{128*k} sc1", 48 + 4 * k, 4) for k in range(4)]
        loads += [(f"buffer_load_dwordx4 v[{120+4*k}:{123+4*k}], v9, s[40:43], s{12+k} offen sc1", 120 + 4 * k, 4) for k in range(4)]
        lh3 = self.newlabel("w_h3")
        e("s_mov_b32 s60, 0")
        self.label(lh3)
        for ins in loads:
            e(ins[0])
        e("s_add_u32 s60, s60, 1\ns_waitcnt vmcnt(4)")
        ops = self.chk_ops(list(range(48, 64)) + list(range(120, 136)), 47)
        ops1, ops2 = ops[:16], ops[16:]
        t = ""
        for k in range(4):
            t += f"v_and_b32 v{140+2*k}, s64, v{48+4*k}\n"
        t += """v_max3_f32 v44, v140, v142, v144
v_max_f32 v44, v44, v146
s_nop 1
v_max_f32_dpp v44, v44, v44 row_ror:8 row_mask:0xf bank_mask:0xf
s_nop 0
v_mov_b32 v45, v44
s_nop 1
v_permlane16_swap_b32 v44, v45
s_nop 0
v_max_f32 v44, v44, v45
v_mov_b32 v45, v44
s_nop 1
v_permlane32_swap_b32 v44, v45
s_nop 0
v_max_f32 v44, v44, v45
v_mul_f32 v44, s62, v44
"""
        for k in range(4):
            t += f"v_fma_f32 v{140+2*k}, v{140+2*k}, s62, -v44\n"
        for k in range(4):
            t += f"v_exp_f32 v{140+2*k}, v{140+2*k}\n"
        t += "s_nop 0\nv_mul_f32 v46, v140, v49\n"
        for k in range(1, 4):
            t += f"v_fmac_f32 v46, v{140+2*k}, v{49+4*k}\n"
        t += """s_nop 1
v_add_f32_dpp v46, v46, v46 row_ror:8 row_mask:0xf bank_mask:0xf
s_nop 0
v_mov_b32 v45, v46
s_nop 1
v_permlane16_swap_b32 v46, v45
s_nop 0
v_add_f32 v46, v46, v45
v_mov_b32 v45, v46
SLOT 16
s_waitcnt vmcnt(0)
"""
        self.fill(t, ops1)
        self.stamp(7)
        t = ""
        for r in (0, 2):
            t += f"v_pk_mul_f32 v[{148+r}:{149+r}], v[{120+r}:{121+r}], v[140:141] op_sel_hi:[1,0]\n"
        t += "v_permlane32_swap_b32 v46, v45\n"
        for k in range(1, 4):
            for r in (0, 2):
                t += f"v_pk_fma_f32 v[{148+r}:{149+r}], v[{120+4*k+r}:{121+4*k+r}], v[{140+2*k}:{141+2*k}], v[{148+r}:{149+r}] op_sel_hi:[1,0,1]\n"
            if k == 1:
                t += "v_add_f32 v46, v46, v45\n"
            if k == 2:
                t += "v_rcp_f32 v46, v46\n"
        t += f"""s_nop 0
v_permlane32_swap_b32 v148, v149
v_permlane32_swap_b32 v150, v151
s_nop 0
v_add_f32 v148, v148, v149
v_add_f32 v150, v150, v151
s_nop 1
v_permlane16_swap_b32 v148, v150
s_nop 0
v_add_f32 v148, v148, v150
s_nop 1
v_add_f32_dpp v148, v148, v148 row_ror:8 row_mask:0xf bank_mask:0xf
s_nop 0
v_mul_f32 v148, v148, v46
v_cvt_pk_bf16_f32 v148, v148, v148
ds_write_b32 v8, v148 offset:{CLX}
SLOT 16
v_and_b32 v47, 0xff, v47
s_waitcnt lgkmcnt(0)
ds_read_b128 v[152:155], v7 offset:{CLX}
v_cmp_ne_u32 vcc, 0, v47
s_cmp_lt_u32 s60, {SPIN_LIMIT}
s_cselect_b64 vcc, vcc, 0
s_cmp_lg_u64 vcc, 0
s_waitcnt lgkmcnt(0)
s_cbranch_scc1 {lh3}
"""
        self.fill(t, ops2)
        for t in range(4):
            for r in range(4):
                e(f"v_and_b32 v{96+4*t+r}, v{152+t}, v{72+r}")
            if t > 0:
                c = "0" if t == 1 else "v[116:119]"
                e(f"v_mfma_f32_16x16x32_bf16 v[116:119], v[{96+4*(t-1)}:{99+4*(t-1)}], v[{16+4*(t-1)}:{19+4*(t-1)}], {c}")
        e("s_nop 0\nv_mfma_f32_16x16x32_bf16 v[116:119], v[108:111], v[28:31], v[116:119]\ns_nop 7")
        for r in range(4):
            e(f"v_mov_b32 v{124+r}, v{116+r}")
        for r in range(4):
            e(f"v_permlane32_swap_b32 v{116+r}, v{124+r}")
        for r in range(4):
            e(f"v_add_f32_dpp v{116+r}, v{124+r}, v{116+r} row_ror:8 row_mask:0xf bank_mask:0xf")
        e(f"""s_mov_b32 exec_lo, 0x00ff00ff
s_mov_b32 exec_hi, 0
ds_write_b128 v36, v[116:119] offset:{RED}
s_mov_b64 exec, -1
s_waitcnt lgkmcnt(0)
s_barrier""")
        lhi = self.newlabel("w_hi")
        e(f"s_cmp_ge_u32 s7, 4\ns_cbranch_scc1 {lhi}")
        for p in range(8):
            e(f"ds_read_b128 v[{120+4*p}:{123+4*p}], v37 offset:{RED + 256*p}")
        e("s_waitcnt lgkmcnt(0)")
        self.tree_sum(120, 8)
        for t in range(4):
            e(f"v_cvt_pk_bf16_f32 v{124+t}, v{120+t}, v{120+t}")
        for t in range(4):
            for r in range(4):
                e(f"v_and_b32 v{96+4*t+r}, v{124+t}, v{68+r}")
            e("s_nop 1")
            for b in range(5):
                r = 160 + (t * 5 + b) * 4
                c = "0" if t == 0 else f"v[{136+4*b}:{139+4*b}]"
                e(f"v_mfma_f32_16x16x32_bf16 v[{136+4*b}:{139+4*b}], v[{96+4*t}:{99+4*t}], v[{r}:{r+3}], {c}")
        e("s_mov_b32 exec_hi, 0\ns_nop 3")
        for b in range(5):
            if b == 4:
                e("s_nop 3")
            e(f"ds_write_b128 v38, v[{136+4*b}:{139+4*b}] offset:{RED2 + 512*b}")
        e("s_mov_b64 exec, -1\ns_waitcnt lgkmcnt(0)\ns_barrier")
        self.stamp(8)
        self.dbgtime(8, 5)
        e("""s_cmp_ge_u32 s4, 40
s_cbranch_scc1 L_fin
s_cmp_lg_u32 s7, 0
s_cbranch_scc1 L_fin""")
        self.colidx(8, 9)
        self.srd(44, 16, 1280)
        self.srd(52, 34, 1280)
        e(f"""s_lshl_b32 s12, s4, 5
v_lshlrev_b32 v9, 1, v8
buffer_load_ushort v50, v9, s[44:47], s12 offen
s_mul_i32 s12, s4, 7168
s_add_u32 s12, s12, {FB}
s_add_u32 s13, s12, 4096
v_cmp_gt_u32 vcc, 48, v1
v_add_u32 v10, 1024, v5
s_nop 0
v_cndmask_b32 v10, v5, v10, vcc
v_bfe_u32 v51, v1, 2, 3
v_mul_u32_u24 v51, 2560, v51
v_and_b32 v52, 3, v1
v_lshl_add_u32 v51, v52, 4, v51
s_lshl_b32 s14, s4, 6
s_add_u32 s14, s14, {XB}""")
        self.sig_prep(4, 70)
        self.sig_wait(72, 16, 11, self.opt("t_h5", 42) + 25)
        self.poll([("buffer_load_dwordx4 v[44:47], v51, s[40:43], s14 offen sc1", 44, 4)], 'tag', 53)
        e("v_cmp_gt_u32 vcc, 32, v1\ns_nop 1")
        for r in range(4):
            e(f"v_cndmask_b32 v{44+r}, 0, v{44+r}, vcc")
        self.reduce16(44, 1)
        e(f"""v_cvt_pk_bf16_f32 v44, v44, v44
v_and_b32 v44, 0xffff0000, v44
v_lshlrev_b32 v50, 16, v50
v_add_f32 v44, v44, v50
v_cvt_pk_bf16_f32 v44, v44, v44
v_and_b32 v44, 0xffff0000, v44
s_lshl_b32 s15, s4, 5
s_mov_b32 s62, 0x000f000f
s_mov_b32 s63, 0x000f000f
v_cmp_gt_u32 s[68:69], 48, v1""")
        self.sig_wait(70, 16, 11, self.opt("t_h6", 45))
        loads = [(f"buffer_load_dwordx4 v[{16+4*k}:{19+4*k}], v5, s[40:43], s{12 + k//4} offen offset:{1024*(k%4)} sc1", 16 + 4 * k, 4) for k in range(6)]
        loads += [("buffer_load_dwordx4 v[40:43], v10, s[40:43], s13 offen offset:1024 sc1", 40, 4)]
        self.poll(loads, 'tag', 53)
        self.stamp(9)
        for r in range(4):
            e(f"v_cndmask_b32 v{40+r}, 0, v{40+r}, s[68:69]")
        self.reduce16(16, 7)
        e(f"""s_nop 0
v_cvt_pk_bf16_f32 v16, v16, v16
v_and_b32 v16, 0xffff0000, v16
v_add_f32 v16, v16, v44
v_cvt_pk_bf16_f32 v16, v16, v16
s_mov_b64 exec, s[62:63]
buffer_store_short v16, v9, s[52:55], s15 offen
s_mov_b64 exec, -1""")
        self.stamp(10)
        if self.opt("pad", 0):
            lp = self.newlabel("pad")
            e("s_load_dword s12, s[36:37], 4 glc\ns_waitcnt lgkmcnt(0)")
            self.label(lp)
            e(f"""s_memrealtime s[10:11]
s_waitcnt lgkmcnt(0)
s_sub_u32 s10, s10, s12
s_cmp_lt_u32 s10, {self.opt("pad", 0)}
s_cbranch_scc1 {lp}""")
        self.dbgtime(2, 0)
        self.dbgtime(3, 39)
        e("s_branch L_fin")
        self.label(lhi)
        e(f"""s_sub_u32 s10, s7, 4
s_lshl_b32 s10, s10, 4
s_add_u32 s10, s10, s9
s_mul_i32 s12, s8, 20
s_add_u32 s12, s12, s10
s_lshl_b32 s12, s12, 11
s_add_u32 s12, s12, {EL}
s_mul_i32 s13, s8, 2560
s_lshl_b32 s14, s10, 7
s_add_u32 s13, s13, s14
s_add_u32 s13, s13, {XB}
v_cmp_gt_u32 vcc, 160, v39
s_and_saveexec_b64 s[62:63], vcc
s_barrier
s_cbranch_execz L_fin""")
        for wv in range(4):
            e(f"ds_read_b128 v[{120+4*wv}:{123+4*wv}], v41 offset:{RED2 + 2560*wv}")
        e("s_waitcnt lgkmcnt(0)")
        self.tree_sum(120, 4)
        self.tag4(120)
        e("buffer_store_dwordx4 v[120:123], v40, s[40:43], s69 offen")
        self.stamp(8)

        def restore_el():
            e("buffer_store_dwordx4 v[120:123], v40, s[40:43], s69 offen sc1")
        lnr = self.newlabel("w_nored")
        e(f"s_cmp_ge_u32 s10, 20\ns_cbranch_scc1 {lnr}")
        self.poll([(f"buffer_load_dwordx4 v[{124+4*k}:{127+4*k}], v5, s[40:43], s12 offen offset:{1024*k} sc1", 124 + 4 * k, 4) for k in range(2)], 'tag', 44, restore=restore_el)
        self.stamp(9)
        lns = self.newlabel("w_nosig")
        e(f"s_cmp_lg_u32 s7, 4\ns_cbranch_scc1 {lns}")
        self.sig_send(72, 42, 11)
        self.label(lns)
        self.tree_sum(124, 2)
        e("s_nop 0")
        for r in range(4):
            e(f"v_add_f32_dpp v{124+r}, v{124+r}, v{124+r} row_ror:8 row_mask:0xf bank_mask:0xf")
        for r in range(4):
            e(f"v_mov_b32 v{128+r}, v{124+r}")
        for r in range(4):
            e(f"v_permlane16_swap_b32 v{124+r}, v{128+r}")
        self.tree_sum(124, 2)
        for r in range(4):
            e(f"v_mov_b32 v{128+r}, v{124+r}")
        for r in range(4):
            e(f"v_permlane32_swap_b32 v{124+r}, v{128+r}")
        self.tree_sum(124, 2)
        self.tag4(124)
        e("""s_mov_b64 exec, 0xff
buffer_store_dwordx4 v[124:127], v5, s[40:43], s13 offen sc1
s_mov_b64 exec, -1""")
        self.stamp(10)
        self.label(lnr)
        e(f"s_sleep {self.opt('sl_el', 64)}")
        restore_el()
        e("s_branch L_fin")

    def colidx(self, vd, vt):
        self.e(f"""v_and_b32 v{vd}, 1, v3
v_lshlrev_b32 v{vd}, 1, v{vd}
v_lshrrev_b32 v{vt}, 1, v3
v_or_b32 v{vd}, v{vd}, v{vt}
v_and_b32 v{vt}, 3, v1
v_lshl_add_u32 v{vd}, v{vt}, 2, v{vd}""")

    def reduce16(self, v0, n):
        e = self.e
        self.tree_sum(v0, n)
        a = v0
        e(f"""s_nop 1
v_permlane32_swap_b32 v{a}, v{a+1}
v_permlane32_swap_b32 v{a+2}, v{a+3}
s_nop 0
v_add_f32 v{a}, v{a}, v{a+1}
v_add_f32 v{a+2}, v{a+2}, v{a+3}
s_nop 1
v_permlane16_swap_b32 v{a}, v{a+2}
s_nop 0
v_add_f32 v{a}, v{a}, v{a+2}
s_nop 1
v_add_f32_dpp v{a}, v{a}, v{a} row_ror:8 row_mask:0xf bank_mask:0xf
s_nop 1
v_add_f32_dpp v{a}, v{a}, v{a} row_ror:4 row_mask:0xf bank_mask:0xf""")

    def acc(self, k):
        return 168 + 4 * k if k < 11 else 64 + 4 * (k - 11)

    def roleKV(self, nt):
        e = self.e
        RT, BT, QL, XCH, PL, SL = 0, 67584, 4096, 49152, 4096, 64
        W1L, HN, HF = 24576, 45056, 50176

        def ids():
            e(f"""s_bfe_u32 s10, s9, 0x20002
s_lshl_b32 s5, s8, 2
s_add_u32 s5, s5, s10
s_and_b32 s6, s9, 3""")
            self.srd(44, 18, 8388608)
            e(f"""s_lshl_b32 s10, s5, 3
s_lshl_b32 s11, s6, 1
s_add_u32 s10, s10, s11
s_mul_i32 s68, s10, {2*PMSG}
s_add_u32 s68, s68, {PB}
s_lshl_b32 s69, s5, 7
s_add_u32 s69, s69, {RDY}""")

        def rows(done):
            e(f"""s_sub_u32 s15, s7, 1
s_lshl_b32 s12, s5, 8
s_lshl_b32 s13, s6, 6
s_add_u32 s12, s12, s13
s_add_u32 s12, s12, s15
s_lshl_b32 s12, s12, 10
s_mul_i32 s14, s15, 1040
s_add_u32 s14, s14, {RT}""")
            for k in range(11):
                if k == 10:
                    e(f"s_cmp_ge_u32 s15, 4\ns_cbranch_scc1 {done}")
                e(f"""s_mov_b32 m0, s14
s_add_u32 s14, s14, {6*1040}
buffer_load_dwordx4 v5, s[44:47], s12 offen {nt} lds
s_add_u32 s12, s12, {6*1024}""")
        lj = "L_kv_join"
        self.label("L_kv_w0")
        ids()
        e(f"s_branch {lj}")
        self.label("L_kv_lo")
        ids()
        if self.opt("t_rows", 0):
            self.label("L_kv_rows")
            e(f"ds_read_b32 v90, v227 offset:4\ns_waitcnt lgkmcnt(0)\nv_readfirstlane_b32 s29, v90")
            self.until(self.opt("t_rows", 0))
        rows(lj)
        e(f"s_branch {lj}")
        self.label("L_kv_hi")
        ids()
        l7 = self.newlabel("kv_w7")
        lrd = self.newlabel("kv_rowsd")
        e(f"s_cmp_eq_u32 s7, 7\ns_cbranch_scc1 {l7}")
        if self.opt("t_rows", 0):
            e("s_barrier\ns_branch L_kv_rows")
        else:
            if self.opt("sl_ckv", 14):
                e(f"s_sleep {self.opt('sl_ckv', 14)}")
            rows(lrd)
            self.label(lrd)
            e(f"s_barrier\ns_branch {lj}")
        self.label(l7)
        e("""v_mov_b32 v20, -1
v_mov_b32 v21, -1
v_mov_b32 v22, -1
v_mov_b32 v23, -1
buffer_store_dwordx4 v[20:23], v5, s[40:43], s68 offen sc1
buffer_store_dwordx4 v[20:23], v5, s[40:43], s68 offen offset:1024 sc1
buffer_store_dwordx4 v[20:23], v5, s[40:43], s68 offen offset:2048 sc1
buffer_store_dwordx4 v[20:23], v5, s[40:43], s68 offen offset:3072 sc1
buffer_store_dwordx4 v[20:23], v5, s[40:43], s68 offen offset:3584 sc1""")
        e(f"""ds_write_b32 v227, v11 offset:{FLG}
ds_write_b32 v227, v11 offset:{FLG+4}
s_waitcnt lgkmcnt(0)
s_barrier
ds_read_b32 v60, v227 offset:{NON}
s_lshl_b32 s12, s6, 4
s_add_u32 s12, s12, s69
s_waitcnt vmcnt(0) lgkmcnt(0)
s_getreg_b32 s13, hwreg(HW_REG_XCC_ID)
v_mov_b32 v61, s13
v_mov_b32 v62, v60
v_mov_b32 v63, v60
s_mov_b64 exec, 1
buffer_store_dwordx4 v[60:63], v11, s[40:43], s12 offen sc1
s_mov_b64 exec, -1
v_readfirstlane_b32 s65, v60
s_mov_b32 s60, 0""")
        lr = self.newlabel("kv_rdy")
        lrdn = self.newlabel("kv_rdyd")
        self.label(lr)
        e(f"""s_load_dwordx16 s[76:91], s[38:39], s69 glc
s_add_u32 s60, s60, 1
s_cmp_ge_u32 s60, {SPIN_LIMIT}
s_cbranch_scc1 {lrdn}
s_waitcnt lgkmcnt(0)
s_xor_b32 s76, s76, s65
s_xor_b32 s80, s80, s65
s_xor_b32 s84, s84, s65
s_xor_b32 s88, s88, s65
s_or_b32 s76, s76, s80
s_or_b32 s84, s84, s88
s_or_b32 s76, s76, s84
s_cbranch_scc1 {lr}""")
        self.label(lrdn)
        e(f"""s_waitcnt lgkmcnt(0)
s_xor_b32 s77, s77, s13
s_xor_b32 s81, s81, s13
s_xor_b32 s85, s85, s13
s_xor_b32 s89, s89, s13
s_or_b32 s77, s77, s81
s_or_b32 s85, s85, s89
s_or_b32 s77, s77, s85
v_mov_b32 v8, s77
ds_write_b32 v227, v8 offset:8
s_mul_i32 s12, s5, {16*PMSG}
s_add_u32 s12, s12, {PB}
v_mul_u32_u24 v8, 96, v1
buffer_load_dword v250, v8, s[40:43], s12 offen sc1
s_add_u32 s12, s12, 6144
buffer_load_dword v251, v8, s[40:43], s12 offen sc1
s_add_u32 s12, s12, 6144
buffer_load_dword v252, v8, s[40:43], s12 offen sc1
s_waitcnt lgkmcnt(0)""")
        self.label(lj)
        e(f"""s_lshr_b32 s10, s7, 2
s_lshl_b32 s10, s10, 7
s_bfe_u32 s11, s7, 0x10001
s_mul_i32 s11, s11, {32*1040}
s_add_u32 s10, s10, s11
s_add_u32 s10, s10, {RT}
v_mul_u32_u24 v231, 1040, v2
v_lshl_add_u32 v231, v3, 8, v231
v_add_u32 v231, s10, v231""")
        e(f"""s_lshl_b32 s48, s7, 10
s_add_u32 s49, s48, {QA}
s_add_u32 s48, s48, {QL}
s_lshr_b32 s10, s7, 2
s_mul_i32 s10, s10, {64*352}
s_and_b32 s11, s7, 1
s_mul_i32 s12, s11, {16*352}
s_add_u32 s10, s10, s12
v_mov_b32 v10, v5
v_lshrrev_b32 v6, 1, v3
v_lshl_add_u32 v6, v6, 5, v2
v_mul_u32_u24 v6, 352, v6
v_and_b32 v8, 1, v3
v_lshl_add_u32 v6, v8, 4, v6
v_add_u32 v6, s10, v6
s_and_b32 s10, s7, 3
s_lshl_b32 s10, s10, 11
v_add_u32 v9, s10, v5
s_lshl_b32 s10, s7, 11
v_add_u32 v7, s10, v5
s_and_b32 s10, s7, 3
s_mul_i32 s10, s10, {PMSG}
s_add_u32 s50, s68, s10
v_lshlrev_b32 v212, 3, v2
s_mul_i32 s51, s5, {16*PMSG}
s_mul_i32 s10, s7, {2*PMSG}
s_add_u32 s51, s51, s10
s_add_u32 s51, s51, {PB}
v_and_b32 v213, 1, v3
v_mul_u32_u24 v213, {PMSG}, v213
v_add_u32 v213, v213, v212
v_and_b32 v214, 31, v1
v_lshlrev_b32 v214, 4, v214
s_lshr_b32 s10, s7, 1
s_lshl_b32 s10, s10, 9
s_and_b32 s12, s7, 1
s_lshl_b32 s12, s12, 3
s_add_u32 s10, s10, s12
v_add_u32 v214, s10, v214
s_lshl_b32 s10, s11, 10
v_add_u32 v215, s10, v10
s_lshl_b32 s10, s11, 4
v_add_u32 v216, s10, v2
v_lshlrev_b32 v217, 4, v216
v_lshlrev_b32 v218, 16, v216
v_lshl_add_u32 v218, v3, 4, v218
s_lshl_b32 s52, s6, 5
s_add_u32 s52, s52, s5
s_lshl_b32 s52, s52, 9
s_lshr_b32 s10, s7, 1
s_lshl_b32 s10, s10, 7
s_add_u32 s52, s52, s10
s_add_u32 s52, s52, {OB}
v_lshlrev_b32 v219, 9, v216
s_lshl_b32 s53, s5, 4
s_add_u32 s53, s53, {OS}
s_mov_b32 s54, {SCALE:#x}
s_mov_b32 s55, {LOG2E:#x}
v_mov_b32 v221, 1
v_lshlrev_b32 v8, 1, v3
v_xor_b32 v8, v8, v2
v_lshlrev_b32 v222, 10, v3
v_lshl_add_u32 v222, v8, 4, v222
v_xor_b32 v226, 0x80, v222
s_lshl_b32 s74, s5, 8
s_lshl_b32 s13, s7, 5
s_add_u32 s74, s74, s13
s_lshl_b32 s74, s74, 10
s_lshl_b32 s14, s6, 8
s_add_u32 s74, s74, s14
s_lshl_b32 s75, s7, 13
s_add_u32 s75, s75, {BT}
v_lshrrev_b32 v223, 2, v2
v_lshl_add_u32 v223, v3, 2, v223
v_and_b32 v229, 7, v223
s_lshr_b32 s12, s7, 1
s_lshl_b32 s12, s12, 1
v_xor_b32 v229, s12, v229
v_lshlrev_b32 v223, 8, v223
v_lshl_add_u32 v223, v229, 5, v223
v_and_b32 v8, 3, v2
v_lshl_add_u32 v223, v8, 3, v223
v_add_u32 v223, {BT}, v223
v_xor_b32 v229, 32, v223
v_add_u32 v230, 12, v5
v_add_u32 v230, s48, v230""")
        self.sig_prep(0, 70)
        self.sig_prep(1, 71)
        self.sig_prep(2, 72)
        nt2 = self.opt("nt_block", nt)

        def blk_dma():
            for k in range(8):
                e(f"""s_mov_b32 m0, s75
s_add_u32 s75, s75, 1024
buffer_load_dwordx4 v{222 if k % 2 == 0 else 226}, s[44:47], s74 offen {nt2} lds
s_add_u32 s74, s74, 4096""")

        def tr_reads():
            for p in range(8):
                for ctl in range(2):
                    for hh in range(2):
                        r = 104 + (p * 2 + ctl) * 4 + 2 * hh
                        e(f"ds_read_b64_tr_b16 v[{r}:{r+1}], v{223 if ctl == 0 else 229} offset:{8192*p + 4096*hh}")
                if p % 3 == 2:
                    e("s_waitcnt lgkmcnt(3)")
        self.tr_reads = tr_reads
        early = 1
        self.get_nonce_lds(240)
        e("v_mov_b32 v220, s65\ns_mov_b32 s73x, 0".replace("s73x", "s47x").replace("s47x", "s3"))
        def rq():
            lrq = self.newlabel("kv_rq")
            e(f"""s_cmp_lg_u32 s7, 0
s_cbranch_scc1 {lrq}
s_mov_b32 exec_hi, 0
buffer_store_dwordx4 v[232:235], v5, s[40:43], s73 offen sc1
s_mov_b64 exec, -1""")
            self.label(lrq)
        def sweep():
            e("s_mov_b32 s10, s48\ns_mov_b32 s11, s49")
            for k in range(6):
                if k == 5:
                    l5 = self.newlabel("kv_sw5")
                    e(f"s_cmp_ge_u32 s7, 4\ns_cbranch_scc1 {l5}")
                e(f"""s_mov_b32 m0, s10
s_add_u32 s10, s10, 8192
buffer_load_dwordx4 v5, s[40:43], s11 offen sc1 lds
s_add_u32 s11, s11, 8192""")
                if k == 5:
                    self.label(l5)
        TH2 = self.opt("t_h2", 90)
        e("v_mov_b32 v232, v120\nv_mov_b32 v233, v121\nv_mov_b32 v234, v122\nv_mov_b32 v235, v123")
        if self.opt("sl_blk", 0):
            e(f"s_sleep {self.opt('sl_blk', 0)}")
        lb7 = self.newlabel("kv_b7")
        lb0 = self.newlabel("kv_b0")
        e(f"s_cmp_eq_u32 s7, 7\ns_cbranch_scc1 {lb7}")
        blk_dma()
        e(f"s_cmp_lg_u32 s7, 0\ns_cbranch_scc1 {lb0}\ns_add_u32 s74, s74, {192*1024}\ns_add_u32 s75, s75, {48*1024}")
        blk_dma()
        e(f"s_branch {lb7}")
        self.label(lb0)
        e("s_waitcnt vmcnt(8)")
        self.label(lb7)
        e("s_barrier")
        self.stamp(3)
        for u in range(8):
            e(f"ds_read_b128 v[{16+4*u}:{19+4*u}], v231 offset:{16*u}")
        for u in range(8):
            if u == 7:
                e("s_waitcnt lgkmcnt(8)")
            e(f"ds_read_b128 v[{60+4*u}:{63+4*u}], v231 offset:{16*1040 + 16*u}")
        e("s_load_dwordx2 s[28:29], s[38:39], s70 glc\nds_read_b32 v237, v227 offset:8\ns_waitcnt vmcnt(0) lgkmcnt(0)\ns_barrier")
        lns = self.newlabel("kv_nosw")
        e(f"""s_memrealtime s[0:1]
s_mov_b32 s61, 0
s_waitcnt lgkmcnt(0)
s_cmp_lg_u32 s28, s65
s_cbranch_scc1 {lns}
s_sub_u32 s0, s0, s29
s_cmp_lt_u32 s0, {TH2}
s_cbranch_scc1 {lns}
s_mov_b32 s61, 1""")
        self.stamp(11)
        sweep()
        self.label(lns)
        tr_reads()
        for a in range(2):
            for z in range(3):
                for i in range(3):
                    sidx = 3 * z + i
                    d = 16 + 44 * a + 4 * (8 + z) + i
                    if sidx < 8:
                        e(f"v_mov_b32 v{d}, v{16+44*a+4*sidx+3}")
                    else:
                        e(f"v_mov_b32 v{d}, 0")
                e(f"v_mov_b32 v{16+44*a+4*(8+z)+3}, 0")
        lsd = self.newlabel("kv_swd")
        lhv = self.newlabel("kv_have")
        e(f"s_cmp_eq_u32 s61, 1\ns_cbranch_scc1 {lsd}\ns_cmp_eq_u32 s28, s65\ns_cbranch_scc1 {lhv}")
        self.sig_wait(70, 240, 11, 0, restore=rq)
        self.label(lhv)
        self.until(TH2)
        self.stamp(11)
        sweep()
        self.label(lsd)
        e("s_waitcnt lgkmcnt(0)")
        if self.opt("valfirst", 0):
            e("v_readfirstlane_b32 s66, v237\ns_mov_b32 s60, 0\ns_mov_b32 s61, 0x1f")
            l45 = self.newlabel("kv_m5")
            e(f"s_cmp_ge_u32 s7, 4\ns_cbranch_scc1 {l45}\ns_mov_b32 s61, 0x3f")
            self.label(l45)
            lchk = self.newlabel("kv_chk")
            lok = self.newlabel("kv_swok")
            self.label(lchk)
            e("s_waitcnt vmcnt(0)")
            for k in range(6):
                e(f"ds_read_b32 v{240+k}, v230 offset:{8192*k}")
            e("s_waitcnt lgkmcnt(0)")
            for k in range(6):
                e(f"v_cmp_ne_u32 s[{10+2*(k%3)}:{11+2*(k%3)}], s67, v{240+k}")
                if k % 3 == 2:
                    for kk in range(k - 2, k + 1):
                        e(f"""s_cmp_eq_u64 s[{10+2*(kk%3)}:{11+2*(kk%3)}], 0
s_cselect_b32 s62, {(~(1 << kk)) & 0x3f:#x}, 0x3f
s_and_b32 s61, s61, s62""")
            e(f"s_cbranch_scc0 {lok}")
            for k in range(6):
                sk = self.newlabel("swk")
                e(f"""s_bitcmp1_b32 s61, {k}
s_cbranch_scc0 {sk}
s_add_u32 s10, s48, {8192*k}
s_mov_b32 m0, s10
s_add_u32 s11, s49, {8192*k}
buffer_load_dwordx4 v5, s[40:43], s11 offen sc1 lds""")
                self.label(sk)
            lnr = self.newlabel("kv_nrq")
            e(f"s_add_u32 s60, s60, 1\ns_cmp_lg_u32 s60, {RESTORE_IT}\ns_cbranch_scc1 {lnr}")
            rq()
            self.label(lnr)
            e(f"s_cmp_lt_u32 s60, {SPIN_LIMIT}\ns_cbranch_scc1 {lchk}\ns_waitcnt vmcnt(0)")
            self.label(lok)
            for k in range(5):
                e(f"ds_write_b32 v230, v11 offset:{8192*k}")
            l5z = self.newlabel("kv_z5")
            e(f"s_cmp_ge_u32 s7, 4\ns_cbranch_scc1 {l5z}\nds_write_b32 v230, v11 offset:{8192*5}")
            self.label(l5z)
            rq()
            e("s_waitcnt lgkmcnt(0)\ns_barrier")
            self.stamp(4)
            for u in range(11):
                e(f"ds_read_b128 v[{168+4*u}:{171+4*u}], v6 offset:{QL + 32*u}")
            for u in range(11):
                e(f"s_waitcnt lgkmcnt({10 - u})")
                r = 168 + 4 * u
                for a in range(2):
                    c = "0" if u == 0 else f"v[{240+4*a}:{243+4*a}]"
                    e(f"v_mfma_f32_16x16x32_bf16 v[{240+4*a}:{243+4*a}], v[{16+44*a+4*u}:{19+44*a+4*u}], v[{r}:{r+3}], {c}")
            lnx = self.newlabel("kv_nox")
            e(f"""s_cmp_lt_u32 s7, 4
s_cbranch_scc1 {lnx}
s_nop 5
ds_write_b128 v9, v[240:243] offset:{XCH}
ds_write_b128 v9, v[244:247] offset:{XCH + 1024}
s_waitcnt lgkmcnt(0)""")
            self.label(lnx)
            e(f"""s_barrier
ds_read_b128 v[168:171], v9 offset:{XCH}
ds_read_b128 v[172:175], v9 offset:{XCH + 1024}""")

        else:
            e("v_readfirstlane_b32 s66, v237\ns_mov_b32 s60, 0\ns_mov_b32 s3, 0")
            lsw = self.newlabel("kv_sweep")
            lfirst = self.newlabel("kv_first")
            e(f"s_branch {lfirst}")
            self.label(lsw)
            sweep()
            self.label(lfirst)
            e("s_waitcnt vmcnt(0)\ns_barrier")
            for u in range(11):
                e(f"ds_read_b128 v[{168+4*u}:{171+4*u}], v6 offset:{QL + 32*u}")
            self.stamp(4)

            def chk(u):
                r = 168 + 4 * u + 3
                e(f"s_waitcnt lgkmcnt({10 - u})")
                if u == 0:
                    e(f"v_xor_b32 v224, s67, v{r}")
                else:
                    e(f"v_bitop3_b32 v224, v224, v{r}, s67 bitop3:0xf6")
                e(f"v_mov_b32 v{r}, 0")
            chk(0)
            for u in range(11):
                if u + 1 < 11:
                    chk(u + 1)
                else:
                    e("v_cmp_ne_u32 vcc, 0, v224\nv_add_u32 v225, s3, v227")
                r = 168 + 4 * u
                for a in range(2):
                    c = "0" if u == 0 else f"v[{240+4*a}:{243+4*a}]"
                    e(f"v_mfma_f32_16x16x32_bf16 v[{240+4*a}:{243+4*a}], v[{16+44*a+4*u}:{19+44*a+4*u}], v[{r}:{r+3}], {c}")
            lok = self.newlabel("kv_ok")
            e(f"""s_cmp_eq_u64 vcc, 0
s_cbranch_scc1 {lok}
ds_write_b32 v225, v221 offset:{FLG}""")
            self.label(lok)
            lnx = self.newlabel("kv_nox")
            e(f"""s_cmp_lt_u32 s7, 4
s_cbranch_scc1 {lnx}
s_nop 3
ds_write_b128 v9, v[240:243] offset:{XCH}
ds_write_b128 v9, v[244:247] offset:{XCH + 1024}""")
            self.label(lnx)
            e(f"""s_waitcnt lgkmcnt(0)
s_barrier
ds_read_b32 v224, v225 offset:{FLG}
ds_read_b128 v[168:171], v9 offset:{XCH}
ds_read_b128 v[172:175], v9 offset:{XCH + 1024}""")
            lgo = self.newlabel("kv_go")
            e(f"""s_waitcnt lgkmcnt(2)
v_readfirstlane_b32 s10, v224
s_nop 0
s_cmp_eq_u32 s10, 0
s_cbranch_scc1 {lgo}
s_waitcnt lgkmcnt(0)
s_xor_b32 s3, s3, 4
v_add_u32 v225, s3, v227
ds_write_b32 v225, v11 offset:{FLG}
s_add_u32 s60, s60, 1
s_waitcnt lgkmcnt(0)
s_barrier""")
            rq()
            e(f"""s_cmp_lt_u32 s60, {SPIN_LIMIT}
s_cbranch_scc1 {lsw}""")
            self.label(lgo)
        self.stamp(5)
        lnsm = self.newlabel("kv_nosm")
        e(f"s_cmp_ge_u32 s7, 4\ns_cbranch_scc1 {lnsm}\ns_waitcnt lgkmcnt(0)")
        for k in range(4):
            e(f"v_pk_add_f32 v[{168+2*k}:{169+2*k}], v[{168+2*k}:{169+2*k}], v[{240+2*k}:{241+2*k}]")
        for k in range(4):
            e(f"v_cvt_pk_bf16_f32 v{176+k}, v{168+2*k}, v{169+2*k}")
        for k in range(4):
            e(f"v_lshlrev_b32 v{168+2*k}, 16, v{176+k}\nv_and_b32 v{169+2*k}, 0xffff0000, v{176+k}")
        for k in range(8):
            e(f"v_mul_f32 v{168+k}, s54, v{168+k}")
        for k in range(4):
            e(f"v_cvt_pk_bf16_f32 v{176+k}, v{168+2*k}, v{169+2*k}")
        for k in range(4):
            e(f"v_lshlrev_b32 v{168+2*k}, 16, v{176+k}\nv_and_b32 v{169+2*k}, 0xffff0000, v{176+k}")
        e("""v_max3_f32 v248, v168, v169, v170
v_max3_f32 v180, v171, v172, v173
v_max3_f32 v248, v248, v174, v175
v_max_f32 v248, v248, v180
v_mov_b32 v180, v248
s_nop 1
v_permlane16_swap_b32 v248, v180
s_nop 0
v_max_f32 v248, v248, v180
v_mov_b32 v180, v248
s_nop 1
v_permlane32_swap_b32 v248, v180
s_nop 0
v_max_f32 v248, v248, v180
v_mul_f32 v180, s55, v248""")
        for k in range(8):
            e(f"v_fma_f32 v{168+k}, v{168+k}, s55, -v180")
        for k in range(8):
            e(f"v_exp_f32 v{168+k}, v{168+k}")
        e("s_nop 0")
        for k in range(4):
            e(f"v_cvt_pk_bf16_f32 v{252+k}, v{168+2*k}, v{169+2*k}")
        e("""buffer_store_dwordx4 v[252:255], v10, s[40:43], s50 offen
v_pk_add_f32 v[168:169], v[168:169], v[170:171]
v_pk_add_f32 v[172:173], v[172:173], v[174:175]
v_pk_add_f32 v[168:169], v[168:169], v[172:173]
v_add_f32 v249, v168, v169
v_mov_b32 v180, v249
s_nop 1
v_permlane16_swap_b32 v249, v180
s_nop 0
v_add_f32 v249, v249, v180
v_mov_b32 v180, v249
s_nop 1
v_permlane32_swap_b32 v249, v180
s_nop 0
v_add_f32 v249, v249, v180
s_mov_b64 exec, 0xffff
buffer_store_dwordx2 v[248:249], v212, s[40:43], s50 offen offset:1024
s_mov_b64 exec, -1""")
        self.stamp(6)
        if not early:
            lsj = self.newlabel("kv_sj")
            e(f"s_waitcnt vmcnt(2)\ns_branch {lsj}")
            self.label(lnsm)
            e("s_waitcnt vmcnt(0)")
            self.label(lsj)
            e("s_barrier")
            tr_reads()
        else:
            self.label(lnsm)

        def restore_p():
            l = self.newlabel("rp")
            e(f"""s_cmp_ge_u32 s7, 4
s_cbranch_scc1 {l}
buffer_store_dwordx4 v[252:255], v10, s[40:43], s50 offen sc1
s_mov_b64 exec, 0xffff
buffer_store_dwordx2 v[248:249], v212, s[40:43], s50 offen offset:1024 sc1
s_mov_b64 exec, -1""")
            self.label(l)
        lsame = self.newlabel("kv_same")
        e(f"s_cmp_eq_u32 s66, 0\ns_cbranch_scc1 {lsame}")
        restore_p()
        self.label(lsame)
        self.poll([("buffer_load_dwordx4 v[168:171], v5, s[40:43], s51 offen sc1", 168, 4),
                   (f"buffer_load_dwordx4 v[172:175], v5, s[40:43], s51 offen offset:{PMSG} sc1", 172, 4),
                   ("buffer_load_dwordx2 v[176:177], v213, s[40:43], s51 offen offset:1024 sc1", 176, 2)], 'sent', 224)
        e(f"""ds_write_b128 v7, v[168:171] offset:{PL}
ds_write_b128 v7, v[172:175] offset:{PL + 1024}
ds_write_b64 v214, v[176:177] offset:{SL}
s_waitcnt lgkmcnt(0)
s_barrier""")
        self.stamp(7)
        if self.opt("sig2_early", 1):
            l0e = self.newlabel("kv_sig")
            e(f"s_cmp_lg_u32 s7, 7\ns_cbranch_scc1 {l0e}")
            self.sig_send(72, 220, 11)
            self.label(l0e)
        for k in range(4):
            e(f"ds_read_b128 v[{48+4*k}:{51+4*k}], v217 offset:{SL + 512*k}")
        for p in range(8):
            e(f"ds_read_b128 v[{16+4*p}:{19+4*p}], v215 offset:{PL + 2048*p}")
        stats = []
        stats.append("v_max3_f32 v238, v48, v50, v52")
        stats.append("v_max3_f32 v239, v54, v56, v58")
        stats.append("v_max3_f32 v238, v238, v60, v62")
        stats.append("v_max_f32 v238, v238, v239")
        stats.append("v_mul_f32 v239, s55, v238")
        for p in range(8):
            stats.append(f"v_fma_f32 v{48+2*p}, v{48+2*p}, s55, -v239")
        for p in range(8):
            stats.append(f"v_exp_f32 v{48+2*p}, v{48+2*p}")
        stats.append("v_and_or_b32 v240, v238, s64, v12")
        stats.append("v_mul_f32 v239, v48, v49")
        for p in range(1, 8):
            stats.append(f"v_fmac_f32 v239, v{48+2*p}, v{49+2*p}")
        si = 0
        for p in range(8):
            e(f"s_waitcnt lgkmcnt({7 - p})")
            for ctl in range(2):
                ar = 104 + (p * 2 + ctl) * 4
                ac = self.acc(p * 2 + ctl)
                e(f"v_mfma_f32_16x16x32_bf16 v[{ac}:{ac+3}], v[{ar}:{ar+3}], v[{16+4*p}:{19+4*p}], 0")
                for _ in range(2):
                    if si < len(stats):
                        e(stats[si]); si += 1
        while si < len(stats):
            e(stats[si]); si += 1
        lno = self.newlabel("kv_noos")
        e(f"""s_cmp_lg_u32 s6, 0
s_cbranch_scc1 {lno}
s_cmp_ge_u32 s7, 2
s_cbranch_scc1 {lno}
v_and_or_b32 v241, v239, s64, v13
v_mov_b32 v242, v14
v_mov_b32 v243, v15
s_mov_b64 exec, 0xffff
buffer_store_dwordx4 v[240:243], v219, s[40:43], s53 offen sc1
s_mov_b64 exec, -1""")
        self.label(lno)
        for r in range(0, 8, 2):
            e(f"v_pk_mul_f32 v[{168+r}:{169+r}], v[{168+r}:{169+r}], v[48:49] op_sel_hi:[1,0]")
        for p in range(1, 8):
            for ctl in range(2):
                for r in (0, 2):
                    a = self.acc(2 * p + ctl) + r
                    o = 168 + 4 * ctl + r
                    e(f"v_pk_fma_f32 v[{o}:{o+1}], v[{a}:{a+1}], v[{48+2*p}:{49+2*p}], v[{o}:{o+1}] op_sel_hi:[1,0,1]")
        self.tag4(168)
        e("buffer_store_dwordx4 v[168:171], v218, s[40:43], s52 offen sc1")
        self.tag4(172)
        e("buffer_store_dwordx4 v[172:175], v218, s[40:43], s52 offen offset:64 sc1")
        self.stamp(8)
        e("s_barrier")
        self.dbgtime(6, 128)
        self.dbgtime(7, 201)
        if not self.opt("sig2_early", 1):
            l0 = self.newlabel("kv_sig")
            e(f"s_cmp_lg_u32 s7, 0\ns_cbranch_scc1 {l0}")
            self.sig_send(72, 220, 11)
            self.label(l0)
        lnf = self.newlabel("kv_nofg")
        llo = self.newlabel("kv_fglo")
        e(f"""v_mov_b32 v236, v220
s_bfe_u32 s10, s9, 0x20002
s_lshl_b32 s10, s10, 3
s_add_u32 s10, s10, s8
s_cmp_ge_u32 s10, 27
s_cbranch_scc1 {lnf}
s_lshl_b32 s10, s10, 2
s_add_u32 s10, s10, s6""")
        if self.opt("sl_fg", 40):
            e(f"s_sleep {self.opt('sl_fg', 40)}")
        e(f"s_cmp_lt_u32 s7, 4\ns_cbranch_scc1 {llo}")
        self.srd(44, 30, 2211840)
        e(f"""v_lshrrev_b32 v6, 1, v1
v_mul_u32_u24 v6, 3456, v6
v_and_b32 v7, 1, v1
v_lshl_add_u32 v6, v7, 4, v6
s_sub_u32 s11, s7, 4
s_mul_i32 s11, s11, 160
s_mul_i32 s12, s11, 3456
s_lshl_b32 s13, s10, 5
s_add_u32 s12, s12, s13
s_lshl_b32 s13, s11, 5
s_add_u32 s13, s13, {W1L}""")
        for k in range(5):
            e(f"""s_mov_b32 m0, s13
s_add_u32 s13, s13, 1024
buffer_load_dwordx4 v6, s[44:47], s12 offen {nt} lds
s_add_u32 s12, s12, {32*3456}""")
        e("s_waitcnt vmcnt(0)")
        if self.opt("dbg2", 0): self.stamp(2)
        e("s_barrier\ns_branch L_fin")
        self.label(lnf)
        if self.opt("clean_p", 0):
            restore_p()
        e("s_branch L_fin")
        self.label(llo)
        self.srd(44, 16, 1280)
        e(f"""v_lshlrev_b32 v8, 3, v1
s_mul_i32 s11, s7, 320
buffer_load_dwordx2 v[48:49], v8, s[44:47], s11 offen
v_mul_u32_u24 v7, 5120, v3
v_lshl_add_u32 v7, v2, 4, v7
s_mul_i32 s12, s10, 20480
s_lshl_b32 s13, s7, 8
s_add_u32 s12, s12, s13
v_add_u32 v7, s12, v7""")
        for t in range(4):
            e(f"global_load_dwordx4 v[{16+4*t}:{19+4*t}], v7, s[32:33] offset:{1280*t} {nt}")
        lb4 = self.newlabel("kv_b4")
        e(f"s_cmp_lg_u32 s7, 0\ns_cbranch_scc1 {lb4}\nv_add_u32 v7, 1024, v7")
        for t in range(4):
            e(f"global_load_dwordx4 v[{32+4*t}:{35+4*t}], v7, s[32:33] offset:{1280*t} {nt}")
        self.label(lb4)
        if self.opt("clean_p", 0):
            restore_p()
        self.masks(52, 2, 60, False)
        e(f"""v_lshrrev_b32 v8, 2, v2
v_lshl_add_u32 v8, v3, 3, v8
v_lshlrev_b32 v8, 5, v8
v_and_b32 v9, 3, v2
v_lshl_add_u32 v8, v9, 3, v8
s_waitcnt vmcnt(0)""")
        if self.opt("dbg2", 0): self.stamp(2)
        e("s_barrier")
        if self.opt("dbg2", 0): self.stamp(3)
        for t in range(20):
            for hh in range(2):
                e(f"ds_read_b64_tr_b16 v[{80+4*t+2*hh}:{81+4*t+2*hh}], v8 offset:{W1L + 1024*t + 128*hh}")
            if t % 4 == 3:
                e("s_waitcnt lgkmcnt(0)")
        e(f"""s_mul_i32 s12, s7, 640
s_add_u32 s12, s12, {XB}
s_add_u32 s13, s12, 5120
s_add_u32 s14, s12, 10240
s_add_u32 s15, s12, 15360
v_lshlrev_b32 v56, 16, v48
v_and_b32 v57, 0xffff0000, v48
v_lshlrev_b32 v58, 16, v49
v_and_b32 v59, 0xffff0000, v49
v_lshlrev_b32 v8, 3, v1
s_mul_i32 s11, s7, 320
v_add_u32 v9, s11, v8
s_mul_i32 s11, s7, 1280
v_add_u32 v10, s11, v8
v_add_u32 v228, s11, v4
v_lshl_add_u32 v229, v3, 4, s11
v_lshrrev_b32 v230, 1, v2
v_mul_u32_u24 v230, 7168, v230
v_and_b32 v231, 1, v2
v_lshl_add_u32 v230, v231, 5, v230
v_lshl_add_u32 v230, v3, 4, v230
s_mul_i32 s52, s7, {8*7168}
s_lshl_b32 s53, s10, 6
s_add_u32 s52, s52, s53
s_add_u32 s52, s52, {FB}
s_add_u32 s53, s52, {32*7168}""")
        e("v_lshlrev_b32 v231, 4, v3")
        for r in range(4):
            e(f"v_mov_b32 v{244+r}, 0x3f803f80")
        e("s_nop 1")
        for t in range(20):
            c = "0" if t == 0 else "v[76:79]"
            e(f"v_mfma_f32_16x16x32_bf16 v[76:79], v[{80+4*t}:{83+4*t}], v[244:247], {c}")
        self.sig_prep(3, 70)
        self.sig_prep(4, 71)
        if not self.opt('dbg1', 0): self.stamp(9)
        self.sig_wait(70, 60, 11, self.opt("t_h5", 42))
        e("s_mov_b32 exec_hi, 0xff")
        self.poll([(f"buffer_load_dwordx4 v[{160+4*x}:{163+4*x}], v5, s[40:43], s{12 + x//2} offen offset:{2560*(x%2)} sc1", 160 + 4 * x, 4) for x in range(8)], 'tag', 60)
        self.tree_sum(160, 8)
        e(f"""v_cvt_pk_bf16_f32 v60, v160, v161
v_cvt_pk_bf16_f32 v61, v162, v163
v_lshlrev_b32 v160, 16, v60
v_and_b32 v161, 0xffff0000, v60
v_lshlrev_b32 v162, 16, v61
v_and_b32 v163, 0xffff0000, v61
v_pk_add_f32 v[160:161], v[160:161], v[56:57]
v_pk_add_f32 v[162:163], v[162:163], v[58:59]
v_cvt_pk_bf16_f32 v60, v160, v161
v_cvt_pk_bf16_f32 v61, v162, v163
ds_write_b64 v9, v[60:61] offset:{HF}
s_mov_b64 exec, -1
s_waitcnt lgkmcnt(0)
s_barrier
ds_read_b64 v[70:71], v8 offset:{HF}
ds_read_b64 v[72:73], v8 offset:{HF + 512}
ds_read_b32 v74, v4 offset:{HF + 1024}""")
        if not self.opt('dbg1', 0): self.stamp(10)
        fbr = lambda t: 160 + 4 * (t % 12)
        for t in range(12):
            e(f"ds_read_b128 v[{fbr(t)}:{fbr(t)+3}], v231 offset:{HF + 64*t}")
        vx, vt, sA, sB = 60, 70, 62, 63
        inv = 0x3acccccd
        ops = []
        for k in range(5):
            ops += [f"v_lshlrev_b32 v{60+2*k}, 16, v{70+k}", f"v_and_b32 v{61+2*k}, 0xffff0000, v{70+k}"]
        ops += [f"v_readfirstlane_b32 s{sA}, v{vx}", "s_nop 1", f"v_mov_b32 v{vt+4}, s{sA}"]
        for k in range(0, 10, 2):
            ops.append(f"v_pk_add_f32 v[250:251], v[{vx+k}:{vx+k+1}], v[{vt+4}:{vt+5}] op_sel_hi:[1,0] neg_lo:[0,1] neg_hi:[0,1]")
            if k == 0:
                ops += [f"v_pk_mul_f32 v[{vt+2}:{vt+3}], v[250:251], v[250:251]", f"v_mov_b32 v{vt}, v250", f"v_mov_b32 v{vt+1}, v251"]
            else:
                ops += [f"v_pk_fma_f32 v[{vt+2}:{vt+3}], v[250:251], v[250:251], v[{vt+2}:{vt+3}]", f"v_pk_add_f32 v[{vt}:{vt+1}], v[{vt}:{vt+1}], v[250:251]"]
        ops += [f"v_add_f32 v{vt+2}, v{vt+2}, v{vt+3}", f"v_add_f32 v{vt}, v{vt}, v{vt+1}", f"v_mov_b32 v{vt+5}, {inv:#x}"]
        steps = [f"row_shr:{sh} row_mask:0xf bank_mask:0xf bound_ctrl:0" for sh in (1, 2, 4, 8)] + ["row_bcast:15 row_mask:0xa bank_mask:0xf", "row_bcast:31 row_mask:0xc bank_mask:0xf"]
        for st in steps:
            ops += [f"v_add_f32_dpp v{vt+2}, v{vt+2}, v{vt+2} {st}", f"v_add_f32_dpp v{vt}, v{vt}, v{vt} {st}", "s_nop 0"]
        ops += f"""v_readlane_b32 s{sB}, v{vt+2}, 63
v_readlane_b32 s{sA}, v{vt}, 63
s_nop 0
v_mul_f32 v{vt+2}, s{sB}, v{vt+5}
v_mul_f32 v{vt}, s{sA}, v{vt+5}
v_fma_f32 v{vt+2}, -v{vt}, v{vt}, v{vt+2}
v_add_f32 v{vt+4}, v{vt+4}, v{vt}
v_max_f32 v{vt+2}, 0, v{vt+2}
v_cvt_pk_bf16_f32 v{vt+3}, v{vt+4}, v{vt+2}
v_lshlrev_b32 v{vt+4}, 16, v{vt+3}
v_and_b32 v{vt+2}, 0xffff0000, v{vt+3}
v_add_f32 v{vt+2}, 0x3727c5ac, v{vt+2}
v_cvt_pk_bf16_f32 v{vt+2}, v{vt+2}, v{vt+2}
v_and_b32 v{vt+2}, 0xffff0000, v{vt+2}
v_sqrt_f32 v{vt+2}, v{vt+2}
s_nop 0
v_cvt_pk_bf16_f32 v{vt+2}, v{vt+2}, v{vt+2}
v_and_b32 v{vt+2}, 0xffff0000, v{vt+2}
v_rcp_f32 v{vt+2}, v{vt+2}""".split("\n")
        per = (len(ops) + 19) // 20
        for t in range(20):
            issued = min(t + 12, 20)
            e(f"s_waitcnt lgkmcnt({issued - t - 1})")
            c = "0" if t == 0 else "v[56:59]"
            e(f"v_mfma_f32_16x16x32_bf16 v[56:59], v[{80+4*t}:{83+4*t}], v[{fbr(t)}:{fbr(t)+3}], {c}")
            for _ in range(per):
                if ops:
                    e(ops.pop(0))
            if t + 12 < 20:
                e(f"ds_read_b128 v[{fbr(t+12)}:{fbr(t+12)+3}], v231 offset:{HF + 64*(t+12)}")
        while ops:
            e(ops.pop(0))
        ls4 = self.newlabel("kv_s4")
        e(f"s_cmp_lg_u32 s7, 1\ns_cbranch_scc1 {ls4}")
        self.sig_send(71, 236, 11)
        self.label(ls4)
        e("s_nop 5")
        for r in range(4):
            e(f"v_fma_f32 v{56+r}, -v{vt+4}, v{76+r}, v{56+r}")
        for r in range(4):
            e(f"v_mul_f32 v{56+r}, v{56+r}, v{vt+2}")
        for r in range(4):
            e(f"v_max_f32 v{56+r}, 0, v{56+r}")
        for t in range(4):
            e(f"v_cvt_pk_bf16_f32 v{240+t}, v{56+t}, v{56+t}")
        for t in range(4):
            for r in range(4):
                e(f"v_and_b32 v{80+4*t+r}, v{240+t}, v{52+r}")
        for t in range(4):
            c = "0" if t == 0 else "v[64:67]"
            e(f"v_mfma_f32_16x16x32_bf16 v[64:67], v[{80+4*t}:{83+4*t}], v[{16+4*t}:{19+4*t}], {c}")
        lb5 = self.newlabel("kv_b5")
        e(f"s_cmp_lg_u32 s7, 0\ns_cbranch_scc1 {lb5}")
        for t in range(4):
            c = "0" if t == 0 else "v[68:71]"
            e(f"v_mfma_f32_16x16x32_bf16 v[68:71], v[{80+4*t}:{83+4*t}], v[{32+4*t}:{35+4*t}], {c}")
        e("s_nop 3")
        self.tag4(64)
        e("""s_mov_b32 exec_hi, 0
buffer_store_dwordx4 v[64:67], v230, s[40:43], s52 offen sc1""")
        self.tag4(68)
        e("buffer_store_dwordx4 v[68:71], v230, s[40:43], s53 offen sc1")
        e("s_mov_b64 exec, -1")
        if not self.opt('dbg1', 0): self.stamp(1)
        e("s_branch L_fin")
        self.label(lb5)
        e("s_nop 5")
        self.tag4(64)
        e("""s_mov_b32 exec_hi, 0
buffer_store_dwordx4 v[64:67], v230, s[40:43], s52 offen sc1
s_mov_b64 exec, -1""")

    def fb(self, t):
        if t < 14:
            return 160 + 4 * t
        return [60, 64, 68, 72, 76, 244][t - 14]


if __name__ == "__main__":
    import argparse
    ap = argparse.ArgumentParser()
    ap.add_argument("out")
    ap.add_argument("--stamps", action="store_true")
    ap.add_argument("--opt", action="append", default=[])
    a = ap.parse_args()
    opts = {}
    for o in a.opt:
        k, v = o.split("=")
        opts[k] = int(v) if v.lstrip("-").isdigit() else v
    g = Gen(stamps=a.stamps, opts=opts)
    open(a.out, "w").write(g.build())
```

```python
import sys

KN = "sequential_preLN__compressed_kv_cla__dense_activation_relu__decode_kernel"

Q1 = 0x000000
QA = 0x020000
PB = 0x030000
PMSG = 1152
OB = 0x0C0000
OS = 0x2C0000
EL = 0x2C4000
XB = 0x314000
FB = 0x319000
SIG = 0x360000
RDY = 0x374000
assert PB + 512 * PMSG <= OB
STAMP = 0x400000
WS_RECORDS = 0x400000 + 256 * 128

SPIN_LIMIT = 100000
RESTORE_IT = 10
LOG2E = 0x3fb8aa3b
SCALE = 0x3db504f3
LDS_BYTES = 146432
NB = 133120
NON, FLG = 0, 16

HEADER = """; ---------------------------------------------------------------------------------------------
; Hand-offs through d_ws are self-validating: every 16-byte granule carries a per-launch tag (published through
; ---------------------------------------------------------------------------------------------"""


class Gen:
    def __init__(self, stamps=False, opts=None):
        self.o = []
        self.nl = 0
        self.stamps = stamps
        self.opts = opts or {}

    def opt(self, k, d):
        return self.opts.get(k, d)

    def e(self, s):
        for line in s.strip("\n").split("\n"):
            self.o.append("  " + line.strip())

    def label(self, name):
        self.o.append(name + ":")

    def newlabel(self, base):
        self.nl += 1
        return f"L_{base}_{self.nl}"

    def srd(self, d, ptr, nbytes):
        self.e(f"""s_mov_b32 s{d}, s{ptr}
s_and_b32 s{d+1}, s{ptr+1}, 0xffff
s_mov_b32 s{d+2}, {nbytes}
s_mov_b32 s{d+3}, 0x00020000""")

    def stamp(self, idx):
        if self.stamps:
            self.e(f"s_memrealtime s[{76+2*idx}:{77+2*idx}]")

    def stamp_dump(self):
        if not self.stamps:
            return
        self.e("""s_and_b32 s60, s7, 3
s_cmp_lg_u32 s60, 0
s_cbranch_scc1 L_end
s_waitcnt lgkmcnt(0)
s_mov_b64 exec, 1
v_mov_b32 v251, 0""")
        self.e(f"s_lshl_b32 s60, s2, 7\ns_lshl_b32 s61, s7, 4\ns_add_u32 s60, s60, s61\ns_add_u32 s60, s60, {STAMP}")
        for i in range(12):
            self.e(f"v_mov_b32 v250, s{76+2*i}\nbuffer_store_dword v250, v251, s[40:43], s60 offen offset:{4*i}")

    def dbgtime(self, word, wg):
        if not self.opt("dbgt", 0):
            return
        l = self.newlabel("dt")
        self.e(f"""s_cmp_lg_u32 s2, {wg}
s_cbranch_scc1 {l}
s_memrealtime s[10:11]
s_load_dword s12, s[36:37], 4 glc
s_waitcnt lgkmcnt(0)
s_sub_u32 s10, s10, s12
v_mov_b32 v250, s10
v_mov_b32 v251, {4*word}
global_store_dword v251, v250, s[36:37]""")
        self.label(l)

    def wave_sum(self, v, sd):
        ins = "v_add_f32_dpp"
        for sh in (1, 2, 4, 8):
            self.e(f"s_nop 1\n{ins} v{v}, v{v}, v{v} row_shr:{sh} row_mask:0xf bank_mask:0xf bound_ctrl:0")
        self.e(f"s_nop 1\n{ins} v{v}, v{v}, v{v} row_bcast:15 row_mask:0xa bank_mask:0xf")
        self.e(f"s_nop 1\n{ins} v{v}, v{v}, v{v} row_bcast:31 row_mask:0xc bank_mask:0xf")
        self.e(f"s_nop 0\nv_readlane_b32 s{sd}, v{v}, 63")

    def wait_nonce(self, vt):
        d = self.newlabel("nnd")
        for k in range(4):
            self.e(f"""s_load_dwordx2 s[28:29], s[36:37], {64*k}
s_waitcnt lgkmcnt(0)
s_mov_b32 s65, s28
s_cmp_lg_u32 s65, 0
s_cbranch_scc1 {d}
s_sleep 4""")
        l = self.newlabel("nn")
        self.e("s_mov_b32 s60, 0")
        self.label(l)
        self.e(f"""buffer_load_dword v{vt}, v11, s[56:59], 0 offen sc1
s_add_u32 s60, s60, 1
s_waitcnt vmcnt(0)
v_readfirstlane_b32 s65, v{vt}
s_cmp_ge_u32 s60, {SPIN_LIMIT}
s_cbranch_scc1 {d}
s_cmp_eq_u32 s65, 0
s_cbranch_scc1 {l}""")
        self.label(d)

    def set_tags(self):
        self.e("""s_mov_b32 s64, 0xffffff00
s_and_b32 s61, s65, 0xff
v_mov_b32 v12, s61
s_bfe_u32 s61, s65, 0x80008
v_mov_b32 v13, s61
s_bfe_u32 s61, s65, 0x80010
v_mov_b32 v14, s61
s_lshr_b32 s61, s65, 24
v_mov_b32 v15, s61
s_and_b32 s67, s65, 0xbfffbfff""")

    def tag4(self, v):
        for r in range(4):
            self.e(f"v_and_or_b32 v{v+r}, v{v+r}, s64, v{12+r}")

    def sig_prep(self, k, sd, sid="s4"):
        self.e(f"s_lshl_b32 s{sd}, {sid}, 7\ns_add_u32 s{sd}, s{sd}, {SIG + k * 16384}")

    def sig_send(self, sd, vtag, vzero):
        self.e(f"""s_memrealtime s[0:1]
s_waitcnt lgkmcnt(0)
v_mov_b32 v{vtag+1}, s0
buffer_store_dwordx2 v[{vtag}:{vtag+1}], v{vzero}, s[40:43], s{sd} offen sc1""")

    def until(self, delta):
        l = self.newlabel("un")
        self.label(l)
        self.e(f"""s_memrealtime s[0:1]
s_waitcnt lgkmcnt(0)
s_sub_u32 s0, s0, s29
s_cmp_lt_u32 s0, {delta}
s_cbranch_scc1 {l}""")

    def sig_wait(self, sd, vt, vzero, delta=0, restore=None):
        l = self.newlabel("sg")
        d = self.newlabel("sgd")
        self.e("s_mov_b32 s60, 0")
        self.label(l)
        self.e(f"""s_load_dwordx2 s[28:29], s[38:39], s{sd} glc
s_add_u32 s60, s60, 1""")
        if restore:
            nr = self.newlabel("snr")
            self.e(f"s_cmp_lg_u32 s60, {RESTORE_IT}\ns_cbranch_scc1 {nr}")
            restore()
            self.label(nr)
        self.e(f"""s_cmp_ge_u32 s60, {SPIN_LIMIT}
s_cbranch_scc1 {d}
s_waitcnt lgkmcnt(0)
s_cmp_lg_u32 s28, s65
s_cbranch_scc1 {l}""")
        if delta:
            self.until(delta)
        self.label(d)
        self.e("s_waitcnt lgkmcnt(0)")

    def check(self, regs, kind, vacc, first=True):
        e = self.e
        if kind == 'tag':
            for i, r in enumerate(regs):
                t = 12 + (i % 4)
                if first and i == 0:
                    e(f"v_xor_b32 v{vacc}, v{r}, v{t}")
                else:
                    e(f"v_bitop3_b32 v{vacc}, v{vacc}, v{r}, v{t} bitop3:0xf6")
        else:
            i = 0
            while i < len(regs):
                if first and i == 0:
                    if len(regs) >= 3:
                        e(f"v_max3_u32 v{vacc}, v{regs[0]}, v{regs[1]}, v{regs[2]}"); i = 3
                    elif len(regs) == 2:
                        e(f"v_max_u32 v{vacc}, v{regs[0]}, v{regs[1]}"); i = 2
                    else:
                        e(f"v_mov_b32 v{vacc}, v{regs[0]}"); i = 1
                elif len(regs) - i >= 2:
                    e(f"v_max3_u32 v{vacc}, v{vacc}, v{regs[i]}, v{regs[i+1]}"); i += 2
                else:
                    e(f"v_max_u32 v{vacc}, v{vacc}, v{regs[i]}"); i += 1

    def verdict(self, kind, vacc):
        if kind == 'tag':
            self.e(f"v_and_b32 v{vacc}, 0xff, v{vacc}\nv_cmp_ne_u32 vcc, 0, v{vacc}\ns_cmp_lg_u64 vcc, 0")
        else:
            self.e(f"v_cmp_eq_u32 vcc, -1, v{vacc}\ns_cmp_lg_u64 vcc, 0")

    def poll(self, loads, kind, vacc, restore=None):
        e = self.e
        l = self.newlabel("pl")
        d = self.newlabel("pld")
        e("s_mov_b32 s60, 0")
        self.label(l)
        for ins in loads:
            e(ins[0])
        e("s_add_u32 s60, s60, 1")
        if restore:
            nr = self.newlabel("pnr")
            e(f"s_cmp_lg_u32 s60, {self.opt('rit', RESTORE_IT)}\ns_cbranch_scc1 {nr}")
            restore()
            self.label(nr)
        e(f"s_cmp_ge_u32 s60, {SPIN_LIMIT}\ns_cbranch_scc1 {d}\ns_waitcnt vmcnt(0)")
        for k, ins in enumerate(loads):
            self.check(list(range(ins[1], ins[1] + ins[2])), kind, vacc, first=(k == 0))
        self.verdict(kind, vacc)
        e(f"s_cbranch_scc1 {l}")
        self.label(d)
        e("s_waitcnt vmcnt(0)")

    def poll_sum(self, loads, vacc, vsum, fix=None):
        e = self.e
        l = self.newlabel("ps")
        n = len(loads)
        e("s_mov_b32 s60, 0")
        self.label(l)
        for ins in loads:
            e(ins[0])
        e("s_add_u32 s60, s60, 1")
        for k, ins in enumerate(loads):
            r = ins[1]
            e(f"s_waitcnt vmcnt({n-1-k})")
            self.check(list(range(r, r + 4)), 'tag', vacc, first=(k == 0))
            if fix and k in fix:
                fix[k]()
            if k == 1:
                r0 = loads[0][1]
                e(f"v_pk_add_f32 v[{vsum}:{vsum+1}], v[{r0}:{r0+1}], v[{r}:{r+1}]\nv_pk_add_f32 v[{vsum+2}:{vsum+3}], v[{r0+2}:{r0+3}], v[{r+2}:{r+3}]")
            elif k > 1:
                e(f"v_pk_add_f32 v[{vsum}:{vsum+1}], v[{vsum}:{vsum+1}], v[{r}:{r+1}]\nv_pk_add_f32 v[{vsum+2}:{vsum+3}], v[{vsum+2}:{vsum+3}], v[{r+2}:{r+3}]")
        e(f"""v_and_b32 v{vacc}, 0xff, v{vacc}
v_cmp_ne_u32 vcc, 0, v{vacc}
s_cmp_lt_u32 s60, {SPIN_LIMIT}
s_cselect_b64 vcc, vcc, 0
s_cmp_lg_u64 vcc, 0
s_cbranch_scc1 {l}""")

    def chk_ops(self, regs, vacc):
        ops = []
        for i, r in enumerate(regs):
            t = 12 + (i % 4)
            ops.append(f"v_xor_b32 v{vacc}, v{r}, v{t}" if i == 0 else f"v_bitop3_b32 v{vacc}, v{vacc}, v{r}, v{t} bitop3:0xf6")
        return ops

    def fill(self, text, ops):
        for line in text.strip("\n").split("\n"):
            line = line.strip()
            if line.startswith("s_nop "):
                n = int(line.split()[1]) + 1
                k = 0
                while k < n and ops:
                    self.e(ops.pop(0)); k += 1
                if k < n:
                    self.e(f"s_nop {n-k-1}")
            elif line.startswith("SLOT"):
                n = int(line.split()[1])
                for _ in range(n):
                    if ops:
                        self.e(ops.pop(0))
            else:
                self.e(line)

    def masks(self, m0, vi, vt, lo_rows):
        self.e(f"""v_and_b32 v{vt}, 1, v{vi}
v_cmp_eq_u32 vcc, 1, v{vt}
v_mov_b32 v{vt}, 0x0000ffff
v_mov_b32 v{vt+1}, 0xffff0000
v_cndmask_b32 v{vt}, v{vt}, v{vt+1}, vcc""")
        if lo_rows:
            self.e(f"v_bfe_u32 v{vt+1}, v{vi}, 1, 2")
        else:
            self.e(f"v_lshrrev_b32 v{vt+1}, 1, v{vi}")
        for r in range(4):
            self.e(f"""v_cmp_eq_u32 vcc, {r}, v{vt+1}
s_nop 1
v_cndmask_b32 v{m0+r}, 0, v{vt}, vcc""")

    def layernorm(self, vx, vt, sA, sB):
        e = self.e
        inv = 0x3acccccd
        e(f"s_nop 0\nv_readfirstlane_b32 s{sA}, v{vx}\ns_nop 1\nv_mov_b32 v{vt+4}, s{sA}")
        for k in range(0, 10, 2):
            e(f"v_pk_add_f32 v[250:251], v[{vx+k}:{vx+k+1}], v[{vt+4}:{vt+5}] op_sel_hi:[1,0] neg_lo:[0,1] neg_hi:[0,1]")
            if k == 0:
                e(f"v_pk_mul_f32 v[{vt+2}:{vt+3}], v[250:251], v[250:251]\nv_mov_b32 v{vt}, v250\nv_mov_b32 v{vt+1}, v251")
            else:
                e(f"v_pk_fma_f32 v[{vt+2}:{vt+3}], v[250:251], v[250:251], v[{vt+2}:{vt+3}]\nv_pk_add_f32 v[{vt}:{vt+1}], v[{vt}:{vt+1}], v[250:251]")
        e(f"v_add_f32 v{vt+2}, v{vt+2}, v{vt+3}\nv_add_f32 v{vt}, v{vt}, v{vt+1}\nv_mov_b32 v{vt+5}, {inv:#x}")
        steps = [f"row_shr:{sh} row_mask:0xf bank_mask:0xf bound_ctrl:0" for sh in (1, 2, 4, 8)] + ["row_bcast:15 row_mask:0xa bank_mask:0xf", "row_bcast:31 row_mask:0xc bank_mask:0xf"]
        for st in steps:
            e(f"v_add_f32_dpp v{vt+2}, v{vt+2}, v{vt+2} {st}\nv_add_f32_dpp v{vt}, v{vt}, v{vt} {st}\ns_nop 0")
        e(f"""v_readlane_b32 s{sB}, v{vt+2}, 63
v_readlane_b32 s{sA}, v{vt}, 63
s_nop 0
v_mul_f32 v{vt+2}, s{sB}, v{vt+5}
v_mul_f32 v{vt}, s{sA}, v{vt+5}
v_fma_f32 v{vt+2}, -v{vt}, v{vt}, v{vt+2}
v_add_f32 v{vt+4}, v{vt+4}, v{vt}
v_max_f32 v{vt+2}, 0, v{vt+2}
v_cvt_pk_bf16_f32 v{vt+3}, v{vt+4}, v{vt+2}
v_lshlrev_b32 v{vt+4}, 16, v{vt+3}
v_and_b32 v{vt+2}, 0xffff0000, v{vt+3}
v_add_f32 v{vt+2}, 0x3727c5ac, v{vt+2}
v_cvt_pk_bf16_f32 v{vt+2}, v{vt+2}, v{vt+2}
v_and_b32 v{vt+2}, 0xffff0000, v{vt+2}
v_sqrt_f32 v{vt+2}, v{vt+2}""")
        for k in range(0, 10, 2):
            e(f"v_pk_add_f32 v[{vx+k}:{vx+k+1}], v[{vx+k}:{vx+k+1}], v[{vt+4}:{vt+5}] op_sel_hi:[1,0] neg_lo:[0,1] neg_hi:[0,1]")
        e(f"""v_cvt_pk_bf16_f32 v{vt+2}, v{vt+2}, v{vt+2}
v_and_b32 v{vt+2}, 0xffff0000, v{vt+2}
v_rcp_f32 v{vt+2}, v{vt+2}""")
        for k in range(0, 10, 2):
            a, b = vx + k, vx + k + 1
            e(f"""v_cvt_pk_bf16_f32 v{vt}, v{a}, v{b}
v_lshlrev_b32 v{a}, 16, v{vt}
v_and_b32 v{b}, 0xffff0000, v{vt}
v_pk_mul_f32 v[{a}:{b}], v[{a}:{b}], v[{vt+2}:{vt+3}] op_sel_hi:[1,0]""")

    def tree_sum(self, v0, n, width=4, stride=None):
        stride = stride or width
        step = 1
        while step < n:
            for k in range(0, n - step, 2 * step):
                for r in range(0, width, 2):
                    a = v0 + stride * k + r
                    b = v0 + stride * (k + step) + r
                    self.e(f"v_pk_add_f32 v[{a}:{a+1}], v[{a}:{a+1}], v[{b}:{b+1}]")
            step *= 2

    def build(self):
        nt = self.opt("nt", "none")
        nt = "" if nt == "none" else nt
        e = self.e
        self.o.append(f"; @launch grid=(256,1,1) block=(512,1,1) lds={LDS_BYTES}")
        self.o.append(HEADER)
        self.o.append('.amdgcn_target "amdgcn-amd-amdhsa--gfx950"')
        self.o.append(".text")
        self.o.append(f".globl {KN}")
        self.o.append(".p2align 8")
        self.o.append(f".type {KN},@function")
        self.label(KN)
        e("""s_load_dwordx16 s[16:31], s[0:1], 0
s_load_dwordx8 s[32:39], s[0:1], 64
s_memrealtime s[62:63]
s_cmp_ge_u32 s2, 256
s_cbranch_scc1 L_end
s_cmp_ge_u32 s2, 16
s_cbranch_scc1 L_nocp
s_getpc_b64 s[60:61]
v_lshlrev_b32 v6, 6, v0
v_min_u32 v6, (L_codeend-L_nocp-64), v6
global_load_dword v255, v6, s[60:61]
L_nocp:
s_and_b32 s8, s2, 7
s_lshr_b32 s9, s2, 3
s_and_b32 s4, s2, 127
v_lshrrev_b32 v1, 6, v0
v_and_b32 v2, 15, v0
v_readfirstlane_b32 s7, v1
v_and_b32 v1, 63, v0
v_bfe_u32 v3, v0, 4, 2
v_lshlrev_b32 v4, 2, v1
v_lshlrev_b32 v5, 4, v1
s_and_b32 s10, s9, 3
s_lshl_b32 s5, s8, 2
s_add_u32 s5, s5, s10
s_lshr_b32 s6, s9, 2
v_mov_b32 v11, 0""")
        if self.stamps:
            for i in range(76, 100):
                e(f"s_mov_b32 s{i}, 0")
        self.stamp(0)
        e("""s_or_b32 s10, s2, s7
s_cmp_lg_u32 s10, 0
s_cbranch_scc1 L_nomaster
s_waitcnt lgkmcnt(0)
s_mov_b32 s63, s62
s_mul_i32 s62, s62, 0x9e3779b1
s_or_b32 s62, s62, 1
v_mov_b32 v16, s62
v_mov_b32 v17, s63
v_lshlrev_b32 v18, 6, v1
s_mov_b64 exec, 15
global_store_dwordx2 v18, v[16:17], s[36:37] sc1
s_mov_b64 exec, -1
L_nomaster:
s_cmp_ge_u32 s7, 4
s_cbranch_scc1 L_hi""")
        self.commonA(nt)
        self.roleW(nt)
        self.roleKV(nt)
        self.label("L_fin")
        self.stamp_dump()
        self.label("L_end")
        e("s_endpgm")
        self.label("L_codeend")
        self.o.append(f""".section .rodata,"a"
.p2align 6
.amdhsa_kernel {KN}
  .amdhsa_next_free_vgpr 256
  .amdhsa_next_free_sgpr 100
  .amdhsa_accum_offset 256
  .amdhsa_group_segment_fixed_size 0
  .amdhsa_kernarg_size 96
  .amdhsa_user_sgpr_count 2
  .amdhsa_user_sgpr_kernarg_segment_ptr 1
  .amdhsa_system_sgpr_workgroup_id_x 1
.end_amdhsa_kernel""")
        return "\n".join(self.o) + "\n"

    def commonA(self, nt):
        e = self.e
        AB = 133248
        XT, QRED = AB, AB + 10240
        e("""s_mul_i32 s10, s6, 80
s_mul_i32 s11, s7, 20
s_add_u32 s10, s10, s11
s_lshl_b32 s11, s10, 13
s_lshl_b32 s12, s5, 8
s_add_u32 s11, s11, s12
v_lshlrev_b32 v6, 13, v3
v_lshl_add_u32 v6, v2, 4, v6
v_add_u32 v6, s11, v6
s_waitcnt lgkmcnt(0)""")
        for k in range(5):
            e(f"global_load_dword v{76+k}, v4, s[16:17] offset:{256*k}")
        for t in range(5):
            e(f"global_load_dwordx4 v[{16+4*t}:{19+4*t}], v6, s[20:21] {nt}")
            if t < 4:
                e("v_add_u32 v6, 0x8000, v6")
        self.stamp(11)
        self.srd(40, 38, WS_RECORDS)
        self.srd(56, 36, 256)
        self.masks(68, 2, 92, False)
        e(f"""s_mul_i32 s14, s7, 2560
s_add_u32 s14, s14, {XT}
v_lshlrev_b32 v8, 3, v1
v_add_u32 v8, s14, v8
s_lshl_b32 s15, s10, 2
s_add_u32 s15, s15, s14
v_lshl_add_u32 v9, v3, 2, s15
v_lshlrev_b32 v10, 5, v2
v_lshl_add_u32 v10, v3, 4, v10
s_lshl_b32 s14, s7, 9
s_add_u32 s14, s14, {QRED}
v_add_u32 v10, s14, v10
v_mov_b32 v227, {NB}
v_add_u32 v7, {QRED}, v5
s_lshl_b32 s68, s5, 12
s_add_u32 s68, s68, {Q1}
s_lshl_b32 s69, s6, 9
s_add_u32 s69, s69, s68
s_waitcnt vmcnt(5)""")
        for k in range(5):
            e(f"v_lshlrev_b32 v{82+2*k}, 16, v{76+k}\nv_and_b32 v{83+2*k}, 0xffff0000, v{76+k}")
        self.layernorm(82, 92, 62, 63)
        for k in range(5):
            e(f"""v_cvt_pk_bf16_f32 v{92+2*(k%2)}, v{82+2*k}, v{82+2*k}
v_cvt_pk_bf16_f32 v{93+2*(k%2)}, v{83+2*k}, v{83+2*k}
ds_write_b64 v8, v[{92+2*(k%2)}:{93+2*(k%2)}] offset:{512*k}""")
        e("s_waitcnt lgkmcnt(0)")
        for t in range(5):
            e(f"ds_read_b32 v{82+t}, v9 offset:{16*t}")
        e("s_waitcnt lgkmcnt(0)")
        for t in range(5):
            for r in range(4):
                e(f"v_and_b32 v{96+4*t+r}, v{82+t}, v{68+r}")
        ln = self.newlabel("a_nn")
        e(f"s_cmp_lg_u32 s7, 0\ns_cbranch_scc1 {ln}")
        self.wait_nonce(90)
        e(f"v_mov_b32 v90, s65\nv_mov_b32 v91, s29\nds_write_b64 v227, v[90:91] offset:{NON}")
        self.label(ln)
        for t in range(5):
            c = "0" if t == 0 else "v[116:119]"
            e(f"s_waitcnt vmcnt({4-t})")
            e(f"v_mfma_f32_16x16x32_bf16 v[116:119], v[{96+4*t}:{99+4*t}], v[{16+4*t}:{19+4*t}], {c}")
        self.stamp(1)
        e("s_nop 2")
        e(f"""s_nop 4
s_mov_b32 exec_hi, 0
ds_write_b128 v10, v[116:119]
s_mov_b64 exec, -1
s_waitcnt lgkmcnt(0)
s_barrier""")
        self.stamp(2)
        e("s_cmp_lg_u32 s7, 0\ns_cbranch_scc1 L_lo123")
        for wv in range(4):
            e(f"ds_read_b128 v[{120+4*wv}:{123+4*wv}], v7 offset:{512*wv}")
        self.set_tags()
        e("s_waitcnt lgkmcnt(0)")
        self.tree_sum(120, 4)
        self.tag4(120)
        e("""s_mov_b32 exec_hi, 0
buffer_store_dwordx4 v[120:123], v5, s[40:43], s69 offen
s_mov_b64 exec, -1
s_mov_b32 s73, s69
s_cmp_ge_u32 s9, 16
s_cbranch_scc1 L_kv_w0""")

    def get_nonce_lds(self, vt):
        self.e(f"""ds_read_b32 v{vt}, v227 offset:{NON}
s_waitcnt lgkmcnt(0)
v_readfirstlane_b32 s65, v{vt}""")
        self.set_tags()

    def roleW(self, nt):
        e = self.e
        QBF, QAL, CLX, RED, RED2 = 24576, 24832, 25600, 26624, 28672
        e("""v_and_b32 v8, 31, v1
v_lshlrev_b32 v8, 3, v8
v_lshrrev_b32 v9, 5, v1
v_lshl_add_u32 v8, v9, 2, v8""")

        def restore_q1():
            e("""s_mov_b32 exec_hi, 0
buffer_store_dwordx4 v[120:123], v5, s[40:43], s73 offen sc1
s_mov_b64 exec, -1""")
        self.restore_q1 = restore_q1
        if self.opt("sl_h1", 0):
            e(f"s_sleep {self.opt('sl_h1', 0)}")
        self.poll([(f"buffer_load_dwordx4 v[{124+4*k}:{127+4*k}], v5, s[40:43], s68 offen offset:{1024*k} sc1", 124 + 4 * k, 4) for k in range(4)], 'tag', 90, restore=restore_q1)
        self.stamp(3)
        self.tree_sum(124, 4)
        e(f"""s_nop 0
v_permlane32_swap_b32 v124, v126
v_permlane32_swap_b32 v125, v127
s_nop 0
v_pk_add_f32 v[124:125], v[124:125], v[126:127]
v_cvt_pk_bf16_f32 v124, v124, v125
ds_write_b32 v8, v124 offset:{QBF}
ds_write_b32 v11, v11 offset:{QAL + 268}
ds_write_b32 v11, v11 offset:{QAL + 284}
s_waitcnt lgkmcnt(0)
s_barrier""")
        e(f"""v_lshrrev_b32 v8, 1, v1
v_and_b32 v9, 1, v1
v_cmp_gt_u32 vcc, 8, v8
v_lshlrev_b32 v128, 4, v8
v_mul_u32_u24 v129, 48, v8
v_add_u32 v129, {-384+12 & 0xffffffff:#x}, v129
v_cndmask_b32 v128, v129, v128, vcc
v_lshl_add_u32 v128, v9, 7, v128
v_mov_b32 v129, 16
v_cndmask_b32 v130, v129, 4, vcc
v_add_u32 v129, v128, v130
v_add_u32 v130, v129, v130
v_mov_b32 v8, v5
s_lshl_b32 s10, s6, 5
s_add_u32 s10, s10, s5
s_mul_i32 s10, s10, 352
s_add_u32 s10, s10, {QA}
v_mov_b32 v127, s67
v_mov_b32 v90, s65""")
        self.sig_prep(0, 70)
        if self.opt("sig0_early", 1):
            self.sig_send(70, 90, 11)
        e(f"""s_mov_b32 exec_lo, 0x3fffff
s_mov_b32 exec_hi, 0
s_barrier
ds_read_b32 v124, v128 offset:{QAL}
ds_read_b32 v125, v129 offset:{QAL}
ds_read_b32 v126, v130 offset:{QAL}
s_waitcnt lgkmcnt(0)
buffer_store_dwordx4 v[124:127], v8, s[40:43], s10 offen sc1
s_mov_b64 exec, -1""")
        if not self.opt("sig0_early", 1):
            self.sig_send(70, 90, 11)
        self.stamp(4)
        self.dbgtime(4, 0)
        self.dbgtime(5, 77)
        e("s_branch L_w_join")
        self.label("L_lo123")
        e("s_cmp_ge_u32 s9, 16\ns_cbranch_scc1 L_kv_lo")
        self.get_nonce_lds(90)
        e("s_barrier\ns_barrier\ns_branch L_w_join")
        self.label("L_hi")
        e(f"""s_lshr_b32 s13, s6, 1
s_lshl_b32 s13, s13, 6
s_and_b32 s14, s6, 1
s_lshl_b32 s14, s14, 8
s_add_u32 s13, s13, s14
s_bfe_u32 s14, s7, 0x10001
s_lshl_b32 s14, s14, 7
s_add_u32 s13, s13, s14
s_and_b32 s14, s7, 1
s_lshl_b32 s14, s14, 5
s_add_u32 s13, s13, s14
s_lshl_b32 s13, s13, 13
s_lshl_b32 s12, s5, 8
s_add_u32 s13, s13, s12
v_xor_b32 v7, v2, v3
v_lshlrev_b32 v7, 4, v7
v_lshl_add_u32 v7, v3, 13, v7
v_mov_b32 v227, {NB}
s_waitcnt lgkmcnt(0)""")
        self.srd(56, 36, 256)
        self.srd(40, 38, WS_RECORDS)
        e("s_cmp_ge_u32 s9, 16\ns_cbranch_scc1 L_kv_hi")
        lpw = self.newlabel("w_pw")
        e(f"""s_cmp_lg_u32 s7, 4
s_cbranch_scc1 {lpw}
s_lshl_b32 s68, s5, 12
s_add_u32 s68, s68, {Q1}
v_lshlrev_b32 v8, 6, v1
buffer_load_dword v91, v8, s[40:43], s68 offen sc1""")
        self.label(lpw)
        ntk = self.opt("nt_wuk", nt)
        if ntk == "none":
            ntk = ""
        if self.opt("sl_wuk", 1):
            e(f"s_sleep {self.opt('sl_wuk', 1)}")
        WKL = 32768
        self.srd(52, 22, 4194304)
        e(f"""s_sub_u32 s14, s7, 4
s_lshl_b32 s14, s14, 13
s_add_u32 s14, s14, {WKL}
v_lshlrev_b32 v6, 8, v2
v_add_u32 v6, s14, v6""")
        for k in range(8):
            e(f"""s_mov_b32 m0, s14
v_xor_b32 v8, {64*(k&3)}, v7
buffer_load_dwordx4 v8, s[52:55], s13 offen {ntk} lds
s_add_u32 s14, s14, 1024
s_add_u32 s13, s13, 32768""")
        self.stamp(2)
        for t in range(4):
            e(f"""v_or_b32 v8, {4*t}, v3
v_xor_b32 v8, v8, v2
v_lshl_add_u32 v{100+t}, v8, 4, v6""")
        e(f"""v_lshlrev_b32 v9, 4, v3
s_sub_u32 s14, s7, 4
s_lshl_b32 s14, s14, 6
v_lshl_add_u32 v8, v3, 3, s14
s_barrier""")
        self.get_nonce_lds(90)
        e("s_waitcnt vmcnt(0)")
        self.stamp(1)
        for t in range(4):
            e(f"ds_read_b128 v[{36+4*t}:{39+4*t}], v{100+t}\nds_read_b128 v[{52+4*t}:{55+4*t}], v{100+t} offset:4096")
        e("s_waitcnt lgkmcnt(0)\ns_barrier")
        for t in range(4):
            e(f"ds_read_b128 v[{120+4*t}:{123+4*t}], v9 offset:{QBF + 64*t}")
        for t in range(4):
            c0 = "0" if t == 0 else "v[116:119]"
            c1 = "0" if t == 0 else "v[136:139]"
            e(f"s_waitcnt lgkmcnt({3-t})")
            e(f"v_mfma_f32_16x16x32_bf16 v[116:119], v[{36+4*t}:{39+4*t}], v[{120+4*t}:{123+4*t}], {c0}")
            e(f"v_mfma_f32_16x16x32_bf16 v[136:139], v[{52+4*t}:{55+4*t}], v[{120+4*t}:{123+4*t}], {c1}")
        e(f"""s_nop 6
v_cvt_pk_bf16_f32 v140, v116, v117
v_cvt_pk_bf16_f32 v141, v118, v119
v_cvt_pk_bf16_f32 v142, v136, v137
v_cvt_pk_bf16_f32 v143, v138, v139
ds_write_b64 v8, v[140:141] offset:{QAL}
ds_write_b64 v8, v[142:143] offset:{QAL + 32}
s_waitcnt lgkmcnt(0)
s_barrier""")
        self.label("L_w_join")
        self.masks(72, 2, 92, True)
        if self.opt("sl_de", 0):
            e(f"s_sleep {self.opt('sl_de', 0)}")
        nto = self.opt("nt_wo", nt)
        e("""s_lshr_b32 s10, s6, 1
s_and_b32 s11, s6, 1
v_lshrrev_b32 v6, 3, v2
v_lshl_add_u32 v6, v6, 2, v3
v_lshlrev_b32 v7, 4, v6
v_lshlrev_b32 v6, 13, v6
v_and_b32 v8, 7, v2
v_lshl_add_u32 v6, v8, 4, v6
s_lshl_b32 s12, s10, 8
s_lshl_b32 s13, s7, 5
s_add_u32 s12, s12, s13
s_lshl_b32 s12, s12, 13
s_lshl_b32 s13, s5, 8
s_add_u32 s12, s12, s13
s_lshl_b32 s13, s11, 7
s_add_u32 s12, s12, s13
v_add_u32 v6, s12, v6""")
        for t in range(4):
            e(f"global_load_dwordx4 v[{16+4*t}:{19+4*t}], v6, s[24:25] {nt}")
            if t < 3:
                e("v_add_u32 v6, 0x10000, v6")
        lwo = self.newlabel("w_nowo")
        e(f"""s_cmp_ge_u32 s7, 4
s_cbranch_scc1 {lwo}
v_mul_u32_u24 v6, 5120, v3
v_lshl_add_u32 v6, v2, 4, v6
s_lshl_b32 s12, s5, 7
s_lshl_b32 s13, s11, 6
s_add_u32 s12, s12, s13
s_lshl_b32 s13, s7, 4
s_add_u32 s12, s12, s13
s_mul_i32 s12, s12, 1280
v_add_u32 v6, s12, v6""")
        for t in range(4):
            for b in range(5):
                r = 160 + (t * 5 + b) * 4
                e(f"global_load_dwordx4 v[{r}:{r+3}], v6, s[26:27] offset:{1280*(t%2) + 256*b} {nto}")
            if t == 1:
                e("v_add_u32 v6, 2560, v6")
        lfp = self.newlabel("w_fgp")
        e(f"s_branch {lfp}")
        self.label(lwo)
        if self.opt("pf_fg", 0):
            pol = self.opt("pf_pol", "none").replace("none", "")
            e(f"""s_lshr_b32 s12, s9, 2
s_lshl_b32 s12, s12, 3
s_add_u32 s12, s12, s8
s_cmp_ge_u32 s12, 27
s_cbranch_scc1 {lfp}
s_and_b32 s13, s9, 3
s_sub_u32 s14, s7, 4
s_mul_i32 s14, s14, 40
v_add_u32 v6, s14, v1
s_lshl_b32 s15, s12, 2
s_add_u32 s15, s15, s13
s_mul_i32 s15, s15, 20480
v_lshlrev_b32 v8, 7, v6
v_add_u32 v8, s15, v8
s_mul_i32 s13, s13, 160
v_add_u32 v6, s13, v6
v_mul_u32_u24 v6, 3456, v6
s_lshl_b32 s12, s12, 7
v_add_u32 v6, s12, v6
s_mov_b32 exec_hi, 0xff
global_load_dword v160, v8, s[32:33] {pol}
global_load_dword v161, v6, s[30:31] {pol}
s_mov_b64 exec, -1""")
        self.label(lfp)
        e(f"""v_and_b32 v8, 1, v3
v_lshlrev_b32 v8, 1, v8
v_lshrrev_b32 v9, 1, v3
v_or_b32 v8, v8, v9
v_and_b32 v9, 1, v1
v_lshl_add_u32 v8, v9, 2, v8
v_bfe_u32 v9, v1, 1, 2
v_lshl_add_u32 v8, v8, 2, v9
v_lshlrev_b32 v8, 2, v8
s_lshl_b32 s12, s7, 7
v_add_u32 v8, s12, v8
v_add_u32 v7, s12, v7
v_lshrrev_b32 v9, 3, v1
v_lshlrev_b32 v10, 4, v9
v_lshlrev_b32 v9, 11, v9
v_and_b32 v6, 7, v1
v_lshl_add_u32 v9, v6, 4, v9
s_lshl_b32 s12, s5, 15
s_lshl_b32 s13, s10, 10
s_add_u32 s12, s12, s13
s_lshl_b32 s13, s7, 7
s_add_u32 s12, s12, s13
s_add_u32 s12, s12, {OB}
s_add_u32 s13, s12, 16384
s_lshl_b32 s68, s5, 8
s_add_u32 s68, s68, {OS}
v_and_b32 v36, 7, v2
v_lshlrev_b32 v36, 5, v36
v_lshl_add_u32 v36, v3, 4, v36
s_lshl_b32 s61, s7, 8
v_add_u32 v36, s61, v36
s_lshl_b32 s61, s7, 6
v_lshl_add_u32 v37, v3, 4, s61
v_lshlrev_b32 v38, 5, v2
v_lshl_add_u32 v38, v3, 4, v38
s_mul_i32 s61, s7, 2560
v_add_u32 v38, s61, v38
v_subrev_u32 v39, 256, v0
v_lshrrev_b32 v40, 3, v39
v_lshlrev_b32 v40, 11, v40
v_and_b32 v41, 7, v39
v_lshl_add_u32 v40, v41, 4, v40
v_lshlrev_b32 v41, 4, v39
s_mul_i32 s69, s8, {20*2048}
s_lshl_b32 s61, s9, 7
s_add_u32 s69, s69, s61
s_add_u32 s69, s69, {EL}
s_and_b32 s61, s4, 0x67
v_mov_b32 v42, s65
s_mov_b32 s62, {LOG2E:#x}""")
        self.sig_prep(1, 70, "s61")
        self.sig_prep(2, 71)
        self.sig_prep(3, 72)
        e("s_waitcnt vmcnt(0)")
        self.stamp(5)
        lrq = self.newlabel("w_rq")
        lpe = self.newlabel("w_pe")
        e(f"""s_cmp_lg_u32 s7, 0
s_cbranch_scc1 {lrq}
s_mov_b32 exec_hi, 0
buffer_store_dwordx4 v[120:123], v5, s[40:43], s73 offen sc1
s_mov_b64 exec, -1""")
        self.label(lrq)
        e(f"""s_sub_u32 s61, s7, 4
s_lshl_b32 s61, s61, 4
s_add_u32 s61, s61, s9
s_cmp_ge_u32 s61, 20
s_cbranch_scc1 {lpe}
s_mul_i32 s63, s8, 20
s_add_u32 s63, s63, s61
s_lshl_b32 s63, s63, 11
s_add_u32 s63, s63, {EL}
v_lshlrev_b32 v44, 5, v1
buffer_load_dword v45, v44, s[40:43], s63 offen sc1""")
        self.label(lpe)
        self.sig_wait(71, 44, 11, self.opt("t_h3", 135))
        self.stamp(6)
        loads = [(f"buffer_load_dwordx4 v[{48+4*k}:{51+4*k}], v10, s[40:43], s68 offen offset:{128*k} sc1", 48 + 4 * k, 4) for k in range(2)]
        loads += [(f"buffer_load_dwordx4 v[{120+4*k}:{123+4*k}], v9, s[40:43], s{12+k} offen sc1", 120 + 4 * k, 4) for k in range(2)]
        lh3 = self.newlabel("w_h3")
        e("s_mov_b32 s60, 0")
        self.label(lh3)
        for ins in loads:
            e(ins[0])
        e("s_add_u32 s60, s60, 1\ns_waitcnt vmcnt(2)")
        ops = self.chk_ops(list(range(48, 56)) + list(range(120, 128)), 47)
        ops1, ops2 = ops[:8], ops[8:]
        t = """v_and_b32 v140, s64, v48
v_and_b32 v142, s64, v52
v_max_f32 v44, v140, v142
s_nop 1
v_max_f32_dpp v44, v44, v44 row_ror:8 row_mask:0xf bank_mask:0xf
s_nop 0
v_mov_b32 v45, v44
s_nop 1
v_permlane16_swap_b32 v44, v45
s_nop 0
v_max_f32 v44, v44, v45
v_mov_b32 v45, v44
s_nop 1
v_permlane32_swap_b32 v44, v45
s_nop 0
v_max_f32 v44, v44, v45
v_mul_f32 v44, s62, v44
v_fma_f32 v140, v140, s62, -v44
v_fma_f32 v142, v142, s62, -v44
v_exp_f32 v140, v140
v_exp_f32 v142, v142
s_nop 0
v_mul_f32 v46, v140, v49
v_fmac_f32 v46, v142, v53
s_nop 1
v_add_f32_dpp v46, v46, v46 row_ror:8 row_mask:0xf bank_mask:0xf
s_nop 0
v_mov_b32 v45, v46
s_nop 1
v_permlane16_swap_b32 v46, v45
s_nop 0
v_add_f32 v46, v46, v45
v_mov_b32 v45, v46
SLOT 16
s_waitcnt vmcnt(0)
"""
        self.fill(t, ops1)
        t = """v_pk_mul_f32 v[148:149], v[120:121], v[140:141] op_sel_hi:[1,0]
v_pk_mul_f32 v[150:151], v[122:123], v[140:141] op_sel_hi:[1,0]
v_permlane32_swap_b32 v46, v45
v_pk_fma_f32 v[148:149], v[124:125], v[142:143], v[148:149] op_sel_hi:[1,0,1]
v_add_f32 v46, v46, v45
v_pk_fma_f32 v[150:151], v[126:127], v[142:143], v[150:151] op_sel_hi:[1,0,1]
v_rcp_f32 v46, v46
"""
        t += f"""s_nop 0
v_permlane32_swap_b32 v148, v149
v_permlane32_swap_b32 v150, v151
s_nop 0
v_add_f32 v148, v148, v149
v_add_f32 v150, v150, v151
s_nop 1
v_permlane16_swap_b32 v148, v150
s_nop 0
v_add_f32 v148, v148, v150
s_nop 1
v_add_f32_dpp v148, v148, v148 row_ror:8 row_mask:0xf bank_mask:0xf
s_nop 0
v_mul_f32 v148, v148, v46
v_cvt_pk_bf16_f32 v148, v148, v148
ds_write_b32 v8, v148 offset:{CLX}
SLOT 16
v_and_b32 v47, 0xff, v47
s_waitcnt lgkmcnt(0)
ds_read_b128 v[152:155], v7 offset:{CLX}
v_cmp_ne_u32 vcc, 0, v47
s_cmp_lt_u32 s60, {SPIN_LIMIT}
s_cselect_b64 vcc, vcc, 0
s_cmp_lg_u64 vcc, 0
s_waitcnt lgkmcnt(0)
s_cbranch_scc1 {lh3}
"""
        self.fill(t, ops2)
        self.stamp(7)
        for t in range(4):
            for r in range(4):
                e(f"v_and_b32 v{96+4*t+r}, v{152+t}, v{72+r}")
            if t > 0:
                c = "0" if t == 1 else "v[116:119]"
                e(f"v_mfma_f32_16x16x32_bf16 v[116:119], v[{96+4*(t-1)}:{99+4*(t-1)}], v[{16+4*(t-1)}:{19+4*(t-1)}], {c}")
        e("s_nop 0\nv_mfma_f32_16x16x32_bf16 v[116:119], v[108:111], v[28:31], v[116:119]\ns_nop 7")
        for r in range(4):
            e(f"v_mov_b32 v{124+r}, v{116+r}")
        for r in range(4):
            e(f"v_permlane32_swap_b32 v{116+r}, v{124+r}")
        for r in range(4):
            e(f"v_add_f32_dpp v{116+r}, v{124+r}, v{116+r} row_ror:8 row_mask:0xf bank_mask:0xf")
        e(f"""s_mov_b32 exec_lo, 0x00ff00ff
s_mov_b32 exec_hi, 0
ds_write_b128 v36, v[116:119] offset:{RED}
s_mov_b64 exec, -1
s_waitcnt lgkmcnt(0)
s_barrier""")
        lhi = self.newlabel("w_hi")
        e(f"s_cmp_ge_u32 s7, 4\ns_cbranch_scc1 {lhi}")
        for p in range(8):
            e(f"ds_read_b128 v[{120+4*p}:{123+4*p}], v37 offset:{RED + 256*p}")
        e("s_waitcnt lgkmcnt(0)")
        self.tree_sum(120, 8)
        for t in range(4):
            e(f"v_cvt_pk_bf16_f32 v{124+t}, v{120+t}, v{120+t}")
        for t in range(4):
            for r in range(4):
                e(f"v_and_b32 v{96+4*t+r}, v{124+t}, v{68+r}")
            e("s_nop 1")
            for b in range(5):
                r = 160 + (t * 5 + b) * 4
                c = "0" if t == 0 else f"v[{136+4*b}:{139+4*b}]"
                e(f"v_mfma_f32_16x16x32_bf16 v[{136+4*b}:{139+4*b}], v[{96+4*t}:{99+4*t}], v[{r}:{r+3}], {c}")
        e("s_mov_b32 exec_hi, 0\ns_nop 3")
        for b in range(5):
            if b == 4:
                e("s_nop 3")
            e(f"ds_write_b128 v38, v[{136+4*b}:{139+4*b}] offset:{RED2 + 512*b}")
        e("s_mov_b64 exec, -1\ns_waitcnt lgkmcnt(0)\ns_barrier")
        self.stamp(8)
        self.dbgtime(8, 5)
        e("""s_cmp_ge_u32 s4, 40
s_cbranch_scc1 L_fin
s_cmp_lg_u32 s7, 0
s_cbranch_scc1 L_fin""")
        self.colidx(8, 9)
        self.srd(44, 16, 1280)
        self.srd(52, 34, 1280)
        e(f"""s_lshl_b32 s12, s4, 5
v_lshlrev_b32 v9, 1, v8
buffer_load_ushort v50, v9, s[44:47], s12 offen
s_mul_i32 s12, s4, 7168
s_add_u32 s12, s12, {FB}
s_add_u32 s13, s12, 4096
v_cmp_gt_u32 vcc, 48, v1
v_add_u32 v10, 1024, v5
s_nop 0
v_cndmask_b32 v10, v5, v10, vcc
v_bfe_u32 v51, v1, 2, 3
v_mul_u32_u24 v51, 2560, v51
v_and_b32 v52, 3, v1
v_lshl_add_u32 v51, v52, 4, v51
s_lshl_b32 s14, s4, 6
s_add_u32 s14, s14, {XB}""")
        self.sig_prep(4, 70)
        self.sig_wait(72, 16, 11, self.opt("t_h5", 42) + 25)
        self.poll([("buffer_load_dwordx4 v[44:47], v51, s[40:43], s14 offen sc1", 44, 4)], 'tag', 53)
        e("v_cmp_gt_u32 vcc, 32, v1\ns_nop 1")
        for r in range(4):
            e(f"v_cndmask_b32 v{44+r}, 0, v{44+r}, vcc")
        self.reduce16(44, 1)
        e(f"""v_cvt_pk_bf16_f32 v44, v44, v44
v_and_b32 v44, 0xffff0000, v44
v_lshlrev_b32 v50, 16, v50
v_add_f32 v44, v44, v50
v_cvt_pk_bf16_f32 v44, v44, v44
v_and_b32 v44, 0xffff0000, v44
s_lshl_b32 s15, s4, 5
s_mov_b32 s62, 0x000f000f
s_mov_b32 s63, 0x000f000f
v_cmp_gt_u32 s[68:69], 48, v1""")
        self.sig_wait(70, 16, 11, self.opt("t_h6", 45))
        loads = [(f"buffer_load_dwordx4 v[{16+4*k}:{19+4*k}], v5, s[40:43], s{12 + k//4} offen offset:{1024*(k%4)} sc1", 16 + 4 * k, 4) for k in range(6)]
        loads += [("buffer_load_dwordx4 v[40:43], v10, s[40:43], s13 offen offset:1024 sc1", 40, 4)]
        loads = [loads[6]] + loads[:6]

        def fix0():
            for r in range(4):
                e(f"v_cndmask_b32 v{40+r}, 0, v{40+r}, s[68:69]")
        self.poll_sum(loads, 53, 56, fix={0: fix0})
        self.stamp(9)
        self.reduce16(56, 1)
        e(f"""s_nop 0
v_cvt_pk_bf16_f32 v16, v56, v56
v_and_b32 v16, 0xffff0000, v16
v_add_f32 v16, v16, v44
v_cvt_pk_bf16_f32 v16, v16, v16
s_mov_b64 exec, s[62:63]
buffer_store_short v16, v9, s[52:55], s15 offen
s_mov_b64 exec, -1""")
        self.stamp(10)
        if self.opt("pad", 0):
            lp = self.newlabel("pad")
            e("s_load_dword s12, s[36:37], 4 glc\ns_waitcnt lgkmcnt(0)")
            self.label(lp)
            e(f"""s_memrealtime s[10:11]
s_waitcnt lgkmcnt(0)
s_sub_u32 s10, s10, s12
s_cmp_lt_u32 s10, {self.opt("pad", 0)}
s_cbranch_scc1 {lp}""")
        self.dbgtime(2, 0)
        self.dbgtime(3, 39)
        e("s_branch L_fin")
        self.label(lhi)
        e(f"""s_sub_u32 s10, s7, 4
s_lshl_b32 s10, s10, 4
s_add_u32 s10, s10, s9
s_mul_i32 s12, s8, 20
s_add_u32 s12, s12, s10
s_lshl_b32 s12, s12, 11
s_add_u32 s12, s12, {EL}
s_mul_i32 s13, s8, 2560
s_lshl_b32 s14, s10, 7
s_add_u32 s13, s13, s14
s_add_u32 s13, s13, {XB}
v_cmp_gt_u32 vcc, 160, v39
s_and_saveexec_b64 s[62:63], vcc
s_barrier
s_cbranch_execz L_fin""")
        for wv in range(4):
            e(f"ds_read_b128 v[{120+4*wv}:{123+4*wv}], v41 offset:{RED2 + 2560*wv}")
        e("s_waitcnt lgkmcnt(0)")
        self.tree_sum(120, 4)
        self.tag4(120)
        e("buffer_store_dwordx4 v[120:123], v40, s[40:43], s69 offen")
        self.stamp(8)

        def restore_el():
            e("buffer_store_dwordx4 v[120:123], v40, s[40:43], s69 offen sc1")
        lnr = self.newlabel("w_nored")
        e(f"s_cmp_ge_u32 s10, 20\ns_cbranch_scc1 {lnr}")
        self.poll([(f"buffer_load_dwordx4 v[{124+4*k}:{127+4*k}], v5, s[40:43], s12 offen offset:{1024*k} sc1", 124 + 4 * k, 4) for k in range(2)], 'tag', 44, restore=restore_el)
        self.stamp(9)
        lns = self.newlabel("w_nosig")
        e(f"s_cmp_lg_u32 s7, 4\ns_cbranch_scc1 {lns}")
        self.sig_send(72, 42, 11)
        self.label(lns)
        self.tree_sum(124, 2)
        e("s_nop 0")
        for r in range(4):
            e(f"v_add_f32_dpp v{124+r}, v{124+r}, v{124+r} row_ror:8 row_mask:0xf bank_mask:0xf")
        for r in range(4):
            e(f"v_mov_b32 v{128+r}, v{124+r}")
        for r in range(4):
            e(f"v_permlane16_swap_b32 v{124+r}, v{128+r}")
        self.tree_sum(124, 2)
        for r in range(4):
            e(f"v_mov_b32 v{128+r}, v{124+r}")
        for r in range(4):
            e(f"v_permlane32_swap_b32 v{124+r}, v{128+r}")
        self.tree_sum(124, 2)
        self.tag4(124)
        e("""s_mov_b64 exec, 0xff
buffer_store_dwordx4 v[124:127], v5, s[40:43], s13 offen sc1
s_mov_b64 exec, -1""")
        self.stamp(10)
        self.label(lnr)
        e(f"s_sleep {self.opt('sl_el', 64)}")
        restore_el()
        e("s_branch L_fin")

    def colidx(self, vd, vt):
        self.e(f"""v_and_b32 v{vd}, 1, v3
v_lshlrev_b32 v{vd}, 1, v{vd}
v_lshrrev_b32 v{vt}, 1, v3
v_or_b32 v{vd}, v{vd}, v{vt}
v_and_b32 v{vt}, 3, v1
v_lshl_add_u32 v{vd}, v{vt}, 2, v{vd}""")

    def reduce16(self, v0, n):
        e = self.e
        self.tree_sum(v0, n)
        a = v0
        e(f"""s_nop 1
v_permlane32_swap_b32 v{a}, v{a+1}
v_permlane32_swap_b32 v{a+2}, v{a+3}
s_nop 0
v_add_f32 v{a}, v{a}, v{a+1}
v_add_f32 v{a+2}, v{a+2}, v{a+3}
s_nop 1
v_permlane16_swap_b32 v{a}, v{a+2}
s_nop 0
v_add_f32 v{a}, v{a}, v{a+2}
s_nop 1
v_add_f32_dpp v{a}, v{a}, v{a} row_ror:8 row_mask:0xf bank_mask:0xf
s_nop 1
v_add_f32_dpp v{a}, v{a}, v{a} row_ror:4 row_mask:0xf bank_mask:0xf""")

    def acc(self, k):
        return 168 + 4 * k if k < 11 else 64 + 4 * (k - 11)

    def roleKV(self, nt):
        e = self.e
        RT, BT, QL, XCH, PL, SL = 0, 67584, 4096, 49152, 4096, 36864
        W1L, HN, HF = 24576, 45056, 50176

        def ids():
            e(f"""s_bfe_u32 s10, s9, 0x10003
s_lshl_b32 s5, s8, 1
s_add_u32 s5, s5, s10
s_and_b32 s6, s9, 7""")
            self.srd(44, 18, 8388608)
            e(f"""s_lshl_b32 s10, s5, 3
s_add_u32 s10, s10, s6
s_mul_i32 s68, s10, {4*PMSG}
s_add_u32 s68, s68, {PB}
s_lshl_b32 s69, s5, 7
s_add_u32 s69, s69, {RDY}""")

        def rows(done):
            e(f"""s_sub_u32 s15, s7, 1
s_lshl_b32 s12, s5, 9
s_lshl_b32 s13, s6, 6
s_add_u32 s12, s12, s13
s_add_u32 s12, s12, s15
s_lshl_b32 s12, s12, 10
s_mul_i32 s14, s15, 1040
s_add_u32 s14, s14, {RT}""")
            for k in range(11):
                if k == 10:
                    e(f"s_cmp_ge_u32 s15, 4\ns_cbranch_scc1 {done}")
                e(f"""s_mov_b32 m0, s14
s_add_u32 s14, s14, {6*1040}
buffer_load_dwordx4 v5, s[44:47], s12 offen {nt} lds
s_add_u32 s12, s12, {6*1024}""")
        lj = "L_kv_join"
        self.label("L_kv_w0")
        ids()
        e(f"s_branch {lj}")
        self.label("L_kv_lo")
        ids()
        if self.opt("t_rows", 0):
            self.label("L_kv_rows")
            e(f"ds_read_b32 v90, v227 offset:4\ns_waitcnt lgkmcnt(0)\nv_readfirstlane_b32 s29, v90")
            self.until(self.opt("t_rows", 0))
        rows(lj)
        e(f"s_branch {lj}")
        self.label("L_kv_hi")
        ids()
        l7 = self.newlabel("kv_w7")
        lrd = self.newlabel("kv_rowsd")
        e(f"s_cmp_eq_u32 s7, 7\ns_cbranch_scc1 {l7}")
        if self.opt("t_rows", 0):
            e("s_barrier\ns_branch L_kv_rows")
        else:
            if self.opt("sl_ckv", 14):
                e(f"s_sleep {self.opt('sl_ckv', 14)}")
            rows(lrd)
            self.label(lrd)
            e(f"s_barrier\ns_branch {lj}")
        self.label(l7)
        e("""v_mov_b32 v20, -1
v_mov_b32 v21, -1
v_mov_b32 v22, -1
v_mov_b32 v23, -1
buffer_store_dwordx4 v[20:23], v5, s[40:43], s68 offen sc1
buffer_store_dwordx4 v[20:23], v5, s[40:43], s68 offen offset:1024 sc1
buffer_store_dwordx4 v[20:23], v5, s[40:43], s68 offen offset:2048 sc1
buffer_store_dwordx4 v[20:23], v5, s[40:43], s68 offen offset:3072 sc1
buffer_store_dwordx4 v[20:23], v5, s[40:43], s68 offen offset:3584 sc1""")
        e(f"""ds_write_b32 v227, v11 offset:{FLG}
ds_write_b32 v227, v11 offset:{FLG+4}
s_waitcnt lgkmcnt(0)
s_barrier
ds_read_b32 v60, v227 offset:{NON}
s_lshl_b32 s12, s6, 3
s_add_u32 s12, s12, s69
s_waitcnt vmcnt(0) lgkmcnt(0)
s_getreg_b32 s13, hwreg(HW_REG_XCC_ID)
v_mov_b32 v61, s13
v_mov_b32 v62, v60
v_mov_b32 v63, v60
s_mov_b64 exec, 1
buffer_store_dwordx2 v[60:61], v11, s[40:43], s12 offen sc1
s_mov_b64 exec, -1
v_readfirstlane_b32 s65, v60
s_mov_b32 s60, 0""")
        lr = self.newlabel("kv_rdy")
        lrdn = self.newlabel("kv_rdyd")
        self.label(lr)
        e(f"""s_load_dwordx16 s[76:91], s[38:39], s69 glc
s_add_u32 s60, s60, 1
s_cmp_ge_u32 s60, {SPIN_LIMIT}
s_cbranch_scc1 {lrdn}
s_waitcnt lgkmcnt(0)
s_xor_b32 s76, s76, s65
s_xor_b32 s78, s78, s65
s_xor_b32 s80, s80, s65
s_xor_b32 s82, s82, s65
s_xor_b32 s84, s84, s65
s_xor_b32 s86, s86, s65
s_xor_b32 s88, s88, s65
s_xor_b32 s90, s90, s65
s_or_b32 s76, s76, s78
s_or_b32 s76, s76, s80
s_or_b32 s76, s76, s82
s_or_b32 s76, s76, s84
s_or_b32 s76, s76, s86
s_or_b32 s76, s76, s88
s_or_b32 s76, s76, s90
s_cbranch_scc1 {lr}""")
        self.label(lrdn)
        e(f"""s_waitcnt lgkmcnt(0)
s_xor_b32 s77, s77, s13
s_xor_b32 s79, s79, s13
s_xor_b32 s81, s81, s13
s_xor_b32 s83, s83, s13
s_xor_b32 s85, s85, s13
s_xor_b32 s87, s87, s13
s_xor_b32 s89, s89, s13
s_xor_b32 s91, s91, s13
s_or_b32 s77, s77, s79
s_or_b32 s77, s77, s81
s_or_b32 s77, s77, s83
s_or_b32 s77, s77, s85
s_or_b32 s77, s77, s87
s_or_b32 s77, s77, s89
s_or_b32 s77, s77, s91
v_mov_b32 v8, s77
ds_write_b32 v227, v8 offset:8
s_mul_i32 s12, s5, {32*PMSG}
s_add_u32 s12, s12, {PB}
v_mul_u32_u24 v8, 96, v1
buffer_load_dword v250, v8, s[40:43], s12 offen sc1
s_add_u32 s12, s12, 6144
buffer_load_dword v251, v8, s[40:43], s12 offen sc1
s_add_u32 s12, s12, 6144
buffer_load_dword v252, v8, s[40:43], s12 offen sc1
s_add_u32 s12, s12, 6144
buffer_load_dword v253, v8, s[40:43], s12 offen sc1
s_add_u32 s12, s12, 6144
buffer_load_dword v254, v8, s[40:43], s12 offen sc1
s_add_u32 s12, s12, 6144
buffer_load_dword v255, v8, s[40:43], s12 offen sc1
s_add_u32 s12, s12, 6144
s_waitcnt lgkmcnt(0)""")
        self.label(lj)
        e(f"""s_lshr_b32 s10, s7, 2
s_lshl_b32 s10, s10, 7
s_bfe_u32 s11, s7, 0x10001
s_mul_i32 s11, s11, {32*1040}
s_add_u32 s10, s10, s11
s_add_u32 s10, s10, {RT}
v_mul_u32_u24 v231, 1040, v2
v_lshl_add_u32 v231, v3, 8, v231
v_add_u32 v231, s10, v231""")
        e(f"""s_lshl_b32 s48, s7, 10
s_add_u32 s49, s48, {QA}
s_add_u32 s48, s48, {QL}
s_lshr_b32 s10, s7, 2
s_mul_i32 s10, s10, {64*352}
s_and_b32 s11, s7, 1
s_mul_i32 s12, s11, {16*352}
s_add_u32 s10, s10, s12
v_mov_b32 v10, v5
v_lshrrev_b32 v6, 1, v3
v_lshl_add_u32 v6, v6, 5, v2
v_mul_u32_u24 v6, 352, v6
v_and_b32 v8, 1, v3
v_lshl_add_u32 v6, v8, 4, v6
v_add_u32 v6, s10, v6
s_and_b32 s10, s7, 3
s_lshl_b32 s10, s10, 11
v_add_u32 v9, s10, v5
s_lshl_b32 s10, s7, 12
v_add_u32 v7, s10, v5
s_and_b32 s10, s7, 3
s_mul_i32 s10, s10, {PMSG}
s_add_u32 s50, s68, s10
v_lshlrev_b32 v212, 3, v2
s_mul_i32 s51, s5, {32*PMSG}
s_mul_i32 s10, s7, {4*PMSG}
s_add_u32 s51, s51, s10
s_add_u32 s51, s51, {PB}
v_mul_u32_u24 v213, {PMSG}, v3
v_add_u32 v213, v213, v212
v_and_b32 v214, 31, v1
v_lshlrev_b32 v214, 4, v214
v_lshrrev_b32 v8, 1, v3
v_lshl_add_u32 v214, v8, 3, v214
s_lshl_b32 s10, s7, 9
v_add_u32 v214, s10, v214
s_lshr_b32 s12, s7, 2
s_lshl_b32 s10, s11, 10
s_lshl_b32 s13, s12, 14
s_add_u32 s10, s10, s13
v_add_u32 v215, s10, v10
s_lshl_b32 s10, s11, 4
v_add_u32 v216, s10, v2
v_lshlrev_b32 v217, 4, v216
s_lshl_b32 s10, s12, 11
v_add_u32 v217, s10, v217
v_xor_b32 v228, 0x800, v217
v_lshlrev_b32 v218, 15, v216
v_lshl_add_u32 v218, v3, 4, v218
s_lshl_b32 s52, s5, 11
s_lshl_b32 s10, s6, 8
s_add_u32 s52, s52, s10
s_bfe_u32 s10, s7, 0x10001
s_lshl_b32 s10, s10, 7
s_add_u32 s52, s52, s10
s_lshl_b32 s10, s12, 6
s_add_u32 s52, s52, s10
s_add_u32 s52, s52, {OB}
v_lshlrev_b32 v219, 8, v216
s_lshl_b32 s53, s5, 4
s_add_u32 s53, s53, {OS}
s_mov_b32 s54, {SCALE:#x}
s_mov_b32 s55, {LOG2E:#x}
v_mov_b32 v221, 1
v_lshlrev_b32 v8, 1, v3
v_and_b32 v222, 7, v1
v_xor_b32 v8, v8, v222
v_lshrrev_b32 v222, 3, v1
v_lshlrev_b32 v222, 10, v222
v_lshl_add_u32 v222, v8, 4, v222
s_lshl_b32 s10, s7, 10
v_add_u32 v226, s10, v5
s_lshl_b32 s74, s5, 9
s_lshl_b32 s13, s7, 6
s_add_u32 s74, s74, s13
s_lshl_b32 s74, s74, 10
s_lshl_b32 s14, s6, 7
s_add_u32 s74, s74, s14
s_lshl_b32 s75, s7, 13
s_add_u32 s75, s75, {BT}
v_lshrrev_b32 v223, 2, v2
v_lshl_add_u32 v223, v3, 2, v223
v_bfe_u32 v229, v223, 1, 2
s_and_b32 s13, s7, 2
v_xor_b32 v229, s13, v229
v_lshlrev_b32 v223, 7, v223
v_lshl_add_u32 v223, v229, 5, v223
v_and_b32 v8, 3, v2
v_lshl_add_u32 v223, v8, 3, v223
s_lshl_b32 s13, s12, 15
s_add_u32 s13, s13, {BT}
v_add_u32 v223, s13, v223
v_xor_b32 v229, 32, v223
v_add_u32 v230, 12, v5
v_add_u32 v230, s48, v230""")
        self.sig_prep(0, 70)
        self.sig_prep(1, 71)
        self.sig_prep(2, 72)
        nt2 = self.opt("nt_block", nt)

        def blk_dma():
            for k in range(8):
                e(f"""s_mov_b32 m0, s75
s_add_u32 s75, s75, 1024
buffer_load_dwordx4 v222, s[44:47], s74 offen {nt2} lds
s_add_u32 s74, s74, 8192""")

        def tr_reads():
            for p in range(8):
                for ctl in range(2):
                    for hh in range(2):
                        r = 104 + (p * 2 + ctl) * 4 + 2 * hh
                        e(f"ds_read_b64_tr_b16 v[{r}:{r+1}], v{223 if ctl == 0 else 229} offset:{4096*p + 2048*hh}")
                if p % 3 == 2:
                    e("s_waitcnt lgkmcnt(3)")
        self.tr_reads = tr_reads
        early = 1
        self.get_nonce_lds(240)
        e("v_mov_b32 v220, s65\ns_mov_b32 s73x, 0".replace("s73x", "s47x").replace("s47x", "s3"))
        def rq():
            lrq = self.newlabel("kv_rq")
            e(f"""s_cmp_lg_u32 s7, 0
s_cbranch_scc1 {lrq}
s_mov_b32 exec_hi, 0
buffer_store_dwordx4 v[232:235], v5, s[40:43], s73 offen sc1
s_mov_b64 exec, -1""")
            self.label(lrq)
        def sweep():
            e("s_mov_b32 s10, s48\ns_mov_b32 s11, s49")
            for k in range(6):
                if k == 5:
                    l5 = self.newlabel("kv_sw5")
                    e(f"s_cmp_ge_u32 s7, 4\ns_cbranch_scc1 {l5}")
                e(f"""s_mov_b32 m0, s10
s_add_u32 s10, s10, 8192
buffer_load_dwordx4 v5, s[40:43], s11 offen sc1 lds
s_add_u32 s11, s11, 8192""")
                if k == 5:
                    self.label(l5)
        TH2 = self.opt("t_h2", 90)
        e("v_mov_b32 v232, v120\nv_mov_b32 v233, v121\nv_mov_b32 v234, v122\nv_mov_b32 v235, v123")
        if self.opt("sl_blk", 0):
            e(f"s_sleep {self.opt('sl_blk', 0)}")
        lb7 = self.newlabel("kv_b7")
        lb0 = self.newlabel("kv_b0")
        e(f"s_cmp_eq_u32 s7, 7\ns_cbranch_scc1 {lb7}")
        blk_dma()
        e(f"s_cmp_lg_u32 s7, 0\ns_cbranch_scc1 {lb0}\ns_add_u32 s74, s74, {384*1024}\ns_add_u32 s75, s75, {48*1024}")
        blk_dma()
        e(f"s_branch {lb7}")
        self.label(lb0)
        e("s_waitcnt vmcnt(8)")
        self.label(lb7)
        e("s_barrier")
        self.stamp(3)
        for u in range(8):
            e(f"ds_read_b128 v[{16+4*u}:{19+4*u}], v231 offset:{16*u}")
        for u in range(8):
            if u == 7:
                e("s_waitcnt lgkmcnt(8)")
            e(f"ds_read_b128 v[{60+4*u}:{63+4*u}], v231 offset:{16*1040 + 16*u}")
        e("s_load_dwordx2 s[28:29], s[38:39], s70 glc\nds_read_b32 v237, v227 offset:8\ns_waitcnt vmcnt(0) lgkmcnt(0)\ns_barrier")
        lns = self.newlabel("kv_nosw")
        e(f"""s_memrealtime s[0:1]
s_mov_b32 s61, 0
s_waitcnt lgkmcnt(0)
s_cmp_lg_u32 s28, s65
s_cbranch_scc1 {lns}
s_sub_u32 s0, s0, s29
s_cmp_lt_u32 s0, {TH2}
s_cbranch_scc1 {lns}
s_mov_b32 s61, 1""")
        self.stamp(11)
        sweep()
        self.label(lns)
        tr_reads()
        for a in range(2):
            for z in range(3):
                for i in range(3):
                    sidx = 3 * z + i
                    d = 16 + 44 * a + 4 * (8 + z) + i
                    if sidx < 8:
                        e(f"v_mov_b32 v{d}, v{16+44*a+4*sidx+3}")
                    else:
                        e(f"v_mov_b32 v{d}, 0")
                e(f"v_mov_b32 v{16+44*a+4*(8+z)+3}, 0")
        lsd = self.newlabel("kv_swd")
        lhv = self.newlabel("kv_have")
        e(f"s_cmp_eq_u32 s61, 1\ns_cbranch_scc1 {lsd}\ns_cmp_eq_u32 s28, s65\ns_cbranch_scc1 {lhv}")
        self.sig_wait(70, 240, 11, 0, restore=rq)
        self.label(lhv)
        self.until(TH2)
        self.stamp(11)
        sweep()
        self.label(lsd)
        e("s_waitcnt lgkmcnt(0)")
        if self.opt("valfirst", 0):
            e("v_readfirstlane_b32 s66, v237\ns_mov_b32 s60, 0\ns_mov_b32 s61, 0x1f")
            l45 = self.newlabel("kv_m5")
            e(f"s_cmp_ge_u32 s7, 4\ns_cbranch_scc1 {l45}\ns_mov_b32 s61, 0x3f")
            self.label(l45)
            lchk = self.newlabel("kv_chk")
            lok = self.newlabel("kv_swok")
            self.label(lchk)
            e("s_waitcnt vmcnt(0)")
            for k in range(6):
                e(f"ds_read_b32 v{240+k}, v230 offset:{8192*k}")
            e("s_waitcnt lgkmcnt(0)")
            for k in range(6):
                e(f"v_cmp_ne_u32 s[{10+2*(k%3)}:{11+2*(k%3)}], s67, v{240+k}")
                if k % 3 == 2:
                    for kk in range(k - 2, k + 1):
                        e(f"""s_cmp_eq_u64 s[{10+2*(kk%3)}:{11+2*(kk%3)}], 0
s_cselect_b32 s62, {(~(1 << kk)) & 0x3f:#x}, 0x3f
s_and_b32 s61, s61, s62""")
            e(f"s_cbranch_scc0 {lok}")
            for k in range(6):
                sk = self.newlabel("swk")
                e(f"""s_bitcmp1_b32 s61, {k}
s_cbranch_scc0 {sk}
s_add_u32 s10, s48, {8192*k}
s_mov_b32 m0, s10
s_add_u32 s11, s49, {8192*k}
buffer_load_dwordx4 v5, s[40:43], s11 offen sc1 lds""")
                self.label(sk)
            lnr = self.newlabel("kv_nrq")
            e(f"s_add_u32 s60, s60, 1\ns_cmp_lg_u32 s60, {RESTORE_IT}\ns_cbranch_scc1 {lnr}")
            rq()
            self.label(lnr)
            e(f"s_cmp_lt_u32 s60, {SPIN_LIMIT}\ns_cbranch_scc1 {lchk}\ns_waitcnt vmcnt(0)")
            self.label(lok)
            for k in range(5):
                e(f"ds_write_b32 v230, v11 offset:{8192*k}")
            l5z = self.newlabel("kv_z5")
            e(f"s_cmp_ge_u32 s7, 4\ns_cbranch_scc1 {l5z}\nds_write_b32 v230, v11 offset:{8192*5}")
            self.label(l5z)
            rq()
            e("s_waitcnt lgkmcnt(0)\ns_barrier")
            self.stamp(4)
            for u in range(11):
                e(f"ds_read_b128 v[{168+4*u}:{171+4*u}], v6 offset:{QL + 32*u}")
            for u in range(11):
                e(f"s_waitcnt lgkmcnt({10 - u})")
                r = 168 + 4 * u
                for a in range(2):
                    c = "0" if u == 0 else f"v[{240+4*a}:{243+4*a}]"
                    e(f"v_mfma_f32_16x16x32_bf16 v[{240+4*a}:{243+4*a}], v[{16+44*a+4*u}:{19+44*a+4*u}], v[{r}:{r+3}], {c}")
            lnx = self.newlabel("kv_nox")
            e(f"""s_cmp_lt_u32 s7, 4
s_cbranch_scc1 {lnx}
s_nop 5
ds_write_b128 v9, v[240:243] offset:{XCH}
ds_write_b128 v9, v[244:247] offset:{XCH + 1024}
s_waitcnt lgkmcnt(0)""")
            self.label(lnx)
            e(f"""s_barrier
ds_read_b128 v[168:171], v9 offset:{XCH}
ds_read_b128 v[172:175], v9 offset:{XCH + 1024}""")

        else:
            e("v_readfirstlane_b32 s66, v237\ns_mov_b32 s60, 0\ns_mov_b32 s3, 0")
            lsw = self.newlabel("kv_sweep")
            lfirst = self.newlabel("kv_first")
            e(f"s_branch {lfirst}")
            self.label(lsw)
            sweep()
            self.label(lfirst)
            e("s_waitcnt vmcnt(0)\ns_barrier")
            for u in range(11):
                e(f"ds_read_b128 v[{168+4*u}:{171+4*u}], v6 offset:{QL + 32*u}")
            self.stamp(4)

            def chk(u):
                r = 168 + 4 * u + 3
                e(f"s_waitcnt lgkmcnt({10 - u})")
                if u == 0:
                    e(f"v_xor_b32 v224, s67, v{r}")
                else:
                    e(f"v_bitop3_b32 v224, v224, v{r}, s67 bitop3:0xf6")
                e(f"v_mov_b32 v{r}, 0")
            chk(0)
            for u in range(11):
                if u + 1 < 11:
                    chk(u + 1)
                else:
                    e("v_cmp_ne_u32 vcc, 0, v224\nv_add_u32 v225, s3, v227")
                r = 168 + 4 * u
                for a in range(2):
                    c = "0" if u == 0 else f"v[{240+4*a}:{243+4*a}]"
                    e(f"v_mfma_f32_16x16x32_bf16 v[{240+4*a}:{243+4*a}], v[{16+44*a+4*u}:{19+44*a+4*u}], v[{r}:{r+3}], {c}")
            lok = self.newlabel("kv_ok")
            e(f"""s_cmp_eq_u64 vcc, 0
s_cbranch_scc1 {lok}
ds_write_b32 v225, v221 offset:{FLG}""")
            self.label(lok)
            lnx = self.newlabel("kv_nox")
            e(f"""s_cmp_lt_u32 s7, 4
s_cbranch_scc1 {lnx}
s_nop 3
ds_write_b128 v9, v[240:243] offset:{XCH}
ds_write_b128 v9, v[244:247] offset:{XCH + 1024}""")
            self.label(lnx)
            e(f"""s_waitcnt lgkmcnt(0)
s_barrier
ds_read_b32 v224, v225 offset:{FLG}
ds_read_b128 v[168:171], v9 offset:{XCH}
ds_read_b128 v[172:175], v9 offset:{XCH + 1024}""")
            lgo = self.newlabel("kv_go")
            e(f"""s_waitcnt lgkmcnt(2)
v_readfirstlane_b32 s10, v224
s_nop 0
s_cmp_eq_u32 s10, 0
s_cbranch_scc1 {lgo}
s_waitcnt lgkmcnt(0)
s_xor_b32 s3, s3, 4
v_add_u32 v225, s3, v227
ds_write_b32 v225, v11 offset:{FLG}
s_add_u32 s60, s60, 1
s_waitcnt lgkmcnt(0)
s_barrier""")
            rq()
            e(f"""s_cmp_lt_u32 s60, {SPIN_LIMIT}
s_cbranch_scc1 {lsw}""")
            self.label(lgo)
        self.stamp(5)
        lnsm = self.newlabel("kv_nosm")
        e(f"s_cmp_ge_u32 s7, 4\ns_cbranch_scc1 {lnsm}\ns_waitcnt lgkmcnt(0)")
        for k in range(4):
            e(f"v_pk_add_f32 v[{168+2*k}:{169+2*k}], v[{168+2*k}:{169+2*k}], v[{240+2*k}:{241+2*k}]")
        for k in range(4):
            e(f"v_cvt_pk_bf16_f32 v{176+k}, v{168+2*k}, v{169+2*k}")
        for k in range(4):
            e(f"v_lshlrev_b32 v{168+2*k}, 16, v{176+k}\nv_and_b32 v{169+2*k}, 0xffff0000, v{176+k}")
        for k in range(4):
            e(f"v_pk_mul_f32 v[{168+2*k}:{169+2*k}], v[{168+2*k}:{169+2*k}], s[54:55] op_sel_hi:[1,0]")
        for k in range(4):
            e(f"v_cvt_pk_bf16_f32 v{176+k}, v{168+2*k}, v{169+2*k}")
        for k in range(4):
            e(f"v_lshlrev_b32 v{168+2*k}, 16, v{176+k}\nv_and_b32 v{169+2*k}, 0xffff0000, v{176+k}")
        e("""v_max3_f32 v248, v168, v169, v170
v_max3_f32 v180, v171, v172, v173
v_max3_f32 v248, v248, v174, v175
v_max_f32 v248, v248, v180
v_mov_b32 v180, v248
s_nop 1
v_permlane16_swap_b32 v248, v180
s_nop 0
v_max_f32 v248, v248, v180
v_mov_b32 v180, v248
s_nop 1
v_permlane32_swap_b32 v248, v180
s_nop 0
v_max_f32 v248, v248, v180
v_mul_f32 v180, s55, v248""")
        for k in range(4):
            e(f"v_pk_fma_f32 v[{168+2*k}:{169+2*k}], v[{168+2*k}:{169+2*k}], s[54:55], v[180:181] op_sel:[0,1,0] op_sel_hi:[1,1,0] neg_lo:[0,0,1] neg_hi:[0,0,1]")
        for k in range(8):
            e(f"v_exp_f32 v{168+k}, v{168+k}")
        e("s_nop 0")
        for k in range(4):
            e(f"v_cvt_pk_bf16_f32 v{252+k}, v{168+2*k}, v{169+2*k}")
        e("""buffer_store_dwordx4 v[252:255], v10, s[40:43], s50 offen
v_pk_add_f32 v[168:169], v[168:169], v[170:171]
v_pk_add_f32 v[172:173], v[172:173], v[174:175]
v_pk_add_f32 v[168:169], v[168:169], v[172:173]
v_add_f32 v249, v168, v169
v_mov_b32 v180, v249
s_nop 1
v_permlane16_swap_b32 v249, v180
s_nop 0
v_add_f32 v249, v249, v180
v_mov_b32 v180, v249
s_nop 1
v_permlane32_swap_b32 v249, v180
s_nop 0
v_add_f32 v249, v249, v180
s_mov_b64 exec, 0xffff
buffer_store_dwordx2 v[248:249], v212, s[40:43], s50 offen offset:1024
s_mov_b64 exec, -1""")
        self.stamp(6)
        if not early:
            lsj = self.newlabel("kv_sj")
            e(f"s_waitcnt vmcnt(2)\ns_branch {lsj}")
            self.label(lnsm)
            e("s_waitcnt vmcnt(0)")
            self.label(lsj)
            e("s_barrier")
            tr_reads()
        else:
            self.label(lnsm)

        def restore_p():
            l = self.newlabel("rp")
            e(f"""s_cmp_ge_u32 s7, 4
s_cbranch_scc1 {l}
buffer_store_dwordx4 v[252:255], v10, s[40:43], s50 offen sc1
s_mov_b64 exec, 0xffff
buffer_store_dwordx2 v[248:249], v212, s[40:43], s50 offen offset:1024 sc1
s_mov_b64 exec, -1""")
            self.label(l)
        lsame = self.newlabel("kv_same")
        e(f"s_cmp_eq_u32 s66, 0\ns_cbranch_scc1 {lsame}")
        restore_p()
        self.label(lsame)
        self.poll([(f"buffer_load_dwordx4 v[{168+4*q}:{171+4*q}], v5, s[40:43], s51 offen offset:{PMSG*q} sc1", 168 + 4 * q, 4) for q in range(4)] +
                  [("buffer_load_dwordx2 v[184:185], v213, s[40:43], s51 offen offset:1024 sc1", 184, 2)], 'sent', 224)
        for q in range(4):
            e(f"ds_write_b128 v7, v[{168+4*q}:{171+4*q}] offset:{PL + 1024*q}")
        e(f"""ds_write_b64 v214, v[184:185] offset:{SL}
s_waitcnt lgkmcnt(0)
s_barrier""")
        self.stamp(7)
        l0e = self.newlabel("kv_sig")
        e(f"s_cmp_lg_u32 s7, 7\ns_cbranch_scc1 {l0e}")
        self.sig_send(72, 220, 11)
        self.label(l0e)
        for k in range(4):
            e(f"ds_read_b128 v[{48+4*k}:{51+4*k}], v217 offset:{SL + 512*k}")
        for k in range(4):
            e(f"ds_read_b128 v[{84+4*k}:{87+4*k}], v228 offset:{SL + 512*k}")
        for p in range(7):
            e(f"ds_read_b128 v[{16+4*p}:{19+4*p}], v215 offset:{PL + 2048*p}")
        stats = ["v_max3_f32 v238, v48, v50, v52", "v_max3_f32 v239, v54, v56, v58", "v_max3_f32 v238, v238, v60, v62",
                 "v_max3_f32 v239, v239, v84, v86", "v_max3_f32 v238, v238, v88, v90", "v_max3_f32 v239, v239, v92, v94",
                 "v_max3_f32 v238, v238, v96, v98", "v_max_f32 v238, v238, v239", "v_mul_f32 v239, s55, v238"]
        for p in range(8):
            stats.append(f"v_fma_f32 v{48+2*p}, v{48+2*p}, s55, -v239")
        for p in range(8):
            stats.append(f"v_exp_f32 v{48+2*p}, v{48+2*p}")
        stats.append("v_and_or_b32 v240, v238, s64, v12")
        stats.append("v_mul_f32 v239, v48, v49")
        for p in range(1, 8):
            stats.append(f"v_fmac_f32 v239, v{48+2*p}, v{49+2*p}")
        si = 0
        for p in range(8):
            e(f"s_waitcnt lgkmcnt({6 if p == 0 else 7 - p})")
            for ctl in range(2):
                ar = 104 + (p * 2 + ctl) * 4
                ac = self.acc(p * 2 + ctl)
                e(f"v_mfma_f32_16x16x32_bf16 v[{ac}:{ac+3}], v[{ar}:{ar+3}], v[{16+4*p}:{19+4*p}], 0")
                if p == 0 and ctl == 0:
                    e(f"ds_read_b128 v[44:47], v215 offset:{PL + 2048*7}")
                for _ in range(2):
                    if si < len(stats):
                        e(stats[si]); si += 1
        while si < len(stats):
            e(stats[si]); si += 1
        for r in range(0, 8, 2):
            e(f"v_pk_mul_f32 v[{168+r}:{169+r}], v[{168+r}:{169+r}], v[48:49] op_sel_hi:[1,0]")
        for p in range(1, 8):
            for ctl in range(2):
                for r in (0, 2):
                    a = self.acc(2 * p + ctl) + r
                    o = 168 + 4 * ctl + r
                    e(f"v_pk_fma_f32 v[{o}:{o+1}], v[{a}:{a+1}], v[{48+2*p}:{49+2*p}], v[{o}:{o+1}] op_sel_hi:[1,0,1]")
        lk1 = self.newlabel("kv_k1")
        lkj = self.newlabel("kv_kj")
        e(f"""v_xor_b32 v225, 0x1000, v226
v_lshrrev_b32 v224, 2, v226
s_cmp_ge_u32 s7, 4
s_cbranch_scc1 {lk1}
ds_write_b128 v226, v[172:175] offset:{XCH}
s_branch {lkj}""")
        self.label(lk1)
        e(f"""ds_write_b128 v226, v[168:171] offset:{XCH}
ds_write_b32 v224, v239 offset:{XCH + 8192}
v_mov_b32 v168, v172
v_mov_b32 v169, v173
v_mov_b32 v170, v174
v_mov_b32 v171, v175""")
        self.label(lkj)
        e(f"""s_waitcnt lgkmcnt(0)
s_barrier
ds_read_b128 v[176:179], v225 offset:{XCH}
ds_read_b32 v180, v224 offset:{XCH + 8192 + 1024}
s_waitcnt lgkmcnt(1)
v_pk_add_f32 v[168:169], v[168:169], v[176:177]
v_pk_add_f32 v[170:171], v[170:171], v[178:179]""")
        self.tag4(168)
        e("buffer_store_dwordx4 v[168:171], v218, s[40:43], s52 offen sc1")
        lno = self.newlabel("kv_noos")
        e(f"""s_cmp_lg_u32 s6, 0
s_cbranch_scc1 {lno}
s_cmp_ge_u32 s7, 2
s_cbranch_scc1 {lno}
s_waitcnt lgkmcnt(0)
v_add_f32 v239, v239, v180
v_and_or_b32 v241, v239, s64, v13
v_mov_b32 v242, v14
v_mov_b32 v243, v15
s_mov_b64 exec, 0xffff
buffer_store_dwordx4 v[240:243], v219, s[40:43], s53 offen sc1
s_mov_b64 exec, -1""")
        self.label(lno)
        e("s_waitcnt lgkmcnt(0)")
        self.stamp(8)
        e("s_barrier")
        self.dbgtime(6, 128)
        self.dbgtime(7, 201)
        if not self.opt("sig2_early", 1):
            l0 = self.newlabel("kv_sig")
            e(f"s_cmp_lg_u32 s7, 0\ns_cbranch_scc1 {l0}")
            self.sig_send(72, 220, 11)
            self.label(l0)
        lnf = self.newlabel("kv_nofg")
        llo = self.newlabel("kv_fglo")
        e(f"""v_mov_b32 v236, v220
s_bfe_u32 s10, s9, 0x20002
s_lshl_b32 s10, s10, 3
s_add_u32 s10, s10, s8
s_cmp_ge_u32 s10, 27
s_cbranch_scc1 {lnf}
s_lshl_b32 s10, s10, 2
s_and_b32 s11, s9, 3
s_add_u32 s10, s10, s11""")
        if self.opt("sl_fg", 40):
            e(f"s_sleep {self.opt('sl_fg', 40)}")
        e(f"s_cmp_lt_u32 s7, 4\ns_cbranch_scc1 {llo}")
        self.srd(44, 30, 2211840)
        e(f"""v_lshrrev_b32 v6, 1, v1
v_mul_u32_u24 v6, 3456, v6
v_and_b32 v7, 1, v1
v_lshl_add_u32 v6, v7, 4, v6
s_sub_u32 s11, s7, 4
s_mul_i32 s11, s11, 160
s_mul_i32 s12, s11, 3456
s_lshl_b32 s13, s10, 5
s_add_u32 s12, s12, s13
s_lshl_b32 s13, s11, 5
s_add_u32 s13, s13, {W1L}""")
        for k in range(5):
            e(f"""s_mov_b32 m0, s13
s_add_u32 s13, s13, 1024
buffer_load_dwordx4 v6, s[44:47], s12 offen {nt} lds
s_add_u32 s12, s12, {32*3456}""")
        e("s_waitcnt vmcnt(0)")
        if self.opt("dbg2", 0): self.stamp(2)
        e("s_barrier\ns_branch L_fin")
        self.label(lnf)
        if self.opt("clean_p", 0):
            restore_p()
        e("s_branch L_fin")
        self.label(llo)
        self.srd(44, 16, 1280)
        e(f"""v_lshlrev_b32 v8, 3, v1
s_mul_i32 s11, s7, 320
buffer_load_dwordx2 v[48:49], v8, s[44:47], s11 offen
v_mul_u32_u24 v7, 5120, v3
v_lshl_add_u32 v7, v2, 4, v7
s_mul_i32 s12, s10, 20480
s_lshl_b32 s13, s7, 8
s_add_u32 s12, s12, s13
v_add_u32 v7, s12, v7""")
        for t in range(4):
            e(f"global_load_dwordx4 v[{16+4*t}:{19+4*t}], v7, s[32:33] offset:{1280*t} {nt}")
        lb4 = self.newlabel("kv_b4")
        e(f"s_cmp_lg_u32 s7, 0\ns_cbranch_scc1 {lb4}\nv_add_u32 v7, 1024, v7")
        for t in range(4):
            e(f"global_load_dwordx4 v[{32+4*t}:{35+4*t}], v7, s[32:33] offset:{1280*t} {nt}")
        self.label(lb4)
        if self.opt("clean_p", 0):
            restore_p()
        self.masks(52, 2, 60, False)
        e(f"""v_lshrrev_b32 v8, 2, v2
v_lshl_add_u32 v8, v3, 3, v8
v_lshlrev_b32 v8, 5, v8
v_and_b32 v9, 3, v2
v_lshl_add_u32 v8, v9, 3, v8
s_waitcnt vmcnt(0)""")
        if self.opt("dbg2", 0): self.stamp(2)
        e("s_barrier")
        if self.opt("dbg2", 0): self.stamp(3)
        for t in range(20):
            for hh in range(2):
                e(f"ds_read_b64_tr_b16 v[{80+4*t+2*hh}:{81+4*t+2*hh}], v8 offset:{W1L + 1024*t + 128*hh}")
            if t % 4 == 3:
                e("s_waitcnt lgkmcnt(0)")
        e(f"""s_mul_i32 s12, s7, 640
s_add_u32 s12, s12, {XB}
s_add_u32 s13, s12, 5120
s_add_u32 s14, s12, 10240
s_add_u32 s15, s12, 15360
v_lshlrev_b32 v56, 16, v48
v_and_b32 v57, 0xffff0000, v48
v_lshlrev_b32 v58, 16, v49
v_and_b32 v59, 0xffff0000, v49
v_lshlrev_b32 v8, 3, v1
s_mul_i32 s11, s7, 320
v_add_u32 v9, s11, v8
s_mul_i32 s11, s7, 1280
v_add_u32 v10, s11, v8
v_add_u32 v228, s11, v4
v_lshl_add_u32 v229, v3, 4, s11
v_lshrrev_b32 v230, 1, v2
v_mul_u32_u24 v230, 7168, v230
v_and_b32 v231, 1, v2
v_lshl_add_u32 v230, v231, 5, v230
v_lshl_add_u32 v230, v3, 4, v230
s_mul_i32 s52, s7, {8*7168}
s_lshl_b32 s53, s10, 6
s_add_u32 s52, s52, s53
s_add_u32 s52, s52, {FB}
s_add_u32 s53, s52, {32*7168}""")
        e("v_lshlrev_b32 v231, 4, v3")
        for r in range(4):
            e(f"v_mov_b32 v{244+r}, 0x3f803f80")
        e("s_nop 1")
        for t in range(20):
            c = "0" if t == 0 else "v[76:79]"
            e(f"v_mfma_f32_16x16x32_bf16 v[76:79], v[{80+4*t}:{83+4*t}], v[244:247], {c}")
        self.sig_prep(3, 70)
        self.sig_prep(4, 71)
        if not self.opt('dbg1', 0): self.stamp(9)
        self.sig_wait(70, 60, 11, self.opt("t_h5", 42))
        e("s_mov_b32 exec_hi, 0xff")
        self.poll_sum([(f"buffer_load_dwordx4 v[{160+4*x}:{163+4*x}], v5, s[40:43], s{12 + x//2} offen offset:{2560*(x%2)} sc1", 160 + 4 * x, 4) for x in range(8)], 60, 192)
        e(f"""v_cvt_pk_bf16_f32 v60, v192, v193
v_cvt_pk_bf16_f32 v61, v194, v195
v_lshlrev_b32 v160, 16, v60
v_and_b32 v161, 0xffff0000, v60
v_lshlrev_b32 v162, 16, v61
v_and_b32 v163, 0xffff0000, v61
v_pk_add_f32 v[160:161], v[160:161], v[56:57]
v_pk_add_f32 v[162:163], v[162:163], v[58:59]
v_cvt_pk_bf16_f32 v60, v160, v161
v_cvt_pk_bf16_f32 v61, v162, v163
ds_write_b64 v9, v[60:61] offset:{HF}
s_mov_b64 exec, -1
s_waitcnt lgkmcnt(0)
s_barrier
ds_read_b64 v[70:71], v8 offset:{HF}
ds_read_b64 v[72:73], v8 offset:{HF + 512}
ds_read_b32 v74, v4 offset:{HF + 1024}""")
        if not self.opt('dbg1', 0): self.stamp(10)
        fbr = lambda t: 160 + 4 * (t % 12)
        for t in range(12):
            e(f"ds_read_b128 v[{fbr(t)}:{fbr(t)+3}], v231 offset:{HF + 64*t}")
        vx, vt, sA, sB = 60, 70, 62, 63
        inv = 0x3acccccd
        ops = []
        for k in range(5):
            ops += [f"v_lshlrev_b32 v{60+2*k}, 16, v{70+k}", f"v_and_b32 v{61+2*k}, 0xffff0000, v{70+k}"]
        ops += [f"v_readfirstlane_b32 s{sA}, v{vx}", "s_nop 1", f"v_mov_b32 v{vt+4}, s{sA}"]
        for k in range(0, 10, 2):
            ops.append(f"v_pk_add_f32 v[250:251], v[{vx+k}:{vx+k+1}], v[{vt+4}:{vt+5}] op_sel_hi:[1,0] neg_lo:[0,1] neg_hi:[0,1]")
            if k == 0:
                ops += [f"v_pk_mul_f32 v[{vt+2}:{vt+3}], v[250:251], v[250:251]", f"v_mov_b32 v{vt}, v250", f"v_mov_b32 v{vt+1}, v251"]
            else:
                ops += [f"v_pk_fma_f32 v[{vt+2}:{vt+3}], v[250:251], v[250:251], v[{vt+2}:{vt+3}]", f"v_pk_add_f32 v[{vt}:{vt+1}], v[{vt}:{vt+1}], v[250:251]"]
        ops += [f"v_add_f32 v{vt+2}, v{vt+2}, v{vt+3}", f"v_add_f32 v{vt}, v{vt}, v{vt+1}", f"v_mov_b32 v{vt+5}, {inv:#x}"]
        steps = [f"row_shr:{sh} row_mask:0xf bank_mask:0xf bound_ctrl:0" for sh in (1, 2, 4, 8)] + ["row_bcast:15 row_mask:0xa bank_mask:0xf", "row_bcast:31 row_mask:0xc bank_mask:0xf"]
        for st in steps:
            ops += [f"v_add_f32_dpp v{vt+2}, v{vt+2}, v{vt+2} {st}", f"v_add_f32_dpp v{vt}, v{vt}, v{vt} {st}", "s_nop 0"]
        ops += f"""v_readlane_b32 s{sB}, v{vt+2}, 63
v_readlane_b32 s{sA}, v{vt}, 63
s_nop 0
v_mul_f32 v{vt+2}, s{sB}, v{vt+5}
v_mul_f32 v{vt}, s{sA}, v{vt+5}
v_fma_f32 v{vt+2}, -v{vt}, v{vt}, v{vt+2}
v_add_f32 v{vt+4}, v{vt+4}, v{vt}
v_max_f32 v{vt+2}, 0, v{vt+2}
v_cvt_pk_bf16_f32 v{vt+3}, v{vt+4}, v{vt+2}
v_lshlrev_b32 v{vt+4}, 16, v{vt+3}
v_and_b32 v{vt+2}, 0xffff0000, v{vt+3}
v_add_f32 v{vt+2}, 0x3727c5ac, v{vt+2}
v_cvt_pk_bf16_f32 v{vt+2}, v{vt+2}, v{vt+2}
v_and_b32 v{vt+2}, 0xffff0000, v{vt+2}
v_sqrt_f32 v{vt+2}, v{vt+2}
s_nop 0
v_cvt_pk_bf16_f32 v{vt+2}, v{vt+2}, v{vt+2}
v_and_b32 v{vt+2}, 0xffff0000, v{vt+2}
v_rcp_f32 v{vt+2}, v{vt+2}""".split("\n")
        per = (len(ops) + 19) // 20
        for t in range(20):
            issued = min(t + 12, 20)
            e(f"s_waitcnt lgkmcnt({issued - t - 1})")
            c = "0" if t == 0 else "v[56:59]"
            e(f"v_mfma_f32_16x16x32_bf16 v[56:59], v[{80+4*t}:{83+4*t}], v[{fbr(t)}:{fbr(t)+3}], {c}")
            for _ in range(per):
                if ops:
                    e(ops.pop(0))
            if t + 12 < 20:
                e(f"ds_read_b128 v[{fbr(t+12)}:{fbr(t+12)+3}], v231 offset:{HF + 64*(t+12)}")
        while ops:
            e(ops.pop(0))
        ls4 = self.newlabel("kv_s4")
        e(f"s_cmp_lg_u32 s7, 1\ns_cbranch_scc1 {ls4}")
        self.sig_send(71, 236, 11)
        self.label(ls4)
        e("s_nop 5")
        for r in range(4):
            e(f"v_fma_f32 v{56+r}, -v{vt+4}, v{76+r}, v{56+r}")
        for r in range(4):
            e(f"v_mul_f32 v{56+r}, v{56+r}, v{vt+2}")
        for r in range(4):
            e(f"v_max_f32 v{56+r}, 0, v{56+r}")
        for t in range(4):
            e(f"v_cvt_pk_bf16_f32 v{240+t}, v{56+t}, v{56+t}")
        for t in range(4):
            for r in range(4):
                e(f"v_and_b32 v{80+4*t+r}, v{240+t}, v{52+r}")
        for t in range(4):
            c = "0" if t == 0 else "v[64:67]"
            e(f"v_mfma_f32_16x16x32_bf16 v[64:67], v[{80+4*t}:{83+4*t}], v[{16+4*t}:{19+4*t}], {c}")
        lb5 = self.newlabel("kv_b5")
        e(f"s_cmp_lg_u32 s7, 0\ns_cbranch_scc1 {lb5}")
        for t in range(4):
            c = "0" if t == 0 else "v[68:71]"
            e(f"v_mfma_f32_16x16x32_bf16 v[68:71], v[{80+4*t}:{83+4*t}], v[{32+4*t}:{35+4*t}], {c}")
        e("s_nop 3")
        self.tag4(64)
        e("""s_mov_b32 exec_hi, 0
buffer_store_dwordx4 v[64:67], v230, s[40:43], s52 offen sc1""")
        self.tag4(68)
        e("buffer_store_dwordx4 v[68:71], v230, s[40:43], s53 offen sc1")
        e("s_mov_b64 exec, -1")
        if not self.opt('dbg1', 0): self.stamp(1)
        e("s_branch L_fin")
        self.label(lb5)
        e("s_nop 5")
        self.tag4(64)
        e("""s_mov_b32 exec_hi, 0
buffer_store_dwordx4 v[64:67], v230, s[40:43], s52 offen sc1
s_mov_b64 exec, -1""")

    def fb(self, t):
        if t < 14:
            return 160 + 4 * t
        return [60, 64, 68, 72, 76, 244][t - 14]


if __name__ == "__main__":
    import argparse
    ap = argparse.ArgumentParser()
    ap.add_argument("out")
    ap.add_argument("--stamps", action="store_true")
    ap.add_argument("--opt", action="append", default=[])
    a = ap.parse_args()
    opts = {}
    for o in a.opt:
        k, v = o.split("=")
        opts[k] = int(v) if v.lstrip("-").isdigit() else v
    g = Gen(stamps=a.stamps, opts=opts)
    open(a.out, "w").write(g.build())
```
